```python
import torch

def _softmax(x, axis=-1):
    return torch.softmax(x, dim=axis)
def _gelu(x):
    return torch.nn.functional.gelu(x, approximate="tanh")
def _silu(x):
    return torch.nn.functional.silu(x)
def _sigmoid(x):
    return torch.sigmoid(x)
def _layernorm(x, axis=-1, eps=1e-5):
    m = x.mean(dim=axis, keepdim=True)
    v = x.var(dim=axis, keepdim=True, unbiased=False)
    return (x - m) / torch.sqrt(v + eps)
def _scatter_add(tgt, idx, src, axis=0):
    return tgt.clone().index_add_(axis, idx, src)
def _segment_sum(src, seg, n):
    out = torch.zeros((n,) + src.shape[1:], dtype=src.dtype)
    return out.index_add_(0, seg, src)
def _pad(x, pw):
    flat = tuple(v for pair in reversed(pw) for v in pair)
    return torch.nn.functional.pad(x, flat)

kernel_name = 'sequential_preLN__linear_kernel_hedgehog__glu_gated_reglu__prompt'

def setup_inputs():

    _w = (lambda a: (lambda t: t.to(torch.bfloat16) if t.is_floating_point() else t)(torch.as_tensor(a)))
    def _A_setup():
        B, S, D, H = 1, 2048, 576, 32
        Dh = D // H
        return {
            "x": _w((lambda *s: torch.randn(*s, dtype=torch.bfloat16) * 0.05)(B, S, D)),
            "wqkv": _w((lambda *s: torch.randn(*s, dtype=torch.bfloat16) * 0.2)(D, 3 * D)),
            "w_phi": _w((lambda *s: torch.randn(*s, dtype=torch.bfloat16) * 0.2)(H, Dh, Dh) * (Dh ** -0.5)),
            "wo": _w((lambda *s: torch.randn(*s, dtype=torch.bfloat16) * 0.05)(D, D)),
        }
    _A_in = _A_setup()

    def _B_setup():
        B, S, D, F = 1, 2048, 576, 4608
        return {
            "x": _w((lambda *s: torch.randn(*s, dtype=torch.bfloat16) * 0.05)(B, S, D)),
            "W_gate": _w((lambda *s: torch.randn(*s, dtype=torch.bfloat16) * 0.4)(D, F) * (2.0 / D) ** 0.5),
            "W_up": _w((lambda *s: torch.randn(*s, dtype=torch.bfloat16) * 0.4)(D, F) * (2.0 / D) ** 0.5),
            "W_down": _w((lambda *s: torch.randn(*s, dtype=torch.bfloat16) * 0.4)(F, D) * (1.0 / F) ** 0.5),
        }
    _B_in = _B_setup()

    return {
        "A_x": _A_in["x"],
        "A_wqkv": _A_in["wqkv"],
        "A_w_phi": _A_in["w_phi"],
        "A_wo": _A_in["wo"],
        "B_x": _B_in["x"],
        "B_W_gate": _B_in["W_gate"],
        "B_W_up": _B_in["W_up"],
        "B_W_down": _B_in["W_down"],
    }

def reference(A_x, A_wqkv, A_w_phi, A_wo, B_x, B_W_gate, B_W_up, B_W_down):
    def _A_ref(x, wqkv, w_phi, wo):
        B, S, D = x.shape
        H = 32; Dh = D // H
        qkv = (lambda x, *d: x.permute(*d))((x @ wqkv).reshape(B, S, 3, H, Dh), 2, 0, 3, 1, 4)
        q, k, v = qkv[0], qkv[1], qkv[2]
        pq = torch.einsum("bhsd,hdf->bhsf", q, w_phi)
        pk = torch.einsum("bhsd,hdf->bhsf", k, w_phi)
        phi_q = torch.concatenate([_softmax(pq, axis=-1), _softmax(-pq, axis=-1)], axis=-1)
        phi_k = torch.concatenate([_softmax(pk, axis=-1), _softmax(-pk, axis=-1)], axis=-1)
        kv = torch.einsum("bhsf,bhsd->bhfd", phi_k, v)
        z  = torch.einsum("bhsf->bhf", phi_k)
        num = torch.einsum("bhqf,bhfd->bhqd", phi_q, kv)
        den = torch.einsum("bhqf,bhf->bhq", phi_q, z)[..., None] + 1e-6
        o = num / den
        return (lambda x, *d: x.permute(*d))(o, 0, 2, 1, 3).reshape(B, S, D) @ wo

    def _B_ref(x, W_gate, W_up, W_down):
        gate = torch.einsum("bsd,df->bsf", x, W_gate)
        up = torch.einsum("bsd,df->bsf", x, W_up)
        gate = gate * (lambda x, dt: x.to(dt))(gate > 0, gate.dtype)
        h = gate * up
        return torch.einsum("bsf,fd->bsd", h, W_down)

    x = A_x
    h = x + _A_ref(_layernorm(x, axis=-1), A_wqkv, A_w_phi, A_wo)
    h2 = h + _B_ref(_layernorm(h, axis=-1), B_W_gate, B_W_up, B_W_down)
    return h2
```

```python
from common import *
import ffn
from ffn import AG

ACFG = dict(map="4x8")
sRBK, sHP = 58, 59
sXB, sWB, sMT = 86, 87, 88
mA, mB, mC = 90, 92, 94
t0, t1, t2, t3 = 96, 97, 98, 99
RND = 53248
L_PHI, L_WBAR, L_MEAN = 159744, 161792, 162048
L_R, L_ZERO = 92160, 96256
vAC = 0
vSUM, vSSQ = 60, 68
vONE = 76
vWF = 80
vPH = 104
vXD, vXR, vWK, vWR, vWM = 128, 130, 132, 137, 138
vLANE, vA, vB = 139, 140, 142
vF = 144
vPP = 160
vPHI = 184
vT = 208
vFA, vFD = 232, 233
vL16 = 234
vWQ = 235
vX2 = 240
LOG2E = 0x3fb8aa3b
def acc(T, c): return vAC + 12 * T + 4 * c
def xf(k, m): return AG + 8 * k + 4 * m

def f_rb(P, dst, rb, tmp):
    if ACFG["map"] == "4x8":
        P("s_and_b32 %s, %s, 3\ns_lshl_b32 %s, %s, 13\ns_lshr_b32 %s, %s, 2\ns_lshl_b32 %s, %s, 8\ns_add_u32 %s, %s, %s" % (dst, rb, dst, dst, tmp, rb, tmp, tmp, dst, dst, tmp))
    else:
        P("s_and_b32 %s, %s, 1\ns_lshl_b32 %s, %s, 14\ns_lshr_b32 %s, %s, 1\ns_lshl_b32 %s, %s, 7\ns_add_u32 %s, %s, %s" % (dst, rb, dst, dst, tmp, rb, tmp, tmp, dst, dst, tmp))
def f_hp(P, dst, hp, tmp):
    if ACFG["map"] == "4x8":
        P("s_and_b32 %s, %s, 7\ns_lshl_b32 %s, %s, 10\ns_lshr_b32 %s, %s, 3\ns_lshl_b32 %s, %s, 7\ns_add_u32 %s, %s, %s" % (dst, hp, dst, dst, tmp, hp, tmp, tmp, dst, dst, tmp))
    else:
        P("s_lshl_b32 %s, %s, 10" % (dst, hp))
def vf_rb(P, dst, rb, tmp):
    if ACFG["map"] == "4x8":
        P("v_and_b32 %s, 3, %s\nv_lshlrev_b32 %s, 13, %s\nv_lshrrev_b32 %s, 2, %s\nv_lshl_add_u32 %s, %s, 8, %s" % (dst, rb, dst, dst, tmp, rb, dst, tmp, dst))
    else:
        P("v_and_b32 %s, 1, %s\nv_lshlrev_b32 %s, 14, %s\nv_lshrrev_b32 %s, 1, %s\nv_lshl_add_u32 %s, %s, 7, %s" % (dst, rb, dst, dst, tmp, rb, dst, tmp, dst))
def vf_hp(P, dst, hp, tmp):
    if ACFG["map"] == "4x8":
        P("v_and_b32 %s, 7, %s\nv_lshlrev_b32 %s, 10, %s\nv_lshrrev_b32 %s, 3, %s\nv_lshl_add_u32 %s, %s, 7, %s" % (dst, hp, dst, dst, tmp, hp, dst, tmp, dst))
    else:
        P("v_lshlrev_b32 %s, 10, %s" % (dst, hp))

def perm32(P, out, rho, tmp):
    P("v_bfe_u32 %s, %s, 2, 2\nv_lshlrev_b32 %s, 3, %s" % (out, rho, out, out))
    P("v_bfe_u32 %s, %s, 4, 1\nv_lshl_add_u32 %s, %s, 2, %s" % (tmp, rho, out, tmp, out))
    P("v_and_b32 %s, 3, %s\nv_add_u32 %s, %s, %s" % (tmp, rho, out, out, tmp))

def round_dma(P, rho, tok):
    base = (rho % 3) * RND
    out = []
    for cb in range(2 if rho < 4 else 1):
        out.append("s_lshl_b32 %s, %s, 3\ns_add_u32 m0, %s, %d" % (S(t0), S(sW1K), S(t0), base + cb * 4096))
        for rg in range(4):
            if rg % 2 == 0:
                out.append("s_add_u32 %s, %s, %d" % (S(t0), S(sXB), (2 * rho + cb) * 128 + (rg >> 1) * (18432 - 2048)))
            out.append("buffer_load_dwordx4 %s, %s, %s offen offset:%d lds" % (V(vXD + (rg & 1)), srd(sX), S(t0), 1024 * rg))
    out.append("s_mul_i32 %s, %s, 5120\ns_add_u32 m0, %s, %d\ns_add_u32 %s, %s, %d" % (S(t1), S(sWAVE), S(t1), base + 32768, S(t0), S(sWB), rho * 4 * 110592 + 1152))
    for q in range(5):
        if q == 4: out.append("s_add_u32 m0, %s, %d" % (S(t1), base + 32768 + 4096))
        out.append(P.mk("buffer_load_dwordx4 %s, %s, %s offen offset:%d lds" % (V(vWK + q), srd(sWQKV), S(t0), 1024 * (q % 4)), tok if q == 4 else None))
    return out

def softmax(P, m):
    p = [vPP + 12 * m + i for i in range(9)]
    mx, mn, a, b = vT, vT + 1, vT + 2, vT + 3
    e = [vT + 4 + i for i in range(18)]
    P("v_max3_f32 %s, %s, %s, %s\nv_min3_f32 %s, %s, %s, %s" % (V(mx), V(p[0]), V(p[1]), V(p[2]), V(mn), V(p[0]), V(p[1]), V(p[2])))
    for i in (3, 5, 7):
        P("v_max3_f32 %s, %s, %s, %s\nv_min3_f32 %s, %s, %s, %s" % (V(mx), V(mx), V(p[i]), V(p[i + 1]), V(mn), V(mn), V(p[i]), V(p[i + 1])))
    P("v_mov_b32 %s, %s\nv_mov_b32 %s, %s" % (V(a), V(mx), V(b), V(mn)))
    P("v_permlane16_swap_b32 %s, %s\nv_permlane16_swap_b32 %s, %s" % (V(mx), V(a), V(mn), V(b)))
    P("v_max_f32 %s, %s, %s\nv_min_f32 %s, %s, %s" % (V(mx), V(mx), V(a), V(mn), V(mn), V(b)))
    P("v_mul_f32 %s, %s, %s\nv_mul_f32 %s, %s, %s" % (V(mx), S(t3), V(mx), V(mn), S(t3), V(mn)))
    for i in range(9):
        P("v_fma_f32 %s, %s, %s, -%s\nv_fma_f32 %s, -%s, %s, %s" % (V(e[i]), V(p[i]), S(t3), V(mx), V(e[9 + i]), V(p[i]), S(t3), V(mn)))
    for i in range(18): P("v_exp_f32 %s, %s" % (V(e[i]), V(e[i])))
    P("v_add_f32 %s, %s, %s\nv_add_f32 %s, %s, %s" % (V(mx), V(e[0]), V(e[1]), V(mn), V(e[9]), V(e[10])))
    for i in range(2, 9):
        P("v_add_f32 %s, %s, %s\nv_add_f32 %s, %s, %s" % (V(mx), V(mx), V(e[i]), V(mn), V(mn), V(e[9 + i])))
    P("v_mov_b32 %s, %s\nv_mov_b32 %s, %s" % (V(a), V(mx), V(b), V(mn)))
    P("v_permlane16_swap_b32 %s, %s\nv_permlane16_swap_b32 %s, %s" % (V(mx), V(a), V(mn), V(b)))
    P("v_add_f32 %s, %s, %s\nv_add_f32 %s, %s, %s" % (V(mx), V(mx), V(a), V(mn), V(mn), V(b)))
    P("v_rcp_f32 %s, %s\nv_rcp_f32 %s, %s" % (V(mx), V(mx), V(mn), V(mn)))
    for i in range(18): P("v_mul_f32 %s, %s, %s" % (V(e[i]), V(e[i]), V(mx if i < 9 else mn)))
    for i in range(9):
        P("v_cvt_pk_bf16_f32 %s, %s, %s" % (V(vPHI + 12 * m + 4 * (i // 3) + i % 3), V(e[2 * i]), V(e[2 * i + 1])))

def ln_fix(P, T, m, dst):
    for j in range(4):
        r = acc(T, m) + j
        P("v_mul_f32 %s, %s, %s\nv_fma_f32 %s, %s, %s, %s" % (V(vT + j), V(acc(T, 2) + j), V(vB + m), V(r), V(r), V(vA + m), V(vT + j)))
    for h in range(2):
        P("v_cvt_pk_bf16_f32 %s, %s, %s" % (V(dst + h), V(acc(T, m) + 2 * h), V(acc(T, m) + 2 * h + 1)))

def feature_map(P):
    for m in range(2):
        for T in range(3):
            d = vPP + 12 * m + 4 * T
            P(mfma(d, vPH + 8 * T, vF + 8 * m)); P(mfma(d, vPH + 8 * T + 4, vF + 8 * m + 4, d))
    for m in range(2): softmax(P, m)

def p1(C, code_bytes):
    P = C.P
    L = V(vLANE)
    a, b, c, d = V(vT), V(vT + 1), V(vT + 2), V(vT + 3)
    P("v_mov_b32 %s, v0\nv_lshlrev_b32 %s, 4, v0" % (L, V(vL16)))
    if ACFG["map"] == "4x8":
        P("s_lshr_b32 %s, %s, 1\ns_lshl_b32 %s, %s, 2\ns_lshr_b32 %s, %s, 3\ns_add_u32 %s, %s, %s" % (S(t0), S(sXCD), S(t0), S(t0), S(t1), S(sIDX), S(sRBK), S(t0), S(t1)))
        P("s_and_b32 %s, %s, 1\ns_lshl_b32 %s, %s, 3\ns_and_b32 %s, %s, 7\ns_add_u32 %s, %s, %s" % (S(t0), S(sXCD), S(t0), S(t0), S(t1), S(sIDX), S(sHP), S(t0), S(t1)))
    else:
        P("s_lshl_b32 %s, %s, 1\ns_lshr_b32 %s, %s, 4\ns_add_u32 %s, %s, %s\ns_and_b32 %s, %s, 15" % (S(t0), S(sXCD), S(t1), S(sIDX), S(sRBK), S(t0), S(t1), S(sHP), S(sIDX)))
    lab = P.newlabel(C.name + "_nz")
    P("s_cmp_lg_u32 s2, 0\ns_cbranch_scc1 %s" % lab)
    P("v_mov_b32 v4, 0\nv_mov_b32 v5, 0\nv_mov_b32 v6, 0\nv_mov_b32 v7, 0\nv_lshlrev_b32 v1, 7, v0\ns_lshl_b32 %s, %s, 13" % (S(t0), S(sWAVE)))
    P("buffer_store_dwordx4 v[4:7], v1, %s, %s offen sc1" % (srd(sWS), S(t0))).nocount = True
    P.label(lab)
    P("s_lshl_b32 %s, %s, 2\ns_add_u32 %s, %s, %s\ns_mul_i32 %s, %s, 36864" % (S(t0), S(sRBK), S(t0), S(t0), S(sWAVE), S(sXB), S(t0)))
    P("s_movk_i32 %s, 1152" % S(t2))
    P("v_lshrrev_b32 %s, 3, %s\nv_and_b32 %s, 7, %s\nv_lshrrev_b32 %s, 4, %s\nv_xor_b32 %s, %s, %s" % (a, L, b, L, c, L, b, b, c))
    P("v_lshlrev_b32 %s, 4, %s\nv_mad_u32_u24 %s, %s, %s, %s" % (c, b, V(vXD), a, S(t2), c))
    P("v_xor_b32 %s, 64, %s\nv_add_u32 %s, %d, %s" % (V(vXD + 1), V(vXD), V(vXD + 1), 9216 - 1024, V(vXD + 1)))
    P("s_mul_i32 %s, %s, 72\ns_and_b32 %s, %s, -16\ns_mul_i32 %s, %s, 110592\ns_add_u32 %s, %s, %s" % (S(t0), S(sHP), S(t0), S(t0), S(t1), S(sWAVE), S(sWB), S(t0), S(t1)))
    P("s_movk_i32 %s, 3456" % S(t2))
    for q in range(5):
        r = V(vWK + q)
        P("v_add_u32 %s, %d, %s\nv_mul_u32_u24 %s, 6554, %s\nv_lshrrev_b32 %s, 16, %s" % (a, 64 * q, L, b, a, b, b))
        P("v_mul_u32_u24 %s, 10, %s\nv_sub_u32 %s, %s, %s" % (c, b, a, a, c))
        perm32(P, c, b, d)
        P("v_mul_lo_u32 %s, %s, %s\nv_lshl_add_u32 %s, %s, 4, %s" % (r, c, S(t2), r, a, r))
        P("v_cmp_lt_u32 vcc, 4, %s\nv_add_u32 %s, %d, %s\nv_cndmask_b32 %s, %s, %s, vcc" % (a, b, 1152 - 80, r, r, r, b))
        if q % 4: P("v_subrev_u32 %s, %d, %s" % (r, 1024 * (q % 4), r))
    lab = P.newlabel(C.name + "_np")
    P("s_cmp_gt_u32 %s, 1\ns_cbranch_scc1 %s" % (S(sWAVE), lab))
    P("s_mul_i32 %s, %s, 1296\ns_add_u32 %s, %s, %s\ns_add_u32 m0, %s, %d" % (S(t0), S(sHP), S(t0), S(t0), S(sW1K), S(sW1K), L_PHI))
    P("buffer_load_dwordx4 %s, %s, %s offen lds" % (V(vL16), srd(sWPHI), S(t0))).nocount = True
    P.label(lab)
    toks = [P.newtok() for _ in range(6)]
    for rho in range(3):
        for x in round_dma(P, rho, toks[rho]): P.add(x)
    nper = -(-code_bytes // (32 * 128))
    P("s_getpc_b64 s[100:101]\ns_and_b32 s100, s100, -256")
    P("s_mul_i32 %s, %s, %d\nv_lshl_add_u32 %s, %s, 7, %s\nv_min_u32 %s, %d, %s" % (S(t0), S(sIDX), nper * 128, a, L, S(t0), a, code_bytes - 2048, a))
    assert nper <= 64
    lab = P.newlabel(C.name + "_nc")
    P("s_cmp_lg_u32 %s, 3\ns_cbranch_scc1 %s" % (S(sWAVE), lab))
    P("s_mov_b64 exec, %d" % ((1 << nper) - 1) if nper <= 31 else "s_mov_b64 exec, -1")
    P("global_load_dword %s, %s, s[100:101]" % (V(vX2 + 15), a))
    P.ins[-1].dst = []; P.ins[-1].nocount = True
    P("s_mov_b64 exec, -1")
    P.label(lab)
    P("v_and_b32 %s, 15, %s\nv_lshrrev_b32 %s, 4, %s\nv_lshrrev_b32 %s, 1, %s\nv_xor_b32 %s, %s, %s" % (a, L, b, L, c, a, b, b, c))
    P("v_lshlrev_b32 %s, 7, %s\nv_lshl_add_u32 %s, %s, 4, %s\ns_lshl_b32 %s, %s, 3\nv_add_u32 %s, %s, %s" % (a, a, a, b, a, S(t0), S(sW1K), V(vXR), S(t0), a))
    P("v_xor_b32 %s, 64, %s" % (V(vXR + 1), V(vXR)))
    P("v_lshrrev_b32 %s, 2, %s\nv_mul_u32_u24 %s, 160, %s\ns_and_b32 %s, %s, 1\ns_lshl_b32 %s, %s, 3\nv_add_u32 %s, %s, %s" % (a, L, a, a, S(t0), S(sHP), S(t0), S(t0), a, S(t0), a))
    P("v_and_b32 %s, 3, %s\nv_lshl_add_u32 %s, %s, 3, %s" % (b, L, V(vWR), b, a))
    P("v_cmp_eq_u32 vcc, 1, %s\nv_add_u32 %s, 32, %s\nv_add_u32 %s, 112, %s\nv_cndmask_b32 %s, %s, %s, vcc" % (b, c, a, d, a, V(vWM), c, d))
    for i in range(4): P("v_mov_b32 %s, 0x3f803f80" % V(vONE + i))
    for q in range(5):
        r = V(vWQ + q)
        P("v_add_u32 %s, %d, %s\nv_mul_u32_u24 %s, 13108, %s\nv_lshrrev_b32 %s, 16, %s" % (a, 64 * q, L, b, a, b, b))
        P("v_mul_u32_u24 %s, 5, %s\nv_sub_u32 %s, %s, %s" % (c, b, a, a, c))
        perm32(P, c, b, d)
        P("v_and_b32 %s, 32, %s\nv_add_u32 %s, %s, %s" % (d, b, c, c, d))
        P("v_mul_lo_u32 %s, %s, %s\nv_lshl_add_u32 %s, %s, 4, %s" % (r, c, S(t2), r, a, r))
        if q % 4: P("v_subrev_u32 %s, %d, %s" % (r, 1024 * (q % 4), r))
    ax = LdsAddr([vXR, vXR + 1]); aw = LdsAddr([vWR, vWM])
    for rho in range(5):
        P.waittok(toks[rho])
        P("s_waitcnt lgkmcnt(0)\ns_barrier")
        if rho == 0:
            for x in C.stamp("r0"): P.add(x)
            lab = P.newlabel(C.name + "_nr")
            P("s_add_u32 %s, s2, %s\ns_cmp_lg_u32 %s, 0\ns_cbranch_scc1 %s" % (S(t0), S(sWAVE), S(t0), lab))
            P("v_mov_b32 %s, 1\ns_mov_b64 exec, 1" % a)
            P("buffer_store_dword %s, off, %s, 0 sc1" % (a, srd(sDBG))).nocount = True
            P("s_mov_b64 exec, -1")
            P.label(lab)
        side = []
        if rho in (1, 2): side = round_dma(P, rho + 2, toks[rho + 2])
        if rho == 3:
            lab = P.newlabel(C.name + "_nq")
            P("s_mul_i32 %s, %s, 5120\ns_mul_i32 %s, %s, 110592\ns_add_u32 %s, %s, %s" % (S(t1), S(sWAVE), S(t0), S(sWAVE), S(sWB), S(sWB), S(t0)))
            P("s_cmp_lg_u32 %s, 0\ns_cbranch_scc1 %s" % (S(sWAVE), lab))
            P("s_add_u32 %s, %s, %d" % (S(t0), S(sWB), 16 * 110592))
            for q in range(5):
                if q % 4 == 0: P("s_mov_b32 m0, %d" % (2 * RND + 8 * 5120 + 1024 * q))
                P("buffer_load_dwordx4 %s, %s, %s offen offset:%d lds" % (V(vWQ + q), srd(sWQKV), S(t0), 1024 * (q % 4))).nocount = True
            P.label(lab)
            for pr in range(2):
                side.append("s_add_u32 %s, %s, %d" % (S(t0), S(sWB), pr * 8 * 110592))
                for q in range(5):
                    if q % 4 == 0: side.append("s_add_u32 m0, %s, %d" % (S(t1), 2 * RND + pr * 4 * 5120 + 1024 * q))
                    side.append(P.mk("buffer_load_dwordx4 %s, %s, %s offen offset:%d lds" % (V(vWQ + q), srd(sWQKV), S(t0), 1024 * (q % 4)), toks[5] if (pr, q) == (1, 4) else None))
        if rho == 4:
            side.append("buffer_load_dword %s, off, %s, 0 sc1" % (V(vFD), srd(sDBG)))
        base = (rho % 3) * RND
        nk = 4 if rho < 4 else 2
        main, rd, st = [], [], []
        nb = 0
        for kk in range(nk):
            k = 4 * rho + kk
            for T in range(5):
                st.append(len(main))
                wf = vWF + 4 * (nb % 6); nb += 1
                for cidx in range(3):
                    x = mfma(acc(T, cidx), wf, xf(k, cidx) if cidx < 2 else vONE, None if k == 0 else acc(T, cidx))
                    main.append(x)
                if T in (1, 3):
                    m = T >> 1
                    main.append(mfma(vSUM + 4 * m, vONE, xf(k, m), None if k == 0 else vSUM + 4 * m))
                    main.append(mfma(vSSQ + 4 * m, xf(k, m), xf(k, m), None if k == 0 else vSSQ + 4 * m))
        nb = 0
        for kk in range(nk):
            k = 4 * rho + kk
            for T in range(5):
                bi = kk * 5 + T
                lo = st[bi - 4] - 1 if bi >= 4 else -1
                lo = max(lo, st[bi - 5] + 2 if bi >= 6 else -1)
                it = []
                if T == 0:
                    it += ax.rebase(base, base + 32768)
                    for m in range(2):
                        it.append("ds_read_b128 %s, %s offset:%d" % (R(xf(k, m), 4), V(vXR + (kk & 1)), ax.off(base + (kk >> 1) * 4096 + m * 2048)))
                    it += aw.rebase(base + 32768, base + RND)
                wf = vWF + 4 * (nb % 6); nb += 1
                reg, col = (vWM, 0) if T == 2 else (vWR, (0, 40, 0, 80, 120)[T])
                for h in range(2):
                    it.append("ds_read_b64_tr_b16 %s, %s offset:%d" % (V(wf + 2 * h, 2), V(reg), aw.off(base + 32768 + kk * 5120 + h * 2560 + col)))
                for x in it: rd.append((lo, st[bi] if bi >= 4 else 0, x))
        extra = []
        if rho == 0: extra = wphi_items(P)
        multi_interleave(P, main, [rd, [(0, INF, x) for x in side], [(4, INF, x) for x in extra]], 2)
    for x in C.stamp("kvg"): P.add(x)
    P("v_and_b32 %s, 15, %s\nv_lshrrev_b32 %s, 2, %s\nv_lshrrev_b32 %s, 4, %s\nv_cmp_eq_u32 %s, %s, %s" % (a, L, b, a, c, L, S(mA, 2), b, c))
    P("v_and_b32 %s, 1, %s\nv_cmp_eq_u32 %s, 1, %s\nv_and_b32 %s, 2, %s\nv_cmp_eq_u32 %s, 2, %s" % (b, a, S(mB, 2), b, b, a, S(mC, 2), b))
    P("v_lshlrev_b32 %s, 2, %s\ns_lshl_b32 %s, %s, 7\nv_add_u32 %s, %s, %s" % (V(vX2), a, S(t0), S(sWAVE), V(vX2), S(t0), V(vX2)))
    P("v_add_u32 %s, %d, %s" % (V(vX2), L_MEAN, V(vX2)))
    for m in range(2):
        q = vSSQ + 4 * m
        P("v_cndmask_b32 %s, %s, %s, %s\nv_cndmask_b32 %s, %s, %s, %s" % (a, V(q), V(q + 1), S(mB, 2), b, V(q + 2), V(q + 3), S(mB, 2)))
        P("v_cndmask_b32 %s, %s, %s, %s\nv_cndmask_b32 %s, 0, %s, %s" % (a, a, b, S(mC, 2), a, a, S(mA, 2)))
        for x in allred(vT, vT + 1, "v_add_f32"): P(x)
        P("v_mul_f32 %s, 0x3ae38e39, %s\nv_mul_f32 %s, 0x3ae38e39, %s" % (b, V(vSUM + 4 * m), a, a))
        P("ds_write_b32 %s, %s offset:%d" % (V(vX2), b, 64 * m))
        P("v_fma_f32 %s, -%s, %s, %s\nv_max_f32 %s, 0, %s\nv_add_f32 %s, 0x3727c5ac, %s\nv_rsq_f32 %s, %s" % (a, b, b, a, a, a, a, a, V(vA + m), a))
        P("v_mul_f32 %s, -%s, %s" % (V(vB + m), b, V(vA + m)))
    P("s_mov_b32 %s, %d" % (S(t3), LOG2E))
    vRW, vRV = vX2 + 1, vX2 + 2
    P("v_and_b32 %s, 15, %s\ns_lshl_b32 %s, %s, 5\nv_add_u32 %s, %s, %s\nv_mul_u32_u24 %s, 288, %s" % (a, L, S(t0), S(sWAVE), a, S(t0), a, a, a))
    P("v_lshrrev_b32 %s, 4, %s\nv_mad_u32_u24 %s, %s, 48, %s\nv_lshl_add_u32 %s, %s, 3, %s" % (b, L, V(vRW), b, a, V(vRV), b, a))
    P("v_cmp_eq_u32 %s, 2, %s" % (S(mA, 2), b))
    for m in range(2):
        ln_fix(P, 0, m, vF + 8 * m); ln_fix(P, 1, m, vF + 8 * m + 2); ln_fix(P, 2, m, vF + 8 * m + 4)
        P("v_mov_b32 %s, 0\nv_mov_b32 %s, 0" % (V(vF + 8 * m + 6), V(vF + 8 * m + 7)))
        for f in range(3): P("v_mov_b32 %s, 0" % V(vPHI + 12 * m + 4 * f + 3))
    for m in range(2):
        for T in range(3):
            dd = vPP + 12 * m + 4 * T
            P(mfma(dd, vPH + 8 * T, vF + 8 * m)); P(mfma(dd, vPH + 8 * T + 4, vF + 8 * m + 4, dd))
    for m in range(2):
        ln_fix(P, 3, m, vT + 4); ln_fix(P, 4, m, vT + 6)
        P("v_cndmask_b32 %s, %s, %s, %s\nv_cndmask_b32 %s, %s, %s, %s" % (V(vT + 8), V(vF + 8 * m + 4), V(vONE), S(mA, 2), V(vT + 9), V(vF + 8 * m + 5), V(vONE), S(mA, 2)))
        for i in range(3): P("ds_write_b64 %s, %s offset:%d" % (V(vRV), V(vT + 4 + 2 * i, 2), m * 4608 + 192 + 32 * i))
    for m in range(2):
        softmax(P, m)
        for f in range(3): P("ds_write_b128 %s, %s offset:%d" % (V(vRW), V(vPHI + 12 * m + 4 * f, 4), m * 4608 + 16 * f))
    vPR, vVR, vKO = vX2 + 3, vX2 + 4, vX2 + 5
    P("v_lshrrev_b32 %s, 2, %s\nv_mul_u32_u24 %s, 288, %s\nv_and_b32 %s, 3, %s\nv_lshl_add_u32 %s, %s, 3, %s" % (a, L, a, a, b, L, a, b, a))
    P("s_lshr_b32 %s, %s, 1\ns_mul_i32 %s, %s, 96\nv_add_u32 %s, %s, %s" % (S(t0), S(sWAVE), S(t1), S(t0), V(vPR), S(t1), a))
    P("s_lshl_b32 %s, %s, 5\ns_and_b32 %s, %s, 1\ns_cmp_eq_u32 %s, 1\ns_cselect_b32 %s, 64, %s\nv_add_u32 %s, %s, %s" % (S(t1), S(t0), S(t2), S(sWAVE), S(t2), S(t1), S(t1), V(vVR), S(t1), a))
    P("v_and_b32 %s, 15, %s\ns_lshl_b32 %s, %s, 1\nv_add_u32 %s, %s, %s" % (a, L, S(t1), S(t0), b, S(t1), a))
    P("s_mul_i32 %s, %s, 18\ns_sub_u32 %s, 12, %s\nv_add_u32 %s, %s, %s" % (S(t1), S(t0), S(t1), S(t1), c, S(t1), a))
    P("s_lshl_b32 %s, %s, 1\ns_add_u32 %s, %s, 4\nv_subrev_u32 %s, %s, %s\nv_cmp_gt_u32 vcc, 2, %s" % (S(t1), S(t0), S(t1), S(t1), d, S(t1), a, d))
    P("v_mov_b32 %s, 0x100000\nv_cndmask_b32 %s, %s, %s, vcc" % (d, c, d, c))
    P("v_cmp_eq_u32 vcc, 8, %s\nv_cndmask_b32 %s, %s, 18, vcc" % (a, c, c) if False else "v_cmp_ne_u32 vcc, 8, %s\nv_cndmask_b32 %s, 18, %s, vcc" % (a, c, c))
    P("s_cmp_eq_u32 %s, 1\ns_cselect_b64 vcc, -1, 0\nv_cndmask_b32 %s, %s, %s, vcc" % (S(t2), b, b, c))
    P("s_mul_i32 %s, %s, 19\nv_add_u32 %s, %s, %s\nv_mul_u32_u24 %s, 96, %s" % (S(t1), S(t0), b, S(t1), b, b, b))
    P("v_lshrrev_b32 %s, 4, %s\nv_lshl_add_u32 %s, %s, 3, %s" % (c, L, V(vKO), c, b))
    P("s_lshl_b32 %s, %s, 4\ns_add_u32 %s, %s, %s\ns_lshl_b32 %s, %s, 12\ns_add_u32 %s, %s, %d" % (S(t0), S(sHP), S(t0), S(t0), S(sRBK), S(t0), S(t0), S(t0), S(t0), WS_KVP))
    P("s_waitcnt lgkmcnt(0)\ns_barrier")
    for x in C.stamp("phik"): P.add(x)
    for ks in range(4):
        fr = vAC + 16 * ks
        for h in range(2): P("ds_read_b64_tr_b16 %s, %s offset:%d" % (V(fr + 12 + 2 * h, 2), V(vVR), ks * 9216 + h * 4608 + 192))
        for tau in range(3):
            for h in range(2): P("ds_read_b64_tr_b16 %s, %s offset:%d" % (V(fr + 4 * tau + 2 * h, 2), V(vPR), ks * 9216 + h * 4608 + 32 * tau))
    for ks in range(4):
        fr = vAC + 16 * ks
        for tau in range(3): P(mfma(vPP + 4 * tau, fr + 4 * tau, fr + 12, None if ks == 0 else vPP + 4 * tau))
    tokS = P.newtok()
    for tau in range(3):
        for h in range(2): P("v_cvt_pk_bf16_f32 %s, %s, %s" % (V(vT + 2 * tau + h), V(vPP + 4 * tau + 2 * h), V(vPP + 4 * tau + 2 * h + 1)))
        P("buffer_store_dwordx2 %s, %s, %s, %s offen offset:%d sc1" % (V(vT + 2 * tau, 2), V(vKO), srd(sWS), S(t0), 32 * tau), tok=tokS if tau == 2 else None)
    lab = P.newlabel(C.name + "_rdy")
    C.slow.append("""%s:
    s_mov_b32 %s, 0
%s_l:
    buffer_load_dword %s, off, %s, 0 sc1
    s_add_u32 %s, %s, 1
    s_waitcnt vmcnt(0)
    v_cmp_ne_u32 vcc, 1, %s
    s_cmp_gt_u32 %s, %d
    s_cbranch_scc1 %s_b
    s_cbranch_vccnz %s_l
    s_branch %s_b
""" % (lab, S(sSPIN), lab, V(vFD), srd(sDBG), S(sSPIN), S(sSPIN), V(vFD), S(sSPIN), SPIN_MAX, lab, lab, lab))
    P("v_cmp_ne_u32 vcc, 1, %s\ns_cbranch_vccnz %s\n%s_b:" % (V(vFD), lab, lab))
    wo_addr(P)
    P.waittok(tokS)
    for x in C.publish(vT, 1): P.add(x)
    P("s_barrier")
    for x in C.stamp("pub1"): P.add(x)

def wphi_items(P):
    L = V(vLANE)
    a, b, c, d = V(vX2), V(vX2 + 1), V(vX2 + 2), V(vX2 + 3)
    tmp = vX2 + 4
    it = []
    it += ["v_bfe_u32 %s, %s, 3, 1" % (a, L), "v_cmp_eq_u32 %s, 1, %s" % (S(mA, 2), a),
           "v_bfe_u32 %s, %s, 2, 1" % (b, L), "v_mul_u32_u24 %s, 18, %s" % (b, b), "v_and_b32 %s, 3, %s" % (c, L),
           "v_cmp_eq_u32 %s, 0, %s" % (S(mB, 2), c), "v_lshl_add_u32 %s, %s, 1, %s" % (b, c, b),
           "v_add_u32 %s, %d, %s" % (b, L_PHI, b), "v_lshrrev_b32 %s, 4, %s" % (c, L), "v_cmp_eq_u32 %s, 0, %s" % (S(mC, 2), c),
           "v_mul_u32_u24 %s, 144, %s" % (c, c), "v_mul_u32_u24 %s, 720, %s" % (d, a), "v_add3_u32 %s, %s, %s, %s" % (c, c, d, b),
           "v_mul_u32_u24 %s, 72, %s" % (d, a), "v_add_u32 %s, %s, %s" % (d, d, b)]
    raw = vPP
    for T in range(3):
        for s in range(4):
            it.append("ds_read_u16 %s, %s offset:%d" % (V(raw + 6 * T + s), c, 36 * s + 8 * T))
        for s in range(2):
            it.append("ds_read_u16 %s, %s offset:%d" % (V(raw + 6 * T + 4 + s), d, 576 + 36 * s + 8 * T))
    for i in range(9): it.append("v_lshl_or_b32 %s, %s, 16, %s" % (V(tmp + i), V(raw + 2 * i + 1), V(raw + 2 * i)))
    for i in range(3): it.append("v_cndmask_b32 %s, 0, %s, %s" % (V(tmp + 6 + i), V(tmp + 6 + i), S(mB, 2)))
    for T in range(3):
        f0, f1 = vPH + 8 * T, vPH + 8 * T + 4
        for i in range(2):
            it.append("v_cndmask_b32 %s, %s, 0, %s" % (V(f0 + i), V(tmp + 3 * T + i), S(mA, 2)))
            it.append("v_cndmask_b32 %s, 0, %s, %s" % (V(f0 + 2 + i), V(tmp + 3 * T + i), S(mA, 2)))
        it.append("v_cndmask_b32 %s, 0, %s, %s" % (V(tmp + 3 * T + 2), V(tmp + 3 * T + 2), S(mC, 2)))
        it.append("v_cndmask_b32 %s, %s, 0, %s" % (V(f1), V(tmp + 3 * T + 2), S(mA, 2)))
        it.append("v_cndmask_b32 %s, 0, %s, %s" % (V(f1 + 1), V(tmp + 3 * T + 2), S(mA, 2)))
        it.append("v_mov_b32 %s, 0" % V(f1 + 2)); it.append("v_mov_b32 %s, 0" % V(f1 + 3))
    return it

vOM, vOLf = 128, 133
def wo_addr(P):
    L = V(vLANE)
    a, b, c, d = V(vT + 8), V(vT + 9), V(vT + 10), V(vT + 11)
    e = V(vT + 12)
    P("s_movk_i32 %s, 1152" % S(t2))
    for q in range(5):
        P("v_add_u32 %s, %d, %s\nv_mul_u32_u24 %s, 6554, %s\nv_lshrrev_b32 %s, 16, %s" % (a, 64 * q, L, b, a, b, b))
        P("v_mul_u32_u24 %s, 10, %s\nv_sub_u32 %s, %s, %s\nv_cmp_eq_u32 vcc, 9, %s" % (c, b, a, a, c, a))
        P("v_lshlrev_b32 %s, 4, %s\nv_mov_b32 %s, 0x1000000\nv_cndmask_b32 %s, %s, %s, vcc" % (a, a, c, a, a, c))
        P("v_lshrrev_b32 %s, 4, %s\nv_and_b32 %s, 3, %s\nv_lshl_add_u32 %s, %s, 2, %s" % (c, b, d, b, c, c, d))
        P("v_bfe_u32 %s, %s, 2, 2" % (b, b))
        P("v_lshrrev_b32 %s, 1, %s\nv_lshl_add_u32 %s, %s, 3, %s\nv_lshl_add_u32 %s, %s, 1, %s" % (d, b, e, b, c, e, d, e))
        P("v_mad_u32_u24 %s, %s, %s, %s" % (V(vOM + q), e, S(t2), a))
        P("v_lshrrev_b32 %s, 1, %s\nv_lshl_add_u32 %s, %s, 2, %s\nv_mul_u32_u24 %s, 18, %s" % (d, c, d, b, d, d, d))
        P("v_and_b32 %s, 1, %s\nv_add3_u32 %s, %s, %s, 16\nv_mad_u32_u24 %s, %s, %s, %s" % (c, c, d, d, c, V(vOLf + q), d, S(t2), a))
        if q % 4: P("v_subrev_u32 %s, %d, %s\nv_subrev_u32 %s, %d, %s" % (V(vOM + q), 1024 * q, V(vOM + q), V(vOLf + q), 1024 * q, V(vOLf + q)))

def p1b(C):
    P = C.P
    L = V(vLANE)
    a, b, c, d = V(vT), V(vT + 1), V(vT + 2), V(vT + 3)
    side = []
    P("s_and_b32 %s, %s, 7\ns_mul_i32 %s, %s, 144" % (S(sWB), S(sHP), S(sWB), S(sWB)))
    P("s_lshr_b32 %s, %s, 3\ns_lshl_b32 %s, %s, 2\ns_lshl_b32 %s, %s, 3\ns_add_u32 %s, %s, %s\ns_add_u32 %s, %s, %s" %
      (S(t0), S(sHP), S(t0), S(t0), S(t1), S(sRBK), S(t0), S(t0), S(t1), S(sMT), S(t0), S(sWAVE)))
    lab = P.newlabel(C.name + "_nl")
    P("s_mul_i32 %s, %s, 5120" % (S(t1), S(sWAVE)))
    P("s_cmp_gt_u32 %s, 1\ns_cbranch_scc1 %s" % (S(sWAVE), lab))
    P("s_mul_i32 %s, %s, %d\ns_add_u32 %s, %s, %s" % (S(t0), S(sWAVE), 288 * 1152, S(t0), S(t0), S(sWB)))
    for q in range(5):
        if q % 4 == 0: P("s_add_u32 m0, %s, %d" % (S(t1), 16 * 5120 + 1024 * q))
        P("buffer_load_dwordx4 %s, %s, %s offen offset:%d lds" % (V(vOLf + q), srd(sWO), S(t0), 1024 * (q % 4))).nocount = True
    P.label(lab)
    P("s_mul_i32 %s, %s, %d\ns_add_u32 %s, %s, %s" % (S(t2), S(sWAVE), 36 * 1152, S(t2), S(t2), S(sWB)))
    for i in range(4):
        side.append("s_add_u32 %s, %s, %d" % (S(t0), S(t2), i * 4 * 36 * 1152))
        for q in range(5):
            if q % 4 == 0: side.append("s_add_u32 m0, %s, %d" % (S(t1), i * 4 * 5120 + 1024 * q))
            side.append("buffer_load_dwordx4 %s, %s, %s offen offset:%d lds" % (V(vOM + q), srd(sWO), S(t0), 1024 * (q % 4)))
    vWB = AG + 144
    vRA, vRB = vX2 + 6, vX2 + 7
    P("v_lshrrev_b32 %s, 3, %s\nv_mul_u32_u24 %s, 1152, %s\nv_and_b32 %s, 7, %s\nv_lshl_add_u32 %s, %s, 4, %s" % (a, L, a, a, b, L, V(vRA), b, a))
    P("v_cmp_gt_u32 vcc, 8, %s\nv_mov_b32 %s, 0x1000000\nv_cndmask_b32 %s, %s, %s, vcc" % (L, a, V(vRB), a, V(vL16)))
    side.append("s_mul_i32 %s, %s, 36\ns_lshl_b32 %s, %s, 3\ns_add_u32 %s, %s, %s\ns_mul_i32 %s, %s, 1152" % (S(t0), S(sHP), S(sXB), S(sWAVE), S(t0), S(t0), S(sXB), S(t0), S(t0)))
    for i in range(9): side.append("buffer_load_dwordx4 %s, %s, %s, %s offen offset:%d" % (R(vWB + 4 * i, 4), V(vRA), srd(sWO), S(t0), 128 * i))
    side.append("s_mul_i32 %s, %s, 36\ns_add_u32 %s, %s, %s\ns_add_u32 %s, %s, 32\ns_mul_i32 %s, %s, 1152" % (S(t0), S(sHP), S(t0), S(t0), S(sWAVE), S(t0), S(t0), S(t0), S(t0)))
    side.append("buffer_load_dwordx4 %s, %s, %s, %s offen" % (R(vWB + 36, 4), V(vL16), srd(sWO), S(t0)))
    side.append("buffer_load_dwordx4 %s, %s, %s, %s offen offset:1024" % (R(vWB + 40, 4), V(vRB), srd(sWO), S(t0)))
    vXA = vX2 + 8
    P("v_and_b32 %s, 15, %s\nv_mul_u32_u24 %s, 1152, %s\nv_lshrrev_b32 %s, 4, %s\nv_lshl_add_u32 %s, %s, 3, %s" % (a, L, a, a, b, L, V(vXA), b, a))
    side.append("s_mul_i32 %s, %s, 18432\ns_add_u32 %s, %s, %s" % (S(t0), S(sMT), S(t0), S(t0), S(sWB)))
    for T in range(5): side.append("buffer_load_dwordx2 %s, %s, %s, %s offen offset:%d" % (R(AG + 192 + 2 * T, 2), V(vXA), srd(sX), S(t0), 32 * T))
    vQR, vQM = vX2 + 9, vX2 + 10
    P("v_lshrrev_b32 %s, 2, %s\nv_mul_u32_u24 %s, 80, %s\ns_and_b32 %s, %s, 1\ns_lshl_b32 %s, %s, 3\ns_add_u32 %s, %s, %d" % (a, L, a, a, S(t0), S(sHP), S(t0), S(t0), S(t0), S(t0), 2 * RND))
    P("v_add_u32 %s, %s, %s\nv_and_b32 %s, 3, %s\nv_lshl_add_u32 %s, %s, 3, %s\nv_add_u32 %s, 32, %s" % (a, S(t0), a, b, L, V(vQR), b, a, V(vQM), a))
    main, rd, st = [], [], []
    for k in range(18):
        for T in range(3):
            bi = len(st); st.append(len(main))
            wf = vWF + 4 * (bi % 6)
            for cidx in range(3):
                main.append(mfma(acc(T, cidx), wf, xf(k, cidx) if cidx < 2 else vONE, None if k == 0 else acc(T, cidx)))
            lo = st[bi - 4] - 1 if bi >= 4 else -1
            for h in range(2):
                rd.append((lo, st[bi] if bi >= 4 else 0, "ds_read_b64_tr_b16 %s, %s offset:%d" % (V(wf + 2 * h, 2), V(vQM if T == 2 else vQR), k * 2560 + h * 1280 + (0, 40, 0)[T])))
    multi_interleave(P, main, [rd, spread(side, 0, 140)], 2)
    for x in C.stamp("qg"): P.add(x)
    P("s_mov_b32 %s, %d" % (S(t3), LOG2E))
    for m in range(2):
        ln_fix(P, 0, m, vF + 8 * m); ln_fix(P, 1, m, vF + 8 * m + 2); ln_fix(P, 2, m, vF + 8 * m + 4)
    P("v_lshrrev_b32 %s, 2, %s" % (V(vT + 4), L))
    vf_rb(P, V(vFA), V(vT + 4), V(vT + 5))
    f_hp(P, S(t0), S(sHP), S(t1))
    P("v_and_b32 %s, 3, %s\nv_lshl_add_u32 %s, %s, 2, %s\nv_add_u32 %s, %s, %s" % (V(vT + 4), L, V(vFA), V(vT + 4), V(vFA), V(vFA), S(t0), V(vFA)))
    feature_map(P)
    P.add(C.load_flags(vFD, vFA))
    for i in range(11):
        for j in range(4): P("v_accvgpr_read_b32 %s, %s" % (V(vAC + 4 * i + j), R(vWB + 4 * i + j)))
    P("v_mov_b32 %s, 0\nv_mov_b32 %s, 0" % (a, b))
    for i in range(36): P("v_dot2c_f32_bf16 %s, %s, %s" % (a, V(vAC + i), V(vONE)))
    for i in range(36, 44): P("v_dot2c_f32_bf16 %s, %s, %s" % (b, V(vAC + i), V(vONE)))
    for r in (a, b):
        P("v_add_f32_dpp %s, %s, %s quad_perm:[1,0,3,2] row_mask:0xf bank_mask:0xf" % (r, r, r))
        P("v_add_f32_dpp %s, %s, %s quad_perm:[2,3,0,1] row_mask:0xf bank_mask:0xf" % (r, r, r))
        P("v_add_f32_dpp %s, %s, %s row_half_mirror row_mask:0xf bank_mask:0xf" % (r, r, r))
    P("v_add_f32_dpp %s, %s, %s row_mirror row_mask:0xf bank_mask:0xf" % (b, b, b))
    for x in allred(vT + 1, vT + 2, "v_add_f32"): P(x)
    P("v_mul_f32 %s, 0x3ae38e39, %s\nv_mul_f32 %s, 0x3ae38e39, %s" % (a, a, b, b))
    P("v_lshrrev_b32 %s, 3, %s\ns_lshl_b32 %s, %s, 3\nv_add_u32 %s, %s, %s\nv_cmp_lt_u32 vcc, 17, %s" % (c, L, S(t0), S(sWAVE), c, S(t0), c, c))
    P("v_add_u32 %s, 2, %s\nv_cndmask_b32 %s, %s, %s, vcc\nv_lshlrev_b32 %s, 2, %s\nv_add_u32 %s, %d, %s" % (d, c, c, c, d, c, c, c, L_WBAR, c))
    P("ds_write_b32 %s, %s" % (c, a))
    P("s_lshl_b32 %s, %s, 2\ns_add_u32 %s, %s, %d\nv_mov_b32 %s, %s\nds_write_b32 %s, %s" % (S(t0), S(sWAVE), S(t0), S(t0), L_WBAR + 34 * 4, c, S(t0), c, b))
    for i in range(4): P("v_mov_b32 %s, 0" % V(vT + 4 + i))
    P("v_and_b32 %s, 0x1f0, %s\nv_add_u32 %s, %d, %s\nds_write_b128 %s, %s" % (c, V(vL16), c, L_ZERO, c, c, V(vT + 4, 4)))
    for x in C.stamp("phiq"): P.add(x)
    for x in C.check_flags(vFD, vFA, 1): P.add(x)
    for x in C.stamp("s1"): P.add(x)
    P("s_lshl_b32 %s, %s, 16\ns_add_u32 %s, %s, %s\ns_add_u32 %s, %s, %d" % (S(t0), S(sHP), S(t0), S(t0), S(sW1K), S(t0), S(t0), WS_KVP))
    for r in range(16):
        P("buffer_load_dwordx4 %s, %s, %s, %s offen sc1" % (V(vAC + 4 * r, 4), V(vL16), srd(sWS), S(t0)))
        if r < 15: P("s_add_u32 %s, %s, 4096" % (S(t0), S(t0)))
    vRa, vRb = vX2 + 1, vX2 + 2
    P("v_bfe_u32 %s, %s, 3, 1\nv_lshrrev_b32 %s, 5, %s\nv_cmp_eq_u32 %s, %s, %s" % (a, L, b, L, S(mA, 2), a, b))
    P("v_mul_u32_u24 %s, %d, %s\nv_bfe_u32 %s, %s, 4, 1\nv_mad_u32_u24 %s, %s, 48, %s\nv_add_u32 %s, %d, %s" % (a, 19 * 96, a, b, L, a, b, a, a, L_R, a))
    P("v_bfe_u32 %s, %s, 2, 1\nv_and_b32 %s, 3, %s\nv_lshl_add_u32 %s, %s, 3, %s\nv_mul_u32_u24 %s, 96, %s\nv_add_u32 %s, %s, %s" % (b, L, c, L, b, b, c, b, b, b, b, a))
    P("v_mov_b32 %s, %d\nv_cndmask_b32 %s, %s, %s, %s" % (d, L_ZERO, V(vRa), d, b, S(mA, 2)))
    P("v_add_u32 %s, 15, %s\nv_cmp_ne_u32 vcc, 0, %s\nv_cndmask_b32 %s, 18, %s, vcc\nv_mul_u32_u24 %s, 96, %s\nv_add_u32 %s, %s, %s" % (b, c, c, b, b, b, b, b, b, a))
    P("v_cmp_ne_u32 vcc, 3, %s\ns_and_b64 vcc, vcc, %s\nv_cndmask_b32 %s, %s, %s, vcc" % (c, S(mA, 2), V(vRb), d, b))
    sm = vWF
    P("s_mov_b32 %s, 0x3f80\ns_mov_b32 %s, 0x3f800000" % (S(t1), S(t2)))
    P("v_mov_b32 %s, %s\nv_mov_b32 %s, %s" % (V(vT + 8), S(t1), V(vT + 9), S(t2)))
    for i in range(6): P("v_mov_b32 %s, 0" % V(sm + i))
    for r in range(16):
        for i in range(6): P("v_dot2c_f32_bf16 %s, %s, %s" % (V(sm + i), V(vAC + 4 * r + (i >> 1)), V(vT + 8 + (i & 1))))
    for i in range(3): P("v_cvt_pk_bf16_f32 %s, %s, %s" % (V(vT + 4 + i), V(sm + 2 * i), V(sm + 2 * i + 1)))
    P("v_add_u32 %s, %s, %s\nv_add_u32 %s, %d, %s\nds_write_b128 %s, %s" % (a, S(sW1K), V(vL16), a, L_R, a, a, V(vT + 4, 4)))
    P("s_waitcnt lgkmcnt(0)\ns_barrier")
    for x in C.stamp("kvred"): P.add(x)
    kf = vAC
    for T in range(3):
        for p in range(3):
            P("ds_read_b128 %s, %s offset:%d" % (V(kf + 12 * T + 4 * p, 4), V(vRb if T == 2 else vRa), (384 if T == 1 else 0) + 16 * p))
    vWb = vAC + 36
    P("v_lshrrev_b32 %s, 5, %s\nv_mul_u32_u24 %s, 80, %s\nv_add_u32 %s, %d, %s\nv_bfe_u32 %s, %s, 4, 1" % (a, L, a, a, a, L_WBAR, a, b, L))
    P("v_cmp_eq_u32 %s, 1, %s\nv_lshl_add_u32 %s, %s, 5, %s" % (S(mB, 2), b, c, b, a))
    P("ds_read_b128 %s, %s\nds_read_b128 %s, %s offset:16" % (V(vWb, 4), c, V(vWb + 4, 4), c))
    P("v_add_u32 %s, 64, %s\nv_mov_b32 %s, %d\nv_cndmask_b32 %s, %s, %s, %s\nds_read_b64 %s, %s" % (a, a, d, L_ZERO, a, a, d, S(mB, 2), V(vWb + 8, 2), a))
    ffn.ffn_setup(C, vLANE)
    ffn.ffn_prefetch1(C)
    for m in range(2):
        for T in range(3):
            dd = vPP + 12 * m + 4 * T
            for p in range(3): P(mfma(dd, kf + 12 * T + 4 * p, vPHI + 12 * m + 4 * p, None if p == 0 else dd))
    vOL = vX2 + 3
    a, b, c, d = V(vF), V(vF + 1), V(vF + 2), V(vF + 3)
    P("v_and_b32 %s, 15, %s\nv_lshlrev_b32 %s, 2, %s\nv_lshrrev_b32 %s, 5, %s\nv_lshl_add_u32 %s, %s, 6, %s" % (a, L, a, a, b, L, a, b, a))
    P("v_bfe_u32 %s, %s, 4, 1\nv_lshl_add_u32 %s, %s, 7, %s" % (b, L, V(vF + 15), b, a))
    P("s_lshl_b32 %s, %s, 3\ns_lshl_b32 %s, %s, 1\ns_add_u32 %s, %s, %s\ns_lshl_b32 %s, %s, 4\ns_add_u32 %s, %s, %s" %
      (S(t0), S(sRBK), S(t1), S(sWAVE), S(t0), S(t0), S(t1), S(t0), S(t0), S(t0), S(t0), S(sHP)))
    P("s_lshl_b32 %s, %s, 8\ns_add_u32 %s, %s, %d\ns_lshl_b32 %s, %s, 10\ns_add_u32 %s, %s, %d" % (S(t1), S(t0), S(t1), S(t1), WS_OL, S(t0), S(t0), S(t0), S(t0), WS_OM))
    for m in range(2):
        o = vPP + 12 * m
        P("v_add_f32 %s, 0x358637bd, %s\nv_rcp_f32 %s, %s" % (a, V(o + 8), a, a))
        for i in (0, 1, 2, 3, 4, 5, 6, 7, 9, 10): P("v_mul_f32 %s, %s, %s" % (V(o + i), V(o + i), a))
        q = vF + 4 + 4 * m
        for i in range(4): P("v_cvt_pk_bf16_f32 %s, %s, %s" % (V(q + i), V(o + 2 * i), V(o + 2 * i + 1)))
        P("buffer_store_dwordx4 %s, %s, %s, %s offen sc1" % (V(q, 4), V(vL16), srd(sWS), S(t0)))
        P("v_mul_f32 %s, %s, %s" % (b, V(o), V(vWb)))
        for i in range(1, 8): P("v_fmac_f32 %s, %s, %s" % (b, V(o + i), V(vWb + i)))
        P("v_fmac_f32 %s, %s, %s\nv_fmac_f32 %s, %s, %s" % (b, V(o + 9), V(vWb + 8), b, V(o + 10), V(vWb + 9)))
        for x in allred(vF + 1, vF + 2, "v_add_f32"): P(x)
        P("v_cvt_pk_bf16_f32 %s, %s, %s\nv_cndmask_b32 %s, %s, %s, %s" % (c, V(o + 9), V(o + 10), V(vF + 12 + m), c, b, S(mB, 2)))
        P("buffer_store_dword %s, %s, %s, %s offen sc1" % (V(vF + 12 + m), V(vF + 15), srd(sWS), S(t1)))
        if m == 0: P("s_add_u32 %s, %s, 16384\ns_add_u32 %s, %s, 4096" % (S(t0), S(t0), S(t1), S(t1)))
    P("v_and_b32 %s, 15, %s" % (a, L))
    vf_hp(P, V(vFA), a, b)
    f_rb(P, S(t0), S(sRBK), S(t1))
    P("s_and_b32 %s, %s, 7\ns_lshr_b32 %s, %s, 1\ns_lshl_b32 %s, %s, 2\ns_add_u32 %s, %s, %s\nv_add_u32 %s, %s, %s" % (S(t1), S(sMT), S(t1), S(t1), S(t1), S(t1), S(t0), S(t0), S(t1), V(vFA), S(t0), V(vFA)))
    P("s_waitcnt vmcnt(0)")
    for x in C.publish(vF, 2): P.add(x)
    for x in C.stamp("pub2"): P.add(x)

def p2(C):
    P = C.P
    L = V(vLANE)
    vO = 0
    vAcc = 72
    vW = 92
    vMU = 124
    vQ = 144
    a, b, c, d = V(vQ), V(vQ + 1), V(vQ + 2), V(vQ + 3)
    vWR2, vLA, vMA, vL8 = 128, 129, 130, 131
    P.add(C.load_flags(vFD, vFA))
    P("v_lshrrev_b32 %s, 2, %s\nv_mul_u32_u24 %s, 160, %s\nv_and_b32 %s, 3, %s\nv_lshl_add_u32 %s, %s, 3, %s" % (a, L, a, a, b, L, V(vWR2), b, a))
    P("v_and_b32 %s, 15, %s\nv_lshlrev_b32 %s, 2, %s\nv_lshrrev_b32 %s, 4, %s" % (a, L, a, a, b, L))
    P("v_lshl_add_u32 %s, %s, 9, %s\nv_lshl_add_u32 %s, %s, 10, %s\nv_lshlrev_b32 %s, 3, %s" % (V(vLA), b, a, V(vMA), b, a, V(vL8), L))
    P("s_and_b32 %s, %s, 7\ns_lshl_b32 %s, %s, 6\ns_add_u32 %s, %s, %d\nv_add_u32 %s, %s, %s\nds_read_b32 %s, %s" % (S(t0), S(sMT), S(t0), S(t0), S(t0), S(t0), L_MEAN, a, S(t0), a, V(vQ + 4), a))
    P("s_lshl_b32 %s, %s, 14\ns_add_u32 %s, %s, %d\ns_lshl_b32 %s, %s, 12\ns_add_u32 %s, %s, %d" % (S(t0), S(sMT), S(t0), S(t0), WS_OM, S(t1), S(sMT), S(t1), S(t1), WS_OL))
    P("s_waitcnt vmcnt(0)")
    for x in C.check_flags(vFD, vFA, 2): P.add(x)
    for x in C.stamp("s2"): P.add(x)
    for f in range(16):
        P("buffer_load_dwordx4 %s, %s, %s, %s offen offset:%d sc1" % (V(vO + 4 * f, 4), V(vL16), srd(sWS), S(t0), 1024 * (f % 4)))
        if f % 4 == 3 and f < 15: P("s_add_u32 %s, %s, 4096" % (S(t0), S(t0)))
    for e in range(2):
        for j in range(4):
            P("buffer_load_dword %s, %s, %s, %s offen offset:%d sc1" % (V(vO + 64 + 4 * e + j), V(vLA), srd(sWS), S(t1), e * 2048 + (j >> 1) * 256 + (j & 1) * 64))
    for i in range(4):
        P("buffer_load_dword %s, %s, %s, %s offen offset:%d sc1" % (V(vMU + i), V(vMA), srd(sWS), S(t1), 128 + 256 * i))
    aw = LdsAddr([vWR2])
    main, rd = [], []
    for f in range(18):
        for T in range(5):
            bi = len(main)
            wf = vW + 4 * (bi % 8)
            main.append(mfma(vAcc + 4 * T, wf, vO + 4 * f, None if f == 0 else vAcc + 4 * T))
            it = aw.rebase(f * 5120, (f + 1) * 5120)
            it += ["ds_read_b64_tr_b16 %s, %s offset:%d" % (V(wf + 2 * h, 2), V(vWR2), aw.off(f * 5120 + h * 2560 + 32 * T)) for h in range(2)]
            for x in it: rd.append((bi - 7 if bi >= 7 else -1, bi if bi >= 7 else 0, x))
    multi_interleave(P, main, [rd], 2)
    P("s_barrier")
    for x in C.stamp("wog"): P.add(x)
    ffn.ffn_prefetch2(C)
    P("v_add_f32 %s, %s, %s\nv_add_f32 %s, %s, %s\nv_add_f32 %s, %s, %s" % (V(vMU), V(vMU), V(vMU + 1), V(vMU + 2), V(vMU + 2), V(vMU + 3), V(vMU), V(vMU), V(vMU + 2)))
    for x in allred(vMU, vMU + 1, "v_add_f32"): P(x)
    P("v_add_f32 %s, %s, %s" % (V(vMU), V(vMU), V(vQ + 4)))
    P("s_and_b32 %s, %s, 7" % (S(t3), S(sHP)))
    P("s_mul_i32 %s, %s, 18432\ns_mul_i32 %s, %s, 2304\ns_add_u32 %s, %s, %s\ns_add_u32 %s, %s, %d" % (S(t0), S(sMT), S(t1), S(t3), S(t1), S(t1), S(t0), S(t1), S(t1), WS_H))
    P("s_lshl_b32 %s, %s, 11\ns_add_u32 %s, %s, %s\ns_add_u32 %s, %s, %d" % (S(t2), S(t3), S(t2), S(t2), S(t0), S(t2), S(t2), WS_HC))
    P("v_cmp_gt_u32 %s, 32, %s\nv_mov_b32 %s, 0x8000000\nv_cndmask_b32 %s, %s, %s, %s" % (S(mA, 2), L, a, V(vLA), a, V(vL8), S(mA, 2)))
    P("v_and_b32 %s, 15, %s\nv_lshlrev_b32 %s, 4, %s\nv_lshrrev_b32 %s, 4, %s\nv_lshl_add_u32 %s, %s, 3, %s\nv_cndmask_b32 %s, %s, %s, %s" % (b, L, b, b, c, L, b, c, b, V(vMA), a, b, S(mA, 2)))
    ss = V(vMU + 2)
    P("v_mov_b32 %s, 0" % ss)
    hq = vO
    for T in range(5):
        r = vAcc + 4 * T
        for h in range(2):
            P("v_accvgpr_read_b32 %s, %s" % (a, R(AG + 192 + 2 * T + h)))
            P("v_lshlrev_b32 %s, 16, %s\nv_and_b32 %s, 0xffff0000, %s" % (b, a, a, a))
            P("v_add_f32 %s, %s, %s\nv_add_f32 %s, %s, %s" % (b, b, V(r + 2 * h), a, a, V(r + 2 * h + 1)))
            P("v_cvt_pk_bf16_f32 %s, %s, %s" % (V(hq + 2 * T + h), b, a))
            P("v_lshlrev_b32 %s, 16, %s\nv_and_b32 %s, 0xffff0000, %s" % (b, V(hq + 2 * T + h), a, V(hq + 2 * T + h)))
            P("v_sub_f32 %s, %s, %s\nv_sub_f32 %s, %s, %s" % (b, b, V(vMU), a, a, V(vMU)))
            P("v_cvt_pk_bf16_f32 %s, %s, %s" % (V(hq + 12 + 2 * T + h), b, a))
            if T == 4: P("v_cndmask_b32 %s, 0, %s, %s\nv_cndmask_b32 %s, 0, %s, %s" % (b, b, S(mA, 2), a, a, S(mA, 2)))
            P("v_fmac_f32 %s, %s, %s\nv_fmac_f32 %s, %s, %s" % (ss, b, b, ss, a, a))
        if T % 2 == 1:
            P("buffer_store_dwordx4 %s, %s, %s, %s offen offset:%d sc1" % (V(hq + 12 + 2 * (T - 1), 4), V(vL16), srd(sWS), S(t2), 1024 * (T >> 1)))
        if T == 4:
            P("s_lshl_b32 %s, %s, 8\ns_add_u32 %s, %s, %s\ns_add_u32 %s, %s, %d" % (S(t2), S(t3), S(t2), S(t2), S(t0), S(t2), S(t2), WS_HC + 16384))
            P("buffer_store_dwordx2 %s, %s, %s, %s offen sc1" % (V(hq + 20, 2), V(vMA), srd(sWS), S(t2)))
    for x in allred(vMU + 2, vMU + 3, "v_add_f32"): P(x)
    P("s_lshl_b32 %s, %s, 3\ns_add_u32 %s, %s, %s\ns_lshl_b32 %s, %s, 8\ns_add_u32 %s, %s, %d" % (S(t0), S(sMT), S(t0), S(t0), S(t3), S(t0), S(t0), S(t0), S(t0), WS_SSQ))
    P("v_lshlrev_b32 %s, 2, %s\nbuffer_store_dword %s, %s, %s, %s offen sc1" % (a, L, ss, a, srd(sWS), S(t0)))
    for T in range(5):
        P("buffer_store_dwordx2 %s, %s, %s, %s offen offset:%d sc1" % (V(hq + 2 * T, 2), V(vL8 if T < 4 else vLA), srd(sWS), S(t1), 512 * T))
    ffn.ffn_addr2(C, vLANE)
    fa = V(ffn.vFA)
    P("s_lshl_b32 %s, %s, 3\ns_lshl_b32 %s, %s, 1\ns_add_u32 %s, %s, %s\ns_lshr_b32 %s, %s, 1\ns_add_u32 %s, %s, %s" % (S(t0), S(sMH), S(t1), S(sRB), S(t0), S(t0), S(t1), S(t1), S(sWAVE), S(t0), S(t0), S(t1)))
    f_rb(P, S(t2), S(t0), S(t1))
    P("s_and_b32 %s, %s, 1\ns_lshl_b32 %s, %s, 3\nv_bfe_u32 %s, %s, 2, 3\nv_add_u32 %s, %s, %s" % (S(t0), S(sWAVE), S(t0), S(t0), a, L, a, S(t0), a))
    vf_hp(P, fa, a, b)
    P("v_and_b32 %s, 3, %s\nv_lshl_add_u32 %s, %s, 2, %s\nv_add_u32 %s, %s, %s" % (a, L, fa, a, fa, fa, S(t2), fa))
    P("s_waitcnt vmcnt(0)")
    for x in C.publish(vQ, 3): P.add(x)
    for x in C.stamp("pub3"): P.add(x)
```

```python
from gen import *

WS_FLAGS = 0x0
WS_KVP = 0x10000
WS_OM = 0x110000
WS_OL = 0x310000
WS_HC = 0x390000
WS_SSQ = 0x5D0000
WS_H = 0x610000
WS_PART = 0x850000
WS_HH = 0x1250000
WS_TIM = 0x2450000
WS_DBG = 0x2500000
WS_SIZE = 0x4000000

sX, sWQKV, sWPHI, sWO, sWG, sWU, sWD, sOUT, sWS, sDBG, sWN = 4, 8, 12, 16, 20, 24, 28, 32, 36, 40, 44
sWAVE, sW1K, sXCD, sIDX, sFLAG = 48, 49, 50, 51, 52
sSPIN = 53
sFQ, sMH, sRB, sFS = 54, 55, 56, 57
sT = 80
def srd(b): return S(b, 4)

SPIN_MAX = 50000

class Ctx:
    def __init__(self, name, timing=False):
        self.name = name
        self.P = Prog()
        self.slow = []
        self.timing = timing
        self.nstamp = 0
        self.sbase = 0
        self.stamp_names = []
    def check_flags(self, vdata, vaddr, phase):
        lab = self.P.newlabel(self.name + "_spin")
        self.slow.append("""%s:
    s_mov_b32 %s, 0
%s_l:
    buffer_load_dword %s, %s, %s, 0 offen sc1
    s_add_u32 %s, %s, 1
    s_waitcnt vmcnt(0)
    v_cmp_gt_u32 vcc, %d, %s
    s_cmp_gt_u32 %s, %d
    s_cbranch_scc1 %s_b
    s_cbranch_vccnz %s_l
    s_branch %s_b
""" % (lab, S(sSPIN), lab, V(vdata), V(vaddr), srd(sWS), S(sSPIN), S(sSPIN), phase, V(vdata), S(sSPIN), SPIN_MAX, lab, lab, lab))
        return ["v_cmp_gt_u32 vcc, %d, %s" % (phase, V(vdata)), "s_cbranch_vccnz %s" % lab, lab + "_b:"]
    def load_flags(self, vdata, vaddr):
        return "buffer_load_dword %s, %s, %s, 0 offen sc1" % (V(vdata), V(vaddr), srd(sWS))
    def publish(self, vtmp, phase):
        return ["v_mov_b32 %s, %d" % (V(vtmp), phase), "s_mov_b64 exec, 1",
                "buffer_store_dword %s, off, %s, %s sc1" % (V(vtmp), srd(sWS), S(sFLAG)), "s_mov_b64 exec, -1"]
    def stamp(self, name):
        if not self.timing: return []
        k = self.nstamp; self.nstamp += 1
        self.stamp_names.append(name)
        return [("s_memtime" if self.timing == 2 else "s_memrealtime") + " s[100:101]", "s_waitcnt lgkmcnt(0)", "s_mov_b32 s%d, s100" % (60 + k - self.sbase)]
    def flush_stamps(self, v0, v1):
        if not self.timing: return
        P = self.P
        assert self.nstamp - self.sbase <= 16
        P("v_mov_b32 %s, 0" % V(v0))
        for k in range(self.sbase, self.nstamp):
            P("v_writelane_b32 %s, s%d, %d" % (V(v0), 60 + k - self.sbase, k - self.sbase))
        P("v_mbcnt_lo_u32_b32 %s, -1, 0\nv_mbcnt_hi_u32_b32 %s, -1, %s\nv_lshlrev_b32 %s, 2, %s" % (V(v1), V(v1), V(v1), V(v1), V(v1)))
        P("s_lshl_b32 s3, s2, 2\ns_add_u32 s3, s3, %s\ns_lshl_b32 s3, s3, 8\ns_add_u32 s3, s3, %d" % (S(sWAVE), WS_TIM + 4 * self.sbase))
        P("s_mov_b64 exec, 0xffff\nbuffer_store_dword %s, %s, %s, s3 offen\ns_mov_b64 exec, -1" % (V(v0), V(v1), srd(sWS)))
        self.sbase = self.nstamp
    def finish(self):
        P = self.P
        self.flush_stamps(0, 1)
        P.label(self.name + "_end")
        P("s_endpgm")
        return kernel_header(self.name) + P.finalize() + "".join(self.slow)

def prologue(C):
    P = C.P
    P("s_cmp_ge_u32 s2, 256\ns_cbranch_scc1 %s_end" % C.name)
    P("s_load_dwordx2 s[4:5], s[0:1], 0\ns_load_dwordx2 s[8:9], s[0:1], 8\ns_load_dwordx2 s[12:13], s[0:1], 16\ns_load_dwordx2 s[16:17], s[0:1], 24")
    P("s_load_dwordx2 s[20:21], s[0:1], 40\ns_load_dwordx2 s[24:25], s[0:1], 48\ns_load_dwordx2 s[28:29], s[0:1], 56")
    P("s_load_dwordx2 s[32:33], s[0:1], 64\ns_load_dwordx2 s[40:41], s[0:1], 72\ns_load_dwordx2 s[36:37], s[0:1], 80")
    for b, n in ((sX, 2359296), (sWQKV, 1990656), (sWPHI, 20736), (sWO, 663552), (sWG, 5308416), (sWU, 5308416), (sWD, 5308416),
                 (sOUT, 2359296), (sWS, WS_SIZE), (sDBG, 256), (sWN, 5308416)):
        P("s_mov_b32 s%d, %d\ns_mov_b32 s%d, 0x20000" % (b + 2, n, b + 3))
    P("v_lshrrev_b32 v1, 6, v0\nv_and_b32 v0, 63, v0\nv_readfirstlane_b32 %s, v1" % S(sWAVE))
    P("s_and_b32 %s, s2, 7\ns_lshr_b32 %s, s2, 3" % (S(sXCD), S(sIDX)))
    P("s_lshl_b32 %s, %s, 10" % (S(sW1K), S(sWAVE)))
    P("s_lshl_b32 %s, s2, 7\ns_lshl_b32 s80, %s, 2\ns_add_u32 %s, %s, s80" % (S(sFLAG), S(sWAVE), S(sFLAG), S(sFLAG)))
    P("s_lshr_b32 %s, %s, 1\ns_and_b32 %s, %s, 1\ns_lshr_b32 %s, %s, 3\ns_and_b32 %s, %s, 7" %
      (S(sFQ), S(sXCD), S(sMH), S(sXCD), S(sRB), S(sIDX), S(sFS), S(sIDX)))
    P("s_waitcnt lgkmcnt(0)")

def allred(reg, tmp, op):
    return ["v_mov_b32 %s, %s" % (V(tmp), V(reg)), "v_permlane16_swap_b32 %s, %s" % (V(reg), V(tmp)), "%s %s, %s, %s" % (op, V(reg), V(reg), V(tmp)),
            "v_mov_b32 %s, %s" % (V(tmp), V(reg)), "v_permlane32_swap_b32 %s, %s" % (V(reg), V(tmp)), "%s %s, %s, %s" % (op, V(reg), V(reg), V(tmp))]

def mfma(d, a, b, c=None):
    return "v_mfma_f32_16x16x32_bf16 %s, %s, %s, %s" % (R(d, 4), R(a, 4), R(b, 4), "0" if c is None else R(c, 4))

class LdsAddr:
    def __init__(self, regs, base=0):
        self.regs, self.base = regs, base
    def rebase(self, lo, hi):
        if lo >= self.base and hi - self.base <= 65536: return []
        d = lo - self.base
        self.base = lo
        if d > 0: return ["v_add_u32 %s, %d, %s" % (V(r), d, V(r)) for r in self.regs]
        return ["v_subrev_u32 %s, %d, %s" % (V(r), -d, V(r)) for r in self.regs]
    def off(self, addr):
        o = addr - self.base
        assert 0 <= o < 65536, (addr, self.base)
        return o
```

```python
from common import *

vA16 = 0
vG, vU, vP = 32, 96, 160
vWF = 192
vOX = 208
vTRU = 216
vTRN = 220
vDM, vDL = 221, 222
vWD = 223
vL16, vL8 = 232, 233
vR2 = 234
vFA, vFD = 238, 239
vT = 240
AG = 256

sA, sCOL, sNB, sNL, sWDB, sWD0, sHST, sHSN, sHLD, sMT2 = 76, 77, 78, 79, 80, 81, 82, 83, 84, 85
t0, t1, t2, t3 = 96, 97, 98, 99
sL2, sD2, sE1, sE2 = 92, 93, 94, 95

CFG = dict(ustep=8, dstep=7, astep=10, hstep=6, hstep2=12, e4=100)
LDS_N = 120 * 1024
PAIRS = [(16, 17), (14, 15)] + [(2 * i, 2 * i + 1) for i in range(7)]
def areg(phi, m):
    return vA16 + (phi - 16) * 16 + 4 * m if phi >= 16 else AG + phi * 16 + 4 * m
def slab_addr(sig):
    return ((sig // 6 + 4) % 5) * 24576 + (sig % 6) * 4096
def slab_phi(sig):
    r = sig % 18
    return PAIRS[r // 2][r % 2]
WD_SLAB = [[LDS_N + 9216 * i for i in range(4)], [24576 + 9216 * i for i in range(4)], [61440 + 9216 * i for i in range(4)],
           [98304, 98304 + 9216, 0, 9216]]
def wd_slab(stage, i): return WD_SLAB[stage % 4][i]
def kappa(p):
    st, i = p // 4, p % 4
    if st == 0: return 32 + i
    kw = (i & 1) + 4 * (i >> 1)
    return 8 * (st - 1) + kw if st <= 4 else 8 * (st - 5) + 2 + kw
def oreg(m, n):
    k = m * 9 + n
    if k < 8: return vA16 + 4 * k
    if k < 16: return vP + 4 * (k - 8)
    return vOX + 4 * (k - 16)

def ffn_setup(C, vlane):
    P = C.P
    L = V(vlane)
    a, b, c, d = V(vT), V(vT + 1), V(vT + 2), V(vT + 3)
    P("s_lshl_b32 %s, %s, 6\ns_lshl_b32 %s, %s, 4\ns_add_u32 %s, %s, %s" % (S(t0), S(sMH), S(t1), S(sRB), S(t0), S(t0), S(t1)))
    P("s_lshl_b32 %s, %s, 2\ns_add_u32 %s, %s, %s" % (S(t1), S(sWAVE), S(t1), S(t1), S(t0)))
    P("s_mul_i32 %s, %s, 18432\ns_add_u32 %s, %s, %d" % (S(sA), S(t1), S(sA), S(sA), WS_HC))
    P("s_mul_i32 %s, %s, 147456\ns_mul_i32 %s, %s, 36864\ns_add_u32 %s, %s, %s\ns_add_u32 %s, %s, %d" %
      (S(t1), S(t1), S(t2), S(sFQ), S(t1), S(t1), S(t2), S(t1), S(t1), WS_HH))
    P("s_lshl_b32 %s, %s, 12\ns_add_u32 %s, %s, %s" % (S(t3), S(sFS), S(sHST), S(t1), S(t3)))
    P("s_lshl_b32 %s, %s, 9\ns_add_u32 %s, %s, %s\ns_add_u32 %s, %s, 32768" % (S(t3), S(sFS), S(sHSN), S(t1), S(t3), S(sHSN), S(sHSN)))
    P("s_lshr_b32 %s, %s, 2\ns_lshl_b32 %s, %s, 3\ns_add_u32 %s, %s, %s\ns_lshl_b32 %s, %s, 1\ns_add_u32 %s, %s, %s" %
      (S(t1), S(sFS), S(t1), S(t1), S(t0), S(t0), S(t1), S(t1), S(sWAVE), S(sMT2), S(t0), S(t1)))
    P("s_mul_i32 %s, %s, 147456\ns_add_u32 %s, %s, %s\ns_add_u32 %s, %s, %d" % (S(sHLD), S(sMT2), S(sHLD), S(sHLD), S(t2), S(sHLD), S(sHLD), WS_HH))
    P("s_mul_i32 %s, %s, 2304\ns_lshl_b32 %s, %s, 8\ns_add_u32 %s, %s, %s" % (S(t0), S(sFQ), S(t1), S(sFS), S(sCOL), S(t0), S(t1)))
    P("s_lshl_b32 %s, %s, 5\ns_add_u32 %s, %s, %s\ns_add_u32 %s, %s, 2048" % (S(t1), S(sFS), S(t0), S(t0), S(t1), S(t0), S(t0)))
    P("s_lshr_b32 %s, %s, 1\ns_mul_i32 %s, %s, %d\ns_add_u32 %s, %s, %s" % (S(t1), S(sWAVE), S(t2), S(t1), 32 * 9216, S(sNB), S(t0), S(t2)))
    P("s_mul_i32 %s, %s, %d\ns_add_u32 %s, %s, %s" % (S(t2), S(t1), 288 * 9216, S(sNL), S(t0), S(t2)))
    P("s_mul_i32 %s, %s, %d\ns_and_b32 %s, %s, 3\ns_mul_i32 %s, %s, 288\ns_add_u32 %s, %s, %s" %
      (S(t0), S(sFQ), 1152 * 1152, S(t2), S(sFS), S(t2), S(t2), S(t0), S(t0), S(t2)))
    P("s_and_b32 %s, %s, 1\ns_lshl_b32 %s, %s, 2\ns_add_u32 %s, %s, %s\ns_mul_i32 %s, %s, 36864\ns_add_u32 %s, %s, %s" %
      (S(t2), S(sWAVE), S(t1), S(t1), S(t2), S(t2), S(t1), S(t2), S(t2), S(sWDB), S(t0), S(t2)))
    P("s_add_u32 %s, %s, 32\ns_mul_i32 %s, %s, 36864\ns_add_u32 %s, %s, %s" % (S(t2), S(sWAVE), S(t2), S(t2), S(sWD0), S(t0), S(t2)))
    P("s_and_b32 %s, %s, 1\ns_cmp_eq_u32 %s, 0\ns_cselect_b32 %s, %s, %s\ns_cselect_b32 %s, %s, %s" %
      (S(t2), S(sWAVE), S(t2), S(sWN), S(sWG), S(sWU), S(sWN + 1), S(sWG + 1), S(sWU + 1)))
    P("s_movk_i32 %s, 9216" % S(t3))
    def grow(rho, out, tmp):
        P("v_bfe_u32 %s, %s, 2, 2\nv_mul_u32_u24 %s, 72, %s" % (out, rho, out, out))
        P("v_lshrrev_b32 %s, 4, %s\nv_lshl_add_u32 %s, %s, 2, %s" % (tmp, rho, out, tmp, out))
        P("v_and_b32 %s, 3, %s\nv_add3_u32 %s, %s, %s, 64" % (tmp, rho, out, out, tmp))
    P("s_lshl_b32 %s, %s, 3\nv_lshrrev_b32 %s, 3, %s\nv_add_u32 %s, %s, %s" % (S(t2), S(sWAVE), a, L, a, S(t2), a))
    P("v_and_b32 %s, 6, %s\nv_and_b32 %s, 7, %s\nv_xor_b32 %s, %s, %s\nv_lshlrev_b32 %s, 4, %s" % (b, a, c, L, b, b, c, b, b))
    P("v_mad_u32_u24 %s, %s, %s, %s" % (V(vDM), a, S(t3), b))
    grow(a, c, d)
    P("v_mad_u32_u24 %s, %s, %s, %s" % (V(vDL), c, S(t3), b))
    P("v_lshrrev_b32 %s, 1, %s\nv_and_b32 %s, 1, %s\nv_lshlrev_b32 %s, 4, %s" % (a, L, b, L, b, b))
    P("v_mad_u32_u24 %s, %s, %s, %s" % (V(vWD), a, S(t3), b))
    grow(a, c, d)
    P("v_mad_u32_u24 %s, %s, %s, %s" % (V(vWD + 1), c, S(t3), b))

def dma_unit(P, sig, tok=None):
    st, phi = sig // 18, slab_phi(sig)
    src = sWG if st % 2 == 0 else sWU
    col = 128 if st >= 2 else 0
    if phi < 16: row, vo = 72 * (phi >> 1) + 32 * (phi & 1), vDM
    else: row, vo = 288 * (phi - 16), vDL
    return ["s_add_u32 m0, %s, %d" % (S(sW1K), slab_addr(sig)), "s_add_u32 %s, %s, %d" % (S(t0), S(sCOL), row * 9216 + col),
            P.mk("buffer_load_dwordx4 %s, %s, %s offen lds" % (V(vo), srd(src), S(t0)), tok)]

def ffn_prefetch1(C):
    P = C.P
    for it in [8, 7] + list(range(7)):
        P("s_add_u32 m0, %s, %d" % (S(sW1K), LDS_N + it * 4096))
        if it < 8:
            P("s_add_u32 %s, %s, %d" % (S(t0), S(sNB), it * 72 * 9216))
            P("buffer_load_dwordx4 %s, %s, %s offen lds" % (V(vWD), srd(sWN), S(t0)))
        else:
            P("buffer_load_dwordx4 %s, %s, %s offen lds" % (V(vWD + 1), srd(sWN), S(sNL)))
    for sig in range(6):
        for x in dma_unit(P, sig): P.add(x)

def ffn_prefetch2(C):
    P = C.P
    tok = P.newtok()
    for sig in range(6, 30):
        for x in dma_unit(P, sig, tok if sig == 29 else None): P.add(x)
    return tok

def ffn_addr2(C, vlane):
    P = C.P
    L = V(vlane)
    a, b, c, d = V(vT), V(vT + 1), V(vT + 2), V(vT + 3)
    P("v_lshlrev_b32 %s, 4, %s\nv_lshlrev_b32 %s, 3, %s" % (V(vL16), L, V(vL8), L))
    P("v_lshrrev_b32 %s, 2, %s\nv_and_b32 %s, 3, %s" % (a, L, b, L))
    P("v_lshlrev_b32 %s, 5, %s\nv_lshl_add_u32 %s, %s, 3, %s\nv_add_u32 %s, %d, %s" % (c, a, c, b, c, V(vTRN), LDS_N, c))
    P("v_bfe_u32 %s, %s, 1, 2" % (c, a))
    P("v_lshlrev_b32 %s, 7, %s\nv_lshl_add_u32 %s, %s, 3, %s" % (d, a, d, b, d))
    for T in range(4):
        P("v_xor_b32 %s, %d, %s\nv_lshl_add_u32 %s, %s, 5, %s" % (V(vTRU + T), T, c, V(vTRU + T), V(vTRU + T), d))
    for q in range(9):
        r = V(vWD + q)
        P("v_add_u32 %s, %d, %s\nv_mul_u32_u24 %s, 3641, %s\nv_lshrrev_b32 %s, 16, %s" % (a, 64 * q, L, b, a, b, b))
        P("v_mul_u32_u24 %s, 864, %s\nv_lshl_add_u32 %s, %s, 4, %s" % (b, b, r, a, b))
        if q % 4: P("v_subrev_u32 %s, %d, %s" % (r, 1024 * (q % 4), r))

def ffn_main(C, vlane_src=None, s3_addr_ready=True):
    P = C.P
    a, b, c, d = V(vT), V(vT + 1), V(vT + 2), V(vT + 3)
    P.add(C.load_flags(vFD, vFA))
    P("s_waitcnt vmcnt(0)")
    for x in C.check_flags(vFD, vFA, 3): P.add(x)
    for x in C.stamp("s3done"): P.add(x)
    def aload(phi, m):
        return ["s_add_u32 %s, %s, %d" % (S(t1), S(sA), m * 18432 + phi * 1024),
                "buffer_load_dwordx4 %s, %s, %s, %s offen sc1" % (R(areg(phi, m), 4), V(vL16), srd(sWS), S(t1)),
                "buffer_load_dwordx4 %s, %s, %s, %s offen offset:1024 sc1" % (R(areg(phi + 1, m), 4), V(vL16), srd(sWS), S(t1))]
    for pr in PAIRS[:2]:
        for m in range(4):
            for x in aload(pr[0], m): P.add(x)
    it = ["v_lshrrev_b32 %s, 4, %s" % (V(vFA), V(vL16)), "v_and_b32 %s, 7, %s" % (V(vFA), V(vFA)), "v_lshlrev_b32 %s, 10, %s" % (V(vFA), V(vFA)),
          "s_lshl_b32 %s, %s, 13" % (S(t1), S(sRB)), "s_lshl_b32 %s, %s, 7" % (S(sL2), S(sXCD)), "s_add_u32 %s, %s, %s" % (S(t1), S(t1), S(sL2)),
          "s_lshr_b32 %s, %s, 2" % (S(sL2), S(sFS)), "s_lshl_b32 %s, %s, 3" % (S(sL2), S(sL2)), "s_add_u32 %s, %s, %s" % (S(t1), S(t1), S(sL2)),
          "s_lshr_b32 %s, %s, 1" % (S(sL2), S(sWAVE)), "s_lshl_b32 %s, %s, 2" % (S(sL2), S(sL2)), "s_add_u32 %s, %s, %s" % (S(t1), S(t1), S(sL2)),
          "v_add_u32 %s, %s, %s" % (V(vFA), S(t1), V(vFA))]
    for x in it: P.add(x)
    P("s_barrier")
    main, blocks = [], []
    for st in range(4):
        tiles = [0, 1, 2, 3] + (["ng", "nu"] if st == 0 else [])
        for pi, pr in enumerate(PAIRS):
            for T in tiles:
                bi = len(blocks)
                wf = vWF + 8 * (bi % 3)
                blocks.append(dict(start=len(main), g=1, st=st, pi=pi, T=T, wf=wf))
                for m in range(4):
                    if T == "ng": acc = vP + 4 * m
                    elif T == "nu": acc = vP + 16 + 4 * m
                    else: acc = (vG if st % 2 == 0 else vU) + 16 * T + 4 * m
                    order = (0, 1) if m % 2 == 0 else (1, 0)
                    for q, i in enumerate(order):
                        x = mfma(acc, wf + 4 * i, areg(pr[i], m), None if (pi == 0 and q == 0) else acc)
                        if m == 0 and q == 0:
                            w = list(range(wf, wf + 8))
                            if st == 0 and T == 0 and pi > 0:
                                for mm in range(4): w += [areg(pr[0], mm), areg(pr[1], mm)]
                            x = [WaitRegs(w), x]
                        main.append(x)
    nb1 = len(blocks)
    def hreg(p, m): return AG + 8 * (p % 28) + 4 * m
    for st in range(9):
        for pp in range(2):
            for n in range(9):
                bi = len(blocks)
                wf = AG + 224 + 8 * ((bi - nb1) % 4)
                blocks.append(dict(start=len(main), g=2, st=st, pp=pp, n=n, wf=wf))
                for m in range(2):
                    order = (0, 1) if m % 2 == 0 else (1, 0)
                    for q, i in enumerate(order):
                        p = 4 * st + 2 * pp + i
                        x = mfma(oreg(m, n), wf + 4 * i, hreg(p, m), None if (st == 0 and pp == 0 and q == 0) else oreg(m, n))
                        if m == 0 and q == 0:
                            w = list(range(wf, wf + 8))
                            if n == 0:
                                for mm in range(2):
                                    for ii in range(2): w += list(range(hreg(p + ii, mm), hreg(p + ii, mm) + 4))
                            x = [WaitRegs(w), x]
                        main.append(x)
    NM = len(main)
    start = [bl["start"] for bl in blocks] + [NM]
    stage1 = [min(bl["start"] for bl in blocks if bl["g"] == 1 and bl["st"] == s_) for s_ in range(4)] + [start[nb1]]
    stage2 = [min(bl["start"] for bl in blocks if bl["g"] == 2 and bl["st"] == s_) for s_ in range(9)] + [NM]
    def pair_end(st, pi):
        return max(start[i + 1] for i, bl in enumerate(blocks) if bl["g"] == 1 and bl["st"] == st and bl["pi"] == pi) - 1

    rd, dm = [], []
    au = LdsAddr([vTRU + T for T in range(4)], 0)
    aw = LdsAddr([vTRN], 0)
    toks = {}
    def wd_dma(stage, nb, step):
        tok = P.newtok(); toks[("d", stage)] = tok
        if stage == 0: so = S(sWD0)
        else:
            k = 8 * (stage - 1) if stage <= 4 else 8 * (stage - 5) + 2
            dm.append((nb, INF, "s_add_u32 %s, %s, %d" % (S(t2), S(sWDB), k * 36864))); so = S(t2)
        sl = WD_SLAB[stage % 4]
        if stage % 4 != 3:
            dm.append((nb, INF, "s_mul_i32 %s, %s, 9216" % (S(t3), S(sWAVE)))); base = sl[0]
        else:
            dm.append((nb, INF, ["s_add_u32 %s, %s, 2" % (S(t3), S(sWAVE)), "s_and_b32 %s, %s, 3" % (S(t3), S(t3)), "s_mul_i32 %s, %s, 9216" % (S(t3), S(t3)),
                                 "s_cmp_lt_u32 %s, 2" % S(sWAVE), "s_cselect_b32 %s, %d, 0" % (S(sD2), 98304 - 2 * 9216), "s_add_u32 %s, %s, %s" % (S(t3), S(t3), S(sD2))]))
            base = 0
        for q in range(9):
            it = []
            if q % 4 == 0: it.append("s_add_u32 m0, %s, %d" % (S(t3), base + 1024 * q))
            it.append(P.mk("buffer_load_dwordx4 %s, %s, %s offen offset:%d lds" % (V(vWD + q), srd(sWD), so, 1024 * (q % 4)), tok if q == 8 else None))
            dm.append((nb + 2 + step * q, INF, it))
    prev_nb = -1
    for bi, bl in enumerate(blocks):
        lead = 2 if bl["g"] == 1 else 3
        nb = start[bi - lead] - 1 if bi >= lead else -1
        dl = start[bi - lead + 1] if bi >= lead else 0
        if bl["g"] == 1:
            st, pi, T = bl["st"], bl["pi"], bl["T"]
            sig = st * 18 + 2 * pi
            if T == 0 and sig % 6 == 0 and sig > 0:
                g = sig // 6
                it = []
                if ("u", g) in toks: it.append(WaitTok(toks[("u", g)]))
                it += ["s_waitcnt lgkmcnt(0)", "s_barrier"]
                rd.append((nb, nb + 1, it))
                if g + 4 < 12:
                    tok = P.newtok(); toks[("u", g + 4)] = tok
                    for s2 in range(6 * (g + 4), 6 * (g + 5)):
                        dm.append((nb + 1 + (s2 % 6) * CFG["ustep"], INF, dma_unit(P, s2, tok if s2 % 6 == 5 else None)))
                if g == 3:
                    wd_dma(0, nb + 1 + 6 * CFG['ustep'], 4)
                if g == 9: wd_dma(1, nb + 1, 10)
                if g == 10: wd_dma(2, nb + 1, 10)
                nb += 1
            items = []
            for i in range(2):
                if T in ("ng", "nu"):
                    o = PAIRS[pi][i] * 2048 + (1024 if T == "nu" else 0)
                    items += ["ds_read_b64_tr_b16 %s, %s offset:%d" % (R(bl["wf"] + 4 * i + 2 * h, 2), V(vTRN), o + 512 * h) for h in range(2)]
                else:
                    ad = slab_addr(sig + i)
                    gbase = slab_addr(sig - sig % 6)
                    items += au.rebase(gbase, gbase + 24576)
                    items += ["ds_read_b64_tr_b16 %s, %s offset:%d" % (R(bl["wf"] + 4 * i + 2 * h, 2), V(vTRU + T), au.off(ad + 2048 * h)) for h in range(2)]
        else:
            st, pp, n = bl["st"], bl["pp"], bl["n"]
            if bi == nb1:
                nb = start[bi - 2] - 1; dl = start[bi - 1]
            if bi == nb1 + 1:
                nb = start[bi - 3] - 1; dl = start[bi - 1]
            if bi == nb1 + 2:
                dl = start[bi - 1]
            if pp == 0 and n == 0:
                it = [WaitTok(toks[("d", st)]), "s_waitcnt lgkmcnt(0)", "s_barrier"]
                rd.append((nb, nb + 1, it))
                if st == 0:
                    rd.append((nb + 1, dl, ["v_lshrrev_b32 %s, 6, %s" % (V(vTRN), V(vL16)), "v_mul_u32_u24 %s, 288, %s" % (V(vTRN), V(vTRN)),
                                            "v_and_b32 %s, 24, %s" % (V(vT + 15), V(vL8)), "v_add_u32 %s, %s, %s" % (V(vTRN), V(vTRN), V(vT + 15))]))
                if st + 3 < 9: wd_dma(st + 3, nb + 1, CFG['dstep'])
                nb += 1
            items = []
            for i in range(2):
                ad = wd_slab(st, 2 * pp + i)
                lo = wd_slab(st, 2 * pp)
                items += aw.rebase(lo, lo + 2 * 9216)
                items += ["ds_read_b64_tr_b16 %s, %s offset:%d" % (R(bl["wf"] + 4 * i + 2 * h, 2), V(vTRN), aw.off(ad + 4608 * h + 32 * n)) for h in range(2)]
        nb = max(nb, prev_nb); prev_nb = nb
        dl = max(dl, nb + 1)
        for x in items: rd.append((nb, dl, x))

    ld = []
    for pi in range(2, 9):
        use = [bl["start"] for bl in blocks if bl["g"] == 1 and bl["st"] == 0 and bl["pi"] == pi][0]
        for m in range(4):
            ld.append((max(-1, ((pi - 2) * 4 + m) * CFG['astep'] - 1), use, aload(PAIRS[pi][0], m)))
        if pi == 4:
            it = ["v_lshrrev_b32 %s, 2, %s" % (V(vT + 8), V(vL16)), "v_and_b32 %s, 0x3c, %s" % (V(vT + 8), V(vT + 8)),
                  "v_lshrrev_b32 %s, 8, %s" % (V(vT + 9), V(vL16)), "v_lshl_add_u32 %s, %s, 9, %s" % (V(vT + 8), V(vT + 9), V(vT + 8)),
                  "s_sub_u32 %s, %s, %d" % (S(t1), S(sA), WS_HC), "s_mul_hi_u32 %s, %s, %d" % (S(t1), S(t1), 477218589),
                  "s_add_u32 %s, %s, %d" % (S(t1), S(t1), WS_SSQ)]
            ld.append((0, INF, it))
            for m in range(4):
                it = []
                if m == 2: it.append("s_add_u32 %s, %s, 4096" % (S(t1), S(t1)))
                for h in range(2):
                    it.append("buffer_load_dword %s, %s, %s, %s offen offset:%d sc1" % (V(vT + 2 * m + h), V(vT + 8), srd(sWS), S(t1), 2048 * (m % 2) + 256 * h))
                ld.append((0, INF, it))
    s4 = stage1[3]
    def hload(p):
        k = kappa(p); it = []
        if p < 4:
            for m in range(2):
                it.append("s_add_u32 %s, %s, %d" % (S(t1), S(sHLD), m * 147456 + k * 1024))
                for h in range(2):
                    it.append("buffer_load_dwordx2 %s, %s, %s, %s offen offset:%d sc1" % (R(hreg(p, m) + 2 * h, 2), V(vL8), srd(sWS), S(t1), 512 * h))
            return [it[:3], it[3:]]
        assert p % 2 == 0 and kappa(p + 1) == k + 1
        out = []
        for m in range(2):
            out.append(["s_add_u32 %s, %s, %d" % (S(t1), S(sHLD), m * 147456 + k * 1024),
                        "buffer_load_dwordx4 %s, %s, %s, %s offen sc1" % (R(hreg(p, m), 4), V(vL16), srd(sWS), S(t1)),
                        "buffer_load_dwordx4 %s, %s, %s, %s offen offset:1024 sc1" % (R(hreg(p + 1, m), 4), V(vL16), srd(sWS), S(t1))])
        return out
    def use2(p): return stage2[p // 4] + 36 * ((p % 4) // 2)
    ld.append((s4 + 40, INF, C.load_flags(vFD, vFA)))
    ld.append((pair_end(3, 2), INF, C.check_flags(vFD, vFA, 4) + C.stamp("s4a")))
    hn = 0
    for p in list(range(4)) + list(range(4, 20, 2)):
        dead = pair_end(3, 2 + (p + 1) // 4)
        for x in hload(p):
            hn = max(hn + CFG['hstep'], dead); ld.append((hn, use2(p), x))
    FB_LOAD, FB_CHECK = stage2[3] + 36, stage2[4]
    ld.append((FB_LOAD, INF, C.load_flags(vFD, vFA)))
    ld.append((FB_CHECK, INF, C.check_flags(vFD, vFA, 5) + C.stamp("s4b")))
    for p in range(20, 36, 2):
        for x in hload(p):
            hn = max(hn + CFG['hstep2'], FB_CHECK); ld.append((min(hn, use2(p) - 30), use2(p), x))

    ep = []
    nb = pair_end(0, 6)
    for m in range(4):
        r = vR2 + m
        it = ["v_add_f32 %s, %s, %s" % (V(r), V(vT + 2 * m), V(vT + 2 * m + 1))] + allred(r, vT + 9, "v_add_f32")
        it += ["v_mov_b32 %s, 0x3727c5ac" % V(vT + 9), "v_fmac_f32 %s, 0x3ae38e39, %s" % (V(vT + 9), V(r)), "v_rcp_f32 %s, %s" % (V(r), V(vT + 9))]
        for x in it: ep.append((nb, stage1[1], x))
    stq = [vT + 8, vT + 12]
    nb = stage1[1] + 3
    for m in range(4):
        g, u, q = vP + 4 * m, vP + 16 + 4 * m, stq[m % 2]
        for j in range(4):
            ep.append((nb, INF, "v_max_f32 %s, 0, %s" % (V(g + j), V(g + j))))
            ep.append((nb, INF, "v_mul_f32 %s, %s, %s" % (V(u + j), V(vR2 + m), V(u + j))))
            ep.append((nb, INF, "v_mul_f32 %s, %s, %s" % (V(g + j), V(g + j), V(u + j))))
        for h in range(2): ep.append((nb, INF, "v_cvt_pk_bf16_f32 %s, %s, %s" % (V(q + h), V(g + 2 * h), V(g + 2 * h + 1))))
        ep.append((nb, INF, ["s_add_u32 %s, %s, %d" % (S(sE1), S(sHSN), m * 147456),
                             "buffer_store_dwordx2 %s, %s, %s, %s offen sc1" % (V(q, 2), V(vL8), srd(sWS), S(sE1))]))
    for T in range(4):
        for m in range(4):
            g, pk = vG + 16 * T + 4 * m, vP + 2 * (4 * T + m)
            for j in range(4): ep.append((nb, stage1[2], "v_mul_f32 %s, %s, %s" % (V(g + j), V(vR2 + m), V(g + j))))
            for h in range(2): ep.append((nb, stage1[2], "v_cvt_pk_bf16_f32 %s, %s, %s" % (V(pk + h), V(g + 2 * h), V(g + 2 * h + 1))))
            for h in range(2): ep.append((nb, stage1[2], "v_pk_max_i16 %s, %s, 0" % (V(pk + h), V(pk + h))))
    nb = stage1[2] + 3
    tokA = P.newtok()
    k = 0
    for m in range(4):
        for i in range(2):
            q = stq[k % 2]; k += 1
            for tt in range(2):
                T = 2 * i + tt
                u, pk = vU + 16 * T + 4 * m, vP + 2 * (4 * T + m)
                for h in range(2):
                    ep.append((nb, stage1[3], "v_lshlrev_b32 %s, 16, %s" % (V(vT + 5), V(pk + h))))
                    ep.append((nb, stage1[3], "v_and_b32 %s, 0xffff0000, %s" % (V(vT + 6), V(pk + h))))
                    ep.append((nb, stage1[3], "v_mul_f32 %s, %s, %s" % (V(vT + 5), V(vT + 5), V(u + 2 * h))))
                    ep.append((nb, stage1[3], "v_mul_f32 %s, %s, %s" % (V(vT + 6), V(vT + 6), V(u + 2 * h + 1))))
                    ep.append((nb, stage1[3], "v_cvt_pk_bf16_f32 %s, %s, %s" % (V(q + 2 * tt + h), V(vT + 5), V(vT + 6))))
            it = []
            if i == 0: it.append("s_add_u32 %s, %s, %d" % (S(sE2), S(sHST), m * 147456))
            it.append(P.mk("buffer_store_dwordx4 %s, %s, %s, %s offen offset:%d sc1" % (V(q, 4), V(vL16), srd(sWS), S(sE2), 1024 * i), tokA if (m, i) == (3, 1) else None))
            ep.append((nb, stage1[3], it))
    ep.append((stage1[3] - 24, stage1[3] + 8, [WaitTok(tokA)] + C.publish(vT + 5, 4)))
    nb = stage1[3] + 9
    for T in range(4):
        for m in range(4):
            g = vG + 16 * T + 4 * m
            for j in range(4):
                ep.append((nb, stage1[4], "v_mul_f32 %s, %s, %s" % (V(g + j), V(vR2 + m), V(g + j))))
                ep.append((nb, stage1[4], "v_max_f32 %s, 0, %s" % (V(g + j), V(g + j))))
    nb = stage1[4] + 3
    tokB = P.newtok()
    k = 0
    for m in range(4):
        for i in range(2):
            q = stq[k % 2]; k += 1
            for tt in range(2):
                T = 2 * i + tt
                u, g = vU + 16 * T + 4 * m, vG + 16 * T + 4 * m
                for j in range(4): ep.append((nb, INF, "v_mul_f32 %s, %s, %s" % (V(u + j), V(u + j), V(g + j))))
                for h in range(2): ep.append((nb, INF, "v_cvt_pk_bf16_f32 %s, %s, %s" % (V(q + 2 * tt + h), V(u + 2 * h), V(u + 2 * h + 1))))
            it = []
            if i == 0: it.append("s_add_u32 %s, %s, %d" % (S(sE2), S(sHST), m * 147456 + 2048))
            it.append(P.mk("buffer_store_dwordx4 %s, %s, %s, %s offen offset:%d sc1" % (V(q, 4), V(vL16), srd(sWS), S(sE2), 1024 * i), tokB if (m, i) == (3, 1) else None))
            ep.append((nb, INF, it))
    ep.append((stage2[2] + 36, FB_LOAD, [WaitTok(tokB)] + C.publish(vT + 5, 5)))
    it = ["s_lshr_b32 %s, %s, 1" % (S(sE1), S(sFQ)), "s_add_u32 %s, %s, %s" % (S(sMT2), S(sMT2), S(sE1)),
          "s_mul_i32 %s, %s, 18432" % (S(sE1), S(sMT2)), "s_and_b32 %s, %s, 3" % (S(sE2), S(sFS)), "s_mul_i32 %s, %s, 4608" % (S(sE2), S(sE2)),
          "s_add_u32 %s, %s, %s" % (S(sE1), S(sE1), S(sE2)), "s_and_b32 %s, %s, 1" % (S(sE2), S(sFQ)), "s_mul_i32 %s, %s, 2560" % (S(sE2), S(sE2)),
          "s_add_u32 %s, %s, %s" % (S(sE1), S(sE1), S(sE2)), "s_add_u32 %s, %s, %d" % (S(sE1), S(sE1), WS_H)]
    it += ["buffer_load_dwordx2 %s, %s, %s, %s offen offset:%d sc1" % (V(vG + 2 * n, 2), V(vL8), srd(sWS), S(sE1), 512 * n) for n in range(5)]
    ep.append((stage2[7], INF, it))
    it = ["v_lshrrev_b32 %s, 4, %s" % (V(vFA), V(vL16)), "v_and_b32 %s, 3, %s" % (V(vFA), V(vFA)), "v_lshlrev_b32 %s, 8, %s" % (V(vFA), V(vFA)),
          "s_lshl_b32 %s, %s, 10" % (S(sE1), S(sIDX)), "s_lshl_b32 %s, %s, 7" % (S(sE2), S(sMH)), "s_add_u32 %s, %s, %s" % (S(sE1), S(sE1), S(sE2)),
          "s_lshl_b32 %s, %s, 2" % (S(sE2), S(sWAVE)), "s_add_u32 %s, %s, %s" % (S(sE1), S(sE1), S(sE2)), "v_add_u32 %s, %s, %s" % (V(vFA), S(sE1), V(vFA))]
    ep.append((stage2[7], INF, it))
    def respread(lo, hi):
        idx = [k for k, e in enumerate(ep) if e[0] == lo]
        for c_, k in enumerate(idx): ep[k] = (lo + (hi - lo) * c_ // len(idx), ep[k][1], ep[k][2])
    respread(pair_end(0, 6), stage1[1] - 8)
    respread(stage1[1] + 3, stage1[2] - 8)
    respread(stage1[2] + 3, stage1[2] + 200)
    respread(stage1[3] + 9, stage1[4] - 8)
    respread(stage1[4] + 3, stage1[4] + CFG["e4"])
    if C.timing:
        for s_ in range(1, 5): ep.append((stage1[s_], INF, C.stamp("g1s%d" % s_)))
        ep.sort(key=lambda x: x[0])

    def per(i):
        k = 1 if (i + 1 < NM and isinstance(main[i + 1], list)) else 2
        if stage1[4] <= i < stage1[4] + CFG["e4"]: k += 1
        return k
    multi_interleave(P, main, [rd, ld, dm, ep], per)
    for x in C.stamp("g2done"): P.add(x)
    ffn_final(C)

def ffn_final(C):
    P = C.P
    labs = [P.newlabel(C.name + "_fin") for _ in range(4)]
    done = P.newlabel(C.name + "_findone")
    P("s_lshl_b32 %s, %s, 3\ns_add_u32 %s, %s, %s\ns_lshl_b32 %s, %s, 4\ns_add_u32 %s, %s, %s" %
      (S(t0), S(sIDX), S(t0), S(t0), S(sMH), S(t0), S(t0), S(t0), S(t0), S(sWAVE)))
    P("s_mul_i32 %s, %s, 2560\ns_add_u32 %s, %s, %d" % (S(t0), S(t0), S(t0), S(t0), WS_PART))
    P("v_lshrrev_b32 %s, 4, %s\nv_and_b32 %s, 15, %s\nv_mul_u32_u24 %s, 1152, %s" % (V(vT), V(vL16), V(vT + 1), V(vT), V(vT + 1), V(vT + 1)))
    P("v_lshrrev_b32 %s, 4, %s\nv_lshl_add_u32 %s, %s, 3, %s" % (V(vT), V(vT), V(vT), V(vT), V(vT + 1)))
    P("s_mul_i32 %s, %s, 18432\ns_and_b32 %s, %s, 3\ns_mul_i32 %s, %s, 288\ns_add_u32 %s, %s, %s" % (S(t2), S(sMT2), S(t3), S(sFS), S(t3), S(t3), S(t2), S(t2), S(t3)))
    P("s_waitcnt vmcnt(0) lgkmcnt(0)\ns_nop 7")
    for fq in range(1, 4):
        P("s_cmp_eq_u32 %s, %d\ns_cbranch_scc1 %s" % (S(sFQ), fq, labs[fq]))
    def part(f): return [(f >> 1, n) for n in (range(5, 9) if f & 1 else range(5))]
    for fq in range(4):
        P.label(labs[fq])
        st = vU
        for d in range(4):
            if d == fq: continue
            tl = part(d); regs = []
            for i, (m, n) in enumerate(tl):
                for h in range(2):
                    P("v_cvt_pk_bf16_f32 %s, %s, %s" % (V(st + 2 * i + h), V(oreg(m, n) + 2 * h), V(oreg(m, n) + 2 * h + 1)))
            P("s_add_u32 %s, %s, %d" % (S(t1), S(t0), (d * 2 * 16 + fq * 4) * 2560))
            P("buffer_store_dwordx4 %s, %s, %s, %s offen sc1" % (V(st, 4), V(vL16), srd(sWS), S(t1)))
            P("buffer_store_dwordx4 %s, %s, %s, %s offen offset:1024 sc1" % (V(st + 4, 4), V(vL16), srd(sWS), S(t1)))
            if len(tl) == 5:
                P("buffer_store_dwordx2 %s, %s, %s, %s offen offset:2048 sc1" % (V(st + 8, 2), V(vL8), srd(sWS), S(t1)))
            st += 12
        tl = part(fq)
        for i, (m, n) in enumerate(tl):
            o = oreg(m, n)
            for h in range(2):
                P("v_lshlrev_b32 %s, 16, %s\nv_and_b32 %s, 0xffff0000, %s" % (V(vT + 2), V(vG + 2 * i + h), V(vT + 3), V(vG + 2 * i + h)))
                P("v_add_f32 %s, %s, %s\nv_add_f32 %s, %s, %s" % (V(o + 2 * h), V(o + 2 * h), V(vT + 2), V(o + 2 * h + 1), V(o + 2 * h + 1), V(vT + 3)))
        P("s_waitcnt vmcnt(0)")
        for x in C.publish(vT + 5, 6): P.add(x)
        P.add(C.load_flags(vFD, vFA))
        P("s_waitcnt vmcnt(0)")
        for x in C.check_flags(vFD, vFA, 6): P.add(x)
        st = vU
        for d in range(4):
            if d == fq: continue
            P("s_add_u32 %s, %s, %d" % (S(t1), S(t0), (fq * 2 * 16 + d * 4) * 2560))
            P("buffer_load_dwordx4 %s, %s, %s, %s offen sc1" % (V(st, 4), V(vL16), srd(sWS), S(t1)))
            P("buffer_load_dwordx4 %s, %s, %s, %s offen offset:1024 sc1" % (V(st + 4, 4), V(vL16), srd(sWS), S(t1)))
            if len(tl) == 5:
                P("buffer_load_dwordx2 %s, %s, %s, %s offen offset:2048 sc1" % (V(st + 8, 2), V(vL8), srd(sWS), S(t1)))
            st += 12
        for k in range(3):
            st = vU + 12 * k
            for i, (m, n) in enumerate(tl):
                o = oreg(m, n)
                for h in range(2):
                    P("v_lshlrev_b32 %s, 16, %s\nv_and_b32 %s, 0xffff0000, %s" % (V(vT + 2), V(st + 2 * i + h), V(vT + 3), V(st + 2 * i + h)))
                    P("v_add_f32 %s, %s, %s\nv_add_f32 %s, %s, %s" % (V(o + 2 * h), V(o + 2 * h), V(vT + 2), V(o + 2 * h + 1), V(o + 2 * h + 1), V(vT + 3)))
                if k == 2:
                    for h in range(2): P("v_cvt_pk_bf16_f32 %s, %s, %s" % (V(o + h), V(o + 2 * h), V(o + 2 * h + 1)))
                    P("buffer_store_dwordx2 %s, %s, %s, %s offen offset:%d" % (V(o, 2), V(vT), srd(sOUT), S(t2), 32 * n))
        if fq < 3:
            P("s_branch %s" % done)
            P.reset()
    P.label(done)
    for x in C.stamp("end"): P.add(x)
```

```python
import re

def vr(base, n=1, kind="v"):
    if n == 1:
        return "%s%d" % (kind, base)
    return "%s[%d:%d]" % (kind, base, base + n - 1)
def V(base, n=1): return vr(base, n, "v")
def Ac(base, n=1): return vr(base, n, "a")
def S(base, n=1): return vr(base, n, "s")
def R(r, n=1):
    if r >= 256:
        return vr(r - 256, n, "a")
    assert r + n <= 256, (r, n)
    return vr(r, n, "v")

_REG = re.compile(r"^(-|\|)?(?:abs\()?([vas])(?:(\d+)|\[(\d+):(\d+)\])\)?\|?$")
def regs_of(tok):
    tok = tok.strip()
    if tok in ("vcc",): return [("s", "vcc")]
    if tok in ("exec",): return [("s", "exec")]
    if tok == "m0": return [("s", "m0")]
    m = _REG.match(tok)
    if not m: return []
    k = m.group(2)
    if m.group(3) is not None: lo = hi = int(m.group(3))
    else: lo, hi = int(m.group(4)), int(m.group(5))
    if k == "a": return [("v", 256 + i) for i in range(lo, hi + 1)]
    return [(k, i) for i in range(lo, hi + 1)]

TRANS = ("v_exp_f32", "v_log_f32", "v_rcp_f32", "v_rsq_f32", "v_sqrt_f32", "v_sin_f32", "v_cos_f32")

class Ins:
    __slots__ = ("text", "op", "kind", "dst", "src", "srcC", "srcAB", "tok", "wide_store", "dpp", "opsel", "is_dma", "nocount")
    def __init__(self, text):
        self.text = text
        self.tok = None
        self.nocount = False
        body = text.split(";")[0].strip()
        sp = body.split(None, 1)
        self.op = op = sp[0] if sp else ""
        rest = sp[1] if len(sp) > 1 else ""
        ops = [o.strip() for o in rest.split(",")] if rest else []
        mods = ""
        if ops:
            last = ops[-1].split()
            if len(last) > 1:
                ops[-1] = last[0]; mods = " ".join(last[1:])
        if "quad_perm" in rest or "op_sel" in rest or "neg_lo" in rest or "neg_hi" in rest:
            i = min(x for x in (rest.find("quad_perm"), rest.find("op_sel"), rest.find("neg_lo"), rest.find("neg_hi")) if x >= 0)
            ops = [o.strip() for o in rest[:i].strip().split(",")]
            last = ops[-1].split(); ops[-1] = last[0]
            mods = " ".join(last[1:]) + " " + rest[i:]
        self.dst, self.src, self.srcC, self.srcAB = [], [], [], []
        self.wide_store = False
        self.is_dma = False
        self.dpp = ("quad_perm" in mods or "row_" in mods or op.endswith("_dpp"))
        self.opsel = ("op_sel" in mods and not op.startswith("v_pk_") and not op.startswith("v_dot")) or "sdwa" in op
        rr = [regs_of(o) for o in ops]
        flat = lambda L: [x for y in L for x in y]
        if op.startswith("v_mfma"):
            self.kind = "mfma"
            self.dst = rr[0]; self.srcAB = rr[1] + rr[2]; self.srcC = rr[3]; self.src = self.srcAB + self.srcC
        elif op.startswith("ds_read") or op.startswith("ds_bpermute") or op.startswith("ds_swizzle"):
            self.kind = "lds"; self.dst = rr[0]; self.src = flat(rr[1:])
            if "d16" in op: self.src += rr[0]
        elif op.startswith("ds_write"):
            self.kind = "lds"; self.src = flat(rr)
        elif op.startswith("buffer_load") or op.startswith("global_load"):
            self.kind = "vmem"
            if re.search(r"\blds\b", mods):
                self.is_dma = True; self.src = flat(rr) + [("s", "m0")]
            else:
                self.dst = rr[0]; self.src = flat(rr[1:])
                if "d16" in op: self.src += rr[0]
        elif op.startswith("buffer_store") or op.startswith("global_store") or op.startswith("buffer_atomic") or op.startswith("global_atomic"):
            self.kind = "vmem"; self.src = flat(rr)
            self.wide_store = op.endswith("x3") or op.endswith("x4")
        elif op.startswith("s_load") or op.startswith("s_memtime") or op.startswith("s_memrealtime"):
            self.kind = "smem"; self.dst = rr[0]; self.src = flat(rr[1:])
        elif op.startswith("v_"):
            self.kind = "valu"
            if op.startswith("v_cmp"):
                self.dst = rr[0]; self.src = flat(rr[1:])
            elif op.startswith("v_permlane") and "swap" in op:
                self.dst = rr[0] + rr[1]; self.src = rr[0] + rr[1]
            elif op in ("v_add_co_u32", "v_sub_co_u32", "v_addc_co_u32", "v_subb_co_u32"):
                self.dst = rr[0] + rr[1]; self.src = flat(rr[2:])
            elif op == "v_nop":
                pass
            else:
                self.dst = rr[0]; self.src = flat(rr[1:])
                if op.startswith("v_fmac") or op.startswith("v_dot2c") or op.startswith("v_writelane") or self.dpp or self.opsel:
                    self.src += rr[0]
        elif op in ("s_waitcnt", "s_nop", "s_barrier", "s_sleep", "s_setprio", "s_endpgm"):
            self.kind = "ctl"
        elif op.startswith("s_cbranch") or op == "s_branch":
            self.kind = "br"
        elif op.endswith(":"):
            self.kind = "label"
        elif op.startswith("."):
            self.kind = "dir"
        elif op.startswith("s_"):
            self.kind = "salu"
            if op.startswith("s_cmp"):
                self.src = flat(rr)
            else:
                self.dst = rr[0]; self.src = flat(rr[1:])
                if "saveexec" in op: self.dst = self.dst + [("s", "exec")]
        elif op == "":
            self.kind = "dir"
        else:
            raise ValueError("unknown op: " + text)

class WaitTok(Ins):
    def __init__(self, tok):
        self.text = ""; self.op = "waittok"; self.kind = "waittok"; self.tok = tok
        self.dst = self.src = self.srcC = self.srcAB = []
        self.wide_store = self.dpp = self.opsel = self.is_dma = False

class WaitRegs(Ins):
    def __init__(self, regs):
        self.text = ""; self.op = "waitregs"; self.kind = "waitregs"; self.tok = None
        self.src = [("v", r) for r in regs]
        self.dst = self.srcC = self.srcAB = []
        self.wide_store = self.dpp = self.opsel = self.is_dma = False

def spread(items, lo, hi, dl=None):
    n = len(items)
    return [(lo + (hi - lo) * k // max(n, 1), 10 ** 9 if dl is None else dl, it) for k, it in enumerate(items)]

class Prog:
    def __init__(self):
        self.ins = []
        self._lab = 0
        self._tok = 0
    def __call__(self, text, tok=None):
        last = None
        for l in text.split("\n"):
            l = l.strip()
            if not l or l.startswith(";"): continue
            last = Ins(l); self.ins.append(last)
        if tok is not None: last.tok = tok
        return last
    def add(self, item):
        if isinstance(item, Ins): self.ins.append(item)
        elif callable(item): item()
        else: self(item)
    def newtok(self):
        self._tok += 1; return self._tok
    def mk(self, text, tok=None):
        i = Ins(text.strip()); i.tok = tok; return i
    def waittok(self, tok):
        self.ins.append(WaitTok(tok))
    def reset(self):
        w = WaitTok(None); w.kind = "reset"; self.ins.append(w)
    def label(self, name): self(name + ":")
    def newlabel(self, p="L"):
        self._lab += 1; return "%s_%d" % (p, self._lab)

    def _waits(self):
        out = []
        vm = []
        lg = []
        done_toks = set()
        smem_pending = set()
        def emit_wait(nv=None, nl=None):
            parts = []
            if nv is not None:
                assert nv <= 63
                parts.append("vmcnt(%d)" % nv)
            if nl is not None:
                parts.append("lgkmcnt(%d)" % min(nl, 15))
            out.append(Ins("s_waitcnt " + " ".join(parts)))
        for ins in self.ins:
            if ins.kind == "reset":
                vm = []; lg = []; smem_pending = set()
                continue
            if ins.kind == "waittok":
                if ins.tok in done_toks: continue
                idx = [i for i, (d, t) in enumerate(vm) if t == ins.tok]
                assert idx, "token %s never issued" % ins.tok
                n = len(vm) - 1 - idx[-1]
                if n <= 63:
                    emit_wait(nv=n)
                for d, t in vm[:idx[-1] + 1]:
                    if t is not None: done_toks.add(t)
                vm = vm[idx[-1] + 1:]
                continue
            if ins.op == "s_waitcnt":
                m = re.search(r"vmcnt\((\d+)\)", ins.text)
                if m:
                    n = int(m.group(1))
                    if len(vm) > n:
                        cut = len(vm) - n
                        for d, t in vm[:cut]:
                            if t is not None: done_toks.add(t)
                        vm = vm[cut:]
                m = re.search(r"lgkmcnt\((\d+)\)", ins.text)
                if m:
                    n = int(m.group(1))
                    if n == 0: lg = []; smem_pending = set()
                    elif not smem_pending and len(lg) > n: lg = lg[len(lg) - n:]
                out.append(ins); continue
            touched = set(ins.src) | set(ins.dst)
            nv = nl = None
            if touched:
                hit = [i for i, (d, t) in enumerate(vm) if d & touched]
                if hit:
                    nv = len(vm) - 1 - hit[-1]
                    if nv > 63: nv = None
                    for d, t in vm[:hit[-1] + 1]:
                        if t is not None: done_toks.add(t)
                    vm = vm[hit[-1] + 1:]
                if smem_pending & touched:
                    nl = 0; lg = []; smem_pending = set()
                else:
                    hit = [i for i, d in enumerate(lg) if d & touched]
                    if hit:
                        if smem_pending:
                            nl = 0; lg = []; smem_pending = set()
                        else:
                            nl = len(lg) - 1 - hit[-1]
                            if nl > 15: nl = 15; lg = lg[len(lg) - 15:]
                            else: lg = lg[hit[-1] + 1:]
            if ins.kind == "vmem" and len(vm) >= 52:
                cut = len(vm) - 51
                for d, t in vm[:cut]:
                    if t is not None: done_toks.add(t)
                vm = vm[cut:]
                nv = 51 if nv is None else min(nv, 51)
            if nv is not None or nl is not None: emit_wait(nv, nl)
            if ins.kind == "waitregs": continue
            out.append(ins)
            if ins.kind == "vmem":
                if ins.nocount: assert not ins.dst
                else: vm.append((set(ins.dst), ins.tok))
            elif ins.kind == "lds": lg.append(set(ins.dst))
            elif ins.kind == "smem": smem_pending |= set(ins.dst); lg.append(set())
        return out

    def _hazards(self, ins_list):
        out = []
        hist = []
        pos = 0
        def need(cur):
            req = 0
            csrc, cdst = set(cur.src), set(cur.dst)
            for p, ppos in reversed(hist):
                dist = pos - ppos - 1
                if dist >= 20: break
                w = 0
                pd = set(p.dst)
                if p.kind == "valu":
                    vd = {x for x in pd if x[0] == "v"}
                    sd = {x for x in pd if x[0] == "s"}
                    if cur.kind == "mfma" and vd & csrc: w = max(w, 2)
                    if cur.kind == "valu":
                        if cur.op.startswith("v_permlane") and vd & csrc: w = max(w, 2)
                        if cur.dpp and vd & csrc: w = max(w, 2)
                        if (cur.op.startswith("v_readfirstlane") or cur.op.startswith("v_readlane")) and vd & csrc: w = max(w, 1)
                        if p.op.split("_e")[0] in TRANS and cur.op.split("_e")[0] not in TRANS and vd & csrc: w = max(w, 1)
                        if p.opsel and vd & (csrc | cdst): w = max(w, 1)
                        if p.op.startswith("v_dot") and vd & (csrc | cdst) and not (cur.op == p.op and not (vd & set(cur.src[:2]))): w = max(w, 3)
                        if sd & csrc:
                            w = max(w, 4 if cur.op.startswith("v_readlane") or cur.op.startswith("v_writelane") else 2)
                        if cur.op.startswith("v_cndmask") and ("s", "vcc") in sd: w = max(w, 2)
                    if p.op.startswith("v_dot") and cur.kind in ("mfma", "vmem", "lds") and vd & csrc: w = max(w, 3)
                    if cur.kind == "vmem" and sd & csrc: w = max(w, 5)
                    if cur.kind == "salu" and sd & csrc: w = max(w, 1)
                    if cur.kind == "br" and "vcc" in cur.op and ("s", "vcc") in sd: w = max(w, 1)
                elif p.kind == "mfma":
                    big = "32x32" in p.op
                    if cur.kind == "mfma":
                        if pd & set(cur.srcAB): w = max(w, 12 if big else 8)
                        cc = set(cur.srcC)
                        if pd & cc and not (pd == cc and cur.op == p.op): w = max(w, 10 if big else 6)
                        elif pd & cdst and not (pd == cc): w = max(w, 10 if big else 6)
                    elif cur.kind in ("valu", "vmem", "lds"):
                        if pd & (csrc | cdst): w = max(w, 12 if big else 8)
                        if cur.kind == "valu" and set(p.srcC) & cdst: w = max(w, 7 if big else 3)
                elif p.kind == "salu":
                    if ("s", "m0") in pd and cur.is_dma: w = max(w, 1)
                elif p.kind == "vmem":
                    if p.wide_store and cdst & set(p.src): w = max(w, 2)
                if w - dist > req: req = w - dist
            return req
        for ins in ins_list:
            if ins.kind in ("dir",):
                out.append(ins); continue
            if ins.kind == "label":
                out.append(ins); continue
            r = need(ins)
            while r > 0:
                k = min(r, 16)
                n = Ins("s_nop %d" % (k - 1)); out.append(n); pos += k; r -= k
            out.append(ins)
            hist.append((ins, pos))
            if ins.op == "s_nop": pos += int(ins.text.split()[1]) + 1
            else: pos += 1
            if len(hist) > 40: hist = hist[-24:]
        return out

    def finalize(self):
        L = self._hazards(self._waits())
        lines = []
        for i in L:
            if i.kind == "label" or i.kind == "dir": lines.append(i.text)
            else: lines.append("    " + i.text)
        self.final = L
        return "\n".join(lines) + "\n"

INF = 10 ** 9
def multi_interleave(P, main, streams, per=2):
    ptr = [0] * len(streams)
    dl = []
    for st in streams:
        d = [x[1] for x in st]
        for k in range(len(d) - 2, -1, -1): d[k] = min(d[k], d[k + 1])
        dl.append(d)
    def emit(si):
        it = streams[si][ptr[si]][2]; ptr[si] += 1
        if isinstance(it, (list, tuple)):
            for x in it: P.add(x)
            return len(it)
        P.add(it); return 1
    for i, m in enumerate(main):
        for si, st in enumerate(streams):
            while ptr[si] < len(st) and dl[si][ptr[si]] <= i:
                assert st[ptr[si]][0] < i or st[ptr[si]][0] < 0, ("deadline before not_before", si, ptr[si], i, st[ptr[si]])
                emit(si)
        if isinstance(m, (list, tuple)):
            for x in m: P.add(x)
        else: P.add(m)
        k = 0
        lim = per(i) if callable(per) else per
        progress = True
        while k < lim and progress:
            progress = False
            for si, st in enumerate(streams):
                if ptr[si] < len(st) and st[ptr[si]][0] <= i:
                    k += emit(si); progress = True
                    break
    for si, st in enumerate(streams):
        while ptr[si] < len(st): emit(si)

def kernel_header(name):
    return (".text\n.globl %s\n.p2align 8\n.type %s,@function\n%s:\n" % (name, name, name))

def kernel_desc(name, nvgpr=512, accum=256, nsgpr=102):
    return (""".section .rodata,"a"
.p2align 6
.amdhsa_kernel %s
  .amdhsa_next_free_vgpr %d
  .amdhsa_next_free_sgpr %d
  .amdhsa_accum_offset %d
  .amdhsa_group_segment_fixed_size 0
  .amdhsa_kernarg_size 88
  .amdhsa_user_sgpr_count 2
  .amdhsa_user_sgpr_kernarg_segment_ptr 1
  .amdhsa_system_sgpr_workgroup_id_x 1
  .amdhsa_float_denorm_mode_32 3
.end_amdhsa_kernel
""" % (name, nvgpr, nsgpr, accum))
```

```python
import sys
from build_all import *
path = sys.argv[1] if len(sys.argv) > 1 else "sequential_preLN__linear_kernel_hedgehog__glu_gated_reglu__prompt.s"
setcfg(sys.argv[2:])
emit(path, 0)
s = open(path).read()
hdr = "".join(l for l in open("sequential_preLN__linear_kernel_hedgehog__glu_gated_reglu__prompt.s.ref").readlines()[:12])
open(path, "w").write(hdr + s)
print("written", path, len(s))
```

```python
from build_all import *
code, C = build(0, "main_kernel"); nb = code_size(code, "main_kernel"); code, C = build(0, "main_kernel", nb)
empty = kernel_header("empty_kernel") + "    s_endpgm\n"
P = Prog()
C2 = Ctx("pf_kernel"); P = C2.P
prologue(C2)
P("v_lshlrev_b32 v1, 7, v0\ns_lshl_b32 s80, s2, 2\ns_add_u32 s80, s80, %s\ns_lshl_b32 s80, s80, 13\nv_add_u32 v1, s80, v1" % S(sWAVE))
for b in (sX, sWQKV, sWO, sWG, sWU, sWD):
    P("buffer_load_dword v2, v1, %s, 0 offen" % srd(b))
P("s_waitcnt vmcnt(0)")
pf = C2.finish()
def L(k, lds=163840, g=256): return "; @launch kernel=%s grid=(%d,1,1) block=(256,1,1) lds=%d\n" % (k, g, lds)
T = '.amdgcn_target "amdgcn-amd-amdhsa--gfx950"\n'
body = code + empty + pf + kernel_desc("main_kernel") + kernel_desc("empty_kernel", 8, 8, 16) + kernel_desc("pf_kernel", 8, 8, 102)
import os
os.makedirs("exp", exist_ok=True)
open("exp/a_single.s", "w").write(L("main_kernel") + T + body)
open("exp/b_mm.s", "w").write(L("main_kernel") + L("main_kernel") + T + body)
open("exp/c_me.s", "w").write(L("main_kernel") + L("empty_kernel", 0, 1) + T + body)
open("exp/d_em.s", "w").write(L("empty_kernel", 0, 1) + L("main_kernel") + T + body)
open("exp/e_pm.s", "w").write(L("pf_kernel", 0) + L("main_kernel") + T + body)
open("exp/f_me4.s", "w").write(L("main_kernel") + L("empty_kernel", 0, 1) * 4 + T + body)
```

```python
from common import *
import ffn
from ffn import AG

ACFG = dict(map="4x8", pace=1.0, pfR={4:[1]}, pa=5, pb=6, pub1=40, touch=0, pf0=[], pfQ=[], pfS2=[], pfS3=[], ct2=1, hop2=1, l4=1, tlb=0, hop=1, r1pre=13, cs=1, rst=[])
sRBK, sHP = 58, 59
sW8K, sW5K, sKV = 76, 77, 78
mD, mE, mF, mG = 80, 82, 84, 94
sXB, sWB, sMT = 86, 87, 88
mA, mB, mC = 90, 92, 94
t0, t1, t2, t3 = 96, 97, 98, 99
RND = 53248
L_PHI, L_WBAR, L_MEAN = 159744, 161792, 162048
L_R, L_ZERO = 92160, 96256
vAC = 0
vSUM, vSSQ = 60, 68
vONE = 76
vWF = 80
vPH = 104
vXD, vXR, vWK, vWR, vWM = 128, 130, 132, 137, 138
vLANE, vA, vB = 139, 140, 142
vF = 144
vPP = 160
vPHI = 184
vT = 208
vFA, vFD = 232, 233
vL16 = 234
vWQ = 235
vX2 = 240
LOG2E = 0x3fb8aa3b
def acc(T, c): return vAC + 12 * T + 4 * c
def xf(k, m): return AG + 8 * k + 4 * m

def f_rb(P, dst, rb, tmp):
    if ACFG["map"] == "4x8":
        P("s_and_b32 %s, %s, 3\ns_lshl_b32 %s, %s, 13\ns_lshr_b32 %s, %s, 2\ns_lshl_b32 %s, %s, 8\ns_add_u32 %s, %s, %s" % (dst, rb, dst, dst, tmp, rb, tmp, tmp, dst, dst, tmp))
    else:
        P("s_and_b32 %s, %s, 1\ns_lshl_b32 %s, %s, 14\ns_lshr_b32 %s, %s, 1\ns_lshl_b32 %s, %s, 7\ns_add_u32 %s, %s, %s" % (dst, rb, dst, dst, tmp, rb, tmp, tmp, dst, dst, tmp))
def f_hp(P, dst, hp, tmp):
    if ACFG["map"] == "4x8":
        P("s_and_b32 %s, %s, 7\ns_lshl_b32 %s, %s, 10\ns_lshr_b32 %s, %s, 3\ns_lshl_b32 %s, %s, 7\ns_add_u32 %s, %s, %s" % (dst, hp, dst, dst, tmp, hp, tmp, tmp, dst, dst, tmp))
    else:
        P("s_lshl_b32 %s, %s, 10" % (dst, hp))
def vf_rb(P, dst, rb, tmp):
    if ACFG["map"] == "4x8":
        P("v_and_b32 %s, 3, %s\nv_lshlrev_b32 %s, 13, %s\nv_lshrrev_b32 %s, 2, %s\nv_lshl_add_u32 %s, %s, 8, %s" % (dst, rb, dst, dst, tmp, rb, dst, tmp, dst))
    else:
        P("v_and_b32 %s, 1, %s\nv_lshlrev_b32 %s, 14, %s\nv_lshrrev_b32 %s, 1, %s\nv_lshl_add_u32 %s, %s, 7, %s" % (dst, rb, dst, dst, tmp, rb, dst, tmp, dst))
def vf_hp(P, dst, hp, tmp):
    if ACFG["map"] == "4x8":
        P("v_and_b32 %s, 7, %s\nv_lshlrev_b32 %s, 10, %s\nv_lshrrev_b32 %s, 3, %s\nv_lshl_add_u32 %s, %s, 7, %s" % (dst, hp, dst, dst, tmp, hp, dst, tmp, dst))
    else:
        P("v_lshlrev_b32 %s, 10, %s" % (dst, hp))

def perm32(P, out, rho, tmp):
    P("v_bfe_u32 %s, %s, 2, 2\nv_lshlrev_b32 %s, 3, %s" % (out, rho, out, out))
    P("v_bfe_u32 %s, %s, 4, 1\nv_lshl_add_u32 %s, %s, 2, %s" % (tmp, rho, out, tmp, out))
    P("v_and_b32 %s, 3, %s\nv_add_u32 %s, %s, %s" % (tmp, rho, out, out, tmp))

def round_x(P, rho):
    base = (rho % 3) * RND
    out = []
    for cb in range(2 if rho < 4 else 1):
        for rg in range(4):
            it = []
            if rg == 0: it.append("s_add_u32 m0, %s, %d" % (S(sW8K), base + cb * 4096))
            if rg % 2 == 0:
                it.append("s_add_u32 %s, %s, %d" % (S(t0), S(sXB), (2 * rho + cb) * 128 + (rg >> 1) * (18432 - 2048)))
            it.append("buffer_load_dwordx4 %s, %s, %s offen offset:%d lds" % (V(vXD + (rg & 1)), srd(sX), S(t0), 1024 * rg))
            out.append(it)
    return out
def round_w(P, rho, tok):
    base = (rho % 3) * RND
    out = []
    for q in range(5):
        it = []
        if q == 0: it.append("s_add_u32 %s, %s, %d" % (S(t0), S(sWB), rho * 4 * 110592 + 1152))
        if q % 4 == 0: it.append("s_add_u32 m0, %s, %d" % (S(sW5K), base + 32768 + 1024 * q))
        it.append(P.mk("buffer_load_dwordx4 %s, %s, %s offen offset:%d lds" % (V(vWK + q), srd(sWQKV), S(t0), 1024 * (q % 4)), tok if q == 4 else None))
        out.append(it)
    return out
def emit_items(P, items):
    for it in items:
        if isinstance(it, (list, tuple)):
            for x in it: P.add(x)
        else: P.add(it)
class Rec:
    def __init__(self): self.items = []
    def __call__(self, text):
        self.items += [l for l in text.split("\n") if l.strip()]

def softmax(P, m):
    p0 = vPP + 12 * m
    p = [p0 + i for i in range(9)]
    mx, mn, a, b = vT, vT + 1, vT + 2, vT + 3
    ep, en = vT + 4, vT + 14
    P("v_max3_f32 %s, %s, %s, %s\nv_min3_f32 %s, %s, %s, %s" % (V(mx), V(p[0]), V(p[1]), V(p[2]), V(mn), V(p[0]), V(p[1]), V(p[2])))
    for i in (3, 5, 7):
        P("v_max3_f32 %s, %s, %s, %s\nv_min3_f32 %s, %s, %s, %s" % (V(mx), V(mx), V(p[i]), V(p[i + 1]), V(mn), V(mn), V(p[i]), V(p[i + 1])))
    P("v_mov_b32 %s, %s\nv_mov_b32 %s, %s" % (V(a), V(mx), V(b), V(mn)))
    P("v_permlane16_swap_b32 %s, %s\nv_permlane16_swap_b32 %s, %s" % (V(mx), V(a), V(mn), V(b)))
    P("v_max_f32 %s, %s, %s\nv_min_f32 %s, %s, %s" % (V(mx), V(mx), V(a), V(mn), V(mn), V(b)))
    P("v_pk_mul_f32 %s, %s, %s op_sel_hi:[1,0]" % (V(mx, 2), V(mx, 2), S(t2, 2)))
    for i in range(0, 8, 2):
        P("v_pk_fma_f32 %s, %s, %s, %s op_sel_hi:[1,0,0] neg_lo:[0,0,1] neg_hi:[0,0,1]" % (V(ep + i, 2), V(p0 + i, 2), S(t2, 2), V(mx, 2)))
        P("v_pk_fma_f32 %s, %s, %s, %s op_sel:[0,0,1] op_sel_hi:[1,0,1] neg_lo:[1,0,0] neg_hi:[1,0,0]" % (V(en + i, 2), V(p0 + i, 2), S(t2, 2), V(mx, 2)))
    P("v_fma_f32 %s, %s, %s, -%s\nv_fma_f32 %s, -%s, %s, %s" % (V(ep + 8), V(p[8]), S(t2), V(mx), V(en + 8), V(p[8]), S(t2), V(mn)))
    for i in range(9): P("v_exp_f32 %s, %s\nv_exp_f32 %s, %s" % (V(ep + i), V(ep + i), V(en + i), V(en + i)))
    for e, q in ((ep, mx), (en, a)):
        P("v_pk_add_f32 %s, %s, %s" % (V(q, 2), V(e, 2), V(e + 2, 2)))
    for k in (4, 6):
        for e, q in ((ep, mx), (en, a)):
            P("v_pk_add_f32 %s, %s, %s" % (V(q, 2), V(q, 2), V(e + k, 2)))
    P("v_add_f32 %s, %s, %s\nv_add_f32 %s, %s, %s" % (V(mx), V(mx), V(mn), V(mn), V(a), V(b)))
    P("v_add_f32 %s, %s, %s\nv_add_f32 %s, %s, %s" % (V(mx), V(mx), V(ep + 8), V(mn), V(mn), V(en + 8)))
    P("v_mov_b32 %s, %s\nv_mov_b32 %s, %s" % (V(a), V(mx), V(b), V(mn)))
    P("v_permlane16_swap_b32 %s, %s\nv_permlane16_swap_b32 %s, %s" % (V(mx), V(a), V(mn), V(b)))
    P("v_pk_add_f32 %s, %s, %s" % (V(mx, 2), V(mx, 2), V(a, 2)))
    P("v_rcp_f32 %s, %s\nv_rcp_f32 %s, %s" % (V(mx), V(mx), V(mn), V(mn)))
    P("v_mul_f32 %s, %s, %s\nv_mul_f32 %s, %s, %s" % (V(ep + 8), V(ep + 8), V(mx), V(en + 8), V(en + 8), V(mn)))
    for i in range(0, 8, 2):
        P("v_pk_mul_f32 %s, %s, %s op_sel_hi:[1,0]" % (V(ep + i, 2), V(ep + i, 2), V(mx, 2)))
        P("v_pk_mul_f32 %s, %s, %s op_sel:[0,1] op_sel_hi:[1,1]" % (V(en + i, 2), V(en + i, 2), V(mx, 2)))
    e = [ep + i for i in range(9)] + [en + i for i in range(9)]
    for i in range(9):
        P("v_cvt_pk_bf16_f32 %s, %s, %s" % (V(vPHI + 12 * m + 4 * (i // 3) + i % 3), V(e[2 * i]), V(e[2 * i + 1])))

def ln_fix(P, T, m, dst):
    s2 = "op_sel_hi:[1,0]" if m == 0 else "op_sel:[0,1] op_sel_hi:[1,1]"
    s3 = "op_sel_hi:[1,0,1]" if m == 0 else "op_sel:[0,1,0] op_sel_hi:[1,1,1]"
    for h in range(2):
        P("v_pk_mul_f32 %s, %s, %s %s" % (V(vT + 2 * h, 2), V(acc(T, 2) + 2 * h, 2), V(vB, 2), s2))
    for h in range(2):
        r = acc(T, m) + 2 * h
        P("v_pk_fma_f32 %s, %s, %s, %s %s" % (V(r, 2), V(r, 2), V(vA, 2), V(vT + 2 * h, 2), s3))
    for h in range(2):
        P("v_cvt_pk_bf16_f32 %s, %s, %s" % (V(dst + h), V(acc(T, m) + 2 * h), V(acc(T, m) + 2 * h + 1)))

def feature_map(P):
    for m in range(2):
        for T in range(3):
            d = vPP + 12 * m + 4 * T
            P(mfma(d, vPH + 8 * T, vF + 8 * m)); P(mfma(d, vPH + 8 * T + 4, vF + 8 * m + 4, d))
    for m in range(2): softmax(P, m)

vRW, vRV, vPR, vVR, vKO, vMN = 240, 241, 242, 243, 253, 254
vWC, vCS, vCA = 251, 252, 250
L_CS = 162560
def p1(C, code_bytes):
    C.code_bytes = code_bytes
    P = C.P
    L = V(vLANE)
    a, b, c, d = V(vT), V(vT + 1), V(vT + 2), V(vT + 3)
    P("v_mov_b32 %s, v0\nv_lshlrev_b32 %s, 4, v0" % (L, V(vL16)))
    if ACFG["map"] == "4x8":
        P("s_lshr_b32 %s, %s, 1\ns_lshl_b32 %s, %s, 2\ns_lshr_b32 %s, %s, 3\ns_add_u32 %s, %s, %s" % (S(t0), S(sXCD), S(t0), S(t0), S(t1), S(sIDX), S(sRBK), S(t0), S(t1)))
        P("s_and_b32 %s, %s, 1\ns_lshl_b32 %s, %s, 3\ns_and_b32 %s, %s, 7\ns_add_u32 %s, %s, %s" % (S(t0), S(sXCD), S(t0), S(t0), S(t1), S(sIDX), S(sHP), S(t0), S(t1)))
    else:
        P("s_lshl_b32 %s, %s, 1\ns_lshr_b32 %s, %s, 4\ns_add_u32 %s, %s, %s\ns_and_b32 %s, %s, 15" % (S(t0), S(sXCD), S(t1), S(sIDX), S(sRBK), S(t0), S(t1), S(sHP), S(sIDX)))
    P("s_lshl_b32 %s, %s, 13\ns_mul_i32 %s, %s, 5120" % (S(sW8K), S(sWAVE), S(sW5K), S(sWAVE)))
    P("s_lshl_b32 %s, %s, 2\ns_add_u32 %s, %s, %s\ns_mul_i32 %s, %s, 36864" % (S(t0), S(sRBK), S(t0), S(t0), S(sWAVE), S(sXB), S(t0)))
    P("s_movk_i32 %s, 1152" % S(t2))
    P("v_lshrrev_b32 %s, 3, %s\nv_and_b32 %s, 7, %s\nv_lshrrev_b32 %s, 4, %s\nv_xor_b32 %s, %s, %s" % (a, L, b, L, c, L, b, b, c))
    P("v_lshlrev_b32 %s, 4, %s\nv_mad_u32_u24 %s, %s, %s, %s" % (c, b, V(vXD), a, S(t2), c))
    P("v_xor_b32 %s, 64, %s\nv_add_u32 %s, %d, %s" % (V(vXD + 1), V(vXD), V(vXD + 1), 9216 - 1024, V(vXD + 1)))
    P("s_mul_i32 %s, %s, 72\ns_and_b32 %s, %s, -16\ns_mul_i32 %s, %s, 110592\ns_add_u32 %s, %s, %s" % (S(t0), S(sHP), S(t0), S(t0), S(t1), S(sWAVE), S(sWB), S(t0), S(t1)))
    P("s_movk_i32 %s, 3456" % S(t2))
    for q in range(5):
        r = V(vWK + q)
        P("v_add_u32 %s, %d, %s\nv_mul_u32_u24 %s, 6554, %s\nv_lshrrev_b32 %s, 16, %s" % (a, 64 * q, L, b, a, b, b))
        P("v_mul_u32_u24 %s, 10, %s\nv_sub_u32 %s, %s, %s" % (c, b, a, a, c))
        perm32(P, c, b, d)
        P("v_mul_lo_u32 %s, %s, %s\nv_lshl_add_u32 %s, %s, 4, %s" % (r, c, S(t2), r, a, r))
        P("v_cmp_lt_u32 vcc, 4, %s\nv_add_u32 %s, %d, %s\nv_cndmask_b32 %s, %s, %s, vcc" % (a, b, 1152 - 80, r, r, r, b))
        if q % 4: P("v_subrev_u32 %s, %d, %s" % (r, 1024 * (q % 4), r))
    P("s_waitcnt lgkmcnt(0)")
    for x in C.stamp("start"): P.add(x)
    l0, l1, l2, l3, l4, l5 = [P.newlabel(C.name + "_w") for _ in range(6)]
    P("s_cmp_gt_u32 %s, 1\ns_cbranch_scc1 %s" % (S(sWAVE), l0))
    P("s_mul_i32 %s, %s, 1296\ns_add_u32 %s, %s, %s\ns_add_u32 m0, %s, %d" % (S(t0), S(sHP), S(t0), S(t0), S(sW1K), S(sW1K), L_PHI))
    P("buffer_load_dwordx4 %s, %s, %s offen lds" % (V(vL16), srd(sWPHI), S(t0))).nocount = True
    P.label(l0)
    P("s_cmp_lg_u32 s2, 0\ns_cbranch_scc1 %s" % l4)
    P("v_mov_b32 v4, 0\nv_mov_b32 v5, 0\nv_mov_b32 v6, 0\nv_mov_b32 v7, 0\nv_lshlrev_b32 v1, 7, v0")
    if GCFG["fl"]:
        P("v_lshlrev_b32 v1, 9, v0\ns_lshl_b32 %s, %s, 15" % (S(t0), S(sWAVE)))
        for i in range(4): P("buffer_store_dword v4, v1, %s, %s offen offset:%d sc1" % (srd(sWS), S(t0), 128 * i)).nocount = True
    else:
        P("buffer_store_dwordx4 v[4:7], v1, %s, %s offen sc1" % (srd(sWS), S(sW8K))).nocount = True
    P.label(l4)
    toks = [P.newtok() for _ in range(6)]
    def touch():
        def ld(text):
            P(text); P.ins[-1].dst = []; P.ins[-1].nocount = True
        if ACFG["l4"]:
            lab = P.newlabel(C.name + "_l4")
            P("s_lshr_b32 %s, %s, 3\ns_xor_b32 %s, %s, %s\ns_and_b32 %s, %s, 1\ns_cbranch_scc1 %s" % (S(t1), S(sHP), S(t1), S(t1), S(sHP), S(t1), S(t1), lab))
            P("s_lshr_b32 %s, %s, 1\ns_lshl_b32 %s, %s, 2\ns_add_u32 %s, %s, %s\ns_mul_i32 %s, %s, %d" % (S(t1), S(sIDX), S(t1), S(t1), S(t1), S(t1), S(sWAVE), S(t1), S(t1), 9 * 3456))
            P("v_min_u32 %s, 26, %s\nv_mul_u32_u24 %s, 1152, %s" % (a, L, a, a))
            ld("buffer_load_dword %s, %s, %s, %s offen offset:512" % (V(255), a, srd(sWQKV), S(t1)))
            P.label(lab)
        nper = -(-(code_bytes - (4096 if ACFG['hop'] else 0)) // (32 * 128))
        assert nper <= 31
        P("s_cmp_eq_u32 %s, 3\ns_cbranch_scc1 %s\ns_cmp_eq_u32 %s, 2\ns_cbranch_scc1 %s\ns_cmp_eq_u32 %s, 1\ns_cbranch_scc1 %s" % (S(sWAVE), l1, S(sWAVE), l2, S(sWAVE), l5))
        P("s_mul_i32 %s, s2, %d\nv_min_u32 %s, 60, %s\nv_lshlrev_b32 %s, 7, %s" % (S(t1), 61 * 128, a, L, a, a))
        ld("buffer_load_dword %s, %s, %s, %s offen" % (V(255), a, srd(sWQKV), S(t1)))
        P("s_branch %s" % l3)
        P.label(l5)
        P("v_lshrrev_b32 %s, 3, %s\nv_mul_u32_u24 %s, 1152, %s\nv_and_b32 %s, 7, %s\nv_min_u32 %s, 6, %s\nv_lshl_add_u32 %s, %s, 7, %s" % (a, L, a, a, b, L, b, b, a, b, a))
        P("s_lshl_b32 %s, %s, 4\ns_add_u32 %s, %s, %s\ns_mul_i32 %s, %s, 9216" % (S(t1), S(sRBK), S(t1), S(t1), S(sHP), S(t1), S(t1)))
        ld("buffer_load_dword %s, %s, %s, %s offen offset:256" % (V(255), a, srd(sX), S(t1)))
        P("s_branch %s" % l3)
        P.label(l1)
        if ACFG["hop"]:
            P("s_getpc_b64 s[100:101]\n%s_pc:\ns_add_u32 s100, s100, %s_body-%s_pc\ns_addc_u32 s101, s101, 0" % (C.name, C.name, C.name))
        else:
            P("s_getpc_b64 s[100:101]\ns_and_b32 s100, s100, -256")
        P("s_mul_i32 %s, %s, %d\nv_min_u32 %s, %d, %s\nv_lshl_add_u32 %s, %s, 7, %s\nv_min_u32 %s, %d, %s" % (S(t1), S(sIDX), nper * 128, a, nper - 1, L, a, a, S(t1), a, code_bytes - (4096 + 128 if ACFG['hop'] else 2048), a))
        ld("global_load_dword %s, %s, s[100:101]" % (V(255), a))
        P("s_branch %s" % l3)
        P.label(l2)
        P("s_mul_i32 %s, s2, %d\nv_min_u32 %s, 20, %s\nv_lshlrev_b32 %s, 7, %s" % (S(t1), 21 * 128, a, L, a, a))
        ld("buffer_load_dword %s, %s, %s, %s offen" % (V(255), a, srd(sWO), S(t1)))
        if ACFG["tlb"]:
            P("v_min_u32 %s, 37, %s\nv_lshlrev_b32 %s, 20, %s" % (a, L, a, a))
            ld("buffer_load_dword %s, %s, %s, 0 offen offset:2048" % (V(255), a, srd(sWS)))
            for sr in (sOUT, sWG, sWU, sWD):
                ld("buffer_load_dword %s, %s, %s, 0 offen" % (V(255), a, srd(sr)))
        P.label(l3)
    if ACFG["touch"] == 0: touch()
    emit_items(P, round_x(P, 0)); emit_items(P, round_w(P, 0, toks[0]))
    if ACFG["touch"] == 1: touch()
    r1 = round_x(P, 1) + round_w(P, 1, toks[1])
    if ACFG["hop"]: C.align_body()
    P("v_and_b32 %s, 15, %s\nv_lshrrev_b32 %s, 4, %s\nv_lshrrev_b32 %s, 1, %s\nv_xor_b32 %s, %s, %s" % (a, L, b, L, c, a, b, b, c))
    P("v_lshlrev_b32 %s, 7, %s\nv_lshl_add_u32 %s, %s, 4, %s\nv_add_u32 %s, %s, %s" % (a, a, a, b, a, V(vXR), S(sW8K), a))
    P("v_xor_b32 %s, 64, %s" % (V(vXR + 1), V(vXR)))
    P("v_lshrrev_b32 %s, 2, %s\nv_mul_u32_u24 %s, 160, %s\ns_and_b32 %s, %s, 1\ns_lshl_b32 %s, %s, 3\nv_add_u32 %s, %s, %s" % (a, L, a, a, S(t0), S(sHP), S(t0), S(t0), a, S(t0), a))
    P("v_and_b32 %s, 3, %s\nv_lshl_add_u32 %s, %s, 3, %s" % (b, L, V(vWR), b, a))
    P("v_cmp_eq_u32 vcc, 1, %s\nv_add_u32 %s, 32, %s\nv_add_u32 %s, 112, %s\nv_cndmask_b32 %s, %s, %s, vcc" % (b, c, a, d, a, V(vWM), c, d))
    for i in range(4): P("v_mov_b32 %s, 0x3f803f80" % V(vONE + i))
    P("s_mul_i32 %s, %s, 40\nv_add_u32 %s, %s, %s" % (S(t0), S(sWAVE), V(vWC), S(t0), V(vWR)))
    emit_items(P, r1[:ACFG['r1pre']])
    for which in ACFG["pf0"]:
        emit_items(P, ffn.hbm_prefetch(P, which, vLANE, vT + 18, vT + 19, vT + 20, 255))
    if ACFG['hop'] == 1: C.hop(None)
    X = Rec()
    X("s_movk_i32 %s, 3456" % S(t2))
    for q in range(5):
        r = V(vWQ + q)
        X("v_add_u32 %s, %d, %s\nv_mul_u32_u24 %s, 13108, %s\nv_lshrrev_b32 %s, 16, %s" % (a, 64 * q, L, b, a, b, b))
        X("v_mul_u32_u24 %s, 5, %s\nv_sub_u32 %s, %s, %s" % (c, b, a, a, c))
        perm32(X, c, b, d)
        X("v_and_b32 %s, 32, %s\nv_add_u32 %s, %s, %s" % (d, b, c, c, d))
        X("v_mul_lo_u32 %s, %s, %s\nv_lshl_add_u32 %s, %s, 4, %s" % (r, c, S(t2), r, a, r))
        if q % 4: X("v_subrev_u32 %s, %d, %s" % (r, 1024 * (q % 4), r))
    wq_items = X.items
    X = Rec()
    u1, u2, u3 = S(t1), S(t2), S(t3)
    X("v_and_b32 %s, 15, %s\nv_lshrrev_b32 %s, 2, %s\nv_lshrrev_b32 %s, 4, %s\nv_cmp_eq_u32 %s, %s, %s" % (a, L, b, a, c, L, S(mD, 2), b, c))
    X("v_cmp_eq_u32 %s, 2, %s" % (S(mG, 2), c))
    X("v_and_b32 %s, 1, %s\nv_cmp_eq_u32 %s, 1, %s\nv_and_b32 %s, 2, %s\nv_cmp_eq_u32 %s, 2, %s" % (b, a, S(mE, 2), b, b, a, S(mF, 2), b))
    X("s_lshl_b32 %s, %s, 7\ns_add_u32 %s, %s, %d\nv_lshl_add_u32 %s, %s, 2, %s" % (u1, S(sWAVE), u1, u1, L_MEAN, V(vMN), a, u1))
    X("s_lshl_b32 %s, %s, 5\nv_add_u32 %s, %s, %s\nv_mul_u32_u24 %s, 288, %s" % (u1, S(sWAVE), b, u1, a, b, b))
    X("v_mad_u32_u24 %s, %s, 48, %s\nv_lshl_add_u32 %s, %s, 3, %s" % (V(vRW), c, b, V(vRV), c, b))
    X("v_lshrrev_b32 %s, 2, %s\nv_mul_u32_u24 %s, 288, %s\nv_and_b32 %s, 3, %s\nv_lshl_add_u32 %s, %s, 3, %s" % (d, L, d, d, b, L, d, b, d))
    X("s_lshr_b32 %s, %s, 1\ns_mul_i32 %s, %s, 96\nv_add_u32 %s, %s, %s" % (u3, S(sWAVE), u1, u3, V(vPR), u1, d))
    X.items.append(["s_lshl_b32 %s, %s, 5" % (u1, u3), "s_and_b32 %s, %s, 1" % (u2, S(sWAVE)), "s_cmp_eq_u32 %s, 1" % u2, "s_cselect_b32 %s, 64, %s" % (u1, u1)])
    X("v_add_u32 %s, %s, %s" % (V(vVR), u1, d))
    X("s_lshl_b32 %s, %s, 1\nv_add_u32 %s, %s, %s" % (u1, u3, b, u1, a))
    X("s_mul_i32 %s, %s, 18\ns_sub_u32 %s, 12, %s\nv_add_u32 %s, %s, %s" % (u1, u3, u1, u1, c, u1, a))
    X("s_lshl_b32 %s, %s, 1\ns_add_u32 %s, %s, 4\nv_subrev_u32 %s, %s, %s\nv_cmp_gt_u32 vcc, 2, %s" % (u1, u3, u1, u1, d, u1, a, d))
    X("v_mov_b32 %s, 0x100000\nv_cndmask_b32 %s, %s, %s, vcc" % (d, c, d, c))
    X("v_cmp_ne_u32 vcc, 8, %s\nv_cndmask_b32 %s, 18, %s, vcc" % (a, c, c))
    X.items.append(["s_cmp_eq_u32 %s, 1" % u2, "s_cselect_b64 vcc, -1, 0"])
    X("v_cndmask_b32 %s, %s, %s, vcc" % (b, b, c))
    X("s_mul_i32 %s, %s, 19\nv_add_u32 %s, %s, %s\nv_mul_u32_u24 %s, 96, %s" % (u1, u3, b, u1, b, b, b))
    X("v_lshrrev_b32 %s, 4, %s\nv_lshl_add_u32 %s, %s, 3, %s" % (c, L, V(vKO), c, b))
    X("s_lshl_b32 %s, %s, 4\ns_add_u32 %s, %s, %s\ns_lshl_b32 %s, %s, 12\ns_add_u32 %s, %s, %d" % (u1, S(sHP), u1, u1, S(sRBK), u1, u1, S(sKV), u1, WS_KVP))
    for m in range(2):
        X("v_mov_b32 %s, 0\nv_mov_b32 %s, 0" % (V(vF + 8 * m + 6), V(vF + 8 * m + 7)))
        for f in range(3): X("v_mov_b32 %s, 0" % V(vPHI + 12 * m + 4 * f + 3))
    X("v_lshrrev_b32 %s, 4, %s\nv_lshlrev_b32 %s, 4, %s\nv_add_u32 %s, %d, %s" % (c, L, c, c, V(vCA), L_CS, c))
    X("s_lshl_b32 %s, %s, 6\nv_add_u32 %s, %s, %s" % (u1, S(sWAVE), V(vCS), u1, V(vCA)))
    addr_items = X.items
    X = Rec()
    wr = vT + 8
    X("v_cmp_gt_u32 vcc, 8, %s\nv_mov_b32 %s, 0x1000000\nv_cndmask_b32 %s, %s, %s, vcc" % (L, V(vT + 4), V(vT + 4), V(vT + 4), V(vL16)))
    X.items.append(["s_lshl_b32 %s, %s, 1" % (u1, S(sRBK)), "s_add_u32 %s, %s, %s" % (u1, u1, S(sWAVE)), "s_add_u32 %s, %s, 32" % (u2, S(sRBK)),
                    "s_cmp_lt_u32 %s, 2" % S(sWAVE), "s_cselect_b32 %s, %s, %s" % (u1, u1, u2), "s_mul_i32 %s, %s, 36" % (u2, S(sHP)),
                    "s_add_u32 %s, %s, %s" % (u1, u1, u2), "s_mul_i32 %s, %s, 1152" % (u1, u1)])
    X("buffer_load_dwordx4 %s, %s, %s, %s offen" % (V(wr, 4), V(vL16), srd(sWO), u1))
    X("buffer_load_dwordx4 %s, %s, %s, %s offen offset:1024" % (V(wr + 4, 4), V(vT + 4), srd(sWO), u1))
    wb_load = X.items
    X = Rec()
    sm = V(vT + 16)
    X("v_mov_b32 %s, 0" % sm)
    for i in range(8): X("v_dot2c_f32_bf16 %s, %s, %s" % (sm, V(wr + i), V(vONE)))
    for mode in ("quad_perm:[1,0,3,2]", "quad_perm:[2,3,0,1]", "row_half_mirror", "row_mirror"):
        X("v_add_f32_dpp %s, %s, %s %s row_mask:0xf bank_mask:0xf" % (sm, sm, sm, mode))
    for x in allred(vT + 16, vT + 17, "v_add_f32"): X(x)
    X("v_mul_f32 %s, 0x3ae38e39, %s" % (sm, sm))
    X.items.append(["s_lshl_b32 %s, %s, 2" % (u1, S(sWAVE)), "s_add_u32 %s, %s, %s" % (u1, u1, S(sKV)), "s_mov_b64 exec, 1",
                    "buffer_store_dword %s, off, %s, %s offset:3648 sc1" % (sm, srd(sWS), u1), "s_mov_b64 exec, -1"])
    wb_sum = X.items
    ax = LdsAddr([vXR, vXR + 1]); aw = LdsAddr([vWR, vWM, vWC])
    for rho in range(5):
        P.waittok(toks[rho])
        P("s_waitcnt lgkmcnt(0)\ns_barrier")
        if rho == 0:
            for x in C.stamp("r0"): P.add(x)
            lab = P.newlabel(C.name + "_nr")
            P("s_add_u32 %s, s2, %s\ns_cmp_lg_u32 %s, 0\ns_cbranch_scc1 %s" % (S(t0), S(sWAVE), S(t0), lab))
            P("v_mov_b32 %s, 1\ns_mov_b64 exec, 1" % a)
            P("buffer_store_dword %s, off, %s, 0 sc1" % (a, srd(sDBG))).nocount = True
            P("s_mov_b64 exec, -1")
            P.label(lab)
        if rho in ACFG["rst"]:
            for x in C.stamp("r%d" % rho): P.add(x)
        side, extra = [], []
        if rho <= 2: side = round_x(P, rho + 2) + round_w(P, rho + 2, toks[rho + 2])
        if rho == 0: side = r1[ACFG['r1pre']:] + side
        if rho == 0 and ACFG['hop'] == 2: C.hop(None)
        if rho == 0: extra = wphi_items(P)
        if rho == 2: extra = wq_items
        if rho == 1: extra = addr_items + wb_load
        if rho == 3:
            extra = wb_sum
            lab = P.newlabel(C.name + "_nq")
            P("s_mul_i32 %s, %s, 110592\ns_add_u32 %s, %s, %s" % (S(t0), S(sWAVE), S(sWB), S(sWB), S(t0)))
            P("s_cmp_lg_u32 %s, 0\ns_cbranch_scc1 %s" % (S(sWAVE), lab))
            P("s_add_u32 %s, %s, %d" % (S(t0), S(sWB), 16 * 110592))
            for q in range(5):
                if q % 4 == 0: P("s_mov_b32 m0, %d" % (2 * RND + 8 * 5120 + 1024 * q))
                P("buffer_load_dwordx4 %s, %s, %s offen offset:%d lds" % (V(vWQ + q), srd(sWQKV), S(t0), 1024 * (q % 4))).nocount = True
            P.label(lab)
            for pr in range(2):
                for q in range(5):
                    it = []
                    if q == 0: it.append("s_add_u32 %s, %s, %d" % (S(t0), S(sWB), pr * 8 * 110592))
                    if q % 4 == 0: it.append("s_add_u32 m0, %s, %d" % (S(sW5K), 2 * RND + pr * 4 * 5120 + 1024 * q))
                    it.append(P.mk("buffer_load_dwordx4 %s, %s, %s offen offset:%d lds" % (V(vWQ + q), srd(sWQKV), S(t0), 1024 * (q % 4)), toks[5] if (pr, q) == (1, 4) else None))
                    side.append(it)
        if rho == 4:
            side.append("buffer_load_dword %s, off, %s, 0 sc1" % (V(vFD), srd(sDBG)))
        tail = []
        for which in ACFG["pfR"].get(rho, []):
            tail += ffn.hbm_prefetch(P, which, vLANE, vT + 18, vT + 19, vT + 20, 255)
        base = (rho % 3) * RND
        nk = 4 if rho < 4 else 2
        NT = 6 if ACFG['cs'] else 5
        main, rd, st = [], [], []
        nb = 0
        for kk in range(nk):
            k = 4 * rho + kk
            for T in range(NT):
                st.append(len(main))
                wf = vWF + 4 * (nb % 6); nb += 1
                if T == 5:
                    main.append(mfma(acc(0, 2), wf, vONE, None if k == 0 else acc(0, 2)))
                    continue
                for cidx in range(3 if (T == 2 or NT == 5) else 2):
                    x = mfma(acc(T, cidx), wf, xf(k, cidx) if cidx < 2 else vONE, None if k == 0 else acc(T, cidx))
                    main.append(x)
                if T in (1, 3):
                    m = T >> 1
                    main.append(mfma(vSUM + 4 * m, vONE, xf(k, m), None if k == 0 else vSUM + 4 * m))
                    main.append(mfma(vSSQ + 4 * m, xf(k, m), xf(k, m), None if k == 0 else vSSQ + 4 * m))
        nb = 0
        for kk in range(nk):
            k = 4 * rho + kk
            for T in range(NT):
                bi = kk * NT + T
                lo = st[bi - 4] - 1 if bi >= 4 else -1
                it = []
                if T == 0:
                    it += ax.rebase(base, base + 32768)
                    for m in range(2):
                        it.append("ds_read_b128 %s, %s offset:%d" % (R(xf(k, m), 4), V(vXR + (kk & 1)), ax.off(base + (kk >> 1) * 4096 + m * 2048)))
                    it += aw.rebase(base + 32768, base + RND)
                wf = vWF + 4 * (nb % 6); nb += 1
                reg, col = (vWM, 0) if T == 2 else (vWC, 0) if T == 5 else (vWR, (0, 40, 0, 80, 120)[T])
                for h in range(2):
                    it.append("ds_read_b64_tr_b16 %s, %s offset:%d" % (V(wf + 2 * h, 2), V(reg), aw.off(base + 32768 + kk * 5120 + h * 2560 + col)))
                for x in it: rd.append((lo, st[bi] if bi >= 4 else 0, x))
        multi_interleave(P, main, [rd, spread(side, 0, int(len(main) * ACFG["pace"])), [(4, INF, x) for x in extra]], 2)
        emit_items(P, tail)
    for x in C.stamp("kvg"): P.add(x)
    if ACFG['cs']:
        P("ds_write_b128 %s, %s" % (V(vCS), V(acc(0, 2), 4)))
    for m in range(2):
        q = vSSQ + 4 * m
        ra, rb = vT + 2 * m, vT + 2 * m + 1
        P("v_cndmask_b32 %s, %s, %s, %s\nv_cndmask_b32 %s, %s, %s, %s" % (V(ra), V(q), V(q + 1), S(mE, 2), V(rb), V(q + 2), V(q + 3), S(mE, 2)))
        P("v_cndmask_b32 %s, %s, %s, %s\nv_cndmask_b32 %s, 0, %s, %s" % (V(ra), V(ra), V(rb), S(mF, 2), V(ra), V(ra), S(mD, 2)))
    r0, r1 = allred(vT, vT + 1, "v_add_f32"), allred(vT + 2, vT + 3, "v_add_f32")
    for x, y in zip(r0, r1): P(x); P(y)
    for m in range(2):
        ra, rb = V(vT + 2 * m), V(vT + 2 * m + 1)
        P("v_mul_f32 %s, 0x3ae38e39, %s\nv_mul_f32 %s, 0x3ae38e39, %s" % (rb, V(vSUM + 4 * m), ra, ra))
        P("ds_write_b32 %s, %s offset:%d" % (V(vMN), rb, 64 * m))
        P("v_fma_f32 %s, -%s, %s, %s\nv_max_f32 %s, 0, %s\nv_add_f32 %s, 0x3727c5ac, %s\nv_rsq_f32 %s, %s" % (ra, rb, rb, ra, ra, ra, ra, ra, V(vA + m), ra))
    for m in range(2): P("v_mul_f32 %s, -%s, %s" % (V(vB + m), V(vT + 2 * m + 1), V(vA + m)))
    if ACFG['cs']:
        P("s_waitcnt lgkmcnt(0)\ns_barrier")
        for w, T in enumerate((0, 1, 3, 4)): P("ds_read_b128 %s, %s offset:%d" % (V(acc(T, 2), 4), V(vCA), 64 * w))
    P("s_mov_b32 %s, %d" % (S(t2), LOG2E))
    for m in range(2):
        ln_fix(P, 0, m, vF + 8 * m); ln_fix(P, 1, m, vF + 8 * m + 2); ln_fix(P, 2, m, vF + 8 * m + 4)
        for T in range(3):
            dd = vPP + 12 * m + 4 * T
            P(mfma(dd, vPH + 8 * T, vF + 8 * m)); P(mfma(dd, vPH + 8 * T + 4, vF + 8 * m + 4, dd))
    for m in range(2):
        ln_fix(P, 3, m, vT + 4); ln_fix(P, 4, m, vT + 6)
        P("v_cndmask_b32 %s, %s, %s, %s\nv_cndmask_b32 %s, %s, %s, %s" % (V(vT + 8), V(vF + 8 * m + 4), V(vONE), S(mG, 2), V(vT + 9), V(vF + 8 * m + 5), V(vONE), S(mG, 2)))
        for i in range(3): P("ds_write_b64 %s, %s offset:%d" % (V(vRV), V(vT + 4 + 2 * i, 2), m * 4608 + 192 + 32 * i))
    for m in range(2):
        softmax(P, m)
        for f in range(3): P("ds_write_b128 %s, %s offset:%d" % (V(vRW), V(vPHI + 12 * m + 4 * f, 4), m * 4608 + 16 * f))
    P("s_waitcnt lgkmcnt(0)\ns_barrier")
    for x in C.stamp("phik"): P.add(x)
    for ks in range(4):
        fr = vAC + 16 * ks
        for h in range(2): P("ds_read_b64_tr_b16 %s, %s offset:%d" % (V(fr + 12 + 2 * h, 2), V(vVR), ks * 9216 + h * 4608 + 192))
        for tau in range(3):
            for h in range(2): P("ds_read_b64_tr_b16 %s, %s offset:%d" % (V(fr + 4 * tau + 2 * h, 2), V(vPR), ks * 9216 + h * 4608 + 32 * tau))
        if ks >= 1:
            fr = vAC + 16 * (ks - 1)
            for tau in range(3): P(mfma(vPP + 4 * tau, fr + 4 * tau, fr + 12, None if ks == 1 else vPP + 4 * tau))
    fr = vAC + 48
    for tau in range(3): P(mfma(vPP + 4 * tau, fr + 4 * tau, fr + 12, vPP + 4 * tau))
    tokS = P.newtok()
    for tau in range(3):
        for h in range(2): P("v_cvt_pk_bf16_f32 %s, %s, %s" % (V(vT + 2 * tau + h), V(vPP + 4 * tau + 2 * h), V(vPP + 4 * tau + 2 * h + 1)))
        P("buffer_store_dwordx2 %s, %s, %s, %s offen offset:%d sc1" % (V(vT + 2 * tau, 2), V(vKO), srd(sWS), S(sKV), 32 * tau), tok=tokS if tau == 2 else None)
    lab = P.newlabel(C.name + "_rdy")
    C.slow.append("""%s:
    s_mov_b32 %s, 0
%s_l:
    buffer_load_dword %s, off, %s, 0 sc1
    s_add_u32 %s, %s, 1
    s_waitcnt vmcnt(0)
    v_cmp_ne_u32 vcc, 1, %s
    s_cmp_gt_u32 %s, %d
    s_cbranch_scc1 %s_b
    s_cbranch_vccnz %s_l
    s_branch %s_b
""" % (lab, S(sSPIN), lab, V(vFD), srd(sDBG), S(sSPIN), S(sSPIN), V(vFD), S(sSPIN), SPIN_MAX, lab, lab, lab))
    P("v_cmp_ne_u32 vcc, 1, %s\ns_cbranch_vccnz %s\n%s_b:" % (V(vFD), lab, lab))
    P.waittok(toks[5])
    P("s_barrier")
    return tokS

def wphi_items(P):
    L = V(vLANE)
    a, b, c, d = V(vT), V(vT + 1), V(vT + 2), V(vT + 3)
    tmp = vT + 4
    it = []
    it += ["v_bfe_u32 %s, %s, 3, 1" % (a, L), "v_cmp_eq_u32 %s, 1, %s" % (S(mA, 2), a),
           "v_bfe_u32 %s, %s, 2, 1" % (b, L), "v_mul_u32_u24 %s, 18, %s" % (b, b), "v_and_b32 %s, 3, %s" % (c, L),
           "v_cmp_eq_u32 %s, 0, %s" % (S(mB, 2), c), "v_lshl_add_u32 %s, %s, 1, %s" % (b, c, b),
           "v_add_u32 %s, %d, %s" % (b, L_PHI, b), "v_lshrrev_b32 %s, 4, %s" % (c, L), "v_cmp_eq_u32 %s, 0, %s" % (S(mC, 2), c),
           "v_mul_u32_u24 %s, 144, %s" % (c, c), "v_mul_u32_u24 %s, 720, %s" % (d, a), "v_add3_u32 %s, %s, %s, %s" % (c, c, d, b),
           "v_mul_u32_u24 %s, 72, %s" % (d, a), "v_add_u32 %s, %s, %s" % (d, d, b)]
    raw = vPP
    for T in range(3):
        for s in range(4):
            it.append("ds_read_u16 %s, %s offset:%d" % (V(raw + 6 * T + s), c, 36 * s + 8 * T))
        for s in range(2):
            it.append("ds_read_u16 %s, %s offset:%d" % (V(raw + 6 * T + 4 + s), d, 576 + 36 * s + 8 * T))
    for i in range(9): it.append("v_lshl_or_b32 %s, %s, 16, %s" % (V(tmp + i), V(raw + 2 * i + 1), V(raw + 2 * i)))
    for i in range(3): it.append("v_cndmask_b32 %s, 0, %s, %s" % (V(tmp + 6 + i), V(tmp + 6 + i), S(mB, 2)))
    for T in range(3):
        f0, f1 = vPH + 8 * T, vPH + 8 * T + 4
        for i in range(2):
            it.append("v_cndmask_b32 %s, %s, 0, %s" % (V(f0 + i), V(tmp + 3 * T + i), S(mA, 2)))
            it.append("v_cndmask_b32 %s, 0, %s, %s" % (V(f0 + 2 + i), V(tmp + 3 * T + i), S(mA, 2)))
        it.append("v_cndmask_b32 %s, 0, %s, %s" % (V(tmp + 3 * T + 2), V(tmp + 3 * T + 2), S(mC, 2)))
        it.append("v_cndmask_b32 %s, %s, 0, %s" % (V(f1), V(tmp + 3 * T + 2), S(mA, 2)))
        it.append("v_cndmask_b32 %s, 0, %s, %s" % (V(f1 + 1), V(tmp + 3 * T + 2), S(mA, 2)))
        it.append("v_mov_b32 %s, 0" % V(f1 + 2)); it.append("v_mov_b32 %s, 0" % V(f1 + 3))
    return it

vOM, vOLf = 128, 133
def wo_addr(P):
    L = V(vLANE)
    a, b, c, d = V(vT + 8), V(vT + 9), V(vT + 10), V(vT + 11)
    e = V(vT + 12)
    P("s_movk_i32 %s, 1152" % S(t2))
    for q in range(5):
        P("v_add_u32 %s, %d, %s\nv_mul_u32_u24 %s, 6554, %s\nv_lshrrev_b32 %s, 16, %s" % (a, 64 * q, L, b, a, b, b))
        P("v_mul_u32_u24 %s, 10, %s\nv_sub_u32 %s, %s, %s\nv_cmp_eq_u32 vcc, 9, %s" % (c, b, a, a, c, a))
        P("v_lshlrev_b32 %s, 4, %s\nv_mov_b32 %s, 0x1000000\nv_cndmask_b32 %s, %s, %s, vcc" % (a, a, c, a, a, c))
        P("v_lshrrev_b32 %s, 4, %s\nv_and_b32 %s, 3, %s\nv_lshl_add_u32 %s, %s, 2, %s" % (c, b, d, b, c, c, d))
        P("v_bfe_u32 %s, %s, 2, 2" % (b, b))
        P("v_lshrrev_b32 %s, 1, %s\nv_lshl_add_u32 %s, %s, 3, %s\nv_lshl_add_u32 %s, %s, 1, %s" % (d, b, e, b, c, e, d, e))
        P("v_mad_u32_u24 %s, %s, %s, %s" % (V(vOM + q), e, S(t2), a))
        P("v_lshrrev_b32 %s, 1, %s\nv_lshl_add_u32 %s, %s, 2, %s\nv_mul_u32_u24 %s, 18, %s" % (d, c, d, b, d, d, d))
        P("v_and_b32 %s, 1, %s\nv_add3_u32 %s, %s, %s, 16\nv_mad_u32_u24 %s, %s, %s, %s" % (c, c, d, d, c, V(vOLf + q), d, S(t2), a))
        if q % 4: P("v_subrev_u32 %s, %d, %s\nv_subrev_u32 %s, %d, %s" % (V(vOM + q), 1024 * q, V(vOM + q), V(vOLf + q), 1024 * q, V(vOLf + q)))

def p1b(C, tokS):
    P = C.P
    L = V(vLANE)
    a, b, c, d = V(vT), V(vT + 1), V(vT + 2), V(vT + 3)
    vQR, vQM = 244, 245
    P("v_lshrrev_b32 %s, 2, %s\nv_mul_u32_u24 %s, 80, %s\ns_and_b32 %s, %s, 1\ns_lshl_b32 %s, %s, 3\ns_add_u32 %s, %s, %d" % (V(vQM), L, V(vQM), V(vQM), S(t0), S(sHP), S(t0), S(t0), S(t0), S(t0), 2 * RND))
    P("v_add_u32 %s, %s, %s\nv_and_b32 %s, 3, %s\nv_lshl_add_u32 %s, %s, 3, %s\nv_add_u32 %s, 32, %s" % (V(vQM), S(t0), V(vQM), V(vQR), L, V(vQR), V(vQR), V(vQM), V(vQM), V(vQM)))
    X = Rec()
    wo_addr(X)
    X("s_and_b32 %s, %s, 7\ns_mul_i32 %s, %s, 144" % (S(sWB), S(sHP), S(sWB), S(sWB)))
    X("s_lshr_b32 %s, %s, 3\ns_lshl_b32 %s, %s, 2\ns_lshl_b32 %s, %s, 3\ns_add_u32 %s, %s, %s\ns_add_u32 %s, %s, %s" %
      (S(t0), S(sHP), S(t0), S(t0), S(t1), S(sRBK), S(t0), S(t0), S(t1), S(sMT), S(t0), S(sWAVE)))
    X("s_mul_i32 %s, %s, %d\ns_add_u32 %s, %s, %s" % (S(t3), S(sWAVE), 36 * 1152, S(t3), S(t3), S(sWB)))
    pre = X.items
    pub = [[WaitTok(tokS)] + C.publish(vT + 7, 1) + C.stamp("pub1")]
    side = []
    lab = P.newlabel(C.name + "_nl")
    it = ["s_cmp_gt_u32 %s, 1" % S(sWAVE), "s_cbranch_scc1 %s" % lab,
          "s_mul_i32 %s, %s, %d" % (S(t0), S(sWAVE), 288 * 1152), "s_add_u32 %s, %s, %s" % (S(t0), S(t0), S(sWB))]
    for q in range(5):
        if q % 4 == 0: it.append("s_add_u32 m0, %s, %d" % (S(sW5K), 16 * 5120 + 1024 * q))
        x = P.mk("buffer_load_dwordx4 %s, %s, %s offen offset:%d lds" % (V(vOLf + q), srd(sWO), S(t0), 1024 * (q % 4))); x.nocount = True
        it.append(x)
    it.append(lab + ":")
    side.append(it)
    for i in range(4):
        for q in range(5):
            it = []
            if q == 0: it.append("s_add_u32 %s, %s, %d" % (S(t0), S(t3), i * 4 * 36 * 1152))
            if q % 4 == 0: it.append("s_add_u32 m0, %s, %d" % (S(sW5K), i * 4 * 5120 + 1024 * q))
            it.append("buffer_load_dwordx4 %s, %s, %s offen offset:%d lds" % (V(vOM + q), srd(sWO), S(t0), 1024 * (q % 4)))
            side.append(it)
    X = Rec()
    e4, e5 = V(vT + 4), V(vT + 5)
    X("v_lshrrev_b32 %s, 2, %s" % (e4, L))
    vf_rb(X, V(vFA), e4, e5)
    f_hp(X, S(t1), S(sHP), S(t2))
    X("v_and_b32 %s, 3, %s\nv_lshl_add_u32 %s, %s, 2, %s\nv_add_u32 %s, %s, %s" % (e4, L, V(vFA), e4, V(vFA), V(vFA), S(t1), V(vFA)))
    for x in flagfix(V(vFA), e4): X(x)
    vRa, vRb, vWa, vWc, vOL, vRS, vXL = 240, 241, 242, 243, 246, 247, 248
    X("v_bfe_u32 %s, %s, 3, 1\nv_lshrrev_b32 %s, 5, %s\nv_cmp_eq_u32 %s, %s, %s" % (a, L, b, L, S(mA, 2), a, b))
    X("v_mul_u32_u24 %s, %d, %s\nv_bfe_u32 %s, %s, 4, 1\nv_mad_u32_u24 %s, %s, 48, %s\nv_add_u32 %s, %d, %s" % (a, 19 * 96, a, b, L, a, b, a, a, L_R, a))
    X("v_bfe_u32 %s, %s, 2, 1\nv_and_b32 %s, 3, %s\nv_lshl_add_u32 %s, %s, 3, %s\nv_mul_u32_u24 %s, 96, %s\nv_add_u32 %s, %s, %s" % (b, L, c, L, b, b, c, b, b, b, b, a))
    X("v_mov_b32 %s, %d\nv_cndmask_b32 %s, %s, %s, %s" % (d, L_ZERO, V(vRa), d, b, S(mA, 2)))
    X("v_add_u32 %s, 15, %s\nv_cmp_ne_u32 vcc, 0, %s\nv_cndmask_b32 %s, 18, %s, vcc\nv_mul_u32_u24 %s, 96, %s\nv_add_u32 %s, %s, %s" % (b, c, c, b, b, b, b, b, b, a))
    X("v_cmp_ne_u32 vcc, 3, %s\ns_and_b64 vcc, vcc, %s\nv_cndmask_b32 %s, %s, %s, vcc" % (c, S(mA, 2), V(vRb), d, b))
    X("v_lshrrev_b32 %s, 5, %s\nv_mul_u32_u24 %s, 80, %s\nv_add_u32 %s, %d, %s\nv_bfe_u32 %s, %s, 4, 1" % (a, L, a, a, a, L_WBAR, a, b, L))
    X("v_cmp_eq_u32 %s, 1, %s\nv_lshl_add_u32 %s, %s, 5, %s" % (S(mB, 2), b, V(vWa), b, a))
    X("v_add_u32 %s, 64, %s\nv_cndmask_b32 %s, %s, %s, %s" % (a, a, V(vWc), a, d, S(mB, 2)))
    X("v_and_b32 %s, 15, %s\nv_lshlrev_b32 %s, 2, %s\nv_lshrrev_b32 %s, 5, %s\nv_lshl_add_u32 %s, %s, 6, %s" % (a, L, a, a, c, L, a, c, a))
    X("v_lshl_add_u32 %s, %s, 7, %s" % (V(vOL), b, a))
    X("v_add_u32 %s, %s, %s\nv_add_u32 %s, %d, %s" % (V(vRS), S(sW1K), V(vL16), V(vRS), L_R, V(vRS)))
    for i in range(4): X("v_mov_b32 %s, 0" % V(vT + 8 + i))
    X("v_and_b32 %s, 0x1f0, %s\nv_add_u32 %s, %d, %s\nds_write_b128 %s, %s" % (c, V(vL16), c, L_ZERO, c, c, V(vT + 8, 4)))
    for q in range(3):
        X("v_add_u32 %s, %d, %s\nv_mul_u32_u24 %s, 7282, %s\nv_lshrrev_b32 %s, 16, %s" % (a, 64 * q, L, b, a, b, b))
        X("v_mul_u32_u24 %s, %d, %s\nv_lshl_add_u32 %s, %s, 4, %s" % (b, 1152 - 144, b, V(vXL + q), a, b))
        if q: X("v_subrev_u32 %s, %d, %s" % (V(vXL + q), 1024 * q, V(vXL + q)))
    X("v_cmp_gt_u32 vcc, 16, %s\nv_mov_b32 %s, 0x1000000\nv_cndmask_b32 %s, %s, %s, vcc" % (L, a, V(vXL + 2), a, V(vXL + 2)))
    post = X.items
    main, rd, st = [], [], []
    for k in range(18):
        for T in range(3):
            bi = len(st); st.append(len(main))
            wf = vWF + 4 * (bi % 6)
            for cidx in range(3):
                main.append(mfma(acc(T, cidx), wf, xf(k, cidx) if cidx < 2 else vONE, None if k == 0 else acc(T, cidx)))
            lo = st[bi - 4] - 1 if bi >= 4 else -1
            for h in range(2):
                rd.append((lo, st[bi] if bi >= 4 else 0, "ds_read_b64_tr_b16 %s, %s offset:%d" % (V(wf + 2 * h, 2), V(vQM if T == 2 else vQR), k * 2560 + h * 1280 + (0, 40, 0)[T])))
    n0 = ACFG["pub1"]
    s2 = [(0, n0, x) for x in pre] + [(n0, n0 + 1, x) for x in pub] + spread(side, n0 + 1, 155)
    multi_interleave(P, main, [rd, s2, [(n0 + 1, INF, x) for x in post]], 2)
    for x in C.stamp("qg"): P.add(x)
    P.add(C.load_flags(vFD, vFA))
    P("s_mov_b32 %s, %d" % (S(t2), LOG2E))
    for m in range(2):
        ln_fix(P, 0, m, vF + 8 * m); ln_fix(P, 1, m, vF + 8 * m + 2); ln_fix(P, 2, m, vF + 8 * m + 4)
        for T in range(3):
            dd = vPP + 12 * m + 4 * T
            P(mfma(dd, vPH + 8 * T, vF + 8 * m)); P(mfma(dd, vPH + 8 * T + 4, vF + 8 * m + 4, dd))
    softmax(P, 0)
    for x in C.check_flags(vFD, vFA, 1, 255): P.add(x)
    for x in C.stamp("s1"): P.add(x)
    P("s_lshl_b32 %s, %s, 16\ns_add_u32 %s, %s, %d\ns_add_u32 %s, %s, %s" % (S(t1), S(sHP), S(t1), S(t1), WS_KVP, S(t0), S(t1), S(sW1K)))
    for r in range(16):
        P("buffer_load_dwordx4 %s, %s, %s, %s offen sc1" % (V(vAC + 4 * r, 4), V(vL16), srd(sWS), S(t0)))
        if r < 15: P("s_add_u32 %s, %s, 4096" % (S(t0), S(t0)))
    P("v_and_b32 %s, 15, %s\nv_lshlrev_b32 %s, 12, %s" % (V(vF + 1), L, V(vF), V(vF + 1)))
    P("buffer_load_dwordx3 %s, %s, %s, %s offen offset:3648 sc1" % (V(vF + 4, 3), V(vF), srd(sWS), S(t1)))
    for which in ACFG["pfQ"]:
        emit_items(P, ffn.hbm_prefetch(P, which, vLANE, vT + 18, vT + 19, vT + 20, 255))
    softmax(P, 1)
    for x in C.stamp("phiq"): P.add(x)
    sm = vWF
    P("v_mov_b32 %s, 0x3f80\nv_mov_b32 %s, 1.0" % (V(vT + 8), V(vT + 9)))
    for i in range(6): P("v_mov_b32 %s, 0" % V(sm + i))
    P("v_mov_b32 %s, 0" % V(vT + 7))
    P("v_cmp_lt_u32 vcc, 8, %s\nv_addc_co_u32 %s, vcc, 0, %s, vcc\nv_lshlrev_b32 %s, 3, %s\nv_add_u32 %s, %d, %s" % (V(vF + 1), V(vF + 2), V(vF + 1), V(vF + 2), V(vF + 2), V(vF + 2), L_WBAR, V(vF + 2)))
    P("v_lshlrev_b32 %s, 2, %s\nv_add_u32 %s, %d, %s" % (V(vF + 3), V(vF + 1), V(vF + 3), L_WBAR + 136, V(vF + 3)))
    for r in range(16):
        for i in range(6): P("v_dot2c_f32_bf16 %s, %s, %s" % (V(sm + i), V(vAC + 4 * r + (i >> 1)), V(vT + 8 + (i & 1))))
    for i in range(3): P("v_cvt_pk_bf16_f32 %s, %s, %s" % (V(vT + 4 + i), V(sm + 2 * i), V(sm + 2 * i + 1)))
    P("ds_write_b128 %s, %s" % (V(vRS), V(vT + 4, 4)))
    P("ds_write_b64 %s, %s\nds_write_b32 %s, %s" % (V(vF + 2), V(vF + 4, 2), V(vF + 3), V(vF + 6)))
    P("s_waitcnt lgkmcnt(0)\ns_barrier")
    for x in C.stamp("kvred"): P.add(x)
    kf = vAC
    for T in range(3):
        for p in range(3):
            P("ds_read_b128 %s, %s offset:%d" % (V(kf + 12 * T + 4 * p, 4), V(vRb if T == 2 else vRa), (384 if T == 1 else 0) + 16 * p))
    vWb = vAC + 36
    P("ds_read_b128 %s, %s\nds_read_b128 %s, %s offset:16\nds_read_b64 %s, %s" % (V(vWb, 4), V(vWa), V(vWb + 4, 4), V(vWa), V(vWb + 8, 2), V(vWc)))
    P("s_mul_i32 %s, %s, 3072\ns_add_u32 m0, %s, %d\ns_mul_i32 %s, %s, 18432\ns_add_u32 %s, %s, %s" % (S(t0), S(sWAVE), S(t0), L_XR, S(t0), S(sMT), S(t0), S(t0), S(sWB)))
    for q in range(3): P("buffer_load_dwordx4 %s, %s, %s offen offset:%d lds" % (V(vXL + q), srd(sX), S(t0), 1024 * q))
    P("s_lshl_b32 %s, %s, 3\ns_lshl_b32 %s, %s, 1\ns_add_u32 %s, %s, %s\ns_lshl_b32 %s, %s, 4\ns_add_u32 %s, %s, %s" %
      (S(t0), S(sRBK), S(t1), S(sWAVE), S(t0), S(t0), S(t1), S(t0), S(t0), S(t0), S(t0), S(sHP)))
    P("s_lshl_b32 %s, %s, 8\ns_add_u32 %s, %s, %d\ns_lshl_b32 %s, %s, 10\ns_add_u32 %s, %s, %d" % (S(t1), S(t0), S(t1), S(t1), WS_OL, S(t0), S(t0), S(t0), S(t0), WS_OM))
    for m in range(2):
        for T in (2, 0, 1):
            dd = vPP + 12 * m + 4 * T
            for p in range(3): P(mfma(dd, kf + 12 * T + 4 * p, vPHI + 12 * m + 4 * p, None if p == 0 else dd))
    a, b, c, d = V(vF), V(vF + 1), V(vF + 2), V(vF + 3)
    for m in range(2):
        o = vPP + 12 * m
        P("v_add_f32 %s, 0x358637bd, %s\nv_rcp_f32 %s, %s" % (a, V(o + 8), a, a))
        P("v_mul_f32 %s, %s, %s\nv_mul_f32 %s, %s, %s" % (V(o + 9), V(o + 9), a, V(o + 10), V(o + 10), a))
        for i in (0, 2, 4, 6): P("v_pk_mul_f32 %s, %s, %s op_sel_hi:[1,0]" % (V(o + i, 2), V(o + i, 2), V(vF, 2)))
        q = vF + 4 + 4 * m
        for i in range(4): P("v_cvt_pk_bf16_f32 %s, %s, %s" % (V(q + i), V(o + 2 * i), V(o + 2 * i + 1)))
        P("buffer_store_dwordx4 %s, %s, %s, %s offen sc1" % (V(q, 4), V(vL16), srd(sWS), S(t0)))
        P("v_pk_mul_f32 %s, %s, %s" % (V(vF + 2, 2), V(o, 2), V(vWb, 2)))
        for i in (2, 4, 6): P("v_pk_fma_f32 %s, %s, %s, %s" % (V(vF + 2, 2), V(o + i, 2), V(vWb + i, 2), V(vF + 2, 2)))
        P("v_fmac_f32 %s, %s, %s\nv_fmac_f32 %s, %s, %s\nv_add_f32 %s, %s, %s" % (c, V(o + 9), V(vWb + 8), d, V(o + 10), V(vWb + 9), b, c, d))
        for x in allred(vF + 1, vF + 2, "v_add_f32"): P(x)
        P("v_cvt_pk_bf16_f32 %s, %s, %s\nv_cndmask_b32 %s, %s, %s, %s" % (c, V(o + 9), V(o + 10), V(vF + 12 + m), c, b, S(mB, 2)))
        P("buffer_store_dword %s, %s, %s, %s offen sc1" % (V(vF + 12 + m), V(vOL), srd(sWS), S(t1)))
        if m == 0: P("s_add_u32 %s, %s, 16384\ns_add_u32 %s, %s, 4096" % (S(t0), S(t0), S(t1), S(t1)))
    P("v_and_b32 %s, 15, %s" % (a, L))
    vf_hp(P, V(vFA), a, b)
    f_rb(P, S(t0), S(sRBK), S(t1))
    P("s_and_b32 %s, %s, 7\ns_lshr_b32 %s, %s, 1\ns_lshl_b32 %s, %s, 2\ns_add_u32 %s, %s, %s\nv_add_u32 %s, %s, %s" % (S(t1), S(sMT), S(t1), S(t1), S(t1), S(t1), S(t0), S(t0), S(t1), V(vFA), S(t0), V(vFA)))
    for x in flagfix(V(vFA), a): P(x)
    P("v_mov_b32 v225, %s" % L)
    ffn.ffn_setup(C, 225)
    P("s_waitcnt vmcnt(0)")
    for x in C.publish(vF, 2): P.add(x)
    for x in C.stamp("pub2"): P.add(x)

L_XR = 106496
def code_touch(C, L, a):
    P = C.P
    nper = -(-(C.code_bytes - 4096) // (32 * 128))
    lab = P.newlabel(C.name + "_ct")
    P("s_cmp_lg_u32 %s, 3\ns_cbranch_scc1 %s" % (S(sWAVE), lab))
    P("s_getpc_b64 s[100:101]\n%s_pc:\ns_sub_u32 s100, s100, %s_pc-%s_body\ns_subb_u32 s101, s101, 0" % (lab, lab, C.name))
    P("s_mul_i32 %s, %s, %d\nv_min_u32 %s, %d, %s\nv_lshl_add_u32 %s, %s, 7, %s\nv_min_u32 %s, %d, %s" % (S(t1), S(sIDX), nper * 128, a, nper - 1, L, a, a, S(t1), a, C.code_bytes - 4096 - 128, a))
    P("global_load_dword %s, %s, s[100:101]" % (V(255), a)); P.ins[-1].dst = []; P.ins[-1].nocount = True
    P.label(lab)

def p2(C):
    P = C.P
    vLN = 225
    L = V(vLN)
    vO, vAcc, vMU, vXS, vWV = 0, 72, 92, 96, 108
    vQ = 240
    a, b, c, d = V(vQ), V(vQ + 1), V(vQ + 2), V(vQ + 3)
    vWR2, vLA, vMA, vL8, vMX = 226, 227, 228, 229, 230
    def wreg(i): return AG + 4 * i if i < 64 else vWV + 4 * (i - 64)
    nar = ffn.narrow_items(P)
    if ACFG["ct2"]: code_touch(C, L, a)
    P("v_lshrrev_b32 %s, 2, %s\nv_mul_u32_u24 %s, 160, %s\nv_and_b32 %s, 3, %s\nv_lshl_add_u32 %s, %s, 3, %s" % (a, L, a, a, b, L, V(vWR2), b, a))
    P("v_and_b32 %s, 15, %s\nv_lshrrev_b32 %s, 4, %s\nv_mul_u32_u24 %s, 144, %s\nv_lshl_add_u32 %s, %s, 3, %s" % (a, L, b, L, c, a, c, b, c))
    P("s_mul_i32 %s, %s, 3072\ns_add_u32 %s, %s, %d\nv_add_u32 %s, %s, %s" % (S(t1), S(sWAVE), S(t1), S(t1), L_XR, c, S(t1), c))
    for T in range(5): P("ds_read_b64 %s, %s offset:%d" % (V(vXS + 2 * T, 2), c, 32 * T))
    P("v_lshlrev_b32 %s, 2, %s" % (a, a))
    P("v_lshl_add_u32 %s, %s, 9, %s\nv_lshl_add_u32 %s, %s, 10, %s\nv_lshlrev_b32 %s, 3, %s" % (V(vLA), b, a, V(vMA), b, a, V(vL8), L))
    P("s_and_b32 %s, %s, 7\ns_lshl_b32 %s, %s, 6\ns_add_u32 %s, %s, %d\nv_add_u32 %s, %s, %s\nds_read_b32 %s, %s" % (S(t1), S(sMT), S(t1), S(t1), S(t1), S(t1), L_MEAN, a, S(t1), a, V(vMX), a))
    aw = LdsAddr([vWR2])
    main = []
    for f in range(18):
        for T in range(5):
            it = aw.rebase(f * 5120, (f + 1) * 5120)
            it += ["ds_read_b64_tr_b16 %s, %s offset:%d" % (R(wreg(5 * f + T) + 2 * h, 2), V(vWR2), aw.off(f * 5120 + h * 2560 + 32 * T)) for h in range(2)]
            main.append(it)
    pa = ACFG["pa"]
    multi_interleave(P, main, [spread(nar[:pa], 0, 60)], 1)
    if ACFG['hop'] and ACFG['hop2'] == 0: C.hop(None)
    for x in (C.stamp("prer") if ACFG["rst"] else []): P.add(x)
    P.add(C.load_flags(vFD, vFA))
    P("s_lshl_b32 %s, %s, 14\ns_add_u32 %s, %s, %d\ns_lshl_b32 %s, %s, 12\ns_add_u32 %s, %s, %d" % (S(t2), S(sMT), S(t2), S(t2), WS_OM, S(t1), S(sMT), S(t1), S(t1), WS_OL))
    P("s_waitcnt lgkmcnt(0)\ns_barrier")
    for x in C.check_flags(vFD, vFA, 2, 255): P.add(x)
    for x in C.stamp("s2"): P.add(x)
    for f in range(16):
        P("buffer_load_dwordx4 %s, %s, %s, %s offen offset:%d sc1" % (V(vO + 4 * f, 4), V(vL16), srd(sWS), S(t2), 1024 * (f % 4)))
        if f % 4 == 3 and f < 15: P("s_add_u32 %s, %s, 4096" % (S(t2), S(t2)))
    for e in range(2):
        for j in range(4):
            P("buffer_load_dword %s, %s, %s, %s offen offset:%d sc1" % (V(vO + 64 + 4 * e + j), V(vLA), srd(sWS), S(t1), e * 2048 + (j >> 1) * 256 + (j & 1) * 64))
    for i in range(4):
        P("buffer_load_dword %s, %s, %s, %s offen offset:%d sc1" % (V(vMU + i), V(vMA), srd(sWS), S(t1), 128 + 256 * i))
    main = []
    for f in range(18):
        for T in range(5):
            main.append(mfma(vAcc + 4 * T, wreg(5 * f + T), vO + 4 * f, None if f == 0 else vAcc + 4 * T))
    units = ffn.unit_items(P, 0, 30)
    pb = ACFG["pb"]
    X = Rec()
    X("s_and_b32 %s, %s, 7" % (S(t3), S(sHP)))
    X("s_mul_i32 %s, %s, 18432\ns_mul_i32 %s, %s, 2304\ns_add_u32 %s, %s, %s\ns_add_u32 %s, %s, %d" % (S(sXB), S(sMT), S(t1), S(t3), S(t1), S(t1), S(sXB), S(t1), S(t1), WS_H))
    X("s_lshl_b32 %s, %s, 11\ns_add_u32 %s, %s, %s\ns_add_u32 %s, %s, %d" % (S(t2), S(t3), S(t2), S(t2), S(sXB), S(t2), S(t2), WS_HC))
    X("v_cmp_gt_u32 %s, 32, %s\nv_mov_b32 %s, 0x8000000\nv_cndmask_b32 %s, %s, %s, %s" % (S(mA, 2), L, a, V(vLA), a, V(vL8), S(mA, 2)))
    X("v_and_b32 %s, 15, %s\nv_lshlrev_b32 %s, 4, %s\nv_lshrrev_b32 %s, 4, %s\nv_lshl_add_u32 %s, %s, 3, %s\nv_cndmask_b32 %s, %s, %s, %s" % (b, L, b, b, c, L, b, c, b, V(vMA), a, b, S(mA, 2)))
    multi_interleave(P, main, [spread(nar[pa:] + units[:pb], 0, 88), [(2, INF, x) for x in X.items]], 2)
    for x in C.stamp("wog"): P.add(x)
    P("v_add_f32 %s, %s, %s\nv_add_f32 %s, %s, %s\nv_add_f32 %s, %s, %s" % (V(vMU), V(vMU), V(vMU + 1), V(vMU + 2), V(vMU + 2), V(vMU + 3), V(vMU), V(vMU), V(vMU + 2)))
    for x in allred(vMU, vMU + 1, "v_add_f32"): P(x)
    P("v_add_f32 %s, %s, %s" % (V(vMU), V(vMU), V(vMX)))
    ss = vMU + 2
    P("v_mov_b32 %s, 0\nv_mov_b32 %s, 0" % (V(ss), V(ss + 1)))
    hq = vO
    for T in range(5):
        r = vAcc + 4 * T
        for h in range(2):
            x = V(vXS + 2 * T + h)
            P("v_lshlrev_b32 %s, 16, %s\nv_and_b32 %s, 0xffff0000, %s" % (a, x, b, x))
            P("v_pk_add_f32 %s, %s, %s" % (V(vQ, 2), V(vQ, 2), V(r + 2 * h, 2)))
            P("v_cvt_pk_bf16_f32 %s, %s, %s" % (V(hq + 2 * T + h), a, b))
            P("v_lshlrev_b32 %s, 16, %s\nv_and_b32 %s, 0xffff0000, %s" % (a, V(hq + 2 * T + h), b, V(hq + 2 * T + h)))
            P("v_pk_add_f32 %s, %s, %s op_sel_hi:[1,0] neg_lo:[0,1] neg_hi:[0,1]" % (V(vQ, 2), V(vQ, 2), V(vMU, 2)))
            P("v_cvt_pk_bf16_f32 %s, %s, %s" % (V(hq + 12 + 2 * T + h), a, b))
            if T == 4: P("v_cndmask_b32 %s, 0, %s, %s\nv_cndmask_b32 %s, 0, %s, %s" % (b, b, S(mA, 2), a, a, S(mA, 2)))
            P("v_pk_fma_f32 %s, %s, %s, %s" % (V(ss, 2), V(vQ, 2), V(vQ, 2), V(ss, 2)))
        if T % 2 == 1:
            P("buffer_store_dwordx4 %s, %s, %s, %s offen offset:%d sc1" % (V(hq + 12 + 2 * (T - 1), 4), V(vL16), srd(sWS), S(t2), 1024 * (T >> 1)))
        if T == 4:
            P("s_lshl_b32 %s, %s, 8\ns_add_u32 %s, %s, %s\ns_add_u32 %s, %s, %d" % (S(t2), S(t3), S(t2), S(t2), S(sXB), S(t2), S(t2), WS_HC + 16384))
            P("buffer_store_dwordx2 %s, %s, %s, %s offen sc1" % (V(hq + 20, 2), V(vMA), srd(sWS), S(t2)))
    P("v_add_f32 %s, %s, %s" % (V(ss), V(ss), V(ss + 1)))
    for x in allred(ss, ss + 1, "v_add_f32"): P(x)
    P("s_lshl_b32 %s, %s, 3\ns_add_u32 %s, %s, %s\ns_lshl_b32 %s, %s, 8\ns_add_u32 %s, %s, %d" % (S(t0), S(sMT), S(t0), S(t0), S(t3), S(t0), S(t0), S(t0), S(t0), WS_SSQ))
    P("v_lshlrev_b32 %s, 2, %s\nbuffer_store_dword %s, %s, %s, %s offen sc1" % (a, L, V(ss), a, srd(sWS), S(t0)))
    for T in range(5):
        P("buffer_store_dwordx2 %s, %s, %s, %s offen offset:%d sc1" % (V(hq + 2 * T, 2), V(vL8 if T < 4 else vLA), srd(sWS), S(t1), 512 * T))
    fa = V(ffn.vFA)
    a, b = V(100), V(101)
    P("s_lshl_b32 %s, %s, 3\ns_lshl_b32 %s, %s, 1\ns_add_u32 %s, %s, %s\ns_lshr_b32 %s, %s, 1\ns_add_u32 %s, %s, %s" % (S(t0), S(sMH), S(t1), S(sRB), S(t0), S(t0), S(t1), S(t1), S(sWAVE), S(t0), S(t0), S(t1)))
    f_rb(P, S(t2), S(t0), S(t1))
    P("s_and_b32 %s, %s, 1\ns_lshl_b32 %s, %s, 3\nv_bfe_u32 %s, %s, 2, 3\nv_add_u32 %s, %s, %s" % (S(t0), S(sWAVE), S(t0), S(t0), a, L, a, S(t0), a))
    vf_hp(P, fa, a, b)
    P("v_and_b32 %s, 3, %s\nv_lshl_add_u32 %s, %s, 2, %s\nv_add_u32 %s, %s, %s" % (a, L, fa, a, fa, fa, S(t2), fa))
    for x in flagfix(fa, a): P(x)
    P("v_mov_b32 v102, %s" % L)
    ffn.ffn_addr2(C, 102)
    P("s_waitcnt vmcnt(0)")
    for x in C.publish(100, 3): P.add(x)
    for x in C.stamp("pub3"): P.add(x)
    emit_items(P, units[pb:])
    for which in ACFG["pfS3"]:
        emit_items(P, ffn.hbm_prefetch(P, which, 102, 103, 104, 105, 106))
    if ACFG['hop'] and ACFG['hop2'] == 1: C.hop(None)
```

```python
from gen import *

WS_FLAGS = 0x0
WS_KVP = 0x20000
WS_OM = 0x120000
WS_OL = 0x320000
WS_HC = 0x3A0000
WS_SSQ = 0x5E0000
WS_H = 0x620000
WS_PART = 0x860000
WS_HH = 0x1260000
WS_TIM = 0x2460000
WS_DBG = 0x2500000
WS_SIZE = 0x4000000

sX, sWQKV, sWPHI, sWO, sWG, sWU, sWD, sOUT, sWS, sDBG, sWN = 4, 8, 12, 16, 20, 24, 28, 32, 36, 40, 44
sWAVE, sW1K, sXCD, sIDX, sFLAG = 48, 49, 50, 51, 52
sSPIN = 53
sFQ, sMH, sRB, sFS = 54, 55, 56, 57
sT = 80
def srd(b): return S(b, 4)

SPIN_MAX = 50000
GCFG = dict(fl=1, poll=1)
def flagfix(reg, tmp):
    if not GCFG['fl']: return []
    return ['v_and_b32 %s, 12, %s' % (tmp, reg), 'v_and_b32 %s, 0xffffff80, %s' % (reg, reg), 'v_lshlrev_b32 %s, 2, %s' % (reg, reg), 'v_lshl_add_u32 %s, %s, 5, %s' % (reg, tmp, reg)]


class Ctx:
    def __init__(self, name, timing=False):
        self.name = name
        self.P = Prog()
        self.slow = []
        self.timing = timing
        self.nstamp = 0
        self.sbase = 0
        self.hops = []
        self.stamp_names = []
    def check_flags(self, vdata, vaddr, phase, v2=None):
        lab = self.P.newlabel(self.name + "_spin")
        if GCFG["poll"] > 1 and v2 is not None:
            ld = lambda r: "    buffer_load_dword %s, %s, %s, 0 offen sc1\n" % (V(r), V(vaddr), srd(sWS))
            ck = lambda r: "    s_waitcnt vmcnt(1)\n    v_cmp_gt_u32 vcc, %d, %s\n    s_cbranch_vccz %s_d\n" % (phase, V(r), lab)
            self.slow.append("%s:\n    s_mov_b32 %s, 0\n" % (lab, S(sSPIN)) + ld(vdata) + "    s_nop 15\n" * GCFG["poll"] + "%s_l:\n" % lab + ld(v2) + ck(vdata) + ld(vdata) + ck(v2) +
                             "    s_add_u32 %s, %s, 1\n    s_cmp_lt_u32 %s, %d\n    s_cbranch_scc1 %s_l\n%s_d:\n    s_waitcnt vmcnt(0)\n    s_branch %s_b\n" % (S(sSPIN), S(sSPIN), S(sSPIN), SPIN_MAX, lab, lab, lab))
            return ["v_cmp_gt_u32 vcc, %d, %s" % (phase, V(vdata)), "s_cbranch_vccnz %s" % lab, lab + "_b:"]
        self.slow.append("""%s:
    s_mov_b32 %s, 0
%s_l:
    buffer_load_dword %s, %s, %s, 0 offen sc1
    s_add_u32 %s, %s, 1
    s_waitcnt vmcnt(0)
    v_cmp_gt_u32 vcc, %d, %s
    s_cmp_gt_u32 %s, %d
    s_cbranch_scc1 %s_b
    s_cbranch_vccnz %s_l
    s_branch %s_b
""" % (lab, S(sSPIN), lab, V(vdata), V(vaddr), srd(sWS), S(sSPIN), S(sSPIN), phase, V(vdata), S(sSPIN), SPIN_MAX, lab, lab, lab))
        return ["v_cmp_gt_u32 vcc, %d, %s" % (phase, V(vdata)), "s_cbranch_vccnz %s" % lab, lab + "_b:"]
    def load_flags(self, vdata, vaddr):
        return "buffer_load_dword %s, %s, %s, 0 offen sc1" % (V(vdata), V(vaddr), srd(sWS))
    def publish(self, vtmp, phase):
        return ["v_mov_b32 %s, %d" % (V(vtmp), phase), "s_mov_b64 exec, 1",
                "buffer_store_dword %s, off, %s, %s sc1" % (V(vtmp), srd(sWS), S(sFLAG)), "s_mov_b64 exec, -1"]
    def stamp(self, name):
        if not self.timing: return []
        k = self.nstamp; self.nstamp += 1
        self.stamp_names.append(name)
        return [("s_memtime" if self.timing == 2 else "s_memrealtime") + " s[100:101]", "s_waitcnt lgkmcnt(0)", "s_mov_b32 s%d, s100" % (60 + k - self.sbase)]
    def flush_stamps(self, v0, v1):
        if not self.timing: return
        P = self.P
        assert self.nstamp - self.sbase <= 16
        P("v_mov_b32 %s, 0" % V(v0))
        for k in range(self.sbase, self.nstamp):
            P("v_writelane_b32 %s, s%d, %d" % (V(v0), 60 + k - self.sbase, k - self.sbase))
        P("v_mbcnt_lo_u32_b32 %s, -1, 0\nv_mbcnt_hi_u32_b32 %s, -1, %s\nv_lshlrev_b32 %s, 2, %s" % (V(v1), V(v1), V(v1), V(v1), V(v1)))
        P("s_lshl_b32 s3, s2, 2\ns_add_u32 s3, s3, %s\ns_lshl_b32 s3, s3, 8\ns_add_u32 s3, s3, %d" % (S(sWAVE), WS_TIM + 4 * self.sbase))
        P("s_mov_b64 exec, 0xffff\nbuffer_store_dword %s, %s, %s, s3 offen\ns_mov_b64 exec, -1" % (V(v0), V(v1), srd(sWS)))
        self.sbase = self.nstamp
    def finish(self):
        P = self.P
        self.flush_stamps(0, 1)
        P.label(self.name + "_end")
        P("s_endpgm")
        text = P.finalize()
        if self.hops: text = self._place_stubs()
        return kernel_header(self.name) + text + "".join(self.slow)
    def align_body(self):
        self.P("s_branch %s_body" % self.name)
        self.P(".p2align 12")
        self.P.label(self.name + "_body")
    def hop(self, upto):
        k = len(self.hops); self.hops.append(upto)
        self.P("s_mov_b64 exec, 0\ns_branch %s_hop%d_0\n%s_hopback%d:\ns_mov_b64 exec, -1" % (self.name, k, self.name, k))
    def _place_stubs(self):
        import subprocess
        L = self.P.final
        lines = [i.text if i.kind in ("label", "dir") else "    " + i.text for i in L]
        fix = "".join("%s_hop%d_0:\n" % (self.name, k) for k in range(len(self.hops)))
        open("_st.s", "w").write('.amdgcn_target "amdgcn-amd-amdhsa--gfx950"\n.text\n' + "\n".join(lines) + "\n" + fix + "".join(self.slow))
        r = subprocess.run(["clang", "-x", "assembler", "-target", "amdgcn-amd-amdhsa", "-mcpu=gfx950", "-c", "_st.s", "-o", "_st.o"], capture_output=True, text=True)
        if r.returncode: print(r.stderr[:3000]); raise SystemExit(1)
        d = subprocess.run(["llvm-objdump", "-d", "--mcpu=gfx950", "_st.o"], capture_output=True, text=True).stdout
        d = d[d.index("<%s_body>:" % self.name):]
        sizes = [4 * len(l.split("//")[1].split(":")[1].split("<")[0].split()) for l in d.splitlines() if "//" in l]
        b0 = [k for k, i in enumerate(L) if i.text == self.name + "_body:"][0]
        out = lines[:b0 + 1]
        addr, page, si = 0, 1, 0
        chain, cnt, chains = None, {}, {}
        for k in range(b0 + 1, len(L)):
            i = L[k]
            if i.kind == "label":
                for h, upto in enumerate(self.hops):
                    if i.text == "%s_hopback%d:" % (self.name, h): chain = h
                    if upto is not None and i.text == upto + ":" and chain == h: chain = None
                out.append(lines[k]); continue
            if i.kind == "dir":
                out.append(lines[k]); continue
            if addr >= page * 4096:
                page += 1
                if chain is not None:
                    n = cnt.get(chain, 0); cnt[chain] = n + 1
                    out.append("%s_hop%d_%d:" % (self.name, chain, n)); out.append("    s_cbranch_execz %s_hop%d_%d" % (self.name, chain, n + 1)); addr += 4
            out.append(lines[k]); addr += sizes[si]; si += 1
        text = "\n".join(out) + "\n"
        for h in range(len(self.hops)):
            n = cnt.get(h, 0)
            text = text.replace("%s_hop%d_%d\n" % (self.name, h, n), "%s_hopback%d\n" % (self.name, h))
        return text

def prologue(C):
    P = C.P
    P("s_cmp_ge_u32 s2, 256\ns_cbranch_scc1 %s_end" % C.name)
    P("s_load_dwordx2 s[4:5], s[0:1], 0\ns_load_dwordx2 s[8:9], s[0:1], 8\ns_load_dwordx2 s[12:13], s[0:1], 16\ns_load_dwordx2 s[16:17], s[0:1], 24")
    P("s_load_dwordx2 s[20:21], s[0:1], 40\ns_load_dwordx2 s[24:25], s[0:1], 48\ns_load_dwordx2 s[28:29], s[0:1], 56")
    P("s_load_dwordx2 s[32:33], s[0:1], 64\ns_load_dwordx2 s[40:41], s[0:1], 72\ns_load_dwordx2 s[36:37], s[0:1], 80")
    for b, n in ((sX, 2359296), (sWQKV, 1990656), (sWPHI, 20736), (sWO, 663552), (sWG, 5308416), (sWU, 5308416), (sWD, 5308416),
                 (sOUT, 2359296), (sWS, WS_SIZE), (sDBG, 256), (sWN, 5308416)):
        P("s_mov_b32 s%d, %d\ns_mov_b32 s%d, 0x20000" % (b + 2, n, b + 3))
    P("v_lshrrev_b32 v1, 6, v0\nv_and_b32 v0, 63, v0\nv_readfirstlane_b32 %s, v1" % S(sWAVE))
    P("s_and_b32 %s, s2, 7\ns_lshr_b32 %s, s2, 3" % (S(sXCD), S(sIDX)))
    P("s_lshl_b32 %s, %s, 10" % (S(sW1K), S(sWAVE)))
    P("s_lshl_b32 %s, s2, %d\ns_lshl_b32 s80, %s, %d\ns_add_u32 %s, %s, s80" % (S(sFLAG), 9 if GCFG['fl'] else 7, S(sWAVE), 7 if GCFG['fl'] else 2, S(sFLAG), S(sFLAG)))
    P("s_lshr_b32 %s, %s, 1\ns_and_b32 %s, %s, 1\ns_lshr_b32 %s, %s, 3\ns_and_b32 %s, %s, 7" %
      (S(sFQ), S(sXCD), S(sMH), S(sXCD), S(sRB), S(sIDX), S(sFS), S(sIDX)))

def allred(reg, tmp, op):
    return ["v_mov_b32 %s, %s" % (V(tmp), V(reg)), "v_permlane16_swap_b32 %s, %s" % (V(reg), V(tmp)), "%s %s, %s, %s" % (op, V(reg), V(reg), V(tmp)),
            "v_mov_b32 %s, %s" % (V(tmp), V(reg)), "v_permlane32_swap_b32 %s, %s" % (V(reg), V(tmp)), "%s %s, %s, %s" % (op, V(reg), V(reg), V(tmp))]

def mfma(d, a, b, c=None):
    return "v_mfma_f32_16x16x32_bf16 %s, %s, %s, %s" % (R(d, 4), R(a, 4), R(b, 4), "0" if c is None else R(c, 4))

class LdsAddr:
    def __init__(self, regs, base=0):
        self.regs, self.base = regs, base
    def rebase(self, lo, hi):
        if lo >= self.base and hi - self.base <= 65536: return []
        d = lo - self.base
        self.base = lo
        if d > 0: return ["v_add_u32 %s, %d, %s" % (V(r), d, V(r)) for r in self.regs]
        return ["v_subrev_u32 %s, %d, %s" % (V(r), -d, V(r)) for r in self.regs]
    def off(self, addr):
        o = addr - self.base
        assert 0 <= o < 65536, (addr, self.base)
        return o
```

```python
from common import *

vA16 = 0
vG, vU, vP = 32, 96, 160
vWF = 192
vOX = 208
vTRU = 216
vTRN = 220
vDM, vDL = 221, 222
vWD = 223
vL16, vL8 = 232, 233
vR2 = 234
vFA, vFD = 238, 239
vT = 240
AG = 256

sA, sCOL, sNB, sNL, sWDB, sWD0, sHST, sHSN, sHLD, sMT2 = 76, 77, 78, 79, 80, 81, 82, 83, 84, 85
t0, t1, t2, t3 = 96, 97, 98, 99
sL2, sD2, sE1, sE2 = 92, 93, 94, 95

CFG = dict(ustep=12, dstep=7, astep=10, hstep=8, hstep2=12, e4=100, abl='', hst='sc1', ost='', wdown=0, rsp1=1, rsp2=1, hlead=30, fine=0, pfB=[(2, 300), (30, 480), (31, 580)], w0=7, w1=8)
LDS_N = 120 * 1024
PAIRS = [(16, 17), (14, 15)] + [(2 * i, 2 * i + 1) for i in range(7)]
def areg(phi, m):
    return vA16 + (phi - 16) * 16 + 4 * m if phi >= 16 else AG + phi * 16 + 4 * m
GSLOT = [4, 3, 0, 2, 1, 0, 2, 1, 0, 2, 1, 0]
def slab_addr(sig):
    return GSLOT[sig // 6] * 24576 + (sig % 6) * 4096
def slab_phi(sig):
    r = sig % 18
    return PAIRS[r // 2][r % 2]
WD_SLAB = [[b * 1024 + 9216 * i for i in range(4)] for b in (120, 84, 48, 12)]
def wd_slab(stage, i): return WD_SLAB[stage % 4][i]
def kappa(p):
    st, i = p // 4, p % 4
    if st == 0: return 32 + i
    kw = (i & 1) + 4 * (i >> 1)
    return 8 * (st - 1) + kw if st <= 4 else 8 * (st - 5) + 2 + kw
def oreg(m, n):
    k = m * 9 + n
    if k < 8: return vA16 + 4 * k
    if k < 16: return vP + 4 * (k - 8)
    return vOX + 4 * (k - 16)

def ffn_setup(C, vlane):
    P = C.P
    L = V(vlane)
    a, b, c, d = V(vT), V(vT + 1), V(vT + 2), V(vT + 3)
    P("s_lshl_b32 %s, %s, 6\ns_lshl_b32 %s, %s, 4\ns_add_u32 %s, %s, %s" % (S(t0), S(sMH), S(t1), S(sRB), S(t0), S(t0), S(t1)))
    P("s_lshl_b32 %s, %s, 2\ns_add_u32 %s, %s, %s" % (S(t1), S(sWAVE), S(t1), S(t1), S(t0)))
    P("s_mul_i32 %s, %s, 18432\ns_add_u32 %s, %s, %d" % (S(sA), S(t1), S(sA), S(sA), WS_HC))
    P("s_mul_i32 %s, %s, 147456\ns_mul_i32 %s, %s, 36864\ns_add_u32 %s, %s, %s\ns_add_u32 %s, %s, %d" %
      (S(t1), S(t1), S(t2), S(sFQ), S(t1), S(t1), S(t2), S(t1), S(t1), WS_HH))
    P("s_lshl_b32 %s, %s, 12\ns_add_u32 %s, %s, %s" % (S(t3), S(sFS), S(sHST), S(t1), S(t3)))
    P("s_lshl_b32 %s, %s, 9\ns_add_u32 %s, %s, %s\ns_add_u32 %s, %s, 32768" % (S(t3), S(sFS), S(sHSN), S(t1), S(t3), S(sHSN), S(sHSN)))
    P("s_lshr_b32 %s, %s, 2\ns_lshl_b32 %s, %s, 3\ns_add_u32 %s, %s, %s\ns_lshl_b32 %s, %s, 1\ns_add_u32 %s, %s, %s" %
      (S(t1), S(sFS), S(t1), S(t1), S(t0), S(t0), S(t1), S(t1), S(sWAVE), S(sMT2), S(t0), S(t1)))
    P("s_mul_i32 %s, %s, 147456\ns_add_u32 %s, %s, %s\ns_add_u32 %s, %s, %d" % (S(sHLD), S(sMT2), S(sHLD), S(sHLD), S(t2), S(sHLD), S(sHLD), WS_HH))
    P("s_mul_i32 %s, %s, 2304\ns_lshl_b32 %s, %s, 8\ns_add_u32 %s, %s, %s" % (S(t0), S(sFQ), S(t1), S(sFS), S(sCOL), S(t0), S(t1)))
    P("s_lshl_b32 %s, %s, 5\ns_add_u32 %s, %s, %s\ns_add_u32 %s, %s, 2048" % (S(t1), S(sFS), S(t0), S(t0), S(t1), S(t0), S(t0)))
    P("s_lshr_b32 %s, %s, 1\ns_mul_i32 %s, %s, %d\ns_add_u32 %s, %s, %s" % (S(t1), S(sWAVE), S(t2), S(t1), 32 * 9216, S(sNB), S(t0), S(t2)))
    P("s_mul_i32 %s, %s, %d\ns_add_u32 %s, %s, %s" % (S(t2), S(t1), 288 * 9216, S(sNL), S(t0), S(t2)))
    P("s_mul_i32 %s, %s, %d\ns_and_b32 %s, %s, 3\ns_mul_i32 %s, %s, 288\ns_add_u32 %s, %s, %s" %
      (S(t0), S(sFQ), 1152 * 1152, S(t2), S(sFS), S(t2), S(t2), S(t0), S(t0), S(t2)))
    P("s_and_b32 %s, %s, 1\ns_lshl_b32 %s, %s, 2\ns_add_u32 %s, %s, %s\ns_mul_i32 %s, %s, 36864\ns_add_u32 %s, %s, %s" %
      (S(t2), S(sWAVE), S(t1), S(t1), S(t2), S(t2), S(t1), S(t2), S(t2), S(sWDB), S(t0), S(t2)))
    P("s_add_u32 %s, %s, 32\ns_mul_i32 %s, %s, 36864\ns_add_u32 %s, %s, %s" % (S(t2), S(sWAVE), S(t2), S(t2), S(sWD0), S(t0), S(t2)))
    P("s_and_b32 %s, %s, 1\ns_cmp_eq_u32 %s, 0\ns_cselect_b32 %s, %s, %s\ns_cselect_b32 %s, %s, %s" %
      (S(t2), S(sWAVE), S(t2), S(sWN), S(sWG), S(sWU), S(sWN + 1), S(sWG + 1), S(sWU + 1)))
    P("s_movk_i32 %s, 9216" % S(t3))
    def grow(rho, out, tmp):
        P("v_bfe_u32 %s, %s, 2, 2\nv_mul_u32_u24 %s, 72, %s" % (out, rho, out, out))
        P("v_lshrrev_b32 %s, 4, %s\nv_lshl_add_u32 %s, %s, 2, %s" % (tmp, rho, out, tmp, out))
        P("v_and_b32 %s, 3, %s\nv_add3_u32 %s, %s, %s, 64" % (tmp, rho, out, out, tmp))
    P("s_lshl_b32 %s, %s, 3\nv_lshrrev_b32 %s, 3, %s\nv_add_u32 %s, %s, %s" % (S(t2), S(sWAVE), a, L, a, S(t2), a))
    P("v_and_b32 %s, 6, %s\nv_and_b32 %s, 7, %s\nv_xor_b32 %s, %s, %s\nv_lshlrev_b32 %s, 4, %s" % (b, a, c, L, b, b, c, b, b))
    P("v_mad_u32_u24 %s, %s, %s, %s" % (V(vDM), a, S(t3), b))
    grow(a, c, d)
    P("v_mad_u32_u24 %s, %s, %s, %s" % (V(vDL), c, S(t3), b))
    P("v_lshrrev_b32 %s, 1, %s\nv_and_b32 %s, 1, %s\nv_lshlrev_b32 %s, 4, %s" % (a, L, b, L, b, b))
    P("v_mad_u32_u24 %s, %s, %s, %s" % (V(vWD), a, S(t3), b))
    grow(a, c, d)
    P("v_mad_u32_u24 %s, %s, %s, %s" % (V(vWD + 1), c, S(t3), b))

def dma_unit(P, sig, tok=None):
    st, phi = sig // 18, slab_phi(sig)
    src = sWG if st % 2 == 0 else sWU
    col = 128 if st >= 2 else 0
    if phi < 16: row, vo = 72 * (phi >> 1) + 32 * (phi & 1), vDM
    else: row, vo = 288 * (phi - 16), vDL
    return ["s_add_u32 m0, %s, %d" % (S(sW1K), slab_addr(sig)), "s_add_u32 %s, %s, %d" % (S(t0), S(sCOL), row * 9216 + col),
            P.mk("buffer_load_dwordx4 %s, %s, %s offen lds" % (V(vo), srd(src), S(t0)), tok)]

def narrow_items(P):
    out = []
    for it in [8, 7] + list(range(7)):
        x = ["s_add_u32 m0, %s, %d" % (S(sW1K), LDS_N + it * 4096)]
        if it < 8:
            x.append("s_add_u32 %s, %s, %d" % (S(t0), S(sNB), it * 72 * 9216))
            x.append("buffer_load_dwordx4 %s, %s, %s offen lds" % (V(vWD), srd(sWN), S(t0)))
        else:
            x.append("buffer_load_dwordx4 %s, %s, %s offen lds" % (V(vWD + 1), srd(sWN), S(sNL)))
        out.append(x)
    return out
def unit_items(P, lo, hi):
    return [dma_unit(P, sig) for sig in range(lo, hi)]

def hbm_prefetch(P, which, vl, ta, tb, tc, dst, mklane=False, s0=None, s1=None):
    L, a, b, c = V(vl), V(ta), V(tb), V(tc)
    if s0 is None: s0, s1 = S(t0), S(t1)
    om = "s_lshl_b32 %s, %s, 6\ns_lshl_b32 %s, %s, 1\ns_add_u32 %s, %s, %s\ns_add_u32 %s, %s, %s" % (s0, S(sWAVE), s1, S(sIDX), s0, s0, s1, s0, s0, S(sMH))
    it = [om]
    if mklane: it.append("v_lshrrev_b32 %s, 4, %s" % (L, V(vL16)))
    def ld(sr):
        x = P.mk("buffer_load_dword %s, %s, %s, %s offen" % (V(dst), a, srd(sr), s1)); x.dst = []
        return x
    if which in (1, 2):
        per, rows = (10, 6) if which == 1 else (8, 8)
        nw = 576 // rows
        if which == 1:
            it.append("v_mul_u32_u24 %s, 6554, %s\nv_lshrrev_b32 %s, 16, %s\nv_mul_u32_u24 %s, 10, %s\nv_sub_u32 %s, %s, %s" % (a, L, a, a, b, a, b, L, b))
            it.append("v_lshlrev_b32 %s, 1, %s\nv_min_u32 %s, 17, %s" % (b, b, b, b))
            it.append("v_min_u32 %s, 5, %s" % (a, a))
        else:
            it.append("v_lshrrev_b32 %s, 3, %s\nv_and_b32 %s, 7, %s\nv_lshl_add_u32 %s, %s, 1, 1" % (a, L, b, L, b, b))
        it.append("v_mul_u32_u24 %s, 9216, %s\nv_lshl_add_u32 %s, %s, 7, %s" % (a, a, a, b, a))
        it.append("s_cmp_ge_u32 %s, %d\ns_cselect_b32 %s, %s, %s\ns_cselect_b32 %s, %s, %s\ns_cselect_b32 %s, %d, 0\ns_sub_u32 %s, %s, %s" %
                  (s0, nw, S(sWN), S(sWU), S(sWG), S(sWN + 1), S(sWU + 1), S(sWG + 1), s1, nw, s0, s0, s1))
        it.append("s_mul_i32 %s, %s, %d\ns_mul_i32 %s, %s, 2304\ns_add_u32 %s, %s, %s" % (s0, s0, rows * 9216, s1, S(sFQ), s1, s1, s0))
        it.append(ld(sWN))
    else:
        if which == 4: it.append("s_xor_b32 %s, %s, 1" % (s0, s0))
        if which >= 30:
            k, n = which % 10, (which // 10) - 1
            per = -(-41 // n)
            it.append("v_min_u32 %s, %d, %s\nv_add_u32 %s, %d, %s\nv_min_u32 %s, 40, %s\nv_lshlrev_b32 %s, 7, %s" % (a, per - 1, L, a, k * per, a, a, a, a, a))
        else:
            it.append("v_min_u32 %s, 40, %s\nv_lshlrev_b32 %s, 7, %s" % (a, L, a, a))
        it.append("s_mul_i32 %s, %s, %d\ns_mul_i32 %s, %s, %d\ns_add_u32 %s, %s, %s" % (s0, s0, 41 * 128, s1, S(sFQ), 1152 * 1152, s1, s1, s0))
        it.append(ld(sWD))
    return it

def ffn_addr2(C, vlane):
    P = C.P
    L = V(vlane)
    a, b, c, d = V(vT), V(vT + 1), V(vT + 2), V(vT + 3)
    P("v_lshlrev_b32 %s, 4, %s\nv_lshlrev_b32 %s, 3, %s" % (V(vL16), L, V(vL8), L))
    P("v_lshrrev_b32 %s, 2, %s\nv_and_b32 %s, 3, %s" % (a, L, b, L))
    P("v_lshlrev_b32 %s, 5, %s\nv_lshl_add_u32 %s, %s, 3, %s\nv_add_u32 %s, %d, %s" % (c, a, c, b, c, V(vTRN), LDS_N, c))
    P("v_bfe_u32 %s, %s, 1, 2" % (c, a))
    P("v_lshlrev_b32 %s, 7, %s\nv_lshl_add_u32 %s, %s, 3, %s" % (d, a, d, b, d))
    for T in range(4):
        P("v_xor_b32 %s, %d, %s\nv_lshl_add_u32 %s, %s, 5, %s" % (V(vTRU + T), T, c, V(vTRU + T), V(vTRU + T), d))
    for q in range(9):
        r = V(vWD + q)
        P("v_add_u32 %s, %d, %s\nv_mul_u32_u24 %s, 3641, %s\nv_lshrrev_b32 %s, 16, %s" % (a, 64 * q, L, b, a, b, b))
        P("v_mul_u32_u24 %s, 864, %s\nv_lshl_add_u32 %s, %s, 4, %s" % (b, b, r, a, b))
        if q % 4: P("v_subrev_u32 %s, %d, %s" % (r, 1024 * (q % 4), r))

def ffn_main(C, vlane_src=None, s3_addr_ready=True):
    P = C.P
    a, b, c, d = V(vT), V(vT + 1), V(vT + 2), V(vT + 3)
    P.add(C.load_flags(vFD, vFA))
    P("s_waitcnt vmcnt(0)")
    for x in C.check_flags(vFD, vFA, 3, vT + 15): P.add(x)
    for x in C.stamp("s3done"): P.add(x)
    def aload(phi, m):
        return ["s_add_u32 %s, %s, %d" % (S(t1), S(sA), m * 18432 + phi * 1024),
                "buffer_load_dwordx4 %s, %s, %s, %s offen sc1" % (R(areg(phi, m), 4), V(vL16), srd(sWS), S(t1)),
                "buffer_load_dwordx4 %s, %s, %s, %s offen offset:1024 sc1" % (R(areg(phi + 1, m), 4), V(vL16), srd(sWS), S(t1))]
    for pr in PAIRS[:2]:
        for m in range(4):
            for x in aload(pr[0], m): P.add(x)
    it = ["v_lshrrev_b32 %s, 4, %s" % (V(vFA), V(vL16)), "v_and_b32 %s, 7, %s" % (V(vFA), V(vFA)), "v_lshlrev_b32 %s, 10, %s" % (V(vFA), V(vFA)),
          "s_lshl_b32 %s, %s, 13" % (S(t1), S(sRB)), "s_lshl_b32 %s, %s, 7" % (S(sL2), S(sXCD)), "s_add_u32 %s, %s, %s" % (S(t1), S(t1), S(sL2)),
          "s_lshr_b32 %s, %s, 2" % (S(sL2), S(sFS)), "s_lshl_b32 %s, %s, 3" % (S(sL2), S(sL2)), "s_add_u32 %s, %s, %s" % (S(t1), S(t1), S(sL2)),
          "s_lshr_b32 %s, %s, 1" % (S(sL2), S(sWAVE)), "s_lshl_b32 %s, %s, 2" % (S(sL2), S(sL2)), "s_add_u32 %s, %s, %s" % (S(t1), S(t1), S(sL2)),
          "v_add_u32 %s, %s, %s" % (V(vFA), S(t1), V(vFA))] + flagfix(V(vFA), V(vFD))
    for x in it: P.add(x)
    P("s_barrier")
    main, blocks = [], []
    for st in range(4):
        tiles = [0, 1, 2, 3] + (["ng", "nu"] if st == 0 else [])
        for pi, pr in enumerate(PAIRS):
            for T in tiles:
                bi = len(blocks)
                wf = vWF + 8 * (bi % 3)
                blocks.append(dict(start=len(main), g=1, st=st, pi=pi, T=T, wf=wf))
                for m in range(4):
                    if T == "ng": acc = vP + 4 * m
                    elif T == "nu": acc = vP + 16 + 4 * m
                    else: acc = (vG if st % 2 == 0 else vU) + 16 * T + 4 * m
                    order = (0, 1) if m % 2 == 0 else (1, 0)
                    for q, i in enumerate(order):
                        x = mfma(acc, wf + 4 * i, areg(pr[i], m), None if (pi == 0 and q == 0) else acc)
                        if m == 0 and q == 0:
                            w = list(range(wf, wf + 8))
                            if st == 0 and T == 0 and pi > 0:
                                for mm in range(4): w += [areg(pr[0], mm), areg(pr[1], mm)]
                            x = [WaitRegs(w), x]
                        main.append(x)
    nb1 = len(blocks)
    def hreg(p, m): return AG + 8 * (p % 28) + 4 * m
    for st in range(9):
        for pp in range(2):
            for n in range(9):
                bi = len(blocks)
                wf = AG + 224 + 8 * ((bi - nb1) % 4)
                blocks.append(dict(start=len(main), g=2, st=st, pp=pp, n=n, wf=wf))
                for m in range(2):
                    order = (0, 1) if m % 2 == 0 else (1, 0)
                    for q, i in enumerate(order):
                        p = 4 * st + 2 * pp + i
                        x = mfma(oreg(m, n), wf + 4 * i, hreg(p, m), None if (st == 0 and pp == 0 and q == 0) else oreg(m, n))
                        if m == 0 and q == 0:
                            w = list(range(wf, wf + 8))
                            if n == 0:
                                for mm in range(2):
                                    for ii in range(2): w += list(range(hreg(p + ii, mm), hreg(p + ii, mm) + 4))
                            x = [WaitRegs(w), x]
                        main.append(x)
    NM = len(main)
    start = [bl["start"] for bl in blocks] + [NM]
    stage1 = [min(bl["start"] for bl in blocks if bl["g"] == 1 and bl["st"] == s_) for s_ in range(4)] + [start[nb1]]
    stage2 = [min(bl["start"] for bl in blocks if bl["g"] == 2 and bl["st"] == s_) for s_ in range(9)] + [NM]
    def pair_end(st, pi):
        return max(start[i + 1] for i, bl in enumerate(blocks) if bl["g"] == 1 and bl["st"] == st and bl["pi"] == pi) - 1

    rd, dm = [], []
    au = LdsAddr([vTRU + T for T in range(4)], 0)
    aw = LdsAddr([vTRN], 0)
    toks = {}
    def wd_dma(stage, nb, step):
        tok = P.newtok(); toks[("d", stage)] = tok
        it = []
        if stage == 0: so = S(sWD0)
        else:
            k = 8 * (stage - 1) if stage <= 4 else 8 * (stage - 5) + 2
            it.append("s_add_u32 %s, %s, %d" % (S(t2), S(sWDB), k * 36864)); so = S(t2)
        base = WD_SLAB[stage % 4][0]
        for q in range(9):
            if q % 4 == 0: it.append("s_add_u32 m0, %s, %d" % (S(sD2), base + 1024 * q))
            it.append(P.mk("buffer_load_dwordx4 %s, %s, %s offen offset:%d lds" % (V(vWD + q), srd(sWD), so, 1024 * (q % 4)), tok if q == 8 else None))
        dm.extend(paced(it, nb + 1, step)[0])
    P("s_mul_i32 %s, %s, 9216" % (S(sD2), S(sWAVE)))
    prev_nb = -1
    for bi, bl in enumerate(blocks):
        lead = 2 if bl["g"] == 1 else 3
        nb = start[bi - lead] - 1 if bi >= lead else -1
        dl = start[bi - lead + 1] if bi >= lead else 0
        if bl["g"] == 1:
            st, pi, T = bl["st"], bl["pi"], bl["T"]
            sig = st * 18 + 2 * pi
            if T == 0 and sig % 6 == 0 and sig >= 18:
                g = sig // 6
                it = []
                if ("u", g) in toks: it.append(WaitTok(toks[("u", g)]))
                it += ["s_waitcnt lgkmcnt(0)", "s_barrier"]
                rd.append((nb, nb + 1, it))
                if g + 2 < 12:
                    tok = P.newtok(); toks[("u", g + 2)] = tok
                    dm.extend(paced([dma_unit(P, s2, tok if s2 % 6 == 5 else None) for s2 in range(6 * (g + 2), 6 * (g + 3))], nb + 3, CFG["ustep"])[0])
                if g == CFG['w0']: wd_dma(0, nb + 1 + 6 * CFG['ustep'], 5)
                if g == CFG['w1']: wd_dma(1, nb + 1 + 6 * CFG['ustep'], 5)
                if g == 10: wd_dma(2, nb + 1, 10)
                nb += 1
            items = []
            for i in range(2):
                if T in ("ng", "nu"):
                    o = PAIRS[pi][i] * 2048 + (1024 if T == "nu" else 0)
                    items += ["ds_read_b64_tr_b16 %s, %s offset:%d" % (R(bl["wf"] + 4 * i + 2 * h, 2), V(vTRN), o + 512 * h) for h in range(2)]
                else:
                    ad = slab_addr(sig + i)
                    gbase = slab_addr(sig - sig % 6)
                    items += au.rebase(gbase, gbase + 24576)
                    items += ["ds_read_b64_tr_b16 %s, %s offset:%d" % (R(bl["wf"] + 4 * i + 2 * h, 2), V(vTRU + T), au.off(ad + 2048 * h)) for h in range(2)]
        else:
            st, pp, n = bl["st"], bl["pp"], bl["n"]
            if bi == nb1:
                nb = start[bi - 2] - 1; dl = start[bi - 1]
            if bi == nb1 + 1:
                nb = start[bi - 3] - 1; dl = start[bi - 1]
            if bi == nb1 + 2:
                dl = start[bi - 1]
            if pp == 0 and n == 0:
                it = [WaitTok(toks[("d", st)]), "s_waitcnt lgkmcnt(0)", "s_barrier"]
                rd.append((nb, nb + 1, it))
                if st == 0:
                    rd.append((nb + 1, dl, ["v_lshrrev_b32 %s, 6, %s" % (V(vTRN), V(vL16)), "v_mul_u32_u24 %s, 288, %s" % (V(vTRN), V(vTRN)),
                                            "v_and_b32 %s, 24, %s" % (V(vT + 15), V(vL8)), "v_add_u32 %s, %s, %s" % (V(vTRN), V(vTRN), V(vT + 15))]))
                if st + 3 < 9: wd_dma(st + 3, nb + 1, CFG['dstep'])
                nb += 1
            items = []
            for i in range(2):
                ad = wd_slab(st, 2 * pp + i)
                lo = wd_slab(st, 2 * pp)
                items += aw.rebase(lo, lo + 2 * 9216)
                items += ["ds_read_b64_tr_b16 %s, %s offset:%d" % (R(bl["wf"] + 4 * i + 2 * h, 2), V(vTRN), aw.off(ad + 4608 * h + 32 * n)) for h in range(2)]
        nb = max(nb, prev_nb); prev_nb = nb
        dl = max(dl, nb + 1)
        k = 0
        for x in items:
            rd.append((min(nb + k * (CFG["rsp1"] if bl["g"] == 1 else CFG["rsp2"]), dl - 1) if nb >= 0 else nb, dl, x))
            if x.startswith("ds_"): k += 1

    ld = []
    apos = 0
    for pi in range(2, 9):
        use = [bl["start"] for bl in blocks if bl["g"] == 1 and bl["st"] == 0 and bl["pi"] == pi][0]
        x, apos = paced([aload(PAIRS[pi][0], m) for m in range(4)], apos, CFG['astep'] / 2, use)
        ld += x
        if pi == 8:
            it = ["v_lshrrev_b32 %s, 2, %s" % (V(vT + 8), V(vL16)), "v_and_b32 %s, 0x3c, %s" % (V(vT + 8), V(vT + 8)),
                  "v_lshrrev_b32 %s, 8, %s" % (V(vT + 9), V(vL16)), "v_lshl_add_u32 %s, %s, 9, %s" % (V(vT + 8), V(vT + 9), V(vT + 8)),
                  "s_sub_u32 %s, %s, %d" % (S(t1), S(sA), WS_HC), "s_mul_hi_u32 %s, %s, %d" % (S(t1), S(t1), 477218589),
                  "s_add_u32 %s, %s, %d" % (S(t1), S(t1), WS_SSQ)]
            for m in range(4):
                if m == 2: it.append("s_add_u32 %s, %s, 4096" % (S(t1), S(t1)))
                for h in range(2):
                    it.append("buffer_load_dword %s, %s, %s, %s offen offset:%d sc1" % (V(vT + 2 * m + h), V(vT + 8), srd(sWS), S(t1), 2048 * (m % 2) + 256 * h))
            x, apos = paced(it, apos, 3)
            ld += x
    for which, at in CFG['pfB']:
        assert at <= 400 or at >= 436
        rg = (vT + 13, vT + 10, vT + 11, vT + 12) if at <= 400 else (vT + 7, vT + 4, vT + 3, vT + 2)
        ld.append((at, 420 if at <= 400 else INF, hbm_prefetch(P, which, rg[0], rg[1], rg[2], rg[3], vFD, True, S(sL2), S(t1))))
    s4 = stage1[3]
    def hload(p):
        k = kappa(p); it = []
        if p < 4:
            for m in range(2):
                it.append("s_add_u32 %s, %s, %d" % (S(t1), S(sHLD), m * 147456 + k * 1024))
                for h in range(2):
                    it.append("buffer_load_dwordx2 %s, %s, %s, %s offen offset:%d sc1" % (R(hreg(p, m) + 2 * h, 2), V(vL8), srd(sWS), S(t1), 512 * h))
            return [it[:3], it[3:]]
        assert p % 2 == 0 and kappa(p + 1) == k + 1
        out = []
        for m in range(2):
            out.append(["s_add_u32 %s, %s, %d" % (S(t1), S(sHLD), m * 147456 + k * 1024),
                        "buffer_load_dwordx4 %s, %s, %s, %s offen sc1" % (R(hreg(p, m), 4), V(vL16), srd(sWS), S(t1)),
                        "buffer_load_dwordx4 %s, %s, %s, %s offen offset:1024 sc1" % (R(hreg(p + 1, m), 4), V(vL16), srd(sWS), S(t1))])
        return out
    def use2(p): return stage2[p // 4] + 36 * ((p % 4) // 2)
    ld.append((s4 + 40, INF, C.load_flags(vFD, vFA)))
    ld.append((pair_end(3, 2), INF, C.check_flags(vFD, vFA, 4) + ([] if CFG["fine"] else C.stamp("s4a"))))
    hn = 0
    for p in list(range(4)) + list(range(4, 20, 2)):
        dead = pair_end(3, 2 + (p + 1) // 4)
        x, hn = paced(hload(p), max(hn, dead), CFG['hstep'] / 2, use2(p) - CFG['hlead'])
        ld += x
    FB_LOAD, FB_CHECK = stage2[3] + 36, stage2[4]
    ld.append((FB_LOAD, INF, C.load_flags(vFD, vFA)))
    ld.append((FB_CHECK, INF, C.check_flags(vFD, vFA, 5) + ([] if CFG["fine"] else C.stamp("s4b"))))
    for p in range(20, 36, 2):
        x, hn = paced(hload(p), max(hn, FB_CHECK + 1), CFG['hstep2'] / 2, use2(p) - CFG['hlead'])
        ld += x

    ep = []
    nb = pair_end(0, 7)
    for m in range(4):
        r = vR2 + m
        it = ["v_add_f32 %s, %s, %s" % (V(r), V(vT + 2 * m), V(vT + 2 * m + 1))] + allred(r, vT + 9, "v_add_f32")
        it += ["v_mov_b32 %s, 0x3727c5ac" % V(vT + 9), "v_fmac_f32 %s, 0x3ae38e39, %s" % (V(vT + 9), V(r)), "v_rcp_f32 %s, %s" % (V(r), V(vT + 9))]
        for x in it: ep.append((nb, stage1[1], x))
    stq = [vT + 8, vT + 12]
    nb = stage1[1] + 3
    for m in range(4):
        g, u, q = vP + 4 * m, vP + 16 + 4 * m, stq[m % 2]
        for j in range(4):
            ep.append((nb, INF, "v_max_f32 %s, 0, %s" % (V(g + j), V(g + j))))
            ep.append((nb, INF, "v_mul_f32 %s, %s, %s" % (V(u + j), V(vR2 + m), V(u + j))))
            ep.append((nb, INF, "v_mul_f32 %s, %s, %s" % (V(g + j), V(g + j), V(u + j))))
        for h in range(2): ep.append((nb, INF, "v_cvt_pk_bf16_f32 %s, %s, %s" % (V(q + h), V(g + 2 * h), V(g + 2 * h + 1))))
        ep.append((nb, INF, "s_add_u32 %s, %s, %d" % (S(sE1), S(sHSN), m * 147456)))
        ep.append((nb, INF, "buffer_store_dwordx2 %s, %s, %s, %s offen %s" % (V(q, 2), V(vL8), srd(sWS), S(sE1), CFG["hst"])))
    for T in range(4):
        for m in range(4):
            g, pk = vG + 16 * T + 4 * m, vP + 2 * (4 * T + m)
            for j in range(4): ep.append((nb, stage1[2], "v_mul_f32 %s, %s, %s" % (V(g + j), V(vR2 + m), V(g + j))))
            for h in range(2): ep.append((nb, stage1[2], "v_cvt_pk_bf16_f32 %s, %s, %s" % (V(pk + h), V(g + 2 * h), V(g + 2 * h + 1))))
            for h in range(2): ep.append((nb, stage1[2], "v_pk_max_i16 %s, %s, 0" % (V(pk + h), V(pk + h))))
    nb = stage1[2] + 3
    tokA = P.newtok()
    k = 0
    for m in range(4):
        for i in range(2):
            q = stq[k % 2]; k += 1
            for tt in range(2):
                T = 2 * i + tt
                u, pk = vU + 16 * T + 4 * m, vP + 2 * (4 * T + m)
                for h in range(2):
                    ep.append((nb, stage1[3], "v_lshlrev_b32 %s, 16, %s" % (V(vT + 5), V(pk + h))))
                    ep.append((nb, stage1[3], "v_and_b32 %s, 0xffff0000, %s" % (V(vT + 6), V(pk + h))))
                    ep.append((nb, stage1[3], "v_mul_f32 %s, %s, %s" % (V(vT + 5), V(vT + 5), V(u + 2 * h))))
                    ep.append((nb, stage1[3], "v_mul_f32 %s, %s, %s" % (V(vT + 6), V(vT + 6), V(u + 2 * h + 1))))
                    ep.append((nb, stage1[3], "v_cvt_pk_bf16_f32 %s, %s, %s" % (V(q + 2 * tt + h), V(vT + 5), V(vT + 6))))
            it = []
            if i == 0: it.append("s_add_u32 %s, %s, %d" % (S(sE2), S(sHST), m * 147456))
            it.append(P.mk("buffer_store_dwordx4 %s, %s, %s, %s offen offset:%d %s" % (V(q, 4), V(vL16), srd(sWS), S(sE2), 1024 * i, CFG["hst"]), tokA if (m, i) == (3, 1) else None))
            for x in it: ep.append((nb, stage1[3], x))
    ep.append((stage1[3] - 24, stage1[3] + 8, [WaitTok(tokA)] + C.publish(vT + 5, 4)))
    nb = stage1[3] + 9
    for T in range(4):
        for m in range(4):
            g = vG + 16 * T + 4 * m
            for j in range(4):
                ep.append((nb, stage1[4], "v_mul_f32 %s, %s, %s" % (V(g + j), V(vR2 + m), V(g + j))))
                ep.append((nb, stage1[4], "v_max_f32 %s, 0, %s" % (V(g + j), V(g + j))))
    nb = stage1[4] + 3
    tokB = P.newtok()
    k = 0
    for m in range(4):
        for i in range(2):
            q = stq[k % 2]; k += 1
            for tt in range(2):
                T = 2 * i + tt
                u, g = vU + 16 * T + 4 * m, vG + 16 * T + 4 * m
                for j in range(4): ep.append((nb, INF, "v_mul_f32 %s, %s, %s" % (V(u + j), V(u + j), V(g + j))))
                for h in range(2): ep.append((nb, INF, "v_cvt_pk_bf16_f32 %s, %s, %s" % (V(q + 2 * tt + h), V(u + 2 * h), V(u + 2 * h + 1))))
            it = []
            if i == 0: it.append("s_add_u32 %s, %s, %d" % (S(sE2), S(sHST), m * 147456 + 2048))
            it.append(P.mk("buffer_store_dwordx4 %s, %s, %s, %s offen offset:%d %s" % (V(q, 4), V(vL16), srd(sWS), S(sE2), 1024 * i, CFG["hst"]), tokB if (m, i) == (3, 1) else None))
            for x in it: ep.append((nb, INF, x))
    ep.append((stage2[2] + 36, FB_LOAD, [WaitTok(tokB)] + C.publish(vT + 5, 5)))
    it = ["s_lshr_b32 %s, %s, 1" % (S(sE1), S(sFQ)), "s_add_u32 %s, %s, %s" % (S(sMT2), S(sMT2), S(sE1)),
          "s_mul_i32 %s, %s, 18432" % (S(sE1), S(sMT2)), "s_and_b32 %s, %s, 3" % (S(sE2), S(sFS)), "s_mul_i32 %s, %s, 4608" % (S(sE2), S(sE2)),
          "s_add_u32 %s, %s, %s" % (S(sE1), S(sE1), S(sE2)), "s_and_b32 %s, %s, 1" % (S(sE2), S(sFQ)), "s_mul_i32 %s, %s, 2560" % (S(sE2), S(sE2)),
          "s_add_u32 %s, %s, %s" % (S(sE1), S(sE1), S(sE2)), "s_add_u32 %s, %s, %d" % (S(sE1), S(sE1), WS_H)]
    it += ["buffer_load_dwordx2 %s, %s, %s, %s offen offset:%d sc1" % (V(vG + 2 * n, 2), V(vL8), srd(sWS), S(sE1), 512 * n) for n in range(5)]
    ep += paced(it, stage2[6] + 30, 5)[0]
    it = ["v_lshrrev_b32 %s, 4, %s" % (V(vFA), V(vL16)), "v_and_b32 %s, 3, %s" % (V(vFA), V(vFA)), "v_lshlrev_b32 %s, 8, %s" % (V(vFA), V(vFA)),
          "s_lshl_b32 %s, %s, 10" % (S(sE1), S(sIDX)), "s_lshl_b32 %s, %s, 7" % (S(sE2), S(sMH)), "s_add_u32 %s, %s, %s" % (S(sE1), S(sE1), S(sE2)),
          "s_lshl_b32 %s, %s, 2" % (S(sE2), S(sWAVE)), "s_add_u32 %s, %s, %s" % (S(sE1), S(sE1), S(sE2)), "v_add_u32 %s, %s, %s" % (V(vFA), S(sE1), V(vFA))] + flagfix(V(vFA), V(vFD))
    for x in it: ep.append((stage2[7] + 10, INF, x))
    def respread(lo, hi):
        idx = [k for k, e in enumerate(ep) if e[0] == lo]
        for c_, k in enumerate(idx): ep[k] = (lo + (hi - lo) * c_ // len(idx), ep[k][1], ep[k][2])
    respread(pair_end(0, 7), stage1[1] - 2)
    respread(stage1[1] + 3, stage1[2] - 8)
    respread(stage1[2] + 3, stage1[2] + 200)
    respread(stage1[3] + 9, stage1[4] - 8)
    respread(stage1[4] + 3, stage1[4] + CFG["e4"])
    if C.timing:
        for s_ in range(1, 5): ep.append((stage1[s_], INF, C.stamp("g1s%d" % s_)))
        if CFG["fine"] == 1:
            for s_ in range(1, 9): ep.append((stage2[s_], INF, C.stamp("b%d" % s_)))
        ep.sort(key=lambda x: x[0])

    def per(i):
        k = 1 if (i + 1 < NM and isinstance(main[i + 1], list)) else 2
        if stage1[4] <= i < stage1[4] + CFG["e4"]: k += 1
        return k
    def txt(x): return x.text if isinstance(x, Ins) else x if isinstance(x, str) else ""
    if "h" in CFG["abl"]: ld = [e for e in ld if not (e[0] >= s4 + 60 and txt(e[2]).startswith("buffer_load_dwordx"))]
    if "a" in CFG["abl"]: ld = [e for e in ld if not (e[0] < s4 and txt(e[2]).startswith("buffer_load_dwordx4"))]
    if "w" in CFG["abl"]: dm = [e for e in dm if not ("s[28:31]" in txt(e[2]) and not (isinstance(e[2], Ins) and e[2].tok))]
    if "u" in CFG["abl"]: dm = [e for e in dm if not (("s[20:23]" in txt(e[2]) or "s[24:27]" in txt(e[2])) and not (isinstance(e[2], Ins) and e[2].tok))]
    if "e" in CFG["abl"]: ep = [e for e in ep if not txt(e[2]).startswith("v_")]
    if "s" in CFG["abl"]: ep = [e for e in ep if not (txt(e[2]).startswith("buffer_store") and not (isinstance(e[2], Ins) and e[2].tok))]
    if "b" in CFG["abl"]: rd = [(e[0], e[1], [y for y in e[2] if y != "s_barrier"] if isinstance(e[2], list) else e[2]) for e in rd]
    if "r" in CFG["abl"]: rd = [e for e in rd if not txt(e[2]).startswith("ds_read")]
    multi_interleave(P, main, [rd, ld, dm, ep], per)
    for x in C.stamp("g2done"): P.add(x)
    ffn_final(C)

def ffn_final(C):
    P = C.P
    labs = [P.newlabel(C.name + "_fin") for _ in range(4)]
    done = P.newlabel(C.name + "_findone")
    P("s_lshl_b32 %s, %s, 3\ns_add_u32 %s, %s, %s\ns_lshl_b32 %s, %s, 4\ns_add_u32 %s, %s, %s" %
      (S(t0), S(sIDX), S(t0), S(t0), S(sMH), S(t0), S(t0), S(t0), S(t0), S(sWAVE)))
    P("s_mul_i32 %s, %s, 2560\ns_add_u32 %s, %s, %d" % (S(t0), S(t0), S(t0), S(t0), WS_PART))
    P("v_lshrrev_b32 %s, 4, %s\nv_and_b32 %s, 15, %s\nv_mul_u32_u24 %s, 1152, %s" % (V(vT), V(vL16), V(vT + 1), V(vT), V(vT + 1), V(vT + 1)))
    P("v_lshrrev_b32 %s, 4, %s\nv_lshl_add_u32 %s, %s, 3, %s" % (V(vT), V(vT), V(vT), V(vT), V(vT + 1)))
    P("s_mul_i32 %s, %s, 18432\ns_and_b32 %s, %s, 3\ns_mul_i32 %s, %s, 288\ns_add_u32 %s, %s, %s" % (S(t2), S(sMT2), S(t3), S(sFS), S(t3), S(t3), S(t2), S(t2), S(t3)))
    P("s_waitcnt vmcnt(0) lgkmcnt(0)\ns_nop 7")
    for fq in range(1, 4):
        P("s_cmp_eq_u32 %s, %d\ns_cbranch_scc1 %s" % (S(sFQ), fq, labs[fq]))
    def part(f): return [(f >> 1, n) for n in (range(5, 9) if f & 1 else range(5))]
    fst = [C.stamp(n) if CFG["fine"] == 2 else [] for n in ("f0", "f1", "f2", "f3", "f4")]
    for fq in range(4):
        P.label(labs[fq])
        for x in fst[0]: P.add(x)
        st = vU
        for d in range(4):
            if d == fq: continue
            tl = part(d); regs = []
            for i, (m, n) in enumerate(tl):
                for h in range(2):
                    P("v_cvt_pk_bf16_f32 %s, %s, %s" % (V(st + 2 * i + h), V(oreg(m, n) + 2 * h), V(oreg(m, n) + 2 * h + 1)))
            P("s_add_u32 %s, %s, %d" % (S(t1), S(t0), (d * 2 * 16 + fq * 4) * 2560))
            P("buffer_store_dwordx4 %s, %s, %s, %s offen sc1" % (V(st, 4), V(vL16), srd(sWS), S(t1)))
            P("buffer_store_dwordx4 %s, %s, %s, %s offen offset:1024 sc1" % (V(st + 4, 4), V(vL16), srd(sWS), S(t1)))
            if len(tl) == 5:
                P("buffer_store_dwordx2 %s, %s, %s, %s offen offset:2048 sc1" % (V(st + 8, 2), V(vL8), srd(sWS), S(t1)))
            st += 12
        tl = part(fq)
        for i, (m, n) in enumerate(tl):
            o = oreg(m, n)
            for h in range(2):
                P("v_lshlrev_b32 %s, 16, %s\nv_and_b32 %s, 0xffff0000, %s" % (V(vT + 2), V(vG + 2 * i + h), V(vT + 3), V(vG + 2 * i + h)))
                P("v_add_f32 %s, %s, %s\nv_add_f32 %s, %s, %s" % (V(o + 2 * h), V(o + 2 * h), V(vT + 2), V(o + 2 * h + 1), V(o + 2 * h + 1), V(vT + 3)))
        for x in fst[1]: P.add(x)
        P("s_waitcnt vmcnt(0)")
        for x in fst[2]: P.add(x)
        for x in C.publish(vT + 5, 6): P.add(x)
        P.add(C.load_flags(vFD, vFA))
        P("s_waitcnt vmcnt(0)")
        for x in C.check_flags(vFD, vFA, 6, vT + 15): P.add(x)
        for x in fst[3]: P.add(x)
        st = vU
        for d in range(4):
            if d == fq: continue
            P("s_add_u32 %s, %s, %d" % (S(t1), S(t0), (fq * 2 * 16 + d * 4) * 2560))
            P("buffer_load_dwordx4 %s, %s, %s, %s offen sc1" % (V(st, 4), V(vL16), srd(sWS), S(t1)))
            P("buffer_load_dwordx4 %s, %s, %s, %s offen offset:1024 sc1" % (V(st + 4, 4), V(vL16), srd(sWS), S(t1)))
            if len(tl) == 5:
                P("buffer_load_dwordx2 %s, %s, %s, %s offen offset:2048 sc1" % (V(st + 8, 2), V(vL8), srd(sWS), S(t1)))
            st += 12
        if CFG["fine"] == 2:
            P("s_waitcnt vmcnt(0)")
            for x in fst[4]: P.add(x)
        for k in range(3):
            st = vU + 12 * k
            for i, (m, n) in enumerate(tl):
                o = oreg(m, n)
                for h in range(2):
                    P("v_lshlrev_b32 %s, 16, %s\nv_and_b32 %s, 0xffff0000, %s" % (V(vT + 2), V(st + 2 * i + h), V(vT + 3), V(st + 2 * i + h)))
                    P("v_add_f32 %s, %s, %s\nv_add_f32 %s, %s, %s" % (V(o + 2 * h), V(o + 2 * h), V(vT + 2), V(o + 2 * h + 1), V(o + 2 * h + 1), V(vT + 3)))
                if k == 2:
                    for h in range(2): P("v_cvt_pk_bf16_f32 %s, %s, %s" % (V(o + h), V(o + 2 * h), V(o + 2 * h + 1)))
                    P("buffer_store_dwordx2 %s, %s, %s, %s offen offset:%d %s" % (V(o, 2), V(vT), srd(sOUT), S(t2), 32 * n, CFG["ost"]))
        if fq < 3:
            P("s_branch %s" % done)
            P.reset()
    P.label(done)
    for x in C.stamp("end"): P.add(x)
```

```python
import re

def vr(base, n=1, kind="v"):
    if n == 1:
        return "%s%d" % (kind, base)
    return "%s[%d:%d]" % (kind, base, base + n - 1)
def V(base, n=1): return vr(base, n, "v")
def Ac(base, n=1): return vr(base, n, "a")
def S(base, n=1): return vr(base, n, "s")
def R(r, n=1):
    if r >= 256:
        return vr(r - 256, n, "a")
    assert r + n <= 256, (r, n)
    return vr(r, n, "v")

_REG = re.compile(r"^(-|\|)?(?:abs\()?([vas])(?:(\d+)|\[(\d+):(\d+)\])\)?\|?$")
def regs_of(tok):
    tok = tok.strip()
    if tok in ("vcc",): return [("s", "vcc")]
    if tok in ("exec",): return [("s", "exec")]
    if tok == "m0": return [("s", "m0")]
    m = _REG.match(tok)
    if not m: return []
    k = m.group(2)
    if m.group(3) is not None: lo = hi = int(m.group(3))
    else: lo, hi = int(m.group(4)), int(m.group(5))
    if k == "a": return [("v", 256 + i) for i in range(lo, hi + 1)]
    return [(k, i) for i in range(lo, hi + 1)]

TRANS = ("v_exp_f32", "v_log_f32", "v_rcp_f32", "v_rsq_f32", "v_sqrt_f32", "v_sin_f32", "v_cos_f32")

class Ins:
    __slots__ = ("text", "op", "kind", "dst", "src", "srcC", "srcAB", "tok", "wide_store", "dpp", "opsel", "is_dma", "nocount")
    def __init__(self, text):
        self.text = text
        self.tok = None
        self.nocount = False
        body = text.split(";")[0].strip()
        sp = body.split(None, 1)
        self.op = op = sp[0] if sp else ""
        rest = sp[1] if len(sp) > 1 else ""
        ops = [o.strip() for o in rest.split(",")] if rest else []
        mods = ""
        if ops:
            last = ops[-1].split()
            if len(last) > 1:
                ops[-1] = last[0]; mods = " ".join(last[1:])
        if "quad_perm" in rest or "op_sel" in rest or "neg_lo" in rest or "neg_hi" in rest:
            i = min(x for x in (rest.find("quad_perm"), rest.find("op_sel"), rest.find("neg_lo"), rest.find("neg_hi")) if x >= 0)
            ops = [o.strip() for o in rest[:i].strip().split(",")]
            last = ops[-1].split(); ops[-1] = last[0]
            mods = " ".join(last[1:]) + " " + rest[i:]
        self.dst, self.src, self.srcC, self.srcAB = [], [], [], []
        self.wide_store = False
        self.is_dma = False
        self.dpp = ("quad_perm" in mods or "row_" in mods or op.endswith("_dpp"))
        self.opsel = ("op_sel" in mods and not op.startswith("v_pk_") and not op.startswith("v_dot")) or "sdwa" in op
        rr = [regs_of(o) for o in ops]
        flat = lambda L: [x for y in L for x in y]
        if op.startswith("v_mfma"):
            self.kind = "mfma"
            self.dst = rr[0]; self.srcAB = rr[1] + rr[2]; self.srcC = rr[3]; self.src = self.srcAB + self.srcC
        elif op.startswith("ds_read") or op.startswith("ds_bpermute") or op.startswith("ds_swizzle"):
            self.kind = "lds"; self.dst = rr[0]; self.src = flat(rr[1:])
            if "d16" in op: self.src += rr[0]
        elif op.startswith("ds_write"):
            self.kind = "lds"; self.src = flat(rr)
        elif op.startswith("buffer_load") or op.startswith("global_load"):
            self.kind = "vmem"
            if re.search(r"\blds\b", mods):
                self.is_dma = True; self.src = flat(rr) + [("s", "m0")]
            else:
                self.dst = rr[0]; self.src = flat(rr[1:])
                if "d16" in op: self.src += rr[0]
        elif op.startswith("buffer_store") or op.startswith("global_store") or op.startswith("buffer_atomic") or op.startswith("global_atomic"):
            self.kind = "vmem"; self.src = flat(rr)
            self.wide_store = op.endswith("x3") or op.endswith("x4")
        elif op.startswith("s_load") or op.startswith("s_memtime") or op.startswith("s_memrealtime"):
            self.kind = "smem"; self.dst = rr[0]; self.src = flat(rr[1:])
        elif op.startswith("v_"):
            self.kind = "valu"
            if op.startswith("v_cmp"):
                self.dst = rr[0]; self.src = flat(rr[1:])
            elif op.startswith("v_permlane") and "swap" in op:
                self.dst = rr[0] + rr[1]; self.src = rr[0] + rr[1]
            elif op in ("v_add_co_u32", "v_sub_co_u32", "v_addc_co_u32", "v_subb_co_u32"):
                self.dst = rr[0] + rr[1]; self.src = flat(rr[2:])
            elif op == "v_nop":
                pass
            else:
                self.dst = rr[0]; self.src = flat(rr[1:])
                if op.startswith("v_fmac") or op.startswith("v_dot2c") or op.startswith("v_writelane") or self.dpp or self.opsel:
                    self.src += rr[0]
        elif op in ("s_waitcnt", "s_nop", "s_barrier", "s_sleep", "s_setprio", "s_endpgm"):
            self.kind = "ctl"
        elif op.startswith("s_cbranch") or op == "s_branch":
            self.kind = "br"
        elif op.endswith(":"):
            self.kind = "label"
        elif op.startswith("."):
            self.kind = "dir"
        elif op.startswith("s_"):
            self.kind = "salu"
            if op.startswith("s_cmp"):
                self.src = flat(rr)
            else:
                self.dst = rr[0]; self.src = flat(rr[1:])
                if "saveexec" in op: self.dst = self.dst + [("s", "exec")]
        elif op == "":
            self.kind = "dir"
        else:
            raise ValueError("unknown op: " + text)

class WaitTok(Ins):
    def __init__(self, tok):
        self.text = ""; self.op = "waittok"; self.kind = "waittok"; self.tok = tok
        self.dst = self.src = self.srcC = self.srcAB = []
        self.wide_store = self.dpp = self.opsel = self.is_dma = False

class WaitRegs(Ins):
    def __init__(self, regs):
        self.text = ""; self.op = "waitregs"; self.kind = "waitregs"; self.tok = None
        self.src = [("v", r) for r in regs]
        self.dst = self.srcC = self.srcAB = []
        self.wide_store = self.dpp = self.opsel = self.is_dma = False

def spread(items, lo, hi, dl=None):
    n = len(items)
    return [(lo + (hi - lo) * k // max(n, 1), 10 ** 9 if dl is None else dl, it) for k, it in enumerate(items)]

def is_vmem(x):
    t = x.text if isinstance(x, Ins) else x
    return t.startswith("buffer_") or t.startswith("global_")
def paced(items, start, step, dl=10 ** 9, dls=None):
    out, pos = [], start
    for k, it in enumerate(items):
        d = dls[k] if dls else dl
        for x in (it if isinstance(it, (list, tuple)) else [it]):
            if is_vmem(x):
                out.append((min(int(pos), d - 1), d, x)); pos += step
            else:
                out.append((min(max(int(pos) - 1, start), d - 1), d, x))
    return out, pos

class Prog:
    def __init__(self):
        self.ins = []
        self._lab = 0
        self._tok = 0
    def __call__(self, text, tok=None):
        last = None
        for l in text.split("\n"):
            l = l.strip()
            if not l or l.startswith(";"): continue
            last = Ins(l); self.ins.append(last)
        if tok is not None: last.tok = tok
        return last
    def add(self, item):
        if isinstance(item, Ins): self.ins.append(item)
        elif callable(item): item()
        else: self(item)
    def newtok(self):
        self._tok += 1; return self._tok
    def mk(self, text, tok=None):
        i = Ins(text.strip()); i.tok = tok; return i
    def waittok(self, tok):
        self.ins.append(WaitTok(tok))
    def reset(self):
        w = WaitTok(None); w.kind = "reset"; self.ins.append(w)
    def label(self, name): self(name + ":")
    def newlabel(self, p="L"):
        self._lab += 1; return "%s_%d" % (p, self._lab)

    def _waits(self):
        out = []
        vm = []
        lg = []
        done_toks = set()
        smem_pending = set()
        def emit_wait(nv=None, nl=None):
            parts = []
            if nv is not None:
                assert nv <= 63
                parts.append("vmcnt(%d)" % nv)
            if nl is not None:
                parts.append("lgkmcnt(%d)" % min(nl, 15))
            out.append(Ins("s_waitcnt " + " ".join(parts)))
        for ins in self.ins:
            if ins.kind == "reset":
                vm = []; lg = []; smem_pending = set()
                continue
            if ins.kind == "waittok":
                if ins.tok in done_toks: continue
                idx = [i for i, (d, t) in enumerate(vm) if t == ins.tok]
                assert idx, "token %s never issued" % ins.tok
                n = len(vm) - 1 - idx[-1]
                if n <= 63:
                    emit_wait(nv=n)
                for d, t in vm[:idx[-1] + 1]:
                    if t is not None: done_toks.add(t)
                vm = vm[idx[-1] + 1:]
                continue
            if ins.op == "s_waitcnt":
                m = re.search(r"vmcnt\((\d+)\)", ins.text)
                if m:
                    n = int(m.group(1))
                    if len(vm) > n:
                        cut = len(vm) - n
                        for d, t in vm[:cut]:
                            if t is not None: done_toks.add(t)
                        vm = vm[cut:]
                m = re.search(r"lgkmcnt\((\d+)\)", ins.text)
                if m:
                    n = int(m.group(1))
                    if n == 0: lg = []; smem_pending = set()
                    elif not smem_pending and len(lg) > n: lg = lg[len(lg) - n:]
                out.append(ins); continue
            touched = set(ins.src) | set(ins.dst)
            nv = nl = None
            if touched:
                hit = [i for i, (d, t) in enumerate(vm) if d & touched]
                if hit:
                    nv = len(vm) - 1 - hit[-1]
                    if nv > 63: nv = None
                    for d, t in vm[:hit[-1] + 1]:
                        if t is not None: done_toks.add(t)
                    vm = vm[hit[-1] + 1:]
                if smem_pending & touched:
                    nl = 0; lg = []; smem_pending = set()
                else:
                    hit = [i for i, d in enumerate(lg) if d & touched]
                    if hit:
                        if smem_pending:
                            nl = 0; lg = []; smem_pending = set()
                        else:
                            nl = len(lg) - 1 - hit[-1]
                            if nl > 15: nl = 15; lg = lg[len(lg) - 15:]
                            else: lg = lg[hit[-1] + 1:]
            if ins.kind == "vmem" and len(vm) >= 52:
                cut = len(vm) - 51
                for d, t in vm[:cut]:
                    if t is not None: done_toks.add(t)
                vm = vm[cut:]
                nv = 51 if nv is None else min(nv, 51)
            if nv is not None or nl is not None: emit_wait(nv, nl)
            if ins.kind == "waitregs": continue
            out.append(ins)
            if ins.kind == "vmem":
                if ins.nocount: assert not ins.dst
                else: vm.append((set(ins.dst), ins.tok))
            elif ins.kind == "lds": lg.append(set(ins.dst))
            elif ins.kind == "smem": smem_pending |= set(ins.dst); lg.append(set())
        return out

    def _hazards(self, ins_list):
        out = []
        hist = []
        pos = 0
        def need(cur):
            req = 0
            csrc, cdst = set(cur.src), set(cur.dst)
            for p, ppos in reversed(hist):
                dist = pos - ppos - 1
                if dist >= 20: break
                w = 0
                pd = set(p.dst)
                if p.kind == "valu":
                    vd = {x for x in pd if x[0] == "v"}
                    sd = {x for x in pd if x[0] == "s"}
                    if cur.kind == "mfma" and vd & csrc: w = max(w, 2)
                    if cur.kind == "valu":
                        if cur.op.startswith("v_permlane") and vd & csrc: w = max(w, 2)
                        if cur.dpp and vd & csrc: w = max(w, 2)
                        if (cur.op.startswith("v_readfirstlane") or cur.op.startswith("v_readlane")) and vd & csrc: w = max(w, 1)
                        if p.op.split("_e")[0] in TRANS and cur.op.split("_e")[0] not in TRANS and vd & csrc: w = max(w, 1)
                        if p.opsel and vd & (csrc | cdst): w = max(w, 1)
                        if p.op.startswith("v_dot") and vd & (csrc | cdst) and not (cur.op == p.op and not (vd & set(cur.src[:2]))): w = max(w, 3)
                        if sd & csrc:
                            w = max(w, 4 if cur.op.startswith("v_readlane") or cur.op.startswith("v_writelane") else 2)
                        if cur.op.startswith("v_cndmask") and ("s", "vcc") in sd: w = max(w, 2)
                    if p.op.startswith("v_dot") and cur.kind in ("mfma", "vmem", "lds") and vd & csrc: w = max(w, 3)
                    if cur.kind == "vmem" and sd & csrc: w = max(w, 5)
                    if cur.kind == "salu" and sd & csrc: w = max(w, 1)
                    if cur.kind == "br" and "vcc" in cur.op and ("s", "vcc") in sd: w = max(w, 1)
                elif p.kind == "mfma":
                    big = "32x32" in p.op
                    if cur.kind == "mfma":
                        if pd & set(cur.srcAB): w = max(w, 12 if big else 8)
                        cc = set(cur.srcC)
                        if pd & cc and not (pd == cc and cur.op == p.op): w = max(w, 10 if big else 6)
                        elif pd & cdst and not (pd == cc): w = max(w, 10 if big else 6)
                    elif cur.kind in ("valu", "vmem", "lds"):
                        if pd & (csrc | cdst): w = max(w, 12 if big else 8)
                        if cur.kind == "valu" and set(p.srcC) & cdst: w = max(w, 7 if big else 3)
                elif p.kind == "salu":
                    if ("s", "m0") in pd and cur.is_dma: w = max(w, 1)
                elif p.kind == "vmem":
                    if p.wide_store and cdst & set(p.src): w = max(w, 2)
                if w - dist > req: req = w - dist
            return req
        for ins in ins_list:
            if ins.kind in ("dir",):
                out.append(ins); continue
            if ins.kind == "label":
                out.append(ins); continue
            r = need(ins)
            while r > 0:
                k = min(r, 16)
                n = Ins("s_nop %d" % (k - 1)); out.append(n); pos += k; r -= k
            out.append(ins)
            hist.append((ins, pos))
            if ins.op == "s_nop": pos += int(ins.text.split()[1]) + 1
            else: pos += 1
            if len(hist) > 40: hist = hist[-24:]
        return out

    def finalize(self):
        L = self._hazards(self._waits())
        lines = []
        for i in L:
            if i.kind == "label" or i.kind == "dir": lines.append(i.text)
            else: lines.append("    " + i.text)
        self.final = L
        return "\n".join(lines) + "\n"

INF = 10 ** 9
def multi_interleave(P, main, streams, per=2):
    ptr = [0] * len(streams)
    dl = []
    for st in streams:
        d = [x[1] for x in st]
        for k in range(len(d) - 2, -1, -1): d[k] = min(d[k], d[k + 1])
        dl.append(d)
    def emit(si):
        it = streams[si][ptr[si]][2]; ptr[si] += 1
        if isinstance(it, (list, tuple)):
            for x in it: P.add(x)
            return len(it)
        P.add(it); return 1
    for i, m in enumerate(main):
        for si, st in enumerate(streams):
            while ptr[si] < len(st) and dl[si][ptr[si]] <= i:
                assert st[ptr[si]][0] < i or st[ptr[si]][0] < 0, ("deadline before not_before", si, ptr[si], i, st[ptr[si]])
                emit(si)
        if isinstance(m, (list, tuple)):
            for x in m: P.add(x)
        else: P.add(m)
        k = 0
        lim = per(i) if callable(per) else per
        progress = True
        while k < lim and progress:
            progress = False
            for si, st in enumerate(streams):
                if ptr[si] < len(st) and st[ptr[si]][0] <= i:
                    k += emit(si); progress = True
                    break
    for si, st in enumerate(streams):
        while ptr[si] < len(st): emit(si)

def kernel_header(name):
    return (".text\n.globl %s\n.p2align 8\n.type %s,@function\n%s:\n" % (name, name, name))

def kernel_desc(name, nvgpr=512, accum=256, nsgpr=102):
    return (""".section .rodata,"a"
.p2align 6
.amdhsa_kernel %s
  .amdhsa_next_free_vgpr %d
  .amdhsa_next_free_sgpr %d
  .amdhsa_accum_offset %d
  .amdhsa_group_segment_fixed_size 0
  .amdhsa_kernarg_size 88
  .amdhsa_user_sgpr_count 2
  .amdhsa_user_sgpr_kernarg_segment_ptr 1
  .amdhsa_system_sgpr_workgroup_id_x 1
  .amdhsa_float_denorm_mode_32 3
.end_amdhsa_kernel
""" % (name, nvgpr, nsgpr, accum))
```

```python
from common import *
import ffn
from ffn import AG

ACFG = dict(map="4x8", pace=1.0, pfR={4:[1]}, pa=6, pb=15, pub1=40, touch=0, aux=1, woq=21, wofr=0.8, early=1, rpt=0, pbat=30, pbstep=6, prep=0, fillat=4, pf0=[], pfQ=[], pfS2=[], pfS3=[], ct2=1, hop2=1, l4=1, tlb=0, hop=1, r1pre=13, cs=1, rst=[])
sRBK, sHP = 58, 59
sZ = 53
sW8K, sW5K, sKV = 76, 77, 78
mD, mE, mF, mG = 80, 82, 84, 94
sXB, sWB, sMT = 86, 87, 88
mA, mB, mC = 90, 92, 94
t0, t1, t2, t3 = 96, 97, 98, 99
RND = 53248
L_PHI, L_WBAR, L_MEAN = 159744, 161792, 162048
L_R, L_ZERO = 92160, 96256
vAC = 0
vSUM, vSSQ = 60, 68
vONE = 76
vWF = 80
vPH = 104
vXD, vXR, vWK, vWR, vWM = 128, 130, 132, 137, 138
vLANE, vA, vB = 139, 140, 142
vF = 144
vPP = 160
vPHI = 184
vT = 208
vFA, vFD = 232, 233
vL16 = 234
vWQ = 235
vX2 = 240
LOG2E = 0x3fb8aa3b
def acc(T, c): return vAC + 12 * T + 4 * c
def xf(k, m): return AG + 8 * k + 4 * m

def f_rb(P, dst, rb, tmp):
    if ACFG["map"] == "4x8":
        P("s_and_b32 %s, %s, 3\ns_lshl_b32 %s, %s, 13\ns_lshr_b32 %s, %s, 2\ns_lshl_b32 %s, %s, 8\ns_add_u32 %s, %s, %s" % (dst, rb, dst, dst, tmp, rb, tmp, tmp, dst, dst, tmp))
    else:
        P("s_and_b32 %s, %s, 1\ns_lshl_b32 %s, %s, 14\ns_lshr_b32 %s, %s, 1\ns_lshl_b32 %s, %s, 7\ns_add_u32 %s, %s, %s" % (dst, rb, dst, dst, tmp, rb, tmp, tmp, dst, dst, tmp))
def f_hp(P, dst, hp, tmp):
    if ACFG["map"] == "4x8":
        P("s_and_b32 %s, %s, 7\ns_lshl_b32 %s, %s, 10\ns_lshr_b32 %s, %s, 3\ns_lshl_b32 %s, %s, 7\ns_add_u32 %s, %s, %s" % (dst, hp, dst, dst, tmp, hp, tmp, tmp, dst, dst, tmp))
    else:
        P("s_lshl_b32 %s, %s, 10" % (dst, hp))
def vf_rb(P, dst, rb, tmp):
    if ACFG["map"] == "4x8":
        P("v_and_b32 %s, 3, %s\nv_lshlrev_b32 %s, 13, %s\nv_lshrrev_b32 %s, 2, %s\nv_lshl_add_u32 %s, %s, 8, %s" % (dst, rb, dst, dst, tmp, rb, dst, tmp, dst))
    else:
        P("v_and_b32 %s, 1, %s\nv_lshlrev_b32 %s, 14, %s\nv_lshrrev_b32 %s, 1, %s\nv_lshl_add_u32 %s, %s, 7, %s" % (dst, rb, dst, dst, tmp, rb, dst, tmp, dst))
def vf_hp(P, dst, hp, tmp):
    if ACFG["map"] == "4x8":
        P("v_and_b32 %s, 7, %s\nv_lshlrev_b32 %s, 10, %s\nv_lshrrev_b32 %s, 3, %s\nv_lshl_add_u32 %s, %s, 7, %s" % (dst, hp, dst, dst, tmp, hp, dst, tmp, dst))
    else:
        P("v_lshlrev_b32 %s, 10, %s" % (dst, hp))

def perm32(P, out, rho, tmp):
    P("v_bfe_u32 %s, %s, 2, 2\nv_lshlrev_b32 %s, 3, %s" % (out, rho, out, out))
    P("v_bfe_u32 %s, %s, 4, 1\nv_lshl_add_u32 %s, %s, 2, %s" % (tmp, rho, out, tmp, out))
    P("v_and_b32 %s, 3, %s\nv_add_u32 %s, %s, %s" % (tmp, rho, out, out, tmp))

def round_x(P, rho):
    base = (rho % 3) * RND
    out = []
    for cb in range(2 if rho < 4 else 1):
        for rg in range(4):
            it = []
            if rg == 0: it.append("s_add_u32 m0, %s, %d" % (S(sW8K), base + cb * 4096))
            if rg % 2 == 0:
                it.append("s_add_u32 %s, %s, %d" % (S(t0), S(sXB), (2 * rho + cb) * 128 + (rg >> 1) * (18432 - 2048)))
            it.append("buffer_load_dwordx4 %s, %s, %s offen offset:%d lds" % (V(vXD + (rg & 1)), srd(sX), S(t0), 1024 * rg))
            out.append(it)
    return out
def round_w(P, rho, tok):
    base = (rho % 3) * RND
    out = []
    for q in range(5):
        it = []
        if q == 0: it.append("s_add_u32 %s, %s, %d" % (S(t0), S(sWB), rho * 4 * 110592 + 1152))
        if q % 4 == 0: it.append("s_add_u32 m0, %s, %d" % (S(sW5K), base + 32768 + 1024 * q))
        it.append(P.mk("buffer_load_dwordx4 %s, %s, %s offen offset:%d lds" % (V(vWK + q), srd(sWQKV), S(t0), 1024 * (q % 4)), tok if q == 4 else None))
        out.append(it)
    return out
def emit_items(P, items):
    for it in items:
        if isinstance(it, (list, tuple)):
            for x in it: P.add(x)
        else: P.add(it)
class Rec:
    def __init__(self): self.items = []
    def __call__(self, text):
        self.items += [l for l in text.split("\n") if l.strip()]

def softmax(P, m):
    p0 = vPP + 12 * m
    p = [p0 + i for i in range(9)]
    mx, mn, a, b = vT, vT + 1, vT + 2, vT + 3
    ep, en = vT + 4, vT + 14
    P("v_max3_f32 %s, %s, %s, %s\nv_min3_f32 %s, %s, %s, %s" % (V(mx), V(p[0]), V(p[1]), V(p[2]), V(mn), V(p[0]), V(p[1]), V(p[2])))
    for i in (3, 5, 7):
        P("v_max3_f32 %s, %s, %s, %s\nv_min3_f32 %s, %s, %s, %s" % (V(mx), V(mx), V(p[i]), V(p[i + 1]), V(mn), V(mn), V(p[i]), V(p[i + 1])))
    P("v_mov_b32 %s, %s\nv_mov_b32 %s, %s" % (V(a), V(mx), V(b), V(mn)))
    P("v_permlane16_swap_b32 %s, %s\nv_permlane16_swap_b32 %s, %s" % (V(mx), V(a), V(mn), V(b)))
    P("v_max_f32 %s, %s, %s\nv_min_f32 %s, %s, %s" % (V(mx), V(mx), V(a), V(mn), V(mn), V(b)))
    P("v_pk_mul_f32 %s, %s, %s op_sel_hi:[1,0]" % (V(mx, 2), V(mx, 2), S(t2, 2)))
    for i in range(0, 8, 2):
        P("v_pk_fma_f32 %s, %s, %s, %s op_sel_hi:[1,0,0] neg_lo:[0,0,1] neg_hi:[0,0,1]" % (V(ep + i, 2), V(p0 + i, 2), S(t2, 2), V(mx, 2)))
        P("v_pk_fma_f32 %s, %s, %s, %s op_sel:[0,0,1] op_sel_hi:[1,0,1] neg_lo:[1,0,0] neg_hi:[1,0,0]" % (V(en + i, 2), V(p0 + i, 2), S(t2, 2), V(mx, 2)))
    P("v_fma_f32 %s, %s, %s, -%s\nv_fma_f32 %s, -%s, %s, %s" % (V(ep + 8), V(p[8]), S(t2), V(mx), V(en + 8), V(p[8]), S(t2), V(mn)))
    for i in range(9): P("v_exp_f32 %s, %s\nv_exp_f32 %s, %s" % (V(ep + i), V(ep + i), V(en + i), V(en + i)))
    for e, q in ((ep, mx), (en, a)):
        P("v_pk_add_f32 %s, %s, %s" % (V(q, 2), V(e, 2), V(e + 2, 2)))
    for k in (4, 6):
        for e, q in ((ep, mx), (en, a)):
            P("v_pk_add_f32 %s, %s, %s" % (V(q, 2), V(q, 2), V(e + k, 2)))
    P("v_add_f32 %s, %s, %s\nv_add_f32 %s, %s, %s" % (V(mx), V(mx), V(mn), V(mn), V(a), V(b)))
    P("v_add_f32 %s, %s, %s\nv_add_f32 %s, %s, %s" % (V(mx), V(mx), V(ep + 8), V(mn), V(mn), V(en + 8)))
    P("v_mov_b32 %s, %s\nv_mov_b32 %s, %s" % (V(a), V(mx), V(b), V(mn)))
    P("v_permlane16_swap_b32 %s, %s\nv_permlane16_swap_b32 %s, %s" % (V(mx), V(a), V(mn), V(b)))
    P("v_pk_add_f32 %s, %s, %s" % (V(mx, 2), V(mx, 2), V(a, 2)))
    P("v_rcp_f32 %s, %s\nv_rcp_f32 %s, %s" % (V(mx), V(mx), V(mn), V(mn)))
    P("v_mul_f32 %s, %s, %s\nv_mul_f32 %s, %s, %s" % (V(ep + 8), V(ep + 8), V(mx), V(en + 8), V(en + 8), V(mn)))
    for i in range(0, 8, 2):
        P("v_pk_mul_f32 %s, %s, %s op_sel_hi:[1,0]" % (V(ep + i, 2), V(ep + i, 2), V(mx, 2)))
        P("v_pk_mul_f32 %s, %s, %s op_sel:[0,1] op_sel_hi:[1,1]" % (V(en + i, 2), V(en + i, 2), V(mx, 2)))
    e = [ep + i for i in range(9)] + [en + i for i in range(9)]
    for i in range(9):
        P("v_cvt_pk_bf16_f32 %s, %s, %s" % (V(vPHI + 12 * m + 4 * (i // 3) + i % 3), V(e[2 * i]), V(e[2 * i + 1])))

def ln_fix(P, T, m, dst):
    s2 = "op_sel_hi:[1,0]" if m == 0 else "op_sel:[0,1] op_sel_hi:[1,1]"
    s3 = "op_sel_hi:[1,0,1]" if m == 0 else "op_sel:[0,1,0] op_sel_hi:[1,1,1]"
    for h in range(2):
        P("v_pk_mul_f32 %s, %s, %s %s" % (V(vT + 2 * h, 2), V(acc(T, 2) + 2 * h, 2), V(vB, 2), s2))
    for h in range(2):
        r = acc(T, m) + 2 * h
        P("v_pk_fma_f32 %s, %s, %s, %s %s" % (V(r, 2), V(r, 2), V(vA, 2), V(vT + 2 * h, 2), s3))
    for h in range(2):
        P("v_cvt_pk_bf16_f32 %s, %s, %s" % (V(dst + h), V(acc(T, m) + 2 * h), V(acc(T, m) + 2 * h + 1)))

def feature_map(P):
    for m in range(2):
        for T in range(3):
            d = vPP + 12 * m + 4 * T
            P(mfma(d, vPH + 8 * T, vF + 8 * m)); P(mfma(d, vPH + 8 * T + 4, vF + 8 * m + 4, d))
    for m in range(2): softmax(P, m)

vRW, vRV, vPR, vVR, vKO, vMN = 240, 241, 242, 243, 253, 254
vWC, vCS, vCA = 251, 252, 250
L_CS = 162560
L_RP = 53248 + 4096
vRP, vRT = 246, 249
sRS, sRO = 79, 3
def repack_items(P):
    L = V(vLANE)
    a, b, c, d = V(vT + 18), V(vT + 19), V(vT + 20), V(vT + 21)
    u0, u1, u2, u3 = S(89), S(t1), S(t2), S(t3)
    out, go = [], []
    X = Rec()
    X("s_lshl_b32 %s, %s, 3\nv_lshrrev_b32 %s, 3, %s\nv_add_u32 %s, %s, %s" % (u0, S(sWAVE), a, L, a, u0, a))
    X("v_and_b32 %s, 6, %s\nv_and_b32 %s, 7, %s\nv_xor_b32 %s, %s, %s\nv_lshlrev_b32 %s, 4, %s" % (b, a, c, L, b, b, c, b, b))
    X("v_bfe_u32 %s, %s, 2, 2\nv_mul_u32_u24 %s, 72, %s\nv_lshrrev_b32 %s, 4, %s\nv_lshl_add_u32 %s, %s, 2, %s" % (c, a, c, c, d, a, c, d, c))
    X("v_and_b32 %s, 3, %s\nv_add3_u32 %s, %s, %s, 64" % (d, a, c, c, d))
    X("v_lshrrev_b32 %s, 2, %s\nv_bfe_u32 %s, %s, 1, 2\nv_xor_b32 %s, %s, %s\nv_lshlrev_b32 %s, 5, %s" % (d, L, V(vRT), d, V(vRT), S(sWAVE), V(vRT), V(vRT), V(vRT)))
    X("v_lshl_add_u32 %s, %s, 7, %s\nv_and_b32 %s, 3, %s\nv_lshl_add_u32 %s, %s, 3, %s" % (V(vRT), d, V(vRT), d, L, V(vRT), d, V(vRT)))
    X("v_add_u32 %s, %d, %s" % (V(vRT), L_RP, V(vRT)))
    out += X.items
    tok = P.newtok()
    for job in range(2):
        dst = S(sRS if job == 0 else sRO)
        ln, ld_ = P.newlabel("rp_n"), P.newlabel("rp_d")
        sr = sWN if job == 0 else sWPHI
        vr_ = V(vRP + job)
        it = ["s_add_u32 %s, s2, %d" % (u0, 256 * job), "s_mov_b32 %s, 5308416" % S(sr + 2)]
        if job == 1: it += ["s_cmp_lt_u32 %s, 288" % u0, "s_cbranch_scc1 %s" % ln,
                            "s_sub_u32 %s, %s, 288" % (u0, u0), "s_mul_i32 %s, %s, 36864" % (u1, u0), "s_add_u32 %s, %s, 1024" % (u1, u1),
                            "s_mul_i32 %s, %s, 147456" % (u2, S(sWAVE)), "s_lshl_b32 %s, %s, 10" % (u3, u0), "s_add_u32 %s, %s, %s" % (u2, u2, u3),
                            "s_add_u32 %s, %s, %d" % (u2, u2, WS_RD), "s_cmp_lt_u32 %s, 144" % u0, "s_cselect_b32 %s, %s, 0x7000000" % (dst, u2),
                            "s_mov_b32 %s, %s" % (S(sr), S(sWD)), "s_mov_b32 %s, %s" % (S(sr + 1), S(sWD + 1)),
                            "v_mul_u32_u24 %s, 1152, %s" % (vr_, a), "v_add_u32 %s, %s, %s" % (vr_, vr_, b), "s_branch %s" % ld_, ln + ":"]
        it += ["s_mul_i32 %s, %s, 3641" % (u1, u0), "s_lshr_b32 %s, %s, 16" % (u1, u1),
               "s_mul_i32 %s, %s, 18" % (u2, u1), "s_sub_u32 %s, %s, %s" % (u0, u0, u2),
               "s_and_b32 %s, %s, 1" % (u2, u1), "s_cmp_eq_u32 %s, 0" % u2,
               "s_cselect_b32 %s, %s, %s" % (S(sr), S(sWG), S(sWU)), "s_cselect_b32 %s, %s, %s" % (S(sr + 1), S(sWG + 1), S(sWU + 1)),
               "s_lshl_b32 %s, %s, 1" % (u3, u0), "s_add_u32 %s, %s, %s" % (u2, u2, u3),
               "s_lshr_b32 %s, %s, 1" % (u1, u1),
               "s_lshl_b32 %s, %s, 2" % (u3, u1), "s_add_u32 %s, %s, %s" % (u3, u3, S(sWAVE)), "s_mul_i32 %s, %s, 36" % (u3, u3),
               "s_add_u32 %s, %s, %s" % (u2, u2, u3), "s_lshl_b32 %s, %s, 10" % (u2, u2), "s_add_u32 %s, %s, %d" % (dst, u2, WS_RN),
               "s_lshr_b32 %s, %s, 1" % (u2, u1), "s_mul_i32 %s, %s, 2304" % (u2, u2), "s_and_b32 %s, %s, 1" % (u1, u1), "s_lshl_b32 %s, %s, 7" % (u1, u1),
               "s_add_u32 %s, %s, %s" % (u1, u1, u2), "s_add_u32 %s, %s, 2048" % (u1, u1),
               "s_lshr_b32 %s, %s, 1" % (u2, u0), "s_mul_i32 %s, %s, 72" % (u2, u2), "s_and_b32 %s, %s, 1" % (u3, u0), "s_lshl_b32 %s, %s, 5" % (u3, u3),
               "s_add_u32 %s, %s, %s" % (u2, u2, u3), "s_mul_i32 %s, %s, 9" % (u3, u3),
               "s_cmp_lt_u32 %s, 16" % u0, "s_cselect_b32 %s, %s, %s" % (u2, u2, u3), "s_cselect_b64 vcc, -1, 0",
               "s_mul_i32 %s, %s, 9216" % (u2, u2), "s_add_u32 %s, %s, %s" % (u1, u1, u2),
               "v_cndmask_b32 %s, %s, %s, vcc" % (vr_, c, a), "v_mul_u32_u24 %s, 9216, %s" % (vr_, vr_), "v_add_u32 %s, %s, %s" % (vr_, vr_, b)]
        if job == 1: it.append(ld_ + ":")
        it.append("v_add_u32 %s, %s, %s" % (vr_, u1, vr_))
        out.append(it)
        go.append(["s_add_u32 m0, %s, %d" % (S(sW1K), L_RP + 8192 * job), P.mk("buffer_load_dwordx4 %s, %s, 0 offen lds" % (vr_, srd(sr)), tok if job == 1 else None)])
    return out, go, tok
def repack_out(P, r0):
    for job in range(2):
        for h in range(2): P("ds_read_b64_tr_b16 %s, %s offset:%d" % (V(r0 + 4 * job + 2 * h, 2), V(vRT), 8192 * job + 2048 * h))
    return ["buffer_store_dwordx4 %s, %s, %s, %s offen sc1" % (V(r0 + 4 * job, 4), V(vL16), srd(sWS), S(sRS if job == 0 else sRO)) for job in range(2)]

def p1(C, code_bytes):
    C.code_bytes = code_bytes
    P = C.P
    L = V(vLANE)
    a, b, c, d = V(vT), V(vT + 1), V(vT + 2), V(vT + 3)
    P("v_mov_b32 %s, v0\nv_lshlrev_b32 %s, 4, v0" % (L, V(vL16)))
    if ACFG["map"] == "4x8":
        P("s_lshr_b32 %s, %s, 1\ns_lshl_b32 %s, %s, 2\ns_lshr_b32 %s, %s, 3\ns_add_u32 %s, %s, %s" % (S(t0), S(sXCD), S(t0), S(t0), S(t1), S(sIDX), S(sRBK), S(t0), S(t1)))
        P("s_and_b32 %s, %s, 1\ns_lshl_b32 %s, %s, 3\ns_and_b32 %s, %s, 7\ns_add_u32 %s, %s, %s" % (S(t0), S(sXCD), S(t0), S(t0), S(t1), S(sIDX), S(sHP), S(t0), S(t1)))
    else:
        P("s_lshl_b32 %s, %s, 1\ns_lshr_b32 %s, %s, 4\ns_add_u32 %s, %s, %s\ns_and_b32 %s, %s, 15" % (S(t0), S(sXCD), S(t1), S(sIDX), S(sRBK), S(t0), S(t1), S(sHP), S(sIDX)))
    P("s_lshl_b32 %s, %s, 13\ns_mul_i32 %s, %s, 5120" % (S(sW8K), S(sWAVE), S(sW5K), S(sWAVE)))
    P("s_lshl_b32 %s, %s, 2\ns_add_u32 %s, %s, %s\ns_mul_i32 %s, %s, 36864" % (S(t0), S(sRBK), S(t0), S(t0), S(sWAVE), S(sXB), S(t0)))
    P("s_movk_i32 %s, 1152" % S(t2))
    P("v_lshrrev_b32 %s, 3, %s\nv_and_b32 %s, 7, %s\nv_lshrrev_b32 %s, 4, %s\nv_xor_b32 %s, %s, %s" % (a, L, b, L, c, L, b, b, c))
    P("v_lshlrev_b32 %s, 4, %s\nv_mad_u32_u24 %s, %s, %s, %s" % (c, b, V(vXD), a, S(t2), c))
    P("v_xor_b32 %s, 64, %s\nv_add_u32 %s, %d, %s" % (V(vXD + 1), V(vXD), V(vXD + 1), 9216 - 1024, V(vXD + 1)))
    P("s_mul_i32 %s, %s, 72\ns_and_b32 %s, %s, -16\ns_mul_i32 %s, %s, 110592\ns_add_u32 %s, %s, %s" % (S(t0), S(sHP), S(t0), S(t0), S(t1), S(sWAVE), S(sWB), S(t0), S(t1)))
    P("s_movk_i32 %s, 3456" % S(t2))
    for q in range(5):
        r = V(vWK + q)
        P("v_add_u32 %s, %d, %s\nv_mul_u32_u24 %s, 6554, %s\nv_lshrrev_b32 %s, 16, %s" % (a, 64 * q, L, b, a, b, b))
        P("v_mul_u32_u24 %s, 10, %s\nv_sub_u32 %s, %s, %s" % (c, b, a, a, c))
        perm32(P, c, b, d)
        P("v_mul_lo_u32 %s, %s, %s\nv_lshl_add_u32 %s, %s, 4, %s" % (r, c, S(t2), r, a, r))
        P("v_cmp_lt_u32 vcc, 4, %s\nv_add_u32 %s, %d, %s\nv_cndmask_b32 %s, %s, %s, vcc" % (a, b, 1152 - 80, r, r, r, b))
        if q % 4: P("v_subrev_u32 %s, %d, %s" % (r, 1024 * (q % 4), r))
    P("s_waitcnt lgkmcnt(0)")
    for x in C.stamp("start"): P.add(x)
    l0, l1, l2, l3, l4, l5 = [P.newlabel(C.name + "_w") for _ in range(6)]
    P("s_cmp_gt_u32 %s, 1\ns_cbranch_scc1 %s" % (S(sWAVE), l0))
    P("s_mul_i32 %s, %s, 1296\ns_add_u32 %s, %s, %s\ns_add_u32 m0, %s, %d" % (S(t0), S(sHP), S(t0), S(t0), S(sW1K), S(sW1K), L_PHI))
    P("buffer_load_dwordx4 %s, %s, %s offen lds" % (V(vL16), srd(sWPHI), S(t0))).nocount = True
    P.label(l0)
    P("s_xor_b32 %s, %s, %s\ns_and_b32 %s, %s, 1\ns_lshr_b32 %s, %s, 2\ns_or_b32 %s, %s, %s\ns_or_b32 %s, %s, %s" %
      (S(t0), S(sIDX), S(sXCD), S(t0), S(t0), S(t1), S(sIDX), S(t0), S(t0), S(t1), S(t0), S(t0), S(sWAVE)))
    P("s_lshl_b32 %s, %s, 1\ns_lshr_b32 %s, %s, 1\ns_add_u32 %s, %s, %s\ns_add_u32 %s, %s, 1" % (S(t1), S(sXCD), S(t3), S(sIDX), S(t1), S(t1), S(t3), S(t3), S(t1)))
    P("s_cmp_eq_u32 %s, 0\ns_cselect_b32 %s, %s, 0\ns_cbranch_scc0 %s" % (S(t0), S(sZ), S(t3), l4))
    P("v_mov_b32 v4, 0\nv_lshlrev_b32 v1, 7, v0\ns_lshl_b32 %s, %s, 13" % (S(t1), S(t1)))
    P("buffer_store_dword v4, v1, %s, %s offen sc1" % (srd(sWS), S(t1))).nocount = True
    P.label(l4)
    toks = [P.newtok() for _ in range(6)]
    def touch():
        def ld(text):
            P(text); P.ins[-1].dst = []; P.ins[-1].nocount = True
        aux = ACFG["aux"]
        lab = P.newlabel(C.name + "_l4")
        P("s_lshr_b32 %s, %s, 3\ns_xor_b32 %s, %s, %s\ns_and_b32 %s, %s, 1\ns_cbranch_scc1 %s" % (S(t1), S(sHP), S(t1), S(t1), S(sHP), S(t1), S(t1), l3 if aux else lab))
        P("s_lshr_b32 %s, %s, 1\ns_lshl_b32 %s, %s, 2\ns_add_u32 %s, %s, %s\ns_mul_i32 %s, %s, %d" % (S(t1), S(sIDX), S(t1), S(t1), S(t1), S(t1), S(sWAVE), S(t1), S(t1), 9 * 3456))
        P("v_min_u32 %s, 26, %s\nv_mul_u32_u24 %s, 1152, %s" % (a, L, a, a))
        ld("buffer_load_dword %s, %s, %s, %s offen offset:512" % (V(255), a, srd(sWQKV), S(t1)))
        P.label(lab)
        nper = -(-(code_bytes - (4096 if ACFG['hop'] else 0)) // (32 * 128))
        assert nper <= 31
        reps = (0, 1) if aux else (0,)
        P("s_cmp_eq_u32 %s, 3\ns_cbranch_scc1 %s\ns_cmp_eq_u32 %s, 2\ns_cbranch_scc1 %s\ns_cmp_eq_u32 %s, 1\ns_cbranch_scc1 %s" % (S(sWAVE), l1, S(sWAVE), l2, S(sWAVE), l5))
        P("v_min_u32 %s, 60, %s\nv_lshlrev_b32 %s, 7, %s" % (a, L, a, a))
        for r in reps:
            P("s_xor_b32 %s, s2, %d\ns_mul_i32 %s, %s, %d" % (S(t1), 8 * r, S(t1), S(t1), 61 * 128))
            ld("buffer_load_dword %s, %s, %s, %s offen" % (V(255), a, srd(sWQKV), S(t1)))
        P("s_branch %s" % l3)
        P.label(l5)
        P("v_lshrrev_b32 %s, 3, %s\nv_mul_u32_u24 %s, 1152, %s\nv_and_b32 %s, 7, %s\nv_min_u32 %s, 6, %s\nv_lshl_add_u32 %s, %s, 7, %s" % (a, L, a, a, b, L, b, b, a, b, a))
        for r in reps:
            P("s_lshl_b32 %s, %s, 4\ns_add_u32 %s, %s, %s\ns_xor_b32 %s, %s, %d\ns_mul_i32 %s, %s, 9216" % (S(t1), S(sRBK), S(t1), S(t1), S(sHP), S(t1), S(t1), r, S(t1), S(t1)))
            ld("buffer_load_dword %s, %s, %s, %s offen offset:256" % (V(255), a, srd(sX), S(t1)))
        P("s_branch %s" % l3)
        P.label(l1)
        P("s_getpc_b64 s[100:101]\n%s_pc:\ns_add_u32 s100, s100, %s_body-%s_pc\ns_addc_u32 s101, s101, 0" % (C.name, C.name, C.name))
        k = 2 if aux else 1
        P("s_lshr_b32 %s, %s, %d\ns_mul_i32 %s, %s, %d\nv_min_u32 %s, %d, %s\nv_lshl_add_u32 %s, %s, 7, %s\nv_min_u32 %s, %d, %s" %
          (S(t1), S(sIDX), k - 1, S(t1), S(t1), k * nper * 128, a, k * nper - 1, L, a, a, S(t1), a, code_bytes - 4096 - 128, a))
        ld("global_load_dword %s, %s, s[100:101]" % (V(255), a))
        P("s_branch %s" % l3)
        P.label(l2)
        P("v_min_u32 %s, 20, %s\nv_lshlrev_b32 %s, 7, %s" % (a, L, a, a))
        for r in reps:
            P("s_xor_b32 %s, s2, %d\ns_mul_i32 %s, %s, %d" % (S(t1), 8 * r, S(t1), S(t1), 21 * 128))
            ld("buffer_load_dword %s, %s, %s, %s offen" % (V(255), a, srd(sWO), S(t1)))
        P.label(l3)
    if ACFG["touch"] == 0: touch()
    emit_items(P, round_x(P, 0)); emit_items(P, round_w(P, 0, toks[0]))
    if ACFG["touch"] == 1: touch()
    r1 = round_x(P, 1) + round_w(P, 1, toks[1])
    if ACFG["hop"]: C.align_body()
    P("v_and_b32 %s, 15, %s\nv_lshrrev_b32 %s, 4, %s\nv_lshrrev_b32 %s, 1, %s\nv_xor_b32 %s, %s, %s" % (a, L, b, L, c, a, b, b, c))
    P("v_lshlrev_b32 %s, 7, %s\nv_lshl_add_u32 %s, %s, 4, %s\nv_add_u32 %s, %s, %s" % (a, a, a, b, a, V(vXR), S(sW8K), a))
    P("v_xor_b32 %s, 64, %s" % (V(vXR + 1), V(vXR)))
    P("v_lshrrev_b32 %s, 2, %s\nv_mul_u32_u24 %s, 160, %s\ns_and_b32 %s, %s, 1\ns_lshl_b32 %s, %s, 3\nv_add_u32 %s, %s, %s" % (a, L, a, a, S(t0), S(sHP), S(t0), S(t0), a, S(t0), a))
    P("v_and_b32 %s, 3, %s\nv_lshl_add_u32 %s, %s, 3, %s" % (b, L, V(vWR), b, a))
    P("v_cmp_eq_u32 vcc, 1, %s\nv_add_u32 %s, 32, %s\nv_add_u32 %s, 112, %s\nv_cndmask_b32 %s, %s, %s, vcc" % (b, c, a, d, a, V(vWM), c, d))
    for i in range(4): P("v_mov_b32 %s, 0x3f803f80" % V(vONE + i))
    P("s_mul_i32 %s, %s, 40\nv_add_u32 %s, %s, %s" % (S(t0), S(sWAVE), V(vWC), S(t0), V(vWR)))
    X = Rec()
    X("s_movk_i32 %s, 3456" % S(t2))
    for q in range(5):
        r = V(vWQ + q)
        X("v_add_u32 %s, %d, %s\nv_mul_u32_u24 %s, 13108, %s\nv_lshrrev_b32 %s, 16, %s" % (a, 64 * q, L, b, a, b, b))
        X("v_mul_u32_u24 %s, 5, %s\nv_sub_u32 %s, %s, %s" % (c, b, a, a, c))
        perm32(X, c, b, d)
        X("v_and_b32 %s, 32, %s\nv_add_u32 %s, %s, %s" % (d, b, c, c, d))
        X("v_mul_lo_u32 %s, %s, %s\nv_lshl_add_u32 %s, %s, 4, %s" % (r, c, S(t2), r, a, r))
        if q % 4: X("v_subrev_u32 %s, %d, %s" % (r, 1024 * (q % 4), r))
    wq_items = X.items
    X = Rec()
    u1, u2, u3 = S(t1), S(t2), S(t3)
    X("v_and_b32 %s, 15, %s\nv_lshrrev_b32 %s, 2, %s\nv_lshrrev_b32 %s, 4, %s\nv_cmp_eq_u32 %s, %s, %s" % (a, L, b, a, c, L, S(mD, 2), b, c))
    X("v_and_b32 %s, 1, %s\nv_cmp_eq_u32 %s, 1, %s\nv_and_b32 %s, 2, %s\nv_cmp_eq_u32 %s, 2, %s" % (b, a, S(mE, 2), b, b, a, S(mF, 2), b))
    X("s_lshl_b32 %s, %s, 7\ns_add_u32 %s, %s, %d\nv_lshl_add_u32 %s, %s, 2, %s" % (u1, S(sWAVE), u1, u1, L_MEAN, V(vMN), a, u1))
    X("s_lshl_b32 %s, %s, 5\nv_add_u32 %s, %s, %s\nv_mul_u32_u24 %s, 288, %s" % (u1, S(sWAVE), b, u1, a, b, b))
    X("v_mad_u32_u24 %s, %s, 48, %s\nv_lshl_add_u32 %s, %s, 3, %s" % (V(vRW), c, b, V(vRV), c, b))
    X("v_lshrrev_b32 %s, 2, %s\nv_mul_u32_u24 %s, 288, %s\nv_and_b32 %s, 3, %s\nv_lshl_add_u32 %s, %s, 3, %s" % (d, L, d, d, b, L, d, b, d))
    X("s_lshr_b32 %s, %s, 1\ns_mul_i32 %s, %s, 96\nv_add_u32 %s, %s, %s" % (u3, S(sWAVE), u1, u3, V(vPR), u1, d))
    X.items.append(["s_lshl_b32 %s, %s, 5" % (u1, u3), "s_and_b32 %s, %s, 1" % (u2, S(sWAVE)), "s_cmp_eq_u32 %s, 1" % u2, "s_cselect_b32 %s, 64, %s" % (u1, u1)])
    X("v_add_u32 %s, %s, %s" % (V(vVR), u1, d))
    X("s_lshl_b32 %s, %s, 1\nv_add_u32 %s, %s, %s" % (u1, u3, b, u1, a))
    X("s_mul_i32 %s, %s, 18\ns_sub_u32 %s, 12, %s\nv_add_u32 %s, %s, %s" % (u1, u3, u1, u1, c, u1, a))
    X("s_lshl_b32 %s, %s, 1\ns_add_u32 %s, %s, 4\nv_subrev_u32 %s, %s, %s\nv_cmp_gt_u32 vcc, 2, %s" % (u1, u3, u1, u1, d, u1, a, d))
    X("v_mov_b32 %s, 0x100000\nv_cndmask_b32 %s, %s, %s, vcc" % (d, c, d, c))
    X("v_cmp_ne_u32 vcc, 8, %s\nv_cndmask_b32 %s, 18, %s, vcc" % (a, c, c))
    X.items.append(["s_cmp_eq_u32 %s, 1" % u2, "s_cselect_b64 vcc, -1, 0"])
    X("v_cndmask_b32 %s, %s, %s, vcc" % (b, b, c))
    X("s_mul_i32 %s, %s, 19\nv_add_u32 %s, %s, %s\nv_mul_u32_u24 %s, 96, %s" % (u1, u3, b, u1, b, b, b))
    X("v_lshrrev_b32 %s, 4, %s\nv_lshl_add_u32 %s, %s, 3, %s" % (c, L, V(vKO), c, b))
    X("s_lshl_b32 %s, %s, 4\ns_add_u32 %s, %s, %s\ns_lshl_b32 %s, %s, 12\ns_add_u32 %s, %s, %d" % (u1, S(sHP), u1, u1, S(sRBK), u1, u1, S(sKV), u1, WS_KVP))
    for m in range(2):
        X("v_mov_b32 %s, 0\nv_mov_b32 %s, 0" % (V(vF + 8 * m + 6), V(vF + 8 * m + 7)))
        for f in range(3): X("v_mov_b32 %s, 0" % V(vPHI + 12 * m + 4 * f + 3))
    X("v_lshrrev_b32 %s, 4, %s\nv_lshlrev_b32 %s, 4, %s\nv_add_u32 %s, %d, %s" % (c, L, c, c, V(vCA), L_CS, c))
    X("s_lshl_b32 %s, %s, 6\nv_add_u32 %s, %s, %s" % (u1, S(sWAVE), V(vCS), u1, V(vCA)))
    addr_items = X.items
    X = Rec()
    wr = vT + 8
    X("v_cmp_gt_u32 vcc, 8, %s\nv_mov_b32 %s, 0x1000000\nv_cndmask_b32 %s, %s, %s, vcc" % (L, V(vT + 4), V(vT + 4), V(vT + 4), V(vL16)))
    X.items.append(["s_lshl_b32 %s, %s, 1" % (u1, S(sRBK)), "s_add_u32 %s, %s, %s" % (u1, u1, S(sWAVE)), "s_add_u32 %s, %s, 32" % (u2, S(sRBK)),
                    "s_cmp_lt_u32 %s, 2" % S(sWAVE), "s_cselect_b32 %s, %s, %s" % (u1, u1, u2), "s_mul_i32 %s, %s, 36" % (u2, S(sHP)),
                    "s_add_u32 %s, %s, %s" % (u1, u1, u2), "s_mul_i32 %s, %s, 1152" % (u1, u1)])
    X("buffer_load_dwordx4 %s, %s, %s, %s offen" % (V(wr, 4), V(vL16), srd(sWO), u1))
    X("buffer_load_dwordx4 %s, %s, %s, %s offen offset:1024" % (V(wr + 4, 4), V(vT + 4), srd(sWO), u1))
    X("v_lshrrev_b32 %s, 4, %s\nv_cmp_eq_u32 %s, 2, %s" % (V(vT + 5), L, S(mG, 2), V(vT + 5)))
    wb_load = X.items
    X = Rec()
    sm = V(vT + 16)
    X("v_mov_b32 %s, 0" % sm)
    for i in range(8): X("v_dot2c_f32_bf16 %s, %s, %s" % (sm, V(wr + i), V(vONE)))
    for mode in ("quad_perm:[1,0,3,2]", "quad_perm:[2,3,0,1]", "row_half_mirror", "row_mirror"):
        X("v_add_f32_dpp %s, %s, %s %s row_mask:0xf bank_mask:0xf" % (sm, sm, sm, mode))
    for x in allred(vT + 16, vT + 17, "v_add_f32"): X(x)
    X("v_mul_f32 %s, 0x3ae38e39, %s" % (sm, sm))
    X.items.append(["s_lshl_b32 %s, %s, 2" % (u1, S(sWAVE)), "s_add_u32 %s, %s, %s" % (u1, u1, S(sKV)), "s_mov_b64 exec, 1",
                    "buffer_store_dword %s, off, %s, %s offset:3648 sc1" % (sm, srd(sWS), u1), "s_mov_b64 exec, -1"])
    wb_sum = X.items
    rp_addr, rp_go, tokR = repack_items(P)
    if ACFG["early"]:
        emit_items(P, wq_items + addr_items + rp_addr)
        wq_items, addr_items, rp_addr = [], [], []
    emit_items(P, r1[:ACFG['r1pre']])
    for which in ACFG["pf0"]:
        emit_items(P, ffn.hbm_prefetch(P, which, vLANE, vT + 18, vT + 19, vT + 20, 255))
    if ACFG['hop'] == 1: C.hop(None)
    ax = LdsAddr([vXR, vXR + 1]); aw = LdsAddr([vWR, vWM, vWC])
    for rho in range(5):
        P.waittok(toks[rho])
        P("s_waitcnt lgkmcnt(0)\ns_barrier")
        if rho == 0:
            for x in C.stamp("r0"): P.add(x)
            lab = P.newlabel(C.name + "_nr")
            P("s_cmp_eq_u32 %s, 0\ns_cbranch_scc1 %s" % (S(sZ), lab))
            P("v_mov_b32 %s, 1\ns_lshl_b32 %s, %s, 2\ns_sub_u32 %s, %s, 4\ns_mov_b64 exec, 1" % (a, S(t0), S(sZ), S(t0), S(t0)))
            P("buffer_store_dword %s, off, %s, %s sc1" % (a, srd(sDBG), S(t0))).nocount = True
            P("s_mov_b64 exec, -1")
            P.label(lab)
        if rho in ACFG["rst"]:
            for x in C.stamp("r%d" % rho): P.add(x)
        side, extra = [], []
        if rho <= 2: side = round_x(P, rho + 2) + round_w(P, rho + 2, toks[rho + 2])
        if rho == 0: side = r1[ACFG['r1pre']:] + side
        if rho == 0 and ACFG['hop'] == 2: C.hop(None)
        if rho == 0: extra = wphi_items(P)
        if rho == 2: extra = wq_items
        if rho == 1: extra = addr_items + wb_load + rp_addr
        if rho == 3:
            extra = wb_sum
            lab = P.newlabel(C.name + "_nq")
            P("s_mul_i32 %s, %s, 110592\ns_add_u32 %s, %s, %s" % (S(t0), S(sWAVE), S(sWB), S(sWB), S(t0)))
            P("s_cmp_lg_u32 %s, 0\ns_cbranch_scc1 %s" % (S(sWAVE), lab))
            P("s_add_u32 %s, %s, %d" % (S(t0), S(sWB), 16 * 110592))
            for q in range(5):
                if q % 4 == 0: P("s_mov_b32 m0, %d" % (2 * RND + 8 * 5120 + 1024 * q))
                P("buffer_load_dwordx4 %s, %s, %s offen offset:%d lds" % (V(vWQ + q), srd(sWQKV), S(t0), 1024 * (q % 4))).nocount = True
            P.label(lab)
            for pr in range(2):
                for q in range(5):
                    it = []
                    if q == 0: it.append("s_add_u32 %s, %s, %d" % (S(t0), S(sWB), pr * 8 * 110592))
                    if q % 4 == 0: it.append("s_add_u32 m0, %s, %d" % (S(sW5K), 2 * RND + pr * 4 * 5120 + 1024 * q))
                    it.append(P.mk("buffer_load_dwordx4 %s, %s, %s offen offset:%d lds" % (V(vWQ + q), srd(sWQKV), S(t0), 1024 * (q % 4)), toks[5] if (pr, q) == (1, 4) else None))
                    side.append(it)
        if rho == 4:
            side.append(["v_and_b32 %s, 15, %s" % (V(vFA), L), "v_lshlrev_b32 %s, 2, %s" % (V(vFA), V(vFA)),
                         "buffer_load_dword %s, %s, %s, 0 offen sc1" % (V(vFD), V(vFA), srd(sDBG))])
        tail = []
        if rho == 2: side = rp_go + side
        if rho == 4:
            X = Rec(); rst = repack_out(X, vT + 8); extra = X.items + rst
        if rho == 2 and ACFG["rpt"]:
            for job in range(2):
                x = P.mk("buffer_load_dword %s, %s, %s, 0 offen" % (V(255), V(vRP + job), srd(sWN if job == 0 else sWPHI))); x.dst = []
                tail.append(x)
        for which in ACFG["pfR"].get(rho, []):
            tail += ffn.hbm_prefetch(P, which, vLANE, vT + 18, vT + 19, vT + 20, 255)
        base = (rho % 3) * RND
        nk = 4 if rho < 4 else 2
        NT = 6 if ACFG['cs'] else 5
        main, rd, st = [], [], []
        nb = 0
        for kk in range(nk):
            k = 4 * rho + kk
            for T in range(NT):
                st.append(len(main))
                wf = vWF + 4 * (nb % 6); nb += 1
                if T == 5:
                    main.append(mfma(acc(0, 2), wf, vONE, None if k == 0 else acc(0, 2)))
                    continue
                for cidx in range(3 if (T == 2 or NT == 5) else 2):
                    x = mfma(acc(T, cidx), wf, xf(k, cidx) if cidx < 2 else vONE, None if k == 0 else acc(T, cidx))
                    main.append(x)
                if T in (1, 3):
                    m = T >> 1
                    main.append(mfma(vSUM + 4 * m, vONE, xf(k, m), None if k == 0 else vSUM + 4 * m))
                    main.append(mfma(vSSQ + 4 * m, xf(k, m), xf(k, m), None if k == 0 else vSSQ + 4 * m))
        nb = 0
        for kk in range(nk):
            k = 4 * rho + kk
            for T in range(NT):
                bi = kk * NT + T
                lo = st[bi - 4] - 1 if bi >= 4 else -1
                it = []
                if T == 0:
                    it += ax.rebase(base, base + 32768)
                    for m in range(2):
                        it.append("ds_read_b128 %s, %s offset:%d" % (R(xf(k, m), 4), V(vXR + (kk & 1)), ax.off(base + (kk >> 1) * 4096 + m * 2048)))
                    it += aw.rebase(base + 32768, base + RND)
                wf = vWF + 4 * (nb % 6); nb += 1
                reg, col = (vWM, 0) if T == 2 else (vWC, 0) if T == 5 else (vWR, (0, 40, 0, 80, 120)[T])
                for h in range(2):
                    it.append("ds_read_b64_tr_b16 %s, %s offset:%d" % (V(wf + 2 * h, 2), V(reg), aw.off(base + 32768 + kk * 5120 + h * 2560 + col)))
                for x in it: rd.append((lo, st[bi] if bi >= 4 else 0, x))
        multi_interleave(P, main, [rd, spread(side, 0, int(len(main) * ACFG["pace"])), [(4, INF, x) for x in extra]], 2)
        emit_items(P, tail)
    for x in C.stamp("kvg"): P.add(x)
    if ACFG['cs']:
        P("ds_write_b128 %s, %s" % (V(vCS), V(acc(0, 2), 4)))
    for m in range(2):
        q = vSSQ + 4 * m
        ra, rb = vT + 2 * m, vT + 2 * m + 1
        P("v_cndmask_b32 %s, %s, %s, %s\nv_cndmask_b32 %s, %s, %s, %s" % (V(ra), V(q), V(q + 1), S(mE, 2), V(rb), V(q + 2), V(q + 3), S(mE, 2)))
        P("v_cndmask_b32 %s, %s, %s, %s\nv_cndmask_b32 %s, 0, %s, %s" % (V(ra), V(ra), V(rb), S(mF, 2), V(ra), V(ra), S(mD, 2)))
    r0, r1 = allred(vT, vT + 1, "v_add_f32"), allred(vT + 2, vT + 3, "v_add_f32")
    for x, y in zip(r0, r1): P(x); P(y)
    for m in range(2):
        ra, rb = V(vT + 2 * m), V(vT + 2 * m + 1)
        P("v_mul_f32 %s, 0x3ae38e39, %s\nv_mul_f32 %s, 0x3ae38e39, %s" % (rb, V(vSUM + 4 * m), ra, ra))
        P("ds_write_b32 %s, %s offset:%d" % (V(vMN), rb, 64 * m))
        P("v_fma_f32 %s, -%s, %s, %s\nv_max_f32 %s, 0, %s\nv_add_f32 %s, 0x3727c5ac, %s\nv_rsq_f32 %s, %s" % (ra, rb, rb, ra, ra, ra, ra, ra, V(vA + m), ra))
    for m in range(2): P("v_mul_f32 %s, -%s, %s" % (V(vB + m), V(vT + 2 * m + 1), V(vA + m)))
    if ACFG['cs']:
        P("s_waitcnt lgkmcnt(0)\ns_barrier")
        for w, T in enumerate((0, 1, 3, 4)): P("ds_read_b128 %s, %s offset:%d" % (V(acc(T, 2), 4), V(vCA), 64 * w))
    P("s_mov_b32 %s, %d" % (S(t2), LOG2E))
    for m in range(2):
        ln_fix(P, 0, m, vF + 8 * m); ln_fix(P, 1, m, vF + 8 * m + 2); ln_fix(P, 2, m, vF + 8 * m + 4)
        for T in range(3):
            dd = vPP + 12 * m + 4 * T
            P(mfma(dd, vPH + 8 * T, vF + 8 * m)); P(mfma(dd, vPH + 8 * T + 4, vF + 8 * m + 4, dd))
    for m in range(2):
        ln_fix(P, 3, m, vT + 4); ln_fix(P, 4, m, vT + 6)
        P("v_cndmask_b32 %s, %s, %s, %s\nv_cndmask_b32 %s, %s, %s, %s" % (V(vT + 8), V(vF + 8 * m + 4), V(vONE), S(mG, 2), V(vT + 9), V(vF + 8 * m + 5), V(vONE), S(mG, 2)))
        for i in range(3): P("ds_write_b64 %s, %s offset:%d" % (V(vRV), V(vT + 4 + 2 * i, 2), m * 4608 + 192 + 32 * i))
    for m in range(2):
        softmax(P, m)
        for f in range(3): P("ds_write_b128 %s, %s offset:%d" % (V(vRW), V(vPHI + 12 * m + 4 * f, 4), m * 4608 + 16 * f))
    P("s_waitcnt lgkmcnt(0)\ns_barrier")
    for x in C.stamp("phik"): P.add(x)
    for ks in range(4):
        fr = vAC + 16 * ks
        for h in range(2): P("ds_read_b64_tr_b16 %s, %s offset:%d" % (V(fr + 12 + 2 * h, 2), V(vVR), ks * 9216 + h * 4608 + 192))
        for tau in range(3):
            for h in range(2): P("ds_read_b64_tr_b16 %s, %s offset:%d" % (V(fr + 4 * tau + 2 * h, 2), V(vPR), ks * 9216 + h * 4608 + 32 * tau))
        if ks >= 1:
            fr = vAC + 16 * (ks - 1)
            for tau in range(3): P(mfma(vPP + 4 * tau, fr + 4 * tau, fr + 12, None if ks == 1 else vPP + 4 * tau))
    fr = vAC + 48
    for tau in range(3): P(mfma(vPP + 4 * tau, fr + 4 * tau, fr + 12, vPP + 4 * tau))
    tokS = P.newtok()
    for tau in range(3):
        for h in range(2): P("v_cvt_pk_bf16_f32 %s, %s, %s" % (V(vT + 2 * tau + h), V(vPP + 4 * tau + 2 * h), V(vPP + 4 * tau + 2 * h + 1)))
        P("buffer_store_dwordx2 %s, %s, %s, %s offen offset:%d sc1" % (V(vT + 2 * tau, 2), V(vKO), srd(sWS), S(sKV), 32 * tau), tok=tokS if tau == 2 else None)
    lab = P.newlabel(C.name + "_rdy")
    C.slow.append("""%s:
    s_mov_b32 %s, 0
%s_l:
    buffer_load_dword %s, %s, %s, 0 offen sc1
    s_add_u32 %s, %s, 1
    s_waitcnt vmcnt(0)
    v_cmp_ne_u32 vcc, 1, %s
    s_cmp_gt_u32 %s, %d
    s_cbranch_scc1 %s_b
    s_cbranch_vccnz %s_l
    s_branch %s_b
""" % (lab, S(sSPIN), lab, V(vFD), V(vFA), srd(sDBG), S(sSPIN), S(sSPIN), V(vFD), S(sSPIN), SPIN_MAX, lab, lab, lab))
    P("v_cmp_ne_u32 vcc, 1, %s\ns_cbranch_vccnz %s\n%s_b:" % (V(vFD), lab, lab))
    P.waittok(toks[5])
    P("s_barrier")
    return tokS

def wphi_items(P):
    L = V(vLANE)
    a, b, c, d = V(vT), V(vT + 1), V(vT + 2), V(vT + 3)
    tmp = vT + 4
    it = []
    it += ["v_bfe_u32 %s, %s, 3, 1" % (a, L), "v_cmp_eq_u32 %s, 1, %s" % (S(mA, 2), a),
           "v_bfe_u32 %s, %s, 2, 1" % (b, L), "v_mul_u32_u24 %s, 18, %s" % (b, b), "v_and_b32 %s, 3, %s" % (c, L),
           "v_cmp_eq_u32 %s, 0, %s" % (S(mB, 2), c), "v_lshl_add_u32 %s, %s, 1, %s" % (b, c, b),
           "v_add_u32 %s, %d, %s" % (b, L_PHI, b), "v_lshrrev_b32 %s, 4, %s" % (c, L), "v_cmp_eq_u32 %s, 0, %s" % (S(mC, 2), c),
           "v_mul_u32_u24 %s, 144, %s" % (c, c), "v_mul_u32_u24 %s, 720, %s" % (d, a), "v_add3_u32 %s, %s, %s, %s" % (c, c, d, b),
           "v_mul_u32_u24 %s, 72, %s" % (d, a), "v_add_u32 %s, %s, %s" % (d, d, b)]
    raw = vPP
    for T in range(3):
        for s in range(4):
            it.append("ds_read_u16 %s, %s offset:%d" % (V(raw + 6 * T + s), c, 36 * s + 8 * T))
        for s in range(2):
            it.append("ds_read_u16 %s, %s offset:%d" % (V(raw + 6 * T + 4 + s), d, 576 + 36 * s + 8 * T))
    for i in range(9): it.append("v_lshl_or_b32 %s, %s, 16, %s" % (V(tmp + i), V(raw + 2 * i + 1), V(raw + 2 * i)))
    for i in range(3): it.append("v_cndmask_b32 %s, 0, %s, %s" % (V(tmp + 6 + i), V(tmp + 6 + i), S(mB, 2)))
    for T in range(3):
        f0, f1 = vPH + 8 * T, vPH + 8 * T + 4
        for i in range(2):
            it.append("v_cndmask_b32 %s, %s, 0, %s" % (V(f0 + i), V(tmp + 3 * T + i), S(mA, 2)))
            it.append("v_cndmask_b32 %s, 0, %s, %s" % (V(f0 + 2 + i), V(tmp + 3 * T + i), S(mA, 2)))
        it.append("v_cndmask_b32 %s, 0, %s, %s" % (V(tmp + 3 * T + 2), V(tmp + 3 * T + 2), S(mC, 2)))
        it.append("v_cndmask_b32 %s, %s, 0, %s" % (V(f1), V(tmp + 3 * T + 2), S(mA, 2)))
        it.append("v_cndmask_b32 %s, 0, %s, %s" % (V(f1 + 1), V(tmp + 3 * T + 2), S(mA, 2)))
        it.append("v_mov_b32 %s, 0" % V(f1 + 2)); it.append("v_mov_b32 %s, 0" % V(f1 + 3))
    return it

vOM, vOLf = 128, 133
def wo_addr(P):
    L = V(vLANE)
    a, b, c, d = V(vT + 8), V(vT + 9), V(vT + 10), V(vT + 11)
    e = V(vT + 12)
    P("s_movk_i32 %s, 1152" % S(t2))
    for q in range(5):
        P("v_add_u32 %s, %d, %s\nv_mul_u32_u24 %s, 6554, %s\nv_lshrrev_b32 %s, 16, %s" % (a, 64 * q, L, b, a, b, b))
        P("v_mul_u32_u24 %s, 10, %s\nv_sub_u32 %s, %s, %s\nv_cmp_eq_u32 vcc, 9, %s" % (c, b, a, a, c, a))
        P("v_lshlrev_b32 %s, 4, %s\nv_mov_b32 %s, 0x1000000\nv_cndmask_b32 %s, %s, %s, vcc" % (a, a, c, a, a, c))
        P("v_lshrrev_b32 %s, 4, %s\nv_and_b32 %s, 3, %s\nv_lshl_add_u32 %s, %s, 2, %s" % (c, b, d, b, c, c, d))
        P("v_bfe_u32 %s, %s, 2, 2" % (b, b))
        P("v_lshrrev_b32 %s, 1, %s\nv_lshl_add_u32 %s, %s, 3, %s\nv_lshl_add_u32 %s, %s, 1, %s" % (d, b, e, b, c, e, d, e))
        P("v_mad_u32_u24 %s, %s, %s, %s" % (V(vOM + q), e, S(t2), a))
        P("v_lshrrev_b32 %s, 1, %s\nv_lshl_add_u32 %s, %s, 2, %s\nv_mul_u32_u24 %s, 18, %s" % (d, c, d, b, d, d, d))
        P("v_and_b32 %s, 1, %s\nv_add3_u32 %s, %s, %s, 16\nv_mad_u32_u24 %s, %s, %s, %s" % (c, c, d, d, c, V(vOLf + q), d, S(t2), a))
        if q % 4: P("v_subrev_u32 %s, %d, %s\nv_subrev_u32 %s, %d, %s" % (V(vOM + q), 1024 * q, V(vOM + q), V(vOLf + q), 1024 * q, V(vOLf + q)))

def p1b(C, tokS):
    P = C.P
    L = V(vLANE)
    a, b, c, d = V(vT), V(vT + 1), V(vT + 2), V(vT + 3)
    vQR, vQM = 244, 245
    P("v_lshrrev_b32 %s, 2, %s\nv_mul_u32_u24 %s, 80, %s\ns_and_b32 %s, %s, 1\ns_lshl_b32 %s, %s, 3\ns_add_u32 %s, %s, %d" % (V(vQM), L, V(vQM), V(vQM), S(t0), S(sHP), S(t0), S(t0), S(t0), S(t0), 2 * RND))
    P("v_add_u32 %s, %s, %s\nv_and_b32 %s, 3, %s\nv_lshl_add_u32 %s, %s, 3, %s\nv_add_u32 %s, 32, %s" % (V(vQM), S(t0), V(vQM), V(vQR), L, V(vQR), V(vQR), V(vQM), V(vQM), V(vQM)))
    X = Rec()
    wo_addr(X)
    X("s_and_b32 %s, %s, 7\ns_mul_i32 %s, %s, 144" % (S(sWB), S(sHP), S(sWB), S(sWB)))
    X("s_lshr_b32 %s, %s, 3\ns_lshl_b32 %s, %s, 2\ns_lshl_b32 %s, %s, 3\ns_add_u32 %s, %s, %s\ns_add_u32 %s, %s, %s" %
      (S(t0), S(sHP), S(t0), S(t0), S(t1), S(sRBK), S(t0), S(t0), S(t1), S(sMT), S(t0), S(sWAVE)))
    X("s_mul_i32 %s, %s, %d\ns_add_u32 %s, %s, %s" % (S(t3), S(sWAVE), 36 * 1152, S(t3), S(t3), S(sWB)))
    pre = X.items
    pub = [[WaitTok(tokS)] + C.publish(vT + 7, 1) + C.stamp("pub1")]
    side = []
    lab = P.newlabel(C.name + "_nl")
    it = ["s_cmp_gt_u32 %s, 1" % S(sWAVE), "s_cbranch_scc1 %s" % lab,
          "s_mul_i32 %s, %s, %d" % (S(t0), S(sWAVE), 288 * 1152), "s_add_u32 %s, %s, %s" % (S(t0), S(t0), S(sWB))]
    for q in range(5):
        if q % 4 == 0: it.append("s_add_u32 m0, %s, %d" % (S(sW5K), 16 * 5120 + 1024 * q))
        x = P.mk("buffer_load_dwordx4 %s, %s, %s offen offset:%d lds" % (V(vOLf + q), srd(sWO), S(t0), 1024 * (q % 4))); x.nocount = True
        it.append(x)
    it.append(lab + ":")
    side.append(it)
    for i in range(4):
        for q in range(5):
            it = []
            if q == 0: it.append("s_add_u32 %s, %s, %d" % (S(t0), S(t3), i * 4 * 36 * 1152))
            if q % 4 == 0: it.append("s_add_u32 m0, %s, %d" % (S(sW5K), i * 4 * 5120 + 1024 * q))
            it.append("buffer_load_dwordx4 %s, %s, %s offen offset:%d lds" % (V(vOM + q), srd(sWO), S(t0), 1024 * (q % 4)))
            side.append(it)
    X = Rec()
    e4, e5 = V(vT + 4), V(vT + 5)
    X("v_lshrrev_b32 %s, 2, %s" % (e4, L))
    vf_rb(X, V(vFA), e4, e5)
    f_hp(X, S(t1), S(sHP), S(t2))
    X("v_and_b32 %s, 3, %s\nv_lshl_add_u32 %s, %s, 2, %s\nv_add_u32 %s, %s, %s" % (e4, L, V(vFA), e4, V(vFA), V(vFA), S(t1), V(vFA)))
    for x in flagfix(V(vFA), e4): X(x)
    vRa, vRb, vWa, vWc, vOL, vRS, vXL = 240, 241, 242, 243, 246, 247, 248
    X("v_bfe_u32 %s, %s, 3, 1\nv_lshrrev_b32 %s, 5, %s\nv_cmp_eq_u32 %s, %s, %s" % (a, L, b, L, S(mA, 2), a, b))
    X("v_mul_u32_u24 %s, %d, %s\nv_bfe_u32 %s, %s, 4, 1\nv_mad_u32_u24 %s, %s, 48, %s\nv_add_u32 %s, %d, %s" % (a, 19 * 96, a, b, L, a, b, a, a, L_R, a))
    X("v_bfe_u32 %s, %s, 2, 1\nv_and_b32 %s, 3, %s\nv_lshl_add_u32 %s, %s, 3, %s\nv_mul_u32_u24 %s, 96, %s\nv_add_u32 %s, %s, %s" % (b, L, c, L, b, b, c, b, b, b, b, a))
    X("v_mov_b32 %s, %d\nv_cndmask_b32 %s, %s, %s, %s" % (d, L_ZERO, V(vRa), d, b, S(mA, 2)))
    X("v_add_u32 %s, 15, %s\nv_cmp_ne_u32 vcc, 0, %s\nv_cndmask_b32 %s, 18, %s, vcc\nv_mul_u32_u24 %s, 96, %s\nv_add_u32 %s, %s, %s" % (b, c, c, b, b, b, b, b, b, a))
    X("v_cmp_ne_u32 vcc, 3, %s\ns_and_b64 vcc, vcc, %s\nv_cndmask_b32 %s, %s, %s, vcc" % (c, S(mA, 2), V(vRb), d, b))
    X("v_lshrrev_b32 %s, 5, %s\nv_mul_u32_u24 %s, 80, %s\nv_add_u32 %s, %d, %s\nv_bfe_u32 %s, %s, 4, 1" % (a, L, a, a, a, L_WBAR, a, b, L))
    X("v_cmp_eq_u32 %s, 1, %s\nv_lshl_add_u32 %s, %s, 5, %s" % (S(mB, 2), b, V(vWa), b, a))
    X("v_add_u32 %s, 64, %s\nv_cndmask_b32 %s, %s, %s, %s" % (a, a, V(vWc), a, d, S(mB, 2)))
    X("v_and_b32 %s, 15, %s\nv_lshlrev_b32 %s, 4, %s\nv_lshrrev_b32 %s, 5, %s\nv_lshl_add_u32 %s, %s, 2, %s" % (a, L, a, a, c, L, a, c, a))
    X("v_lshl_add_u32 %s, %s, 3, %s" % (V(vOL), b, a))
    X("v_add_u32 %s, %s, %s\nv_add_u32 %s, %d, %s" % (V(vRS), S(sW1K), V(vL16), V(vRS), L_R, V(vRS)))
    for i in range(4): X("v_mov_b32 %s, 0" % V(vT + 8 + i))
    X("v_and_b32 %s, 0x1f0, %s\nv_add_u32 %s, %d, %s\nds_write_b128 %s, %s" % (c, V(vL16), c, L_ZERO, c, c, V(vT + 8, 4)))
    for q in range(3):
        X("v_add_u32 %s, %d, %s\nv_mul_u32_u24 %s, 7282, %s\nv_lshrrev_b32 %s, 16, %s" % (a, 64 * q, L, b, a, b, b))
        X("v_mul_u32_u24 %s, %d, %s\nv_lshl_add_u32 %s, %s, 4, %s" % (b, 1152 - 144, b, V(vXL + q), a, b))
        if q: X("v_subrev_u32 %s, %d, %s" % (V(vXL + q), 1024 * q, V(vXL + q)))
    X("v_cmp_gt_u32 vcc, 16, %s\nv_mov_b32 %s, 0x1000000\nv_cndmask_b32 %s, %s, %s, vcc" % (L, a, V(vXL + 2), a, V(vXL + 2)))
    post = X.items
    main, rd, st = [], [], []
    for k in range(18):
        for T in range(3):
            bi = len(st); st.append(len(main))
            wf = vWF + 4 * (bi % 6)
            for cidx in range(3):
                main.append(mfma(acc(T, cidx), wf, xf(k, cidx) if cidx < 2 else vONE, None if k == 0 else acc(T, cidx)))
            lo = st[bi - 4] - 1 if bi >= 4 else -1
            for h in range(2):
                rd.append((lo, st[bi] if bi >= 4 else 0, "ds_read_b64_tr_b16 %s, %s offset:%d" % (V(wf + 2 * h, 2), V(vQM if T == 2 else vQR), k * 2560 + h * 1280 + (0, 40, 0)[T])))
    n0 = ACFG["pub1"]
    s2 = [(0, n0, x) for x in pre] + [(n0, n0 + 1, x) for x in pub] + spread(side[:ACFG['woq']], n0 + 1, 155)
    multi_interleave(P, main, [rd, s2, [(n0 + 1, INF, x) for x in post]], 2)
    for x in C.stamp("qg"): P.add(x)
    P.add(C.load_flags(vFD, vFA))
    P("s_mov_b32 %s, %d" % (S(t2), LOG2E))
    for m in range(2):
        ln_fix(P, 0, m, vF + 8 * m); ln_fix(P, 1, m, vF + 8 * m + 2); ln_fix(P, 2, m, vF + 8 * m + 4)
        for T in range(3):
            dd = vPP + 12 * m + 4 * T
            P(mfma(dd, vPH + 8 * T, vF + 8 * m)); P(mfma(dd, vPH + 8 * T + 4, vF + 8 * m + 4, dd))
    softmax(P, 0)
    for x in C.check_flags(vFD, vFA, 1, 255): P.add(x)
    for x in C.stamp("s1"): P.add(x)
    P("s_lshl_b32 %s, %s, 16\ns_add_u32 %s, %s, %d\ns_add_u32 %s, %s, %s" % (S(t1), S(sHP), S(t1), S(t1), WS_KVP, S(t0), S(t1), S(sW1K)))
    for r in range(16):
        P("buffer_load_dwordx4 %s, %s, %s, %s offen sc1" % (V(vAC + 4 * r, 4), V(vL16), srd(sWS), S(t0)))
        if r < 15: P("s_add_u32 %s, %s, 4096" % (S(t0), S(t0)))
    P("v_and_b32 %s, 15, %s\nv_lshlrev_b32 %s, 12, %s" % (V(vF + 1), L, V(vF), V(vF + 1)))
    P("buffer_load_dwordx3 %s, %s, %s, %s offen offset:3648 sc1" % (V(vF + 4, 3), V(vF), srd(sWS), S(t1)))
    for which in ACFG["pfQ"]:
        emit_items(P, ffn.hbm_prefetch(P, which, vLANE, vT + 18, vT + 19, vT + 20, 255))
    main_P = P
    P = Prog(); P._tok, P._lab = main_P._tok, main_P._lab
    softmax(P, 1)
    for x in C.stamp("phiq"): P.add(x)
    sm = vWF
    P("v_mov_b32 %s, 0x3f80\nv_mov_b32 %s, 1.0" % (V(vT + 8), V(vT + 9)))
    for i in range(6): P("v_mov_b32 %s, 0" % V(sm + i))
    P("v_mov_b32 %s, 0" % V(vT + 7))
    P("v_cmp_lt_u32 vcc, 8, %s\nv_addc_co_u32 %s, vcc, 0, %s, vcc\nv_lshlrev_b32 %s, 3, %s\nv_add_u32 %s, %d, %s" % (V(vF + 1), V(vF + 2), V(vF + 1), V(vF + 2), V(vF + 2), V(vF + 2), L_WBAR, V(vF + 2)))
    P("v_lshlrev_b32 %s, 2, %s\nv_add_u32 %s, %d, %s" % (V(vF + 3), V(vF + 1), V(vF + 3), L_WBAR + 136, V(vF + 3)))
    for r in range(16):
        for i in range(6): P("v_dot2c_f32_bf16 %s, %s, %s" % (V(sm + i), V(vAC + 4 * r + (i >> 1)), V(vT + 8 + (i & 1))))
    for i in range(3): P("v_cvt_pk_bf16_f32 %s, %s, %s" % (V(vT + 4 + i), V(sm + 2 * i), V(sm + 2 * i + 1)))
    P("ds_write_b128 %s, %s" % (V(vRS), V(vT + 4, 4)))
    P("ds_write_b64 %s, %s\nds_write_b32 %s, %s" % (V(vF + 2), V(vF + 4, 2), V(vF + 3), V(vF + 6)))
    P("s_waitcnt lgkmcnt(0)\ns_barrier")
    for x in C.stamp("kvred"): P.add(x)
    kf = vAC
    for T in range(3):
        for p in range(3):
            P("ds_read_b128 %s, %s offset:%d" % (V(kf + 12 * T + 4 * p, 4), V(vRb if T == 2 else vRa), (384 if T == 1 else 0) + 16 * p))
    vWb = vAC + 36
    P("ds_read_b128 %s, %s\nds_read_b128 %s, %s offset:16\nds_read_b64 %s, %s" % (V(vWb, 4), V(vWa), V(vWb + 4, 4), V(vWa), V(vWb + 8, 2), V(vWc)))
    P("s_mul_i32 %s, %s, 3072\ns_add_u32 m0, %s, %d\ns_mul_i32 %s, %s, 18432\ns_add_u32 %s, %s, %s" % (S(t0), S(sWAVE), S(t0), L_XR, S(t0), S(sMT), S(t0), S(t0), S(sWB)))
    for q in range(3): P("buffer_load_dwordx4 %s, %s, %s offen offset:%d lds" % (V(vXL + q), srd(sX), S(t0), 1024 * q))
    P("s_lshl_b32 %s, %s, 3\ns_lshl_b32 %s, %s, 1\ns_add_u32 %s, %s, %s\ns_lshl_b32 %s, %s, 4\ns_add_u32 %s, %s, %s" %
      (S(t0), S(sRBK), S(t1), S(sWAVE), S(t0), S(t0), S(t1), S(t0), S(t0), S(t0), S(t0), S(sHP)))
    P("s_lshl_b32 %s, %s, 8\ns_add_u32 %s, %s, %d\ns_lshl_b32 %s, %s, 10\ns_add_u32 %s, %s, %d" % (S(t1), S(t0), S(t1), S(t1), WS_OL, S(t0), S(t0), S(t0), S(t0), WS_OM))
    for m in range(2):
        for T in (2, 0, 1):
            dd = vPP + 12 * m + 4 * T
            for p in range(3): P(mfma(dd, kf + 12 * T + 4 * p, vPHI + 12 * m + 4 * p, None if p == 0 else dd))
    chain = P.ins
    main_P._tok, main_P._lab = P._tok, P._lab
    P = main_P
    rest = side[ACFG['woq']:]
    step = max(1, int(len(chain) * ACFG["wofr"]) // max(len(rest), 1))
    k = 0
    for n, x in enumerate(chain):
        if x.is_dma or (x.kind == "salu" and (("s", "m0") in x.dst or ("s", t0) in x.dst)):
            while k < len(rest): emit_items(P, [rest[k]]); k += 1
        P.add(x)
        if n % step == 0 and k < len(rest) and x.op not in ("s_waitcnt", "s_memrealtime", "s_memtime", "v_cmp_lt_u32"):
            emit_items(P, [rest[k]]); k += 1
    assert k == len(rest)
    a, b, c, d = V(vF), V(vF + 1), V(vF + 2), V(vF + 3)
    for m in range(2):
        o = vPP + 12 * m
        P("v_add_f32 %s, 0x358637bd, %s\nv_rcp_f32 %s, %s" % (a, V(o + 8), a, a))
        P("v_mul_f32 %s, %s, %s\nv_mul_f32 %s, %s, %s" % (V(o + 9), V(o + 9), a, V(o + 10), V(o + 10), a))
        for i in (0, 2, 4, 6): P("v_pk_mul_f32 %s, %s, %s op_sel_hi:[1,0]" % (V(o + i, 2), V(o + i, 2), V(vF, 2)))
        q = vF + 4 + 4 * m
        for i in range(4): P("v_cvt_pk_bf16_f32 %s, %s, %s" % (V(q + i), V(o + 2 * i), V(o + 2 * i + 1)))
        P("buffer_store_dwordx4 %s, %s, %s, %s offen sc1" % (V(q, 4), V(vL16), srd(sWS), S(t0)))
        P("v_pk_mul_f32 %s, %s, %s" % (V(vF + 2, 2), V(o, 2), V(vWb, 2)))
        for i in (2, 4, 6): P("v_pk_fma_f32 %s, %s, %s, %s" % (V(vF + 2, 2), V(o + i, 2), V(vWb + i, 2), V(vF + 2, 2)))
        P("v_fmac_f32 %s, %s, %s\nv_fmac_f32 %s, %s, %s\nv_add_f32 %s, %s, %s" % (c, V(o + 9), V(vWb + 8), d, V(o + 10), V(vWb + 9), b, c, d))
        for x in allred(vF + 1, vF + 2, "v_add_f32"): P(x)
        P("v_cvt_pk_bf16_f32 %s, %s, %s\nv_cndmask_b32 %s, %s, %s, %s" % (c, V(o + 9), V(o + 10), V(vF + 12 + m), c, b, S(mB, 2)))
        P("buffer_store_dword %s, %s, %s, %s offen sc1" % (V(vF + 12 + m), V(vOL), srd(sWS), S(t1)))
        if m == 0: P("s_add_u32 %s, %s, 16384\ns_add_u32 %s, %s, 4096" % (S(t0), S(t0), S(t1), S(t1)))
    P("v_and_b32 %s, 15, %s" % (a, L))
    vf_hp(P, V(vFA), a, b)
    f_rb(P, S(t0), S(sRBK), S(t1))
    P("s_and_b32 %s, %s, 7\ns_lshr_b32 %s, %s, 1\ns_lshl_b32 %s, %s, 2\ns_add_u32 %s, %s, %s\nv_add_u32 %s, %s, %s" % (S(t1), S(sMT), S(t1), S(t1), S(t1), S(t1), S(t0), S(t0), S(t1), V(vFA), S(t0), V(vFA)))
    for x in flagfix(V(vFA), a): P(x)
    P("v_mov_b32 v225, %s" % L)
    ffn.ffn_setup(C, 225)

L_XR = 122880
def code_touch(C, L, a):
    P = C.P
    nper = -(-(C.code_bytes - 4096) // (32 * 128))
    lab = P.newlabel(C.name + "_ct")
    P("s_cmp_lg_u32 %s, 3\ns_cbranch_scc1 %s" % (S(sWAVE), lab))
    P("s_getpc_b64 s[100:101]\n%s_pc:\ns_sub_u32 s100, s100, %s_pc-%s_body\ns_subb_u32 s101, s101, 0" % (lab, lab, C.name))
    P("s_mul_i32 %s, %s, %d\nv_min_u32 %s, %d, %s\nv_lshl_add_u32 %s, %s, 7, %s\nv_min_u32 %s, %d, %s" % (S(t1), S(sIDX), nper * 128, a, nper - 1, L, a, a, S(t1), a, C.code_bytes - 4096 - 128, a))
    P("global_load_dword %s, %s, s[100:101]" % (V(255), a)); P.ins[-1].dst = []; P.ins[-1].nocount = True
    P.label(lab)

def p2(C):
    P = C.P
    vLN = 225
    L = V(vLN)
    vO, vAcc, vMU, vXS, vWV = 0, 72, 92, 96, 108
    vQ = 240
    a, b, c, d = V(vQ), V(vQ + 1), V(vQ + 2), V(vQ + 3)
    vWR2, vLA, vMA, vL8, vMX = 226, 227, 228, 229, 230
    def wreg(i): return AG + 4 * i if i < 64 else vWV + 4 * (i - 64)
    nar = ffn.narrow_items(P, vL16)

    P("v_lshrrev_b32 %s, 2, %s\nv_mul_u32_u24 %s, 160, %s\nv_and_b32 %s, 3, %s\nv_lshl_add_u32 %s, %s, 3, %s" % (a, L, a, a, b, L, V(vWR2), b, a))
    P("v_and_b32 %s, 15, %s\nv_lshrrev_b32 %s, 4, %s\nv_mul_u32_u24 %s, 144, %s\nv_lshl_add_u32 %s, %s, 3, %s" % (a, L, b, L, c, a, c, b, c))
    P("s_mul_i32 %s, %s, 3072\ns_add_u32 %s, %s, %d\nv_add_u32 %s, %s, %s" % (S(t1), S(sWAVE), S(t1), S(t1), L_XR, c, S(t1), c))
    xrd = ["ds_read_b64 %s, %s offset:%d" % (V(vXS + 2 * T, 2), c, 32 * T) for T in range(5)]
    P("v_lshlrev_b32 %s, 4, %s\nv_lshl_add_u32 %s, %s, 9, %s\nv_lshlrev_b32 %s, 3, %s" % (d, a, V(vLA), b, d, V(vL8), L))
    P("v_lshlrev_b32 %s, 2, %s" % (a, a))
    P("s_and_b32 %s, %s, 7\ns_lshl_b32 %s, %s, 6\ns_add_u32 %s, %s, %d\nv_add_u32 %s, %s, %s\nds_read_b32 %s, %s" % (S(t1), S(sMT), S(t1), S(t1), S(t1), S(t1), L_MEAN, a, S(t1), a, V(vMX), a))
    aw = LdsAddr([vWR2])
    main = []
    for f in range(18):
        for T in range(5):
            it = aw.rebase(f * 5120, (f + 1) * 5120)
            it += ["ds_read_b64_tr_b16 %s, %s offset:%d" % (R(wreg(5 * f + T) + 2 * h, 2), V(vWR2), aw.off(f * 5120 + h * 2560 + 32 * T)) for h in range(2)]
            main.append(it)
    pa = ACFG["pa"]
    assert pa <= 6
    k0 = ACFG["prep"]
    emit_items(P, main[:k0])
    P("s_waitcnt vmcnt(0)")
    for x in C.publish(vQ + 3, 2): P.add(x)
    for x in C.stamp("pub2"): P.add(x)
    if ACFG["woq"] < 21: P("s_barrier")
    emit_items(P, xrd)
    if ACFG["ct2"]: code_touch(C, L, a)
    units = ffn.unit_items(P, 0, 30 - ffn.CFG['late'])
    multi_interleave(P, main[k0:], [spread(units[:pa], 0, max(90 - k0 - 5, 1))], 1)
    if ACFG['hop'] and ACFG['hop2'] == 0: C.hop(None)
    for x in (C.stamp("prer") if ACFG["rst"] else []): P.add(x)
    P.add(C.load_flags(vFD, vFA))
    P("s_lshl_b32 %s, %s, 14\ns_add_u32 %s, %s, %d\ns_lshl_b32 %s, %s, 12\ns_add_u32 %s, %s, %d" % (S(t2), S(sMT), S(t2), S(t2), WS_OM, S(t1), S(sMT), S(t1), S(t1), WS_OL))
    P("s_waitcnt lgkmcnt(0)\ns_barrier")
    for x in C.check_flags(vFD, vFA, 2, 255): P.add(x)
    for x in C.stamp("s2"): P.add(x)
    vLQ = 244
    for f in range(16):
        P("buffer_load_dwordx4 %s, %s, %s, %s offen offset:%d sc1" % (V(vO + 4 * f, 4), V(vL16), srd(sWS), S(t2), 1024 * (f % 4)))
        if f == 7:
            for e in range(2):
                P("buffer_load_dwordx3 %s, %s, %s, %s offen offset:%d sc1" % (V(vO + 64 + 4 * e, 3), V(vLA), srd(sWS), S(t1), e * 2048))
                P("buffer_load_dwordx3 %s, %s, %s, %s offen offset:%d sc1" % (V(vLQ + 4 * e, 3), V(vLA), srd(sWS), S(t1), e * 2048 + 256))
        if f % 4 == 3 and f < 15: P("s_add_u32 %s, %s, 4096" % (S(t2), S(t2)))
    main = []
    for f in range(18):
        for T in range(5):
            main.append(mfma(vAcc + 4 * T, wreg(5 * f + T), vO + 4 * f, None if f == 0 else vAcc + 4 * T))
    units = nar + units[pa:]
    pb = ACFG["pb"]
    X = Rec()
    X("s_and_b32 %s, %s, 7" % (S(t3), S(sHP)))
    X("s_mul_i32 %s, %s, 18432\ns_mul_i32 %s, %s, 2304\ns_add_u32 %s, %s, %s\ns_add_u32 %s, %s, %d" % (S(sXB), S(sMT), S(t1), S(t3), S(t1), S(t1), S(sXB), S(t1), S(t1), WS_H))
    X("s_lshl_b32 %s, %s, 11\ns_add_u32 %s, %s, %s\ns_add_u32 %s, %s, %d" % (S(t2), S(t3), S(t2), S(t2), S(sXB), S(t2), S(t2), WS_HC))
    X("v_cmp_gt_u32 %s, 32, %s\nv_mov_b32 %s, 0x8000000\nv_cndmask_b32 %s, %s, %s, %s" % (S(mA, 2), L, a, V(vLA), a, V(vL8), S(mA, 2)))
    X("v_and_b32 %s, 15, %s\nv_lshlrev_b32 %s, 4, %s\nv_lshrrev_b32 %s, 4, %s\nv_lshl_add_u32 %s, %s, 3, %s\nv_cndmask_b32 %s, %s, %s, %s" % (b, L, b, b, c, L, b, c, b, V(vMA), a, b, S(mA, 2)))
    Y = []
    for e in range(2):
        Y += ["v_add_f32 %s, %s, %s" % (V(vMU + e), V(vO + 66 + 4 * e), V(vLQ + 4 * e + 2)),
              "v_mov_b32 %s, %s" % (V(vO + 66 + 4 * e), V(vLQ + 4 * e)), "v_mov_b32 %s, %s" % (V(vO + 67 + 4 * e), V(vLQ + 4 * e + 1))]
    Y += ["v_add_f32 %s, %s, %s" % (V(vMU), V(vMU), V(vMU + 1))] + allred(vMU, vMU + 1, "v_add_f32") + ["v_add_f32 %s, %s, %s" % (V(vMU), V(vMU), V(vMX))]
    multi_interleave(P, main, [paced(units[:pb], ACFG["pbat"], ACFG["pbstep"])[0], [(2, INF, x) for x in X.items] + [(45, 78, x) for x in Y]], 2)
    for x in C.stamp("wog"): P.add(x)
    ss = vMU + 2
    P("v_mov_b32 %s, 0\nv_mov_b32 %s, 0" % (V(ss), V(ss + 1)))
    hq = vO
    for T in range(5):
        r = vAcc + 4 * T
        for h in range(2):
            x = V(vXS + 2 * T + h)
            P("v_lshlrev_b32 %s, 16, %s\nv_and_b32 %s, 0xffff0000, %s" % (a, x, b, x))
            P("v_pk_add_f32 %s, %s, %s" % (V(vQ, 2), V(vQ, 2), V(r + 2 * h, 2)))
            P("v_cvt_pk_bf16_f32 %s, %s, %s" % (V(hq + 2 * T + h), a, b))
            P("v_lshlrev_b32 %s, 16, %s\nv_and_b32 %s, 0xffff0000, %s" % (a, V(hq + 2 * T + h), b, V(hq + 2 * T + h)))
            P("v_pk_add_f32 %s, %s, %s op_sel_hi:[1,0] neg_lo:[0,1] neg_hi:[0,1]" % (V(vQ, 2), V(vQ, 2), V(vMU, 2)))
            P("v_cvt_pk_bf16_f32 %s, %s, %s" % (V(hq + 12 + 2 * T + h), a, b))
            if T == 4: P("v_cndmask_b32 %s, 0, %s, %s\nv_cndmask_b32 %s, 0, %s, %s" % (b, b, S(mA, 2), a, a, S(mA, 2)))
            P("v_pk_fma_f32 %s, %s, %s, %s" % (V(ss, 2), V(vQ, 2), V(vQ, 2), V(ss, 2)))
        if T % 2 == 1:
            P("buffer_store_dwordx4 %s, %s, %s, %s offen offset:%d sc1" % (V(hq + 12 + 2 * (T - 1), 4), V(vL16), srd(sWS), S(t2), 1024 * (T >> 1)))
        if T == 4:
            P("s_lshl_b32 %s, %s, 8\ns_add_u32 %s, %s, %s\ns_add_u32 %s, %s, %d" % (S(t2), S(t3), S(t2), S(t2), S(sXB), S(t2), S(t2), WS_HC + 16384))
            P("buffer_store_dwordx2 %s, %s, %s, %s offen sc1" % (V(hq + 20, 2), V(vMA), srd(sWS), S(t2)))
    P("v_add_f32 %s, %s, %s" % (V(ss), V(ss), V(ss + 1)))
    for x in allred(ss, ss + 1, "v_add_f32"): P(x)
    P("s_lshl_b32 %s, %s, 3\ns_add_u32 %s, %s, %s\ns_lshl_b32 %s, %s, 8\ns_add_u32 %s, %s, %d" % (S(t0), S(sMT), S(t0), S(t0), S(t3), S(t0), S(t0), S(t0), S(t0), WS_SSQ))
    P("v_lshlrev_b32 %s, 2, %s\nbuffer_store_dword %s, %s, %s, %s offen sc1" % (a, L, V(ss), a, srd(sWS), S(t0)))
    for T in range(5):
        P("buffer_store_dwordx2 %s, %s, %s, %s offen offset:%d sc1" % (V(hq + 2 * T, 2), V(vL8 if T < 4 else vLA), srd(sWS), S(t1), 512 * T))
    fa = V(ffn.vFA)
    a, b = V(100), V(101)
    P("s_lshl_b32 %s, %s, 3\ns_lshl_b32 %s, %s, 1\ns_add_u32 %s, %s, %s\ns_lshr_b32 %s, %s, 1\ns_add_u32 %s, %s, %s" % (S(t0), S(sMH), S(t1), S(sRB), S(t0), S(t0), S(t1), S(t1), S(sWAVE), S(t0), S(t0), S(t1)))
    f_rb(P, S(t2), S(t0), S(t1))
    P("s_and_b32 %s, %s, 1\ns_lshl_b32 %s, %s, 3\nv_bfe_u32 %s, %s, 2, 3\nv_add_u32 %s, %s, %s" % (S(t0), S(sWAVE), S(t0), S(t0), a, L, a, S(t0), a))
    vf_hp(P, fa, a, b)
    P("v_and_b32 %s, 3, %s\nv_lshl_add_u32 %s, %s, 2, %s\nv_add_u32 %s, %s, %s" % (a, L, fa, a, fa, fa, S(t2), fa))
    for x in flagfix(fa, a): P(x)
    P("v_mov_b32 v102, %s" % L)
    ffn.ffn_addr2(C, 102)
    P("s_waitcnt vmcnt(0)")
    for x in C.publish(100, 3): P.add(x)
    for x in C.stamp("pub3"): P.add(x)
    emit_items(P, units[pb:])
    for which in ACFG["pfS3"]:
        emit_items(P, ffn.hbm_prefetch(P, which, 102, 103, 104, 105, 106))
    if ACFG['hop'] and ACFG['hop2'] == 1: C.hop(None)
```

```python
from gen import *

WS_FLAGS = 0x0
WS_KVP = 0x20000
WS_OM = 0x120000
WS_OL = 0x320000
WS_HC = 0x3A0000
WS_SSQ = 0x5E0000
WS_H = 0x620000
WS_PART = 0x860000
WS_HH = 0x1260000
WS_RN = 0x2500000
WS_RD = 0x2640000
WS_TIM = 0x2460000
WS_DBG = 0x2700000
WS_SIZE = 0x4000000

sX, sWQKV, sWPHI, sWO, sWG, sWU, sWD, sOUT, sWS, sDBG, sWN = 4, 8, 12, 16, 20, 24, 28, 32, 36, 40, 44
sWAVE, sW1K, sXCD, sIDX, sFLAG = 48, 49, 50, 51, 52
sSPIN = 53
sFQ, sMH, sRB, sFS = 54, 55, 56, 57
sT = 80
def srd(b): return S(b, 4)

SPIN_MAX = 50000
GCFG = dict(fl=1, poll=1)
def flagfix(reg, tmp):
    if not GCFG['fl']: return []
    return ['v_and_b32 %s, 12, %s' % (tmp, reg), 'v_and_b32 %s, 0xffffff80, %s' % (reg, reg), 'v_lshlrev_b32 %s, 2, %s' % (reg, reg), 'v_lshl_add_u32 %s, %s, 5, %s' % (reg, tmp, reg)]


class Ctx:
    def __init__(self, name, timing=False):
        self.name = name
        self.P = Prog()
        self.slow = []
        self.timing = timing
        self.nstamp = 0
        self.sbase = 0
        self.hops = []
        self.stamp_names = []
    def check_flags(self, vdata, vaddr, phase, v2=None):
        lab = self.P.newlabel(self.name + "_spin")
        if GCFG["poll"] > 1 and v2 is not None:
            ld = lambda r: "    buffer_load_dword %s, %s, %s, 0 offen sc1\n" % (V(r), V(vaddr), srd(sWS))
            ck = lambda r: "    s_waitcnt vmcnt(1)\n    v_cmp_gt_u32 vcc, %d, %s\n    s_cbranch_vccz %s_d\n" % (phase, V(r), lab)
            self.slow.append("%s:\n    s_mov_b32 %s, 0\n" % (lab, S(sSPIN)) + ld(vdata) + "    s_nop 15\n" * GCFG["poll"] + "%s_l:\n" % lab + ld(v2) + ck(vdata) + ld(vdata) + ck(v2) +
                             "    s_add_u32 %s, %s, 1\n    s_cmp_lt_u32 %s, %d\n    s_cbranch_scc1 %s_l\n%s_d:\n    s_waitcnt vmcnt(0)\n    s_branch %s_b\n" % (S(sSPIN), S(sSPIN), S(sSPIN), SPIN_MAX, lab, lab, lab))
            return ["v_cmp_gt_u32 vcc, %d, %s" % (phase, V(vdata)), "s_cbranch_vccnz %s" % lab, lab + "_b:"]
        self.slow.append("""%s:
    s_mov_b32 %s, 0
%s_l:
    buffer_load_dword %s, %s, %s, 0 offen sc1
    s_add_u32 %s, %s, 1
    s_waitcnt vmcnt(0)
    v_cmp_gt_u32 vcc, %d, %s
    s_cmp_gt_u32 %s, %d
    s_cbranch_scc1 %s_b
    s_cbranch_vccnz %s_l
    s_branch %s_b
""" % (lab, S(sSPIN), lab, V(vdata), V(vaddr), srd(sWS), S(sSPIN), S(sSPIN), phase, V(vdata), S(sSPIN), SPIN_MAX, lab, lab, lab))
        return ["v_cmp_gt_u32 vcc, %d, %s" % (phase, V(vdata)), "s_cbranch_vccnz %s" % lab, lab + "_b:"]
    def load_flags(self, vdata, vaddr):
        return "buffer_load_dword %s, %s, %s, 0 offen sc1" % (V(vdata), V(vaddr), srd(sWS))
    def publish(self, vtmp, phase):
        return ["v_mov_b32 %s, %d" % (V(vtmp), phase), "s_mov_b64 exec, 1",
                "buffer_store_dword %s, off, %s, %s sc1" % (V(vtmp), srd(sWS), S(sFLAG)), "s_mov_b64 exec, -1"]
    def stamp(self, name):
        if not self.timing: return []
        k = self.nstamp; self.nstamp += 1
        self.stamp_names.append(name)
        return [("s_memtime" if self.timing == 2 else "s_memrealtime") + " s[100:101]", "s_waitcnt lgkmcnt(0)", "s_mov_b32 s%d, s100" % (60 + k - self.sbase)]
    def flush_stamps(self, v0, v1):
        if not self.timing: return
        P = self.P
        assert self.nstamp - self.sbase <= 16
        P("v_mov_b32 %s, 0" % V(v0))
        for k in range(self.sbase, self.nstamp):
            P("v_writelane_b32 %s, s%d, %d" % (V(v0), 60 + k - self.sbase, k - self.sbase))
        P("v_mbcnt_lo_u32_b32 %s, -1, 0\nv_mbcnt_hi_u32_b32 %s, -1, %s\nv_lshlrev_b32 %s, 2, %s" % (V(v1), V(v1), V(v1), V(v1), V(v1)))
        P("s_lshl_b32 s3, s2, 2\ns_add_u32 s3, s3, %s\ns_lshl_b32 s3, s3, 8\ns_add_u32 s3, s3, %d" % (S(sWAVE), WS_TIM + 4 * self.sbase))
        P("s_mov_b64 exec, 0xffff\nbuffer_store_dword %s, %s, %s, s3 offen\ns_mov_b64 exec, -1" % (V(v0), V(v1), srd(sWS)))
        self.sbase = self.nstamp
    def finish(self):
        P = self.P
        self.flush_stamps(0, 1)
        P.label(self.name + "_end")
        P("s_endpgm")
        text = P.finalize()
        if self.hops: text = self._place_stubs()
        return kernel_header(self.name) + text + "".join(self.slow)
    def align_body(self):
        self.P("s_branch %s_body" % self.name)
        self.P(".p2align 12")
        self.P.label(self.name + "_body")
    def hop(self, upto):
        k = len(self.hops); self.hops.append(upto)
        self.P("s_mov_b64 exec, 0\ns_branch %s_hop%d_0\n%s_hopback%d:\ns_mov_b64 exec, -1" % (self.name, k, self.name, k))
    def _place_stubs(self):
        import subprocess
        L = self.P.final
        lines = [i.text if i.kind in ("label", "dir") else "    " + i.text for i in L]
        fix = "".join("%s_hop%d_0:\n" % (self.name, k) for k in range(len(self.hops)))
        open("_st.s", "w").write('.amdgcn_target "amdgcn-amd-amdhsa--gfx950"\n.text\n' + "\n".join(lines) + "\n" + fix + "".join(self.slow))
        r = subprocess.run(["clang", "-x", "assembler", "-target", "amdgcn-amd-amdhsa", "-mcpu=gfx950", "-c", "_st.s", "-o", "_st.o"], capture_output=True, text=True)
        if r.returncode: print(r.stderr[:3000]); raise SystemExit(1)
        d = subprocess.run(["llvm-objdump", "-d", "--mcpu=gfx950", "_st.o"], capture_output=True, text=True).stdout
        d = d[d.index("<%s_body>:" % self.name):]
        sizes = [4 * len(l.split("//")[1].split(":")[1].split("<")[0].split()) for l in d.splitlines() if "//" in l]
        b0 = [k for k, i in enumerate(L) if i.text == self.name + "_body:"][0]
        out = lines[:b0 + 1]
        addr, page, si = 0, 1, 0
        chain, cnt, chains = None, {}, {}
        for k in range(b0 + 1, len(L)):
            i = L[k]
            if i.kind == "label":
                for h, upto in enumerate(self.hops):
                    if i.text == "%s_hopback%d:" % (self.name, h): chain = h
                    if upto is not None and i.text == upto + ":" and chain == h: chain = None
                out.append(lines[k]); continue
            if i.kind == "dir":
                out.append(lines[k]); continue
            if addr >= page * 4096:
                page += 1
                if chain is not None:
                    n = cnt.get(chain, 0); cnt[chain] = n + 1
                    out.append("%s_hop%d_%d:" % (self.name, chain, n)); out.append("    s_cbranch_execz %s_hop%d_%d" % (self.name, chain, n + 1)); addr += 4
            out.append(lines[k]); addr += sizes[si]; si += 1
        text = "\n".join(out) + "\n"
        for h in range(len(self.hops)):
            n = cnt.get(h, 0)
            text = text.replace("%s_hop%d_%d\n" % (self.name, h, n), "%s_hopback%d\n" % (self.name, h))
        return text

def prologue(C):
    P = C.P
    P("s_cmp_ge_u32 s2, 256\ns_cbranch_scc1 %s_end" % C.name)
    P("s_load_dwordx2 s[4:5], s[0:1], 0\ns_load_dwordx2 s[8:9], s[0:1], 8\ns_load_dwordx2 s[12:13], s[0:1], 16\ns_load_dwordx2 s[16:17], s[0:1], 24")
    P("s_load_dwordx2 s[20:21], s[0:1], 40\ns_load_dwordx2 s[24:25], s[0:1], 48\ns_load_dwordx2 s[28:29], s[0:1], 56")
    P("s_load_dwordx2 s[32:33], s[0:1], 64\ns_load_dwordx2 s[40:41], s[0:1], 72\ns_load_dwordx2 s[36:37], s[0:1], 80")
    for b, n in ((sX, 2359296), (sWQKV, 1990656), (sWPHI, 20736), (sWO, 663552), (sWG, 5308416), (sWU, 5308416), (sWD, 5308416),
                 (sOUT, 2359296), (sWS, WS_SIZE), (sDBG, 256), (sWN, 5308416)):
        P("s_mov_b32 s%d, %d\ns_mov_b32 s%d, 0x20000" % (b + 2, n, b + 3))
    P("v_lshrrev_b32 v1, 6, v0\nv_and_b32 v0, 63, v0\nv_readfirstlane_b32 %s, v1" % S(sWAVE))
    P("s_and_b32 %s, s2, 7\ns_lshr_b32 %s, s2, 3" % (S(sXCD), S(sIDX)))
    P("s_lshl_b32 %s, %s, 10" % (S(sW1K), S(sWAVE)))
    P("s_lshl_b32 %s, s2, %d\ns_lshl_b32 s80, %s, %d\ns_add_u32 %s, %s, s80" % (S(sFLAG), 9 if GCFG['fl'] else 7, S(sWAVE), 7 if GCFG['fl'] else 2, S(sFLAG), S(sFLAG)))
    P("s_lshr_b32 %s, %s, 1\ns_and_b32 %s, %s, 1\ns_lshr_b32 %s, %s, 3\ns_and_b32 %s, %s, 7" %
      (S(sFQ), S(sXCD), S(sMH), S(sXCD), S(sRB), S(sIDX), S(sFS), S(sIDX)))

def allred(reg, tmp, op):
    return ["v_mov_b32 %s, %s" % (V(tmp), V(reg)), "v_permlane16_swap_b32 %s, %s" % (V(reg), V(tmp)), "%s %s, %s, %s" % (op, V(reg), V(reg), V(tmp)),
            "v_mov_b32 %s, %s" % (V(tmp), V(reg)), "v_permlane32_swap_b32 %s, %s" % (V(reg), V(tmp)), "%s %s, %s, %s" % (op, V(reg), V(reg), V(tmp))]

def mfma(d, a, b, c=None):
    return "v_mfma_f32_16x16x32_bf16 %s, %s, %s, %s" % (R(d, 4), R(a, 4), R(b, 4), "0" if c is None else R(c, 4))

class LdsAddr:
    def __init__(self, regs, base=0):
        self.regs, self.base = regs, base
    def rebase(self, lo, hi):
        if lo >= self.base and hi - self.base <= 65536: return []
        d = lo - self.base
        self.base = lo
        if d > 0: return ["v_add_u32 %s, %d, %s" % (V(r), d, V(r)) for r in self.regs]
        return ["v_subrev_u32 %s, %d, %s" % (V(r), -d, V(r)) for r in self.regs]
    def off(self, addr):
        o = addr - self.base
        assert 0 <= o < 65536, (addr, self.base)
        return o
```

```python
from common import *

vA16 = 0
vG, vU, vP = 32, 96, 160
vWF = 192
vOX = 208
vTRU = 216
vTRN = 220
vDM, vDL = 221, 222
vWD = 223
vL16, vL8 = 232, 233
vWE = 216
vR2 = 234
vFA, vFD = 238, 239
vT = 240
AG = 256

sA, sCOL, sNB, sNL, sWDB, sWD0, sHST, sHSN, sHLD, sMT2 = 76, 77, 78, 79, 80, 81, 82, 83, 84, 85
t0, t1, t2, t3 = 96, 97, 98, 99
sL2, sD2, sE1, sE2 = 92, 93, 94, 95
sKW = 89

CFG = dict(ustep=16, dstep=7, astep=10, hstep=8, hstep2=12, e4=100, fbl=36, fbc=72, fbp=36, w2step=10, e2=200, chain=1, fill=620, fstep=10, s5=0, late=0, lateat=310, abl='', hst='sc1', ost='', wdown=0, rsp1=1, rsp2=1, hlead=30, fine=0, pfB=[(2, 300), (30, 480), (31, 580)], w0=7, w1=8)
LDS_N = 120 * 1024
PAIRS = [(16, 17), (14, 15)] + [(2 * i, 2 * i + 1) for i in range(7)]
def areg(phi, m):
    return vA16 + (phi - 16) * 16 + 4 * m if phi >= 16 else AG + phi * 16 + 4 * m
GSLOT = [4, 3, 0, 2, 1, 0, 2, 1, 0, 2, 1, 0]
def slab_addr(sig):
    return GSLOT[sig // 6] * 24576 + (sig % 6) * 4096
def slab_phi(sig):
    r = sig % 18
    return PAIRS[r // 2][r % 2]
WD_SLAB = [[b * 1024 + 9216 * i for i in range(4)] for b in (120, 84, 48, 12)]
def wd_slab(stage, i): return WD_SLAB[stage % 4][i]
def kappa(p):
    st, i = p // 4, p % 4
    if st == 0: return 32 + i
    kw = (i & 1) + 4 * (i >> 1)
    return 8 * (st - 1) + kw if st <= 4 else 8 * (st - 5) + 2 + kw
def oreg(m, n):
    k = m * 9 + n
    if k < 8: return vA16 + 4 * k
    if k < 16: return vP + 4 * (k - 8)
    return vOX + 4 * (k - 16)

def ffn_setup(C, vlane):
    P = C.P
    L = V(vlane)
    a, b, c, d = V(vT), V(vT + 1), V(vT + 2), V(vT + 3)
    P("s_lshl_b32 %s, %s, 6\ns_lshl_b32 %s, %s, 4\ns_add_u32 %s, %s, %s" % (S(t0), S(sMH), S(t1), S(sRB), S(t0), S(t0), S(t1)))
    P("s_lshl_b32 %s, %s, 2\ns_add_u32 %s, %s, %s" % (S(t1), S(sWAVE), S(t1), S(t1), S(t0)))
    P("s_mul_i32 %s, %s, 18432\ns_add_u32 %s, %s, %d" % (S(sA), S(t1), S(sA), S(sA), WS_HC))
    P("s_mul_i32 %s, %s, 147456\ns_mul_i32 %s, %s, 36864\ns_add_u32 %s, %s, %s\ns_add_u32 %s, %s, %d" %
      (S(t1), S(t1), S(t2), S(sFQ), S(t1), S(t1), S(t2), S(t1), S(t1), WS_HH))
    P("s_lshl_b32 %s, %s, 12\ns_add_u32 %s, %s, %s" % (S(t3), S(sFS), S(sHST), S(t1), S(t3)))
    P("s_lshl_b32 %s, %s, 9\ns_add_u32 %s, %s, %s\ns_add_u32 %s, %s, 32768" % (S(t3), S(sFS), S(sHSN), S(t1), S(t3), S(sHSN), S(sHSN)))
    P("s_lshr_b32 %s, %s, 2\ns_lshl_b32 %s, %s, 3\ns_add_u32 %s, %s, %s\ns_lshl_b32 %s, %s, 1\ns_add_u32 %s, %s, %s" %
      (S(t1), S(sFS), S(t1), S(t1), S(t0), S(t0), S(t1), S(t1), S(sWAVE), S(sMT2), S(t0), S(t1)))
    P("s_mul_i32 %s, %s, 147456\ns_add_u32 %s, %s, %s\ns_add_u32 %s, %s, %d" % (S(sHLD), S(sMT2), S(sHLD), S(sHLD), S(t2), S(sHLD), S(sHLD), WS_HH))
    P("s_mul_i32 %s, %s, 2304\ns_lshl_b32 %s, %s, 8\ns_add_u32 %s, %s, %s" % (S(t0), S(sFQ), S(t1), S(sFS), S(sCOL), S(t0), S(t1)))
    P("s_lshl_b32 %s, %s, 3\ns_add_u32 %s, %s, %s\ns_mul_i32 %s, %s, 36864\ns_add_u32 %s, %s, %s\ns_add_u32 %s, %s, %d" %
      (S(t1), S(sFQ), S(t1), S(t1), S(sFS), S(t1), S(t1), S(t1), S(t1), S(sW1K), S(sNB), S(t1), WS_RN))
    P("s_lshr_b32 %s, %s, 1" % (S(t1), S(sWAVE)))
    P("s_mul_i32 %s, %s, %d\ns_and_b32 %s, %s, 3\ns_mul_i32 %s, %s, 147456\ns_lshl_b32 %s, %s, 8\ns_add_u32 %s, %s, %s" %
      (S(t0), S(sFQ), 1152 * 1152, S(t2), S(sFS), S(sNL), S(t2), S(t2), S(t2), S(t0), S(t0), S(t2)))
    P("s_mul_i32 %s, %s, 36864\ns_add_u32 %s, %s, %s\ns_add_u32 %s, %s, %d" % (S(t2), S(sFQ), S(sNL), S(sNL), S(t2), S(sNL), S(sNL), WS_RD))
    P("s_and_b32 %s, %s, 1\ns_lshl_b32 %s, %s, 2\ns_add_u32 %s, %s, %s\ns_mul_i32 %s, %s, 36864\ns_add_u32 %s, %s, %s" %
      (S(t2), S(sWAVE), S(t1), S(t1), S(sKW), S(t2), S(t1), S(t2), S(sKW), S(sWDB), S(t0), S(t2)))
    P("s_lshl_b32 %s, %s, 10\ns_add_u32 %s, %s, %s" % (S(sKW), S(sKW), S(sKW), S(sKW), S(sNL)))
    P("s_add_u32 %s, %s, 32\ns_mul_i32 %s, %s, 36864\ns_add_u32 %s, %s, %s" % (S(t2), S(sWAVE), S(t2), S(t2), S(sWD0), S(t0), S(t2)))
    P("s_movk_i32 %s, 9216" % S(t3))
    def grow(rho, out, tmp):
        P("v_bfe_u32 %s, %s, 2, 2\nv_mul_u32_u24 %s, 72, %s" % (out, rho, out, out))
        P("v_lshrrev_b32 %s, 4, %s\nv_lshl_add_u32 %s, %s, 2, %s" % (tmp, rho, out, tmp, out))
        P("v_and_b32 %s, 3, %s\nv_add3_u32 %s, %s, %s, 64" % (tmp, rho, out, out, tmp))
    P("s_lshl_b32 %s, %s, 3\nv_lshrrev_b32 %s, 3, %s\nv_add_u32 %s, %s, %s" % (S(t2), S(sWAVE), a, L, a, S(t2), a))
    P("v_and_b32 %s, 6, %s\nv_and_b32 %s, 7, %s\nv_xor_b32 %s, %s, %s\nv_lshlrev_b32 %s, 4, %s" % (b, a, c, L, b, b, c, b, b))
    P("v_mad_u32_u24 %s, %s, %s, %s" % (V(vDM), a, S(t3), b))
    grow(a, c, d)
    P("v_mad_u32_u24 %s, %s, %s, %s" % (V(vDL), c, S(t3), b))

def dma_unit(P, sig, tok=None):
    st, phi = sig // 18, slab_phi(sig)
    src = sWG if st % 2 == 0 else sWU
    col = 128 if st >= 2 else 0
    if phi < 16: row, vo = 72 * (phi >> 1) + 32 * (phi & 1), vDM
    else: row, vo = 288 * (phi - 16), vDL
    return ["s_add_u32 m0, %s, %d" % (S(sW1K), slab_addr(sig)), "s_add_u32 %s, %s, %d" % (S(t0), S(sCOL), row * 9216 + col),
            P.mk("buffer_load_dwordx4 %s, %s, %s offen lds" % (V(vo), srd(src), S(t0)), tok)]

def narrow_items(P, vl16):
    out = []
    for it in [8, 7] + list(range(7)):
        out.append(["s_add_u32 m0, %s, %d" % (S(sW1K), LDS_N + it * 4096), "s_add_u32 %s, %s, %d" % (S(t0), S(sNB), it * 4096),
                    "buffer_load_dwordx4 %s, %s, %s offen sc1 lds" % (V(vl16), srd(sWS), S(t0))])
    return out
def unit_items(P, lo, hi):
    return [dma_unit(P, sig) for sig in range(lo, hi)]

def hbm_prefetch(P, which, vl, ta, tb, tc, dst, mklane=False, s0=None, s1=None):
    L, a, b, c = V(vl), V(ta), V(tb), V(tc)
    if s0 is None: s0, s1 = S(t0), S(t1)
    om = "s_lshl_b32 %s, %s, 6\ns_lshl_b32 %s, %s, 1\ns_add_u32 %s, %s, %s\ns_add_u32 %s, %s, %s" % (s0, S(sWAVE), s1, S(sIDX), s0, s0, s1, s0, s0, S(sMH))
    it = [om]
    if mklane: it.append("v_lshrrev_b32 %s, 4, %s" % (L, V(vL16)))
    def ld(sr):
        x = P.mk("buffer_load_dword %s, %s, %s, %s offen" % (V(dst), a, srd(sr), s1)); x.dst = []
        return x
    if which in (1, 2):
        per, rows = (8, 8)
        nw = 576 // rows
        it.append("v_lshrrev_b32 %s, 3, %s\nv_and_b32 %s, 7, %s\nv_lshl_add_u32 %s, %s, 1, %d" % (a, L, b, L, b, b, which - 1))
        it.append("v_mul_u32_u24 %s, 9216, %s\nv_lshl_add_u32 %s, %s, 7, %s" % (a, a, a, b, a))
        it.append("s_cmp_ge_u32 %s, %d\ns_cselect_b32 %s, %s, %s\ns_cselect_b32 %s, %s, %s\ns_cselect_b32 %s, %d, 0\ns_sub_u32 %s, %s, %s" %
                  (s0, nw, S(sWN), S(sWU), S(sWG), S(sWN + 1), S(sWU + 1), S(sWG + 1), s1, nw, s0, s0, s1))
        it.append("s_mul_i32 %s, %s, %d\ns_mul_i32 %s, %s, 2304\ns_add_u32 %s, %s, %s" % (s0, s0, rows * 9216, s1, S(sFQ), s1, s1, s0))
        it.append(ld(sWN))
    else:
        if which == 4: it.append("s_xor_b32 %s, %s, 1" % (s0, s0))
        if which >= 30:
            k, n = which % 10, (which // 10) - 1
            per = -(-41 // n)
            it.append("v_min_u32 %s, %d, %s\nv_add_u32 %s, %d, %s\nv_min_u32 %s, 40, %s\nv_lshlrev_b32 %s, 7, %s" % (a, per - 1, L, a, k * per, a, a, a, a, a))
        else:
            it.append("v_min_u32 %s, 40, %s\nv_lshlrev_b32 %s, 7, %s" % (a, L, a, a))
        it.append("s_mul_i32 %s, %s, %d\ns_mul_i32 %s, %s, %d\ns_add_u32 %s, %s, %s" % (s0, s0, 41 * 128, s1, S(sFQ), 1152 * 1152, s1, s1, s0))
        it.append(ld(sWD))
    return it

def part_prefill(P, vq, vl16, vl8, t0, t1):
    it = ["s_lshl_b32 %s, s2, 4" % S(t0), "s_add_u32 %s, %s, %s" % (S(t0), S(t0), S(sWAVE)), "s_mul_i32 %s, %s, 2560" % (S(t0), S(t0)),
          "s_add_u32 %s, %s, %d" % (S(t0), S(t0), WS_PART)]
    for i in range(1, 4):
        it += ["s_add_u32 %s, %s, %d" % (S(t1), S(sFQ), i), "s_and_b32 %s, %s, 3" % (S(t1), S(t1)), "s_mul_i32 %s, %s, %d" % (S(t1), S(t1), 4 * 2560),
               "s_add_u32 %s, %s, %s" % (S(t1), S(t1), S(t0)),
               "buffer_store_dwordx4 %s, %s, %s, %s offen sc1" % (V(vq, 4), V(vl16), srd(sWS), S(t1)),
               "buffer_store_dwordx4 %s, %s, %s, %s offen offset:1024 sc1" % (V(vq, 4), V(vl16), srd(sWS), S(t1)),
               "buffer_store_dwordx2 %s, %s, %s, %s offen offset:2048 sc1" % (V(vq, 2), V(vl8), srd(sWS), S(t1))]
    return it

def ffn_addr2(C, vlane):
    P = C.P
    L = V(vlane)
    a, b, c, d = V(vT), V(vT + 1), V(vT + 2), V(vT + 3)
    P("v_lshlrev_b32 %s, 4, %s\nv_lshlrev_b32 %s, 3, %s" % (V(vL16), L, V(vL8), L))
    P("v_lshrrev_b32 %s, 2, %s\nv_and_b32 %s, 3, %s" % (a, L, b, L))
    P("v_add_u32 %s, %d, %s" % (V(vTRN), LDS_N, V(vL16)))
    P("v_bfe_u32 %s, %s, 1, 2" % (c, a))
    P("v_lshlrev_b32 %s, 7, %s\nv_lshl_add_u32 %s, %s, 3, %s" % (d, a, d, b, d))
    for T in range(4):
        P("v_xor_b32 %s, %d, %s\nv_lshl_add_u32 %s, %s, 5, %s" % (V(vTRU + T), T, c, V(vTRU + T), V(vTRU + T), d))
    P("v_bfe_u32 %s, %s, 2, 2\nv_mul_u32_u24 %s, 1152, %s\nv_lshrrev_b32 %s, 4, %s\nv_lshl_add_u32 %s, %s, 6, %s" % (a, L, a, a, c, L, a, c, a))
    P("v_lshl_add_u32 %s, %s, 4, %s\nv_xor_b32 %s, 32, %s" % (c, b, a, d, c))
    for q in range(8):
        P("v_add_u32 %s, %d, %s" % (V(vWD + q), q * 4608 - 1024 * (q % 4), d if q & 1 else c))

def ffn_main(C, vlane_src=None, s3_addr_ready=True):
    P = C.P
    a, b, c, d = V(vT), V(vT + 1), V(vT + 2), V(vT + 3)
    P.add(C.load_flags(vFD, vFA))
    P("s_waitcnt vmcnt(0)")
    for x in C.check_flags(vFD, vFA, 3, vT + 15): P.add(x)
    for x in C.stamp("s3done"): P.add(x)
    def aload(phi, m):
        return ["s_add_u32 %s, %s, %d" % (S(t1), S(sA), m * 18432 + phi * 1024),
                "buffer_load_dwordx4 %s, %s, %s, %s offen sc1" % (R(areg(phi, m), 4), V(vL16), srd(sWS), S(t1)),
                "buffer_load_dwordx4 %s, %s, %s, %s offen offset:1024 sc1" % (R(areg(phi + 1, m), 4), V(vL16), srd(sWS), S(t1))]
    for pr in PAIRS[:2]:
        for m in range(4):
            for x in aload(pr[0], m): P.add(x)
    it = ["v_lshrrev_b32 %s, 4, %s" % (V(vFA), V(vL16)), "v_and_b32 %s, 7, %s" % (V(vFA), V(vFA)), "v_lshlrev_b32 %s, 10, %s" % (V(vFA), V(vFA)),
          "s_lshl_b32 %s, %s, 13" % (S(t1), S(sRB)), "s_lshl_b32 %s, %s, 7" % (S(sL2), S(sXCD)), "s_add_u32 %s, %s, %s" % (S(t1), S(t1), S(sL2)),
          "s_lshr_b32 %s, %s, 2" % (S(sL2), S(sFS)), "s_lshl_b32 %s, %s, 3" % (S(sL2), S(sL2)), "s_add_u32 %s, %s, %s" % (S(t1), S(t1), S(sL2)),
          "s_lshr_b32 %s, %s, 1" % (S(sL2), S(sWAVE)), "s_lshl_b32 %s, %s, 2" % (S(sL2), S(sL2)), "s_add_u32 %s, %s, %s" % (S(t1), S(t1), S(sL2)),
          "v_add_u32 %s, %s, %s" % (V(vFA), S(t1), V(vFA))] + flagfix(V(vFA), V(vFD))
    for x in it: P.add(x)
    P("s_barrier")
    main, blocks = [], []
    for st in range(4):
        tiles = [0, 1, 2, 3] + (["ng", "nu"] if st == 0 else [])
        for pi, pr in enumerate(PAIRS):
            for T in tiles:
                bi = len(blocks)
                wf = vWF + 8 * (bi % 3)
                blocks.append(dict(start=len(main), g=1, st=st, pi=pi, T=T, wf=wf))
                for m in range(4):
                    if T == "ng": acc = vP + 4 * m
                    elif T == "nu": acc = vP + 16 + 4 * m
                    else: acc = (vG if st % 2 == 0 else vU) + 16 * T + 4 * m
                    order = (0, 1) if (m % 2 == 0 or not CFG['chain']) else (1, 0)
                    for q, i in enumerate(order):
                        x = mfma(acc, wf + 4 * i, areg(pr[i], m), None if (pi == 0 and q == 0) else acc)
                        if m == 0 and q == 0:
                            w = list(range(wf, wf + 8))
                            if st == 0 and T == 0 and pi > 0:
                                for mm in range(4): w += [areg(pr[0], mm), areg(pr[1], mm)]
                            x = [WaitRegs(w), x]
                        main.append(x)
    nb1 = len(blocks)
    def hreg(p, m): return AG + 8 * (p % 28) + 4 * m
    for st in range(9):
        for pp in range(2):
            for n in range(9):
                bi = len(blocks)
                wf = AG + 224 + 8 * ((bi - nb1) % 4)
                blocks.append(dict(start=len(main), g=2, st=st, pp=pp, n=n, wf=wf))
                for m in range(2):
                    order = (0, 1) if (m % 2 == 0 or not CFG['chain']) else (1, 0)
                    for q, i in enumerate(order):
                        p = 4 * st + 2 * pp + i
                        x = mfma(oreg(m, n), wf + 4 * i, hreg(p, m), None if (st == 0 and pp == 0 and q == 0) else oreg(m, n))
                        if m == 0 and q == 0:
                            w = list(range(wf, wf + 8))
                            if n == 0:
                                for mm in range(2):
                                    for ii in range(2): w += list(range(hreg(p + ii, mm), hreg(p + ii, mm) + 4))
                            x = [WaitRegs(w), x]
                        main.append(x)
    NM = len(main)
    start = [bl["start"] for bl in blocks] + [NM]
    stage1 = [min(bl["start"] for bl in blocks if bl["g"] == 1 and bl["st"] == s_) for s_ in range(4)] + [start[nb1]]
    stage2 = [min(bl["start"] for bl in blocks if bl["g"] == 2 and bl["st"] == s_) for s_ in range(9)] + [NM]
    def pair_end(st, pi):
        return max(start[i + 1] for i, bl in enumerate(blocks) if bl["g"] == 1 and bl["st"] == st and bl["pi"] == pi) - 1

    rd, dm = [], []
    au = LdsAddr([vTRU + T for T in range(4)], 0)
    aw = LdsAddr([vTRN, vWE, vWE + 1], 0)
    toks = {}
    def wd_dma(stage, nb, step):
        tok = P.newtok(); toks[("d", stage)] = tok
        it = []
        if stage == 0:
            so = S(sWD0)
            it.append("s_add_u32 %s, %s, %s" % (S(t3), S(sNL), S(sW1K))); it.append("s_add_u32 %s, %s, 32768" % (S(t3), S(t3)))
        else:
            k = 8 * (stage - 1) if stage <= 4 else 8 * (stage - 5) + 2
            it.append("s_add_u32 %s, %s, %d" % (S(t2), S(sWDB), k * 36864)); so = S(t2)
            it.append("s_add_u32 %s, %s, %d" % (S(t3), S(sKW), k * 1024))
        base = WD_SLAB[stage % 4][0]
        for q in range(9):
            if q % 4 == 0: it.append("s_add_u32 m0, %s, %d" % (S(sD2), base + 1024 * q))
            if q < 8: it.append("buffer_load_dwordx4 %s, %s, %s offen offset:%d lds" % (V(vWD + q), srd(sWD), so, 1024 * (q % 4)))
            else: it.append(P.mk("buffer_load_dwordx4 %s, %s, %s offen sc1 lds" % (V(vL16), srd(sWS), S(t3)), tok))
        dm.extend(paced(it, nb + 1, step)[0])
    P("s_mul_i32 %s, %s, 9216" % (S(sD2), S(sWAVE)))
    if CFG["late"]:
        lo = 30 - CFG["late"]
        its = []
        for s2 in range(lo, 30):
            tok = None
            if s2 % 6 == 5:
                tok = P.newtok(); toks[("u", s2 // 6)] = tok
            its.append(dma_unit(P, s2, tok))
        dm.extend(paced(its, CFG["lateat"], 5, 400)[0])
    prev_nb = -1
    for bi, bl in enumerate(blocks):
        lead = 2 if bl["g"] == 1 else 3
        nb = start[bi - lead] - 1 if bi >= lead else -1
        dl = start[bi - lead + 1] if bi >= lead else 0
        if bl["g"] == 1:
            st, pi, T = bl["st"], bl["pi"], bl["T"]
            sig = st * 18 + 2 * pi
            if T == 0 and sig % 6 == 0 and sig >= 18:
                g = sig // 6
                it = []
                if ("u", g) in toks: it.append(WaitTok(toks[("u", g)]))
                it += ["s_waitcnt lgkmcnt(0)", "s_barrier"]
                rd.append((nb, nb + 1, it))
                if g + 2 < 12:
                    tok = P.newtok(); toks[("u", g + 2)] = tok
                    dm.extend(paced([dma_unit(P, s2, tok if s2 % 6 == 5 else None) for s2 in range(6 * (g + 2), 6 * (g + 3))], nb + 3, CFG["ustep"])[0])
                if g == CFG['w0']: wd_dma(0, nb + 1 + 6 * CFG['ustep'], 5)
                if g == CFG['w1']: wd_dma(1, nb + 1 + 6 * CFG['ustep'], 5)
                if g == 10: wd_dma(2, nb + 1, CFG['w2step'])
                nb += 1
            items = []
            for i in range(2):
                if T in ("ng", "nu"):
                    o = PAIRS[pi][i] * 2048 + (1024 if T == "nu" else 0)
                    items += ["ds_read_b128 %s, %s offset:%d" % (R(bl["wf"] + 4 * i, 4), V(vTRN), o)]
                else:
                    ad = slab_addr(sig + i)
                    gbase = slab_addr(sig - sig % 6)
                    items += au.rebase(gbase, gbase + 24576)
                    items += ["ds_read_b64_tr_b16 %s, %s offset:%d" % (R(bl["wf"] + 4 * i + 2 * h, 2), V(vTRU + T), au.off(ad + 2048 * h)) for h in range(2)]
        else:
            st, pp, n = bl["st"], bl["pp"], bl["n"]
            if bi == nb1:
                nb = start[bi - 2] - 1; dl = start[bi - 1]
            if bi == nb1 + 1:
                nb = start[bi - 3] - 1; dl = start[bi - 1]
            if bi == nb1 + 2:
                dl = start[bi - 1]
            if pp == 0 and n == 0:
                it = [WaitTok(toks[("d", st)]), "s_waitcnt lgkmcnt(0)", "s_barrier"]
                rd.append((nb, nb + 1, it))
                if st == 0:
                    x0, x1 = V(vWE), V(vWE + 1)
                    for x in ["v_and_b32 %s, 0xc0, %s" % (x0, V(vL16)), "v_and_b32 %s, 24, %s" % (x1, V(vL8)), "v_add_u32 %s, %s, %s" % (x0, x0, x1),
                              "v_lshrrev_b32 %s, 8, %s" % (x1, V(vL16)), "v_lshl_add_u32 %s, %s, 10, %s" % (x0, x1, x0), "v_and_b32 %s, 1, %s" % (x1, x1),
                              "v_lshl_add_u32 %s, %s, 5, %s" % (x0, x1, x0), "v_xor_b32 %s, 32, %s" % (x1, x0), "v_mov_b32 %s, %s" % (V(vTRN), V(vL16))]:
                        rd.append((nb + 1, dl, x))
                if st + 3 < 9: wd_dma(st + 3, nb + 1, CFG['dstep'])
                nb += 1
            items = []
            for i in range(2):
                ad = wd_slab(st, 2 * pp + i)
                lo = wd_slab(st, 2 * pp)
                items += aw.rebase(lo, lo + 2 * 9216)
                if n < 8: items += ["ds_read_b64_tr_b16 %s, %s offset:%d" % (R(bl["wf"] + 4 * i + 2 * h, 2), V(vWE + (n & 1)), aw.off(ad + 4096 * h + 256 * (n >> 1))) for h in range(2)]
                else: items += ["ds_read_b128 %s, %s offset:%d" % (R(bl["wf"] + 4 * i, 4), V(vTRN), aw.off(ad + 8192))]
        nb = max(nb, prev_nb); prev_nb = nb
        dl = max(dl, nb + 1)
        k = 0
        for x in items:
            rd.append((min(nb + k * (CFG["rsp1"] if bl["g"] == 1 else CFG["rsp2"]), dl - 1) if nb >= 0 else nb, dl, x))
            if x.startswith("ds_"): k += 1

    ld = []
    apos = 0
    for pi in range(2, 9):
        use = [bl["start"] for bl in blocks if bl["g"] == 1 and bl["st"] == 0 and bl["pi"] == pi][0]
        x, apos = paced([aload(PAIRS[pi][0], m) for m in range(4)], apos, CFG['astep'] / 2, use)
        ld += x
        if pi == 8:
            it = ["v_lshrrev_b32 %s, 2, %s" % (V(vT + 8), V(vL16)), "v_and_b32 %s, 0x3c, %s" % (V(vT + 8), V(vT + 8)),
                  "v_lshrrev_b32 %s, 8, %s" % (V(vT + 9), V(vL16)), "v_lshl_add_u32 %s, %s, 9, %s" % (V(vT + 8), V(vT + 9), V(vT + 8)),
                  "s_sub_u32 %s, %s, %d" % (S(t1), S(sA), WS_HC), "s_mul_hi_u32 %s, %s, %d" % (S(t1), S(t1), 477218589),
                  "s_add_u32 %s, %s, %d" % (S(t1), S(t1), WS_SSQ)]
            for m in range(4):
                if m == 2: it.append("s_add_u32 %s, %s, 4096" % (S(t1), S(t1)))
                for h in range(2):
                    it.append("buffer_load_dword %s, %s, %s, %s offen offset:%d sc1" % (V(vT + 2 * m + h), V(vT + 8), srd(sWS), S(t1), 2048 * (m % 2) + 256 * h))
            x, apos = paced(it, apos, 3)
            ld += x
    for which, at in CFG['pfB']:
        assert at <= 400 or at >= 436
        rg = (vT + 13, vT + 10, vT + 11, vT + 12) if at <= 400 else (vT + 7, vT + 4, vT + 3, vT + 2)
        ld.append((at, 420 if at <= 400 else INF, hbm_prefetch(P, which, rg[0], rg[1], rg[2], rg[3], vFD, True, S(sL2), S(t1))))
    if CFG["s5"]:
        it = ["v_mov_b32 %s, -1" % V(vT + i) for i in range(4)] + part_prefill(P, vT, vL16, vL8, sL2, t1)
        tokF = P.newtok(); it[-1] = P.mk(it[-1], tokF)
        ld += paced(it, CFG["fill"], CFG["fstep"], stage1[3] - 40)[0]
    s4 = stage1[3]
    def hload(p):
        k = kappa(p); it = []
        if p < 4:
            for m in range(2):
                it.append("s_add_u32 %s, %s, %d" % (S(t1), S(sHLD), m * 147456 + k * 1024))
                for h in range(2):
                    it.append("buffer_load_dwordx2 %s, %s, %s, %s offen offset:%d sc1" % (R(hreg(p, m) + 2 * h, 2), V(vL8), srd(sWS), S(t1), 512 * h))
            return [it[:3], it[3:]]
        assert p % 2 == 0 and kappa(p + 1) == k + 1
        out = []
        for m in range(2):
            out.append(["s_add_u32 %s, %s, %d" % (S(t1), S(sHLD), m * 147456 + k * 1024),
                        "buffer_load_dwordx4 %s, %s, %s, %s offen sc1" % (R(hreg(p, m), 4), V(vL16), srd(sWS), S(t1)),
                        "buffer_load_dwordx4 %s, %s, %s, %s offen offset:1024 sc1" % (R(hreg(p + 1, m), 4), V(vL16), srd(sWS), S(t1))])
        return out
    def use2(p): return stage2[p // 4] + 36 * ((p % 4) // 2)
    ld.append((s4 + 40, INF, C.load_flags(vFD, vFA)))
    ld.append((pair_end(3, 2), INF, C.check_flags(vFD, vFA, 4) + ([] if CFG["fine"] else C.stamp("s4a"))))
    hn = 0
    for p in list(range(4)) + list(range(4, 20, 2)):
        dead = pair_end(3, 2 + (p + 1) // 4)
        x, hn = paced(hload(p), max(hn, dead), CFG['hstep'] / 2, use2(p) - CFG['hlead'])
        ld += x
    FB_LOAD, FB_CHECK = stage2[3] + CFG['fbl'], stage2[3] + CFG['fbc']
    ld.append((FB_LOAD, INF, C.load_flags(vFD, vFA)))
    ld.append((FB_CHECK, INF, C.check_flags(vFD, vFA, 5) + ([] if CFG["fine"] else C.stamp("s4b"))))
    for p in range(20, 36, 2):
        x, hn = paced(hload(p), max(hn, FB_CHECK + 1), CFG['hstep2'] / 2, use2(p) - CFG['hlead'])
        ld += x

    ep = []
    nb = pair_end(0, 7)
    for m in range(4):
        r = vR2 + m
        it = ["v_add_f32 %s, %s, %s" % (V(r), V(vT + 2 * m), V(vT + 2 * m + 1))] + allred(r, vT + 9, "v_add_f32")
        it += ["v_mov_b32 %s, 0x3727c5ac" % V(vT + 9), "v_fmac_f32 %s, 0x3ae38e39, %s" % (V(vT + 9), V(r)), "v_rcp_f32 %s, %s" % (V(r), V(vT + 9))]
        for x in it: ep.append((nb, stage1[1], x))
    stq = [vT + 8, vT + 12]
    nb = stage1[1] + 3
    for m in range(4):
        g, u, q = vP + 4 * m, vP + 16 + 4 * m, stq[m % 2]
        for j in range(4):
            ep.append((nb, INF, "v_max_f32 %s, 0, %s" % (V(g + j), V(g + j))))
            ep.append((nb, INF, "v_mul_f32 %s, %s, %s" % (V(u + j), V(vR2 + m), V(u + j))))
            ep.append((nb, INF, "v_mul_f32 %s, %s, %s" % (V(g + j), V(g + j), V(u + j))))
        for h in range(2): ep.append((nb, INF, "v_cvt_pk_bf16_f32 %s, %s, %s" % (V(q + h), V(g + 2 * h), V(g + 2 * h + 1))))
        ep.append((nb, INF, "s_add_u32 %s, %s, %d" % (S(sE1), S(sHSN), m * 147456)))
        ep.append((nb, INF, "buffer_store_dwordx2 %s, %s, %s, %s offen %s" % (V(q, 2), V(vL8), srd(sWS), S(sE1), CFG["hst"])))
    for T in range(4):
        for m in range(4):
            g, pk = vG + 16 * T + 4 * m, vP + 2 * (4 * T + m)
            for j in range(4): ep.append((nb, stage1[2], "v_mul_f32 %s, %s, %s" % (V(g + j), V(vR2 + m), V(g + j))))
            for h in range(2): ep.append((nb, stage1[2], "v_cvt_pk_bf16_f32 %s, %s, %s" % (V(pk + h), V(g + 2 * h), V(g + 2 * h + 1))))
            for h in range(2): ep.append((nb, stage1[2], "v_pk_max_i16 %s, %s, 0" % (V(pk + h), V(pk + h))))
    nb = stage1[2] + 3
    tokA = P.newtok()
    k = 0
    for m in range(4):
        for i in range(2):
            q = stq[k % 2]; k += 1
            for tt in range(2):
                T = 2 * i + tt
                u, pk = vU + 16 * T + 4 * m, vP + 2 * (4 * T + m)
                for h in range(2):
                    ep.append((nb, stage1[3], "v_lshlrev_b32 %s, 16, %s" % (V(vT + 5), V(pk + h))))
                    ep.append((nb, stage1[3], "v_and_b32 %s, 0xffff0000, %s" % (V(vT + 6), V(pk + h))))
                    ep.append((nb, stage1[3], "v_mul_f32 %s, %s, %s" % (V(vT + 5), V(vT + 5), V(u + 2 * h))))
                    ep.append((nb, stage1[3], "v_mul_f32 %s, %s, %s" % (V(vT + 6), V(vT + 6), V(u + 2 * h + 1))))
                    ep.append((nb, stage1[3], "v_cvt_pk_bf16_f32 %s, %s, %s" % (V(q + 2 * tt + h), V(vT + 5), V(vT + 6))))
            it = []
            if i == 0: it.append("s_add_u32 %s, %s, %d" % (S(sE2), S(sHST), m * 147456))
            it.append(P.mk("buffer_store_dwordx4 %s, %s, %s, %s offen offset:%d %s" % (V(q, 4), V(vL16), srd(sWS), S(sE2), 1024 * i, CFG["hst"]), tokA if (m, i) == (3, 1) else None))
            for x in it: ep.append((nb, stage1[3], x))
    ep.append((stage1[3] - 24, stage1[3] + 8, [WaitTok(tokA)] + ([WaitTok(tokF)] if CFG['s5'] else []) + C.publish(vT + 5, 4)))
    nb = stage1[3] + 9
    for T in range(4):
        for m in range(4):
            g = vG + 16 * T + 4 * m
            for j in range(4):
                ep.append((nb, stage1[4], "v_mul_f32 %s, %s, %s" % (V(g + j), V(vR2 + m), V(g + j))))
                ep.append((nb, stage1[4], "v_max_f32 %s, 0, %s" % (V(g + j), V(g + j))))
    nb = stage1[4] + 3
    tokB = P.newtok()
    k = 0
    for m in range(4):
        for i in range(2):
            q = stq[k % 2]; k += 1
            for tt in range(2):
                T = 2 * i + tt
                u, g = vU + 16 * T + 4 * m, vG + 16 * T + 4 * m
                for j in range(4): ep.append((nb, INF, "v_mul_f32 %s, %s, %s" % (V(u + j), V(u + j), V(g + j))))
                for h in range(2): ep.append((nb, INF, "v_cvt_pk_bf16_f32 %s, %s, %s" % (V(q + 2 * tt + h), V(u + 2 * h), V(u + 2 * h + 1))))
            it = []
            if i == 0: it.append("s_add_u32 %s, %s, %d" % (S(sE2), S(sHST), m * 147456 + 2048))
            it.append(P.mk("buffer_store_dwordx4 %s, %s, %s, %s offen offset:%d %s" % (V(q, 4), V(vL16), srd(sWS), S(sE2), 1024 * i, CFG["hst"]), tokB if (m, i) == (3, 1) else None))
            for x in it: ep.append((nb, INF, x))
    ep.append((stage2[2] + CFG['fbp'], FB_LOAD, [WaitTok(tokB)] + C.publish(vT + 5, 5)))
    it = ["s_lshr_b32 %s, %s, 1" % (S(sE1), S(sFQ)), "s_add_u32 %s, %s, %s" % (S(sMT2), S(sMT2), S(sE1)),
          "s_mul_i32 %s, %s, 18432" % (S(sE1), S(sMT2)), "s_add_u32 %s, %s, %d" % (S(sE1), S(sE1), WS_H),
          "s_and_b32 %s, %s, 3" % (S(sE2), S(sFS)), "s_lshl_b32 %s, %s, 9" % (S(sE2), S(sE2)), "s_add_u32 %s, %s, %s" % (S(sA), S(sE1), S(sE2)),
          "s_add_u32 %s, %s, 16384" % (S(sA), S(sA)), "s_lshl_b32 %s, %s, 3" % (S(sE2), S(sE2)), "s_add_u32 %s, %s, %s" % (S(sE1), S(sE1), S(sE2)),
          "s_and_b32 %s, %s, 1" % (S(sE2), S(sFQ)), "s_mul_i32 %s, %s, 2560" % (S(sE2), S(sE2)), "s_add_u32 %s, %s, %s" % (S(sE1), S(sE1), S(sE2))]
    it += ["buffer_load_dwordx2 %s, %s, %s, %s offen offset:%d sc1" % (V(vG + 2 * n, 2), V(vL8), srd(sWS), S(sE1), 512 * n) for n in range(5)]
    it += ["buffer_load_dwordx2 %s, %s, %s, %s offen sc1" % (V(vG + 10, 2), V(vL8), srd(sWS), S(sA))]
    ep += paced(it, stage2[6] + 30, 5)[0]
    it = ["v_lshrrev_b32 %s, 4, %s" % (V(vFA), V(vL16)), "v_and_b32 %s, 3, %s" % (V(vFA), V(vFA)), "v_lshlrev_b32 %s, 8, %s" % (V(vFA), V(vFA)),
          "s_lshl_b32 %s, %s, 10" % (S(sE1), S(sIDX)), "s_lshl_b32 %s, %s, 7" % (S(sE2), S(sMH)), "s_add_u32 %s, %s, %s" % (S(sE1), S(sE1), S(sE2)),
          "s_lshl_b32 %s, %s, 2" % (S(sE2), S(sWAVE)), "s_add_u32 %s, %s, %s" % (S(sE1), S(sE1), S(sE2)), "v_add_u32 %s, %s, %s" % (V(vFA), S(sE1), V(vFA))] + flagfix(V(vFA), V(vFD))
    for x in it: ep.append((stage2[7] + 10, INF, x))
    if CFG["s5"]:
        ep.append((stage2[7] + 40, INF, C.load_flags(vFD, vFA)))
        ep.append((stage2[8] + 30, INF, C.check_flags(vFD, vFA, 4)))
    def respread(lo, hi):
        idx = [k for k, e in enumerate(ep) if e[0] == lo]
        for c_, k in enumerate(idx): ep[k] = (lo + (hi - lo) * c_ // len(idx), ep[k][1], ep[k][2])
    respread(pair_end(0, 7), stage1[1] - 2)
    respread(stage1[1] + 3, stage1[2] - 8)
    respread(stage1[2] + 3, stage1[2] + CFG['e2'])
    respread(stage1[3] + 9, stage1[4] - 8)
    respread(stage1[4] + 3, stage1[4] + CFG["e4"])
    if C.timing:
        for s_ in range(1, 5): ep.append((stage1[s_], INF, C.stamp("g1s%d" % s_)))
        if CFG["fine"] == 1:
            for s_ in range(1, 9): ep.append((stage2[s_], INF, C.stamp("b%d" % s_)))
        ep.sort(key=lambda x: x[0])

    def per(i):
        k = 1 if (i + 1 < NM and isinstance(main[i + 1], list)) else 2
        if stage1[4] <= i < stage1[4] + CFG["e4"]: k += 1
        return k
    def txt(x): return x.text if isinstance(x, Ins) else x if isinstance(x, str) else ""
    if "h" in CFG["abl"]: ld = [e for e in ld if not (e[0] >= s4 + 60 and txt(e[2]).startswith("buffer_load_dwordx"))]
    if "a" in CFG["abl"]: ld = [e for e in ld if not (e[0] < s4 and txt(e[2]).startswith("buffer_load_dwordx4"))]
    if "w" in CFG["abl"]: dm = [e for e in dm if not ("s[28:31]" in txt(e[2]) and not (isinstance(e[2], Ins) and e[2].tok))]
    if "u" in CFG["abl"]: dm = [e for e in dm if not (("s[20:23]" in txt(e[2]) or "s[24:27]" in txt(e[2])) and not (isinstance(e[2], Ins) and e[2].tok))]
    if "e" in CFG["abl"]: ep = [e for e in ep if not txt(e[2]).startswith("v_")]
    if "s" in CFG["abl"]: ep = [e for e in ep if not (txt(e[2]).startswith("buffer_store") and not (isinstance(e[2], Ins) and e[2].tok))]
    if "b" in CFG["abl"]: rd = [(e[0], e[1], [y for y in e[2] if y != "s_barrier"] if isinstance(e[2], list) else e[2]) for e in rd]
    if "r" in CFG["abl"]: rd = [e for e in rd if not txt(e[2]).startswith("ds_read")]
    multi_interleave(P, main, [rd, ld, dm, ep], per)
    for x in C.stamp("g2done"): P.add(x)
    ffn_final(C)

def ffn_final(C):
    P = C.P
    labs = [P.newlabel(C.name + "_fin") for _ in range(4)]
    done = P.newlabel(C.name + "_findone")
    P("s_lshl_b32 %s, %s, 3\ns_add_u32 %s, %s, %s\ns_lshl_b32 %s, %s, 4\ns_add_u32 %s, %s, %s" %
      (S(t0), S(sIDX), S(t0), S(t0), S(sMH), S(t0), S(t0), S(t0), S(t0), S(sWAVE)))
    P("s_mul_i32 %s, %s, 2560\ns_add_u32 %s, %s, %d" % (S(t0), S(t0), S(t0), S(t0), WS_PART))
    P("v_lshrrev_b32 %s, 4, %s\nv_and_b32 %s, 15, %s\nv_mul_u32_u24 %s, 1152, %s" % (V(vT), V(vL16), V(vT + 1), V(vT), V(vT + 1), V(vT + 1)))
    P("v_lshrrev_b32 %s, 4, %s\nv_lshl_add_u32 %s, %s, 3, %s" % (V(vT), V(vT), V(vT), V(vT), V(vT + 1)))
    P("s_mul_i32 %s, %s, 18432\ns_and_b32 %s, %s, 3\ns_lshl_b32 %s, %s, 5\ns_add_u32 %s, %s, %s" % (S(t2), S(sMT2), S(t3), S(sFS), S(t3), S(t3), S(sA), S(t2), S(t3)))
    P("s_lshl_b32 %s, %s, 3\ns_add_u32 %s, %s, %s" % (S(t3), S(t3), S(t2), S(t2), S(t3)))
    P("s_waitcnt vmcnt(0) lgkmcnt(0)\ns_nop 7")
    for fq in range(1, 4):
        P("s_cmp_eq_u32 %s, %d\ns_cbranch_scc1 %s" % (S(sFQ), fq, labs[fq]))
    def part(f): return [(f >> 1, n) for n in (range(5, 9) if f & 1 else range(5))]
    fst = [C.stamp(n) if CFG["fine"] == 2 else [] for n in ("f0", "f1", "f2", "f3", "f4")] if not CFG["s5"] else [C.stamp(n) if (CFG["fine"] == 2 and n) else [] for n in ("f0", "f1", "", "f3", "")]
    for fq in range(4):
        P.label(labs[fq])
        for x in fst[0]: P.add(x)
        st = vU
        for d in range(4):
            if d == fq: continue
            tl = part(d); regs = []
            for i, (m, n) in enumerate(tl):
                for h in range(2):
                    P("v_cvt_pk_bf16_f32 %s, %s, %s" % (V(st + 2 * i + h), V(oreg(m, n) + 2 * h), V(oreg(m, n) + 2 * h + 1)))
            P("s_add_u32 %s, %s, %d" % (S(t1), S(t0), (d * 2 * 16 + fq * 4) * 2560))
            P("buffer_store_dwordx4 %s, %s, %s, %s offen sc1" % (V(st, 4), V(vL16), srd(sWS), S(t1)))
            P("buffer_store_dwordx4 %s, %s, %s, %s offen offset:1024 sc1" % (V(st + 4, 4), V(vL16), srd(sWS), S(t1)))
            if len(tl) == 5:
                P("buffer_store_dwordx2 %s, %s, %s, %s offen offset:2048 sc1" % (V(st + 8, 2), V(vL8), srd(sWS), S(t1)))
            st += 12
        tl = part(fq)
        for i, (m, n) in enumerate(tl):
            o = oreg(m, n)
            for h in range(2):
                P("v_lshlrev_b32 %s, 16, %s\nv_and_b32 %s, 0xffff0000, %s" % (V(vT + 2), V(vG + (10 if n == 8 else 2 * i) + h), V(vT + 3), V(vG + (10 if n == 8 else 2 * i) + h)))
                P("v_pk_add_f32 %s, %s, %s" % (V(o + 2 * h, 2), V(o + 2 * h, 2), V(vT + 2, 2)))
        if CFG["s5"]:
            for x in fst[1]: P.add(x)
            loop, ok = P.newlabel(C.name + "_s5"), P.newlabel(C.name + "_s5ok")
            P("s_mov_b32 %s, 0" % S(sSPIN))
            P.label(loop)
            st = vU + 40; regs = []
            for d in range(4):
                if d == fq: continue
                P("s_add_u32 %s, %s, %d" % (S(t1), S(t0), (fq * 2 * 16 + d * 4) * 2560))
                P("buffer_load_dwordx4 %s, %s, %s, %s offen sc1" % (V(st, 4), V(vL16), srd(sWS), S(t1)))
                P("buffer_load_dwordx4 %s, %s, %s, %s offen offset:1024 sc1" % (V(st + 4, 4), V(vL16), srd(sWS), S(t1)))
                if len(tl) == 5:
                    P("buffer_load_dwordx2 %s, %s, %s, %s offen offset:2048 sc1" % (V(st + 8, 2), V(vL8), srd(sWS), S(t1)))
                regs += list(range(st, st + 2 * len(tl)))
                st = {vU + 40: vU + 52, vU + 52: vG + 12}[st] if st != vG + 12 else st
            P("s_add_u32 %s, %s, 1" % (S(sSPIN), S(sSPIN)))
            mxr = V(vT + 4)
            P("v_max_u32 %s, %s, %s" % (mxr, V(regs[0]), V(regs[1])))
            for k in range(2, len(regs), 2): P("v_max3_u32 %s, %s, %s, %s" % (mxr, mxr, V(regs[k]), V(regs[k + 1])))
            P("v_cmp_eq_u32 vcc, -1, %s\ns_cmp_gt_u32 %s, %d\ns_cbranch_scc1 %s\ns_cbranch_vccnz %s" % (mxr, S(sSPIN), SPIN_MAX, ok, loop))
            P.label(ok)
            for x in fst[3]: P.add(x)
            stl = [vU + 40, vU + 52, vG + 12]
        else:
            stl = [vU, vU + 12, vU + 24]
            for x in fst[1]: P.add(x)
            P("s_waitcnt vmcnt(0)")
            for x in fst[2]: P.add(x)
            for x in C.publish(vT + 5, 6): P.add(x)
            P.add(C.load_flags(vFD, vFA))
            P("s_waitcnt vmcnt(0)")
            for x in C.check_flags(vFD, vFA, 6, vT + 15): P.add(x)
            for x in fst[3]: P.add(x)
            st = vU
            for d in range(4):
                if d == fq: continue
                P("s_add_u32 %s, %s, %d" % (S(t1), S(t0), (fq * 2 * 16 + d * 4) * 2560))
                P("buffer_load_dwordx4 %s, %s, %s, %s offen sc1" % (V(st, 4), V(vL16), srd(sWS), S(t1)))
                P("buffer_load_dwordx4 %s, %s, %s, %s offen offset:1024 sc1" % (V(st + 4, 4), V(vL16), srd(sWS), S(t1)))
                if len(tl) == 5:
                    P("buffer_load_dwordx2 %s, %s, %s, %s offen offset:2048 sc1" % (V(st + 8, 2), V(vL8), srd(sWS), S(t1)))
                st += 12
        if CFG["fine"] == 2 and not CFG["s5"]:
            P("s_waitcnt vmcnt(0)")
            for x in fst[4]: P.add(x)
        for k in range(3):
            st = stl[k]
            for i, (m, n) in enumerate(tl):
                o = oreg(m, n)
                for h in range(2):
                    P("v_lshlrev_b32 %s, 16, %s\nv_and_b32 %s, 0xffff0000, %s" % (V(vT + 2), V(st + 2 * i + h), V(vT + 3), V(st + 2 * i + h)))
                    P("v_pk_add_f32 %s, %s, %s" % (V(o + 2 * h, 2), V(o + 2 * h, 2), V(vT + 2, 2)))
                if k == 2:
                    for h in range(2): P("v_cvt_pk_bf16_f32 %s, %s, %s" % (V(o + h), V(o + 2 * h), V(o + 2 * h + 1)))
                    P("buffer_store_dwordx2 %s, %s, %s, %s offen offset:%d %s" % (V(o, 2), V(vT), srd(sOUT), S(t2 if n < 8 else sA), 32 * n if n < 8 else 1024, CFG["ost"]))
        if fq < 3:
            P("s_branch %s" % done)
            P.reset()
    P.label(done)
    for x in C.stamp("end"): P.add(x)
```

```python
import re

def vr(base, n=1, kind="v"):
    if n == 1:
        return "%s%d" % (kind, base)
    return "%s[%d:%d]" % (kind, base, base + n - 1)
def V(base, n=1): return vr(base, n, "v")
def Ac(base, n=1): return vr(base, n, "a")
def S(base, n=1): return vr(base, n, "s")
def R(r, n=1):
    if r >= 256:
        return vr(r - 256, n, "a")
    assert r + n <= 256, (r, n)
    return vr(r, n, "v")

_REG = re.compile(r"^(-|\|)?(?:abs\()?([vas])(?:(\d+)|\[(\d+):(\d+)\])\)?\|?$")
def regs_of(tok):
    tok = tok.strip()
    if tok in ("vcc",): return [("s", "vcc")]
    if tok in ("exec",): return [("s", "exec")]
    if tok == "m0": return [("s", "m0")]
    m = _REG.match(tok)
    if not m: return []
    k = m.group(2)
    if m.group(3) is not None: lo = hi = int(m.group(3))
    else: lo, hi = int(m.group(4)), int(m.group(5))
    if k == "a": return [("v", 256 + i) for i in range(lo, hi + 1)]
    return [(k, i) for i in range(lo, hi + 1)]

HZ = dict(trans=1, pk=0, perm=0, pkm=1)
TRANS = ("v_exp_f32", "v_log_f32", "v_rcp_f32", "v_rsq_f32", "v_sqrt_f32", "v_sin_f32", "v_cos_f32")

class Ins:
    __slots__ = ("text", "op", "kind", "dst", "src", "srcC", "srcAB", "tok", "wide_store", "dpp", "opsel", "is_dma", "nocount")
    def __init__(self, text):
        self.text = text
        self.tok = None
        self.nocount = False
        body = text.split(";")[0].strip()
        sp = body.split(None, 1)
        self.op = op = sp[0] if sp else ""
        rest = sp[1] if len(sp) > 1 else ""
        ops = [o.strip() for o in rest.split(",")] if rest else []
        mods = ""
        if ops:
            last = ops[-1].split()
            if len(last) > 1:
                ops[-1] = last[0]; mods = " ".join(last[1:])
        if "quad_perm" in rest or "op_sel" in rest or "neg_lo" in rest or "neg_hi" in rest:
            i = min(x for x in (rest.find("quad_perm"), rest.find("op_sel"), rest.find("neg_lo"), rest.find("neg_hi")) if x >= 0)
            ops = [o.strip() for o in rest[:i].strip().split(",")]
            last = ops[-1].split(); ops[-1] = last[0]
            mods = " ".join(last[1:]) + " " + rest[i:]
        self.dst, self.src, self.srcC, self.srcAB = [], [], [], []
        self.wide_store = False
        self.is_dma = False
        self.dpp = ("quad_perm" in mods or "row_" in mods or op.endswith("_dpp"))
        self.opsel = ("op_sel" in mods and not op.startswith("v_pk_") and not op.startswith("v_dot")) or "sdwa" in op
        rr = [regs_of(o) for o in ops]
        flat = lambda L: [x for y in L for x in y]
        if op.startswith("v_mfma"):
            self.kind = "mfma"
            self.dst = rr[0]; self.srcAB = rr[1] + rr[2]; self.srcC = rr[3]; self.src = self.srcAB + self.srcC
        elif op.startswith("ds_read") or op.startswith("ds_bpermute") or op.startswith("ds_swizzle"):
            self.kind = "lds"; self.dst = rr[0]; self.src = flat(rr[1:])
            if "d16" in op: self.src += rr[0]
        elif op.startswith("ds_write"):
            self.kind = "lds"; self.src = flat(rr)
        elif op.startswith("buffer_load") or op.startswith("global_load"):
            self.kind = "vmem"
            if re.search(r"\blds\b", mods):
                self.is_dma = True; self.src = flat(rr) + [("s", "m0")]
            else:
                self.dst = rr[0]; self.src = flat(rr[1:])
                if "d16" in op: self.src += rr[0]
        elif op.startswith("buffer_store") or op.startswith("global_store") or op.startswith("buffer_atomic") or op.startswith("global_atomic"):
            self.kind = "vmem"; self.src = flat(rr)
            self.wide_store = op.endswith("x3") or op.endswith("x4")
        elif op.startswith("s_load") or op.startswith("s_memtime") or op.startswith("s_memrealtime"):
            self.kind = "smem"; self.dst = rr[0]; self.src = flat(rr[1:])
        elif op.startswith("v_"):
            self.kind = "valu"
            if op.startswith("v_cmp"):
                self.dst = rr[0]; self.src = flat(rr[1:])
            elif op.startswith("v_permlane") and "swap" in op:
                self.dst = rr[0] + rr[1]; self.src = rr[0] + rr[1]
            elif op in ("v_add_co_u32", "v_sub_co_u32", "v_addc_co_u32", "v_subb_co_u32"):
                self.dst = rr[0] + rr[1]; self.src = flat(rr[2:])
            elif op == "v_nop":
                pass
            else:
                self.dst = rr[0]; self.src = flat(rr[1:])
                if op.startswith("v_fmac") or op.startswith("v_dot2c") or op.startswith("v_writelane") or self.dpp or self.opsel:
                    self.src += rr[0]
        elif op in ("s_waitcnt", "s_nop", "s_barrier", "s_sleep", "s_setprio", "s_endpgm"):
            self.kind = "ctl"
        elif op.startswith("s_cbranch") or op == "s_branch":
            self.kind = "br"
        elif op.endswith(":"):
            self.kind = "label"
        elif op.startswith("."):
            self.kind = "dir"
        elif op.startswith("s_"):
            self.kind = "salu"
            if op.startswith("s_cmp"):
                self.src = flat(rr)
            else:
                self.dst = rr[0]; self.src = flat(rr[1:])
                if "saveexec" in op: self.dst = self.dst + [("s", "exec")]
        elif op == "":
            self.kind = "dir"
        else:
            raise ValueError("unknown op: " + text)

class WaitTok(Ins):
    def __init__(self, tok):
        self.text = ""; self.op = "waittok"; self.kind = "waittok"; self.tok = tok
        self.dst = self.src = self.srcC = self.srcAB = []
        self.wide_store = self.dpp = self.opsel = self.is_dma = False

class WaitRegs(Ins):
    def __init__(self, regs):
        self.text = ""; self.op = "waitregs"; self.kind = "waitregs"; self.tok = None
        self.src = [("v", r) for r in regs]
        self.dst = self.srcC = self.srcAB = []
        self.wide_store = self.dpp = self.opsel = self.is_dma = False

def spread(items, lo, hi, dl=None):
    n = len(items)
    return [(lo + (hi - lo) * k // max(n, 1), 10 ** 9 if dl is None else dl, it) for k, it in enumerate(items)]

def is_vmem(x):
    t = x.text if isinstance(x, Ins) else x
    return t.startswith("buffer_") or t.startswith("global_")
def paced(items, start, step, dl=10 ** 9, dls=None):
    out, pos = [], start
    for k, it in enumerate(items):
        d = dls[k] if dls else dl
        for x in (it if isinstance(it, (list, tuple)) else [it]):
            if is_vmem(x):
                out.append((min(int(pos), d - 1), d, x)); pos += step
            else:
                out.append((min(max(int(pos) - 1, start), d - 1), d, x))
    return out, pos

class Prog:
    def __init__(self):
        self.ins = []
        self._lab = 0
        self._tok = 0
    def __call__(self, text, tok=None):
        last = None
        for l in text.split("\n"):
            l = l.strip()
            if not l or l.startswith(";"): continue
            last = Ins(l); self.ins.append(last)
        if tok is not None: last.tok = tok
        return last
    def add(self, item):
        if isinstance(item, Ins): self.ins.append(item)
        elif callable(item): item()
        else: self(item)
    def newtok(self):
        self._tok += 1; return self._tok
    def mk(self, text, tok=None):
        i = Ins(text.strip()); i.tok = tok; return i
    def waittok(self, tok):
        self.ins.append(WaitTok(tok))
    def reset(self):
        w = WaitTok(None); w.kind = "reset"; self.ins.append(w)
    def label(self, name): self(name + ":")
    def newlabel(self, p="L"):
        self._lab += 1; return "%s_%d" % (p, self._lab)

    def _waits(self):
        out = []
        vm = []
        lg = []
        done_toks = set()
        smem_pending = set()
        def emit_wait(nv=None, nl=None):
            parts = []
            if nv is not None:
                assert nv <= 63
                parts.append("vmcnt(%d)" % nv)
            if nl is not None:
                parts.append("lgkmcnt(%d)" % min(nl, 14))
            out.append(Ins("s_waitcnt " + " ".join(parts)))
        for ins in self.ins:
            if ins.kind == "reset":
                vm = []; lg = []; smem_pending = set()
                continue
            if ins.kind == "waittok":
                if ins.tok in done_toks: continue
                idx = [i for i, (d, t) in enumerate(vm) if t == ins.tok]
                assert idx, "token %s never issued" % ins.tok
                n = len(vm) - 1 - idx[-1]
                if n <= 63:
                    emit_wait(nv=n)
                for d, t in vm[:idx[-1] + 1]:
                    if t is not None: done_toks.add(t)
                vm = vm[idx[-1] + 1:]
                continue
            if ins.op == "s_waitcnt":
                m = re.search(r"vmcnt\((\d+)\)", ins.text)
                if m:
                    n = int(m.group(1))
                    if len(vm) > n:
                        cut = len(vm) - n
                        for d, t in vm[:cut]:
                            if t is not None: done_toks.add(t)
                        vm = vm[cut:]
                m = re.search(r"lgkmcnt\((\d+)\)", ins.text)
                if m:
                    n = int(m.group(1))
                    if n == 0: lg = []; smem_pending = set()
                    elif not smem_pending and len(lg) > n: lg = lg[len(lg) - n:]
                out.append(ins); continue
            touched = set(ins.src) | set(ins.dst)
            nv = nl = None
            if touched:
                hit = [i for i, (d, t) in enumerate(vm) if d & touched]
                if hit:
                    nv = len(vm) - 1 - hit[-1]
                    if nv > 63: nv = None
                    for d, t in vm[:hit[-1] + 1]:
                        if t is not None: done_toks.add(t)
                    vm = vm[hit[-1] + 1:]
                if smem_pending & touched:
                    nl = 0; lg = []; smem_pending = set()
                else:
                    hit = [i for i, d in enumerate(lg) if d & touched]
                    if hit:
                        if smem_pending:
                            nl = 0; lg = []; smem_pending = set()
                        else:
                            nl = len(lg) - 1 - hit[-1]
                            if nl > 14: nl = 14; lg = lg[len(lg) - 14:]
                            else: lg = lg[hit[-1] + 1:]
            if ins.kind == "vmem" and len(vm) >= 52:
                cut = len(vm) - 51
                for d, t in vm[:cut]:
                    if t is not None: done_toks.add(t)
                vm = vm[cut:]
                nv = 51 if nv is None else min(nv, 51)
            if nv is not None or nl is not None: emit_wait(nv, nl)
            if ins.kind == "waitregs": continue
            out.append(ins)
            if ins.kind == "vmem":
                if ins.nocount: assert not ins.dst
                else: vm.append((set(ins.dst), ins.tok))
            elif ins.kind == "lds": lg.append(set(ins.dst))
            elif ins.kind == "smem": smem_pending |= set(ins.dst); lg.append(set())
        return out

    def _hazards(self, ins_list):
        out = []
        hist = []
        pos = 0
        def need(cur):
            req = 0
            csrc, cdst = set(cur.src), set(cur.dst)
            for p, ppos in reversed(hist):
                dist = pos - ppos - 1
                if dist >= 20: break
                w = 0
                pd = set(p.dst)
                if p.kind == "valu":
                    vd = {x for x in pd if x[0] == "v"}
                    sd = {x for x in pd if x[0] == "s"}
                    if cur.kind == "mfma" and vd & csrc: w = max(w, 2)
                    if cur.kind == "mfma" and p.op.startswith('v_pk_') and p.op.endswith('_f32'): w = max(w, HZ['pkm'])
                    if cur.kind == "valu":
                        if cur.op.startswith("v_permlane") and vd & csrc: w = max(w, 2)
                        if cur.dpp and vd & csrc: w = max(w, 2)
                        if (cur.op.startswith("v_readfirstlane") or cur.op.startswith("v_readlane")) and vd & csrc: w = max(w, 1)
                        if p.op in TRANS and cur.op not in TRANS and vd & csrc: w = max(w, HZ['trans'])
                        if p.op.startswith('v_pk_') and vd & csrc: w = max(w, HZ['pk'])
                        if p.op.startswith('v_permlane') and vd & csrc: w = max(w, HZ['perm'])
                        if p.opsel and vd & (csrc | cdst): w = max(w, 1)
                        if p.op.startswith("v_dot") and vd & (csrc | cdst) and not (cur.op == p.op and not (vd & set(cur.src[:2]))): w = max(w, 3)
                        if sd & csrc:
                            w = max(w, 4 if cur.op.startswith("v_readlane") or cur.op.startswith("v_writelane") else 2)
                        if cur.op.startswith("v_cndmask") and ("s", "vcc") in sd: w = max(w, 2)
                    if p.op.startswith("v_dot") and cur.kind in ("mfma", "vmem", "lds") and vd & csrc: w = max(w, 3)
                    if cur.kind == "vmem" and sd & csrc: w = max(w, 5)
                    if cur.kind == "salu" and sd & csrc: w = max(w, 1)
                    if cur.kind == "br" and "vcc" in cur.op and ("s", "vcc") in sd: w = max(w, 1)
                elif p.kind == "mfma":
                    big = "32x32" in p.op
                    if cur.kind == "mfma":
                        if pd & set(cur.srcAB): w = max(w, 12 if big else 8)
                        cc = set(cur.srcC)
                        if pd & cc and not (pd == cc and cur.op == p.op): w = max(w, 10 if big else 6)
                        elif pd & cdst and not (pd == cc): w = max(w, 10 if big else 6)
                    elif cur.kind in ("valu", "vmem", "lds"):
                        if pd & (csrc | cdst): w = max(w, 12 if big else 8)
                        if cur.kind == "valu" and set(p.srcC) & cdst: w = max(w, 7 if big else 3)
                elif p.kind == "salu":
                    if ("s", "m0") in pd and cur.is_dma: w = max(w, 1)
                elif p.kind == "vmem":
                    if p.wide_store and cdst & set(p.src): w = max(w, 2)
                if w - dist > req: req = w - dist
            return req
        for ins in ins_list:
            if ins.kind in ("dir",):
                out.append(ins); continue
            if ins.kind == "label":
                out.append(ins); continue
            r = need(ins)
            while r > 0:
                k = min(r, 16)
                n = Ins("s_nop %d" % (k - 1)); out.append(n); pos += k; r -= k
            out.append(ins)
            hist.append((ins, pos))
            if ins.op == "s_nop": pos += int(ins.text.split()[1]) + 1
            else: pos += 1
            if len(hist) > 40: hist = hist[-24:]
        return out

    def finalize(self):
        L = self._hazards(self._waits())
        lines = []
        for i in L:
            if i.kind == "label" or i.kind == "dir": lines.append(i.text)
            else: lines.append("    " + i.text)
        self.final = L
        return "\n".join(lines) + "\n"

INF = 10 ** 9
def multi_interleave(P, main, streams, per=2):
    ptr = [0] * len(streams)
    dl = []
    for st in streams:
        d = [x[1] for x in st]
        for k in range(len(d) - 2, -1, -1): d[k] = min(d[k], d[k + 1])
        dl.append(d)
    def emit(si):
        it = streams[si][ptr[si]][2]; ptr[si] += 1
        if isinstance(it, (list, tuple)):
            for x in it: P.add(x)
            return len(it)
        P.add(it); return 1
    for i, m in enumerate(main):
        for si, st in enumerate(streams):
            while ptr[si] < len(st) and dl[si][ptr[si]] <= i:
                assert st[ptr[si]][0] < i or st[ptr[si]][0] < 0, ("deadline before not_before", si, ptr[si], i, st[ptr[si]])
                emit(si)
        if isinstance(m, (list, tuple)):
            for x in m: P.add(x)
        else: P.add(m)
        k = 0
        lim = per(i) if callable(per) else per
        progress = True
        while k < lim and progress:
            progress = False
            for si, st in enumerate(streams):
                if ptr[si] < len(st) and st[ptr[si]][0] <= i:
                    k += emit(si); progress = True
                    break
    for si, st in enumerate(streams):
        while ptr[si] < len(st): emit(si)

def kernel_header(name):
    return (".text\n.globl %s\n.p2align 8\n.type %s,@function\n%s:\n" % (name, name, name))

def kernel_desc(name, nvgpr=512, accum=256, nsgpr=102):
    return (""".section .rodata,"a"
.p2align 6
.amdhsa_kernel %s
  .amdhsa_next_free_vgpr %d
  .amdhsa_next_free_sgpr %d
  .amdhsa_accum_offset %d
  .amdhsa_group_segment_fixed_size 0
  .amdhsa_kernarg_size 88
  .amdhsa_user_sgpr_count 2
  .amdhsa_user_sgpr_kernarg_segment_ptr 1
  .amdhsa_system_sgpr_workgroup_id_x 1
  .amdhsa_float_denorm_mode_32 3
.end_amdhsa_kernel
""" % (name, nvgpr, nsgpr, accum))
```

```python
from common import *
import ffn
from ffn import AG

ACFG = dict(map="4x8", pace=1.0, pfR={4:[1]}, pa=6, pb=15, pub1=40, touch=0, aux=1, woq=21, wofr=0.8, early=1, rpt=0, pbat=30, pbstep=6, prep=0, fillat=4, pf0=[], pfQ=[], pfS2=[], pfS3=[], ct2=1, hop2=1, l4=1, tlb=0, hop=1, r1pre=13, cs=1, rst=[])
sRBK, sHP = 58, 59
sZ = 53
sW8K, sW5K, sKV = 76, 77, 78
mD, mE, mF, mG = 80, 82, 84, 94
sXB, sWB, sMT = 86, 87, 88
mA, mB, mC = 90, 92, 94
t0, t1, t2, t3 = 96, 97, 98, 99
RND = 53248
L_PHI, L_WBAR, L_MEAN = 159744, 161792, 162048
L_R, L_ZERO = 92160, 96256
vAC = 0
vSUM, vSSQ = 60, 68
vONE = 76
vWF = 80
vPH = 104
vXD, vXR, vWK, vWR, vWM = 128, 130, 132, 137, 138
vLANE, vA, vB = 139, 140, 142
vF = 144
vPP = 160
vPHI = 184
vT = 208
vFA, vFD = 232, 233
vL16 = 234
vWQ = 235
vX2 = 240
LOG2E = 0x3fb8aa3b
def acc(T, c): return vAC + 12 * T + 4 * c
def xf(k, m): return AG + 8 * k + 4 * m

def f_rb(P, dst, rb, tmp):
    if ACFG["map"] == "4x8":
        P("s_and_b32 %s, %s, 3\ns_lshl_b32 %s, %s, 13\ns_lshr_b32 %s, %s, 2\ns_lshl_b32 %s, %s, 8\ns_add_u32 %s, %s, %s" % (dst, rb, dst, dst, tmp, rb, tmp, tmp, dst, dst, tmp))
    else:
        P("s_and_b32 %s, %s, 1\ns_lshl_b32 %s, %s, 14\ns_lshr_b32 %s, %s, 1\ns_lshl_b32 %s, %s, 7\ns_add_u32 %s, %s, %s" % (dst, rb, dst, dst, tmp, rb, tmp, tmp, dst, dst, tmp))
def f_hp(P, dst, hp, tmp):
    if ACFG["map"] == "4x8":
        P("s_and_b32 %s, %s, 7\ns_lshl_b32 %s, %s, 10\ns_lshr_b32 %s, %s, 3\ns_lshl_b32 %s, %s, 7\ns_add_u32 %s, %s, %s" % (dst, hp, dst, dst, tmp, hp, tmp, tmp, dst, dst, tmp))
    else:
        P("s_lshl_b32 %s, %s, 10" % (dst, hp))
def vf_rb(P, dst, rb, tmp):
    if ACFG["map"] == "4x8":
        P("v_and_b32 %s, 3, %s\nv_lshlrev_b32 %s, 13, %s\nv_lshrrev_b32 %s, 2, %s\nv_lshl_add_u32 %s, %s, 8, %s" % (dst, rb, dst, dst, tmp, rb, dst, tmp, dst))
    else:
        P("v_and_b32 %s, 1, %s\nv_lshlrev_b32 %s, 14, %s\nv_lshrrev_b32 %s, 1, %s\nv_lshl_add_u32 %s, %s, 7, %s" % (dst, rb, dst, dst, tmp, rb, dst, tmp, dst))
def vf_hp(P, dst, hp, tmp):
    if ACFG["map"] == "4x8":
        P("v_and_b32 %s, 7, %s\nv_lshlrev_b32 %s, 10, %s\nv_lshrrev_b32 %s, 3, %s\nv_lshl_add_u32 %s, %s, 7, %s" % (dst, hp, dst, dst, tmp, hp, dst, tmp, dst))
    else:
        P("v_lshlrev_b32 %s, 10, %s" % (dst, hp))

def perm32(P, out, rho, tmp):
    P("v_bfe_u32 %s, %s, 2, 2\nv_lshlrev_b32 %s, 3, %s" % (out, rho, out, out))
    P("v_bfe_u32 %s, %s, 4, 1\nv_lshl_add_u32 %s, %s, 2, %s" % (tmp, rho, out, tmp, out))
    P("v_and_b32 %s, 3, %s\nv_add_u32 %s, %s, %s" % (tmp, rho, out, out, tmp))

def round_x(P, rho):
    base = (rho % 3) * RND
    out = []
    for cb in range(2 if rho < 4 else 1):
        for rg in range(4):
            it = []
            if rg == 0: it.append("s_add_u32 m0, %s, %d" % (S(sW8K), base + cb * 4096))
            if rg % 2 == 0:
                it.append("s_add_u32 %s, %s, %d" % (S(t0), S(sXB), (2 * rho + cb) * 128 + (rg >> 1) * (18432 - 2048)))
            it.append("buffer_load_dwordx4 %s, %s, %s offen offset:%d lds" % (V(vXD + (rg & 1)), srd(sX), S(t0), 1024 * rg))
            out.append(it)
    return out
def round_w(P, rho, tok):
    base = (rho % 3) * RND
    out = []
    for q in range(5):
        it = []
        if q == 0: it.append("s_add_u32 %s, %s, %d" % (S(t0), S(sWB), rho * 4 * 110592 + 1152))
        if q % 4 == 0: it.append("s_add_u32 m0, %s, %d" % (S(sW5K), base + 32768 + 1024 * q))
        it.append(P.mk("buffer_load_dwordx4 %s, %s, %s offen offset:%d lds" % (V(vWK + q), srd(sWQKV), S(t0), 1024 * (q % 4)), tok if q == 4 else None))
        out.append(it)
    return out
def emit_items(P, items):
    for it in items:
        if isinstance(it, (list, tuple)):
            for x in it: P.add(x)
        else: P.add(it)
class Rec:
    def __init__(self): self.items = []
    def __call__(self, text):
        self.items += [l for l in text.split("\n") if l.strip()]

def softmax(P, m):
    p0 = vPP + 12 * m
    p = [p0 + i for i in range(9)]
    mx, mn, a, b = vT, vT + 1, vT + 2, vT + 3
    ep, en = vT + 4, vT + 14
    P("v_max3_f32 %s, %s, %s, %s\nv_min3_f32 %s, %s, %s, %s" % (V(mx), V(p[0]), V(p[1]), V(p[2]), V(mn), V(p[0]), V(p[1]), V(p[2])))
    for i in (3, 5, 7):
        P("v_max3_f32 %s, %s, %s, %s\nv_min3_f32 %s, %s, %s, %s" % (V(mx), V(mx), V(p[i]), V(p[i + 1]), V(mn), V(mn), V(p[i]), V(p[i + 1])))
    P("v_mov_b32 %s, %s\nv_mov_b32 %s, %s" % (V(a), V(mx), V(b), V(mn)))
    P("v_permlane16_swap_b32 %s, %s\nv_permlane16_swap_b32 %s, %s" % (V(mx), V(a), V(mn), V(b)))
    P("v_max_f32 %s, %s, %s\nv_min_f32 %s, %s, %s" % (V(mx), V(mx), V(a), V(mn), V(mn), V(b)))
    P("v_pk_mul_f32 %s, %s, %s op_sel_hi:[1,0]" % (V(mx, 2), V(mx, 2), S(t2, 2)))
    for i in range(0, 8, 2):
        P("v_pk_fma_f32 %s, %s, %s, %s op_sel_hi:[1,0,0] neg_lo:[0,0,1] neg_hi:[0,0,1]" % (V(ep + i, 2), V(p0 + i, 2), S(t2, 2), V(mx, 2)))
        P("v_pk_fma_f32 %s, %s, %s, %s op_sel:[0,0,1] op_sel_hi:[1,0,1] neg_lo:[1,0,0] neg_hi:[1,0,0]" % (V(en + i, 2), V(p0 + i, 2), S(t2, 2), V(mx, 2)))
    P("v_fma_f32 %s, %s, %s, -%s\nv_fma_f32 %s, -%s, %s, %s" % (V(ep + 8), V(p[8]), S(t2), V(mx), V(en + 8), V(p[8]), S(t2), V(mn)))
    for i in range(9): P("v_exp_f32 %s, %s\nv_exp_f32 %s, %s" % (V(ep + i), V(ep + i), V(en + i), V(en + i)))
    for e, q in ((ep, mx), (en, a)):
        P("v_pk_add_f32 %s, %s, %s" % (V(q, 2), V(e, 2), V(e + 2, 2)))
    for k in (4, 6):
        for e, q in ((ep, mx), (en, a)):
            P("v_pk_add_f32 %s, %s, %s" % (V(q, 2), V(q, 2), V(e + k, 2)))
    P("v_add_f32 %s, %s, %s\nv_add_f32 %s, %s, %s" % (V(mx), V(mx), V(mn), V(mn), V(a), V(b)))
    P("v_add_f32 %s, %s, %s\nv_add_f32 %s, %s, %s" % (V(mx), V(mx), V(ep + 8), V(mn), V(mn), V(en + 8)))
    P("v_mov_b32 %s, %s\nv_mov_b32 %s, %s" % (V(a), V(mx), V(b), V(mn)))
    P("v_permlane16_swap_b32 %s, %s\nv_permlane16_swap_b32 %s, %s" % (V(mx), V(a), V(mn), V(b)))
    P("v_pk_add_f32 %s, %s, %s" % (V(mx, 2), V(mx, 2), V(a, 2)))
    P("v_rcp_f32 %s, %s\nv_rcp_f32 %s, %s" % (V(mx), V(mx), V(mn), V(mn)))
    P("v_mul_f32 %s, %s, %s\nv_mul_f32 %s, %s, %s" % (V(ep + 8), V(ep + 8), V(mx), V(en + 8), V(en + 8), V(mn)))
    for i in range(0, 8, 2):
        P("v_pk_mul_f32 %s, %s, %s op_sel_hi:[1,0]" % (V(ep + i, 2), V(ep + i, 2), V(mx, 2)))
        P("v_pk_mul_f32 %s, %s, %s op_sel:[0,1] op_sel_hi:[1,1]" % (V(en + i, 2), V(en + i, 2), V(mx, 2)))
    e = [ep + i for i in range(9)] + [en + i for i in range(9)]
    for i in range(9):
        P("v_cvt_pk_bf16_f32 %s, %s, %s" % (V(vPHI + 12 * m + 4 * (i // 3) + i % 3), V(e[2 * i]), V(e[2 * i + 1])))

def ln_fix(P, T, m, dst):
    s2 = "op_sel_hi:[1,0]" if m == 0 else "op_sel:[0,1] op_sel_hi:[1,1]"
    s3 = "op_sel_hi:[1,0,1]" if m == 0 else "op_sel:[0,1,0] op_sel_hi:[1,1,1]"
    for h in range(2):
        P("v_pk_mul_f32 %s, %s, %s %s" % (V(vT + 2 * h, 2), V(acc(T, 2) + 2 * h, 2), V(vB, 2), s2))
    for h in range(2):
        r = acc(T, m) + 2 * h
        P("v_pk_fma_f32 %s, %s, %s, %s %s" % (V(r, 2), V(r, 2), V(vA, 2), V(vT + 2 * h, 2), s3))
    for h in range(2):
        P("v_cvt_pk_bf16_f32 %s, %s, %s" % (V(dst + h), V(acc(T, m) + 2 * h), V(acc(T, m) + 2 * h + 1)))

def feature_map(P):
    for m in range(2):
        for T in range(3):
            d = vPP + 12 * m + 4 * T
            P(mfma(d, vPH + 8 * T, vF + 8 * m)); P(mfma(d, vPH + 8 * T + 4, vF + 8 * m + 4, d))
    for m in range(2): softmax(P, m)

vRW, vRV, vPR, vVR, vKO, vMN = 240, 241, 242, 243, 253, 254
vWC, vCS, vCA = 251, 252, 250
L_CS = 162560
L_RP = 53248 + 4096
vRP, vRT = 246, 249
sRS, sRO = 79, 3
def repack_items(P):
    L = V(vLANE)
    a, b, c, d = V(vT + 18), V(vT + 19), V(vT + 20), V(vT + 21)
    u0, u1, u2, u3 = S(89), S(t1), S(t2), S(t3)
    out, go = [], []
    X = Rec()
    X("s_lshl_b32 %s, %s, 3\nv_lshrrev_b32 %s, 3, %s\nv_add_u32 %s, %s, %s" % (u0, S(sWAVE), a, L, a, u0, a))
    X("v_and_b32 %s, 6, %s\nv_and_b32 %s, 7, %s\nv_xor_b32 %s, %s, %s\nv_lshlrev_b32 %s, 4, %s" % (b, a, c, L, b, b, c, b, b))
    X("v_bfe_u32 %s, %s, 2, 2\nv_mul_u32_u24 %s, 72, %s\nv_lshrrev_b32 %s, 4, %s\nv_lshl_add_u32 %s, %s, 2, %s" % (c, a, c, c, d, a, c, d, c))
    X("v_and_b32 %s, 3, %s\nv_add3_u32 %s, %s, %s, 64" % (d, a, c, c, d))
    X("v_lshrrev_b32 %s, 2, %s\nv_bfe_u32 %s, %s, 1, 2\nv_xor_b32 %s, %s, %s\nv_lshlrev_b32 %s, 5, %s" % (d, L, V(vRT), d, V(vRT), S(sWAVE), V(vRT), V(vRT), V(vRT)))
    X("v_lshl_add_u32 %s, %s, 7, %s\nv_and_b32 %s, 3, %s\nv_lshl_add_u32 %s, %s, 3, %s" % (V(vRT), d, V(vRT), d, L, V(vRT), d, V(vRT)))
    X("v_add_u32 %s, %d, %s" % (V(vRT), L_RP, V(vRT)))
    out += X.items
    tok = P.newtok()
    for job in range(2):
        dst = S(sRS if job == 0 else sRO)
        ln, ld_ = P.newlabel("rp_n"), P.newlabel("rp_d")
        sr = sWN if job == 0 else sWPHI
        vr_ = V(vRP + job)
        it = ["s_add_u32 %s, s2, %d" % (u0, 256 * job), "s_mov_b32 %s, 5308416" % S(sr + 2)]
        if job == 1: it += ["s_cmp_lt_u32 %s, 288" % u0, "s_cbranch_scc1 %s" % ln,
                            "s_sub_u32 %s, %s, 288" % (u0, u0), "s_mul_i32 %s, %s, 36864" % (u1, u0), "s_add_u32 %s, %s, 1024" % (u1, u1),
                            "s_mul_i32 %s, %s, 147456" % (u2, S(sWAVE)), "s_lshl_b32 %s, %s, 10" % (u3, u0), "s_add_u32 %s, %s, %s" % (u2, u2, u3),
                            "s_add_u32 %s, %s, %d" % (u2, u2, WS_RD), "s_cmp_lt_u32 %s, 144" % u0, "s_cselect_b32 %s, %s, 0x7000000" % (dst, u2),
                            "s_mov_b32 %s, %s" % (S(sr), S(sWD)), "s_mov_b32 %s, %s" % (S(sr + 1), S(sWD + 1)),
                            "v_mul_u32_u24 %s, 1152, %s" % (vr_, a), "v_add_u32 %s, %s, %s" % (vr_, vr_, b), "s_branch %s" % ld_, ln + ":"]
        it += ["s_mul_i32 %s, %s, 3641" % (u1, u0), "s_lshr_b32 %s, %s, 16" % (u1, u1),
               "s_mul_i32 %s, %s, 18" % (u2, u1), "s_sub_u32 %s, %s, %s" % (u0, u0, u2),
               "s_and_b32 %s, %s, 1" % (u2, u1), "s_cmp_eq_u32 %s, 0" % u2,
               "s_cselect_b32 %s, %s, %s" % (S(sr), S(sWG), S(sWU)), "s_cselect_b32 %s, %s, %s" % (S(sr + 1), S(sWG + 1), S(sWU + 1)),
               "s_lshl_b32 %s, %s, 1" % (u3, u0), "s_add_u32 %s, %s, %s" % (u2, u2, u3),
               "s_lshr_b32 %s, %s, 1" % (u1, u1),
               "s_lshl_b32 %s, %s, 2" % (u3, u1), "s_add_u32 %s, %s, %s" % (u3, u3, S(sWAVE)), "s_mul_i32 %s, %s, 36" % (u3, u3),
               "s_add_u32 %s, %s, %s" % (u2, u2, u3), "s_lshl_b32 %s, %s, 10" % (u2, u2), "s_add_u32 %s, %s, %d" % (dst, u2, WS_RN),
               "s_lshr_b32 %s, %s, 1" % (u2, u1), "s_mul_i32 %s, %s, 2304" % (u2, u2), "s_and_b32 %s, %s, 1" % (u1, u1), "s_lshl_b32 %s, %s, 7" % (u1, u1),
               "s_add_u32 %s, %s, %s" % (u1, u1, u2), "s_add_u32 %s, %s, 2048" % (u1, u1),
               "s_lshr_b32 %s, %s, 1" % (u2, u0), "s_mul_i32 %s, %s, 72" % (u2, u2), "s_and_b32 %s, %s, 1" % (u3, u0), "s_lshl_b32 %s, %s, 5" % (u3, u3),
               "s_add_u32 %s, %s, %s" % (u2, u2, u3), "s_mul_i32 %s, %s, 9" % (u3, u3),
               "s_cmp_lt_u32 %s, 16" % u0, "s_cselect_b32 %s, %s, %s" % (u2, u2, u3), "s_cselect_b64 vcc, -1, 0",
               "s_mul_i32 %s, %s, 9216" % (u2, u2), "s_add_u32 %s, %s, %s" % (u1, u1, u2),
               "v_cndmask_b32 %s, %s, %s, vcc" % (vr_, c, a), "v_mul_u32_u24 %s, 9216, %s" % (vr_, vr_), "v_add_u32 %s, %s, %s" % (vr_, vr_, b)]
        if job == 1: it.append(ld_ + ":")
        it.append("v_add_u32 %s, %s, %s" % (vr_, u1, vr_))
        out.append(it)
        go.append(["s_add_u32 m0, %s, %d" % (S(sW1K), L_RP + 8192 * job), P.mk("buffer_load_dwordx4 %s, %s, 0 offen lds" % (vr_, srd(sr)), tok if job == 1 else None)])
    return out, go, tok
def repack_out(P, r0):
    for job in range(2):
        for h in range(2): P("ds_read_b64_tr_b16 %s, %s offset:%d" % (V(r0 + 4 * job + 2 * h, 2), V(vRT), 8192 * job + 2048 * h))
    return ["buffer_store_dwordx4 %s, %s, %s, %s offen sc1" % (V(r0 + 4 * job, 4), V(vL16), srd(sWS), S(sRS if job == 0 else sRO)) for job in range(2)]

def p1(C, code_bytes):
    C.code_bytes = code_bytes
    P = C.P
    L = V(vLANE)
    a, b, c, d = V(vT), V(vT + 1), V(vT + 2), V(vT + 3)
    P("v_mov_b32 %s, v0\nv_lshlrev_b32 %s, 4, v0" % (L, V(vL16)))
    if ACFG["map"] == "4x8":
        P("s_lshr_b32 %s, %s, 1\ns_lshl_b32 %s, %s, 2\ns_lshr_b32 %s, %s, 3\ns_add_u32 %s, %s, %s" % (S(t0), S(sXCD), S(t0), S(t0), S(t1), S(sIDX), S(sRBK), S(t0), S(t1)))
        P("s_and_b32 %s, %s, 1\ns_lshl_b32 %s, %s, 3\ns_and_b32 %s, %s, 7\ns_add_u32 %s, %s, %s" % (S(t0), S(sXCD), S(t0), S(t0), S(t1), S(sIDX), S(sHP), S(t0), S(t1)))
    else:
        P("s_lshl_b32 %s, %s, 1\ns_lshr_b32 %s, %s, 4\ns_add_u32 %s, %s, %s\ns_and_b32 %s, %s, 15" % (S(t0), S(sXCD), S(t1), S(sIDX), S(sRBK), S(t0), S(t1), S(sHP), S(sIDX)))
    P("s_lshl_b32 %s, %s, 13\ns_mul_i32 %s, %s, 5120" % (S(sW8K), S(sWAVE), S(sW5K), S(sWAVE)))
    P("s_lshl_b32 %s, %s, 2\ns_add_u32 %s, %s, %s\ns_mul_i32 %s, %s, 36864" % (S(t0), S(sRBK), S(t0), S(t0), S(sWAVE), S(sXB), S(t0)))
    P("s_movk_i32 %s, 1152" % S(t2))
    P("v_lshrrev_b32 %s, 3, %s\nv_and_b32 %s, 7, %s\nv_lshrrev_b32 %s, 4, %s\nv_xor_b32 %s, %s, %s" % (a, L, b, L, c, L, b, b, c))
    P("v_lshlrev_b32 %s, 4, %s\nv_mad_u32_u24 %s, %s, %s, %s" % (c, b, V(vXD), a, S(t2), c))
    P("v_xor_b32 %s, 64, %s\nv_add_u32 %s, %d, %s" % (V(vXD + 1), V(vXD), V(vXD + 1), 9216 - 1024, V(vXD + 1)))
    P("s_mul_i32 %s, %s, 72\ns_and_b32 %s, %s, -16\ns_mul_i32 %s, %s, 110592\ns_add_u32 %s, %s, %s" % (S(t0), S(sHP), S(t0), S(t0), S(t1), S(sWAVE), S(sWB), S(t0), S(t1)))
    P("s_movk_i32 %s, 3456" % S(t2))
    for q in range(5):
        r = V(vWK + q)
        P("v_add_u32 %s, %d, %s\nv_mul_u32_u24 %s, 6554, %s\nv_lshrrev_b32 %s, 16, %s" % (a, 64 * q, L, b, a, b, b))
        P("v_mul_u32_u24 %s, 10, %s\nv_sub_u32 %s, %s, %s" % (c, b, a, a, c))
        perm32(P, c, b, d)
        P("v_mul_lo_u32 %s, %s, %s\nv_lshl_add_u32 %s, %s, 4, %s" % (r, c, S(t2), r, a, r))
        P("v_cmp_lt_u32 vcc, 4, %s\nv_add_u32 %s, %d, %s\nv_cndmask_b32 %s, %s, %s, vcc" % (a, b, 1152 - 80, r, r, r, b))
        if q % 4: P("v_subrev_u32 %s, %d, %s" % (r, 1024 * (q % 4), r))
    P("s_waitcnt lgkmcnt(0)")
    for x in C.stamp("start"): P.add(x)
    l0, l1, l2, l3, l4, l5 = [P.newlabel(C.name + "_w") for _ in range(6)]
    P("s_cmp_gt_u32 %s, 1\ns_cbranch_scc1 %s" % (S(sWAVE), l0))
    P("s_mul_i32 %s, %s, 1296\ns_add_u32 %s, %s, %s\ns_add_u32 m0, %s, %d" % (S(t0), S(sHP), S(t0), S(t0), S(sW1K), S(sW1K), L_PHI))
    P("buffer_load_dwordx4 %s, %s, %s offen lds" % (V(vL16), srd(sWPHI), S(t0))).nocount = True
    P.label(l0)
    P("s_xor_b32 %s, %s, %s\ns_and_b32 %s, %s, 1\ns_lshr_b32 %s, %s, 2\ns_or_b32 %s, %s, %s\ns_or_b32 %s, %s, %s" %
      (S(t0), S(sIDX), S(sXCD), S(t0), S(t0), S(t1), S(sIDX), S(t0), S(t0), S(t1), S(t0), S(t0), S(sWAVE)))
    P("s_lshl_b32 %s, %s, 1\ns_lshr_b32 %s, %s, 1\ns_add_u32 %s, %s, %s\ns_add_u32 %s, %s, 1" % (S(t1), S(sXCD), S(t3), S(sIDX), S(t1), S(t1), S(t3), S(t3), S(t1)))
    P("s_cmp_eq_u32 %s, 0\ns_cselect_b32 %s, %s, 0\ns_cbranch_scc0 %s" % (S(t0), S(sZ), S(t3), l4))
    P("v_mov_b32 v4, 0\nv_lshlrev_b32 v1, 7, v0\ns_lshl_b32 %s, %s, 13" % (S(t1), S(t1)))
    P("buffer_store_dword v4, v1, %s, %s offen sc1" % (srd(sWS), S(t1))).nocount = True
    P.label(l4)
    toks = [P.newtok() for _ in range(6)]
    def touch():
        def ld(text):
            P(text); P.ins[-1].dst = []; P.ins[-1].nocount = True
        aux = ACFG["aux"]
        lab = P.newlabel(C.name + "_l4")
        P("s_lshr_b32 %s, %s, 3\ns_xor_b32 %s, %s, %s\ns_and_b32 %s, %s, 1\ns_cbranch_scc1 %s" % (S(t1), S(sHP), S(t1), S(t1), S(sHP), S(t1), S(t1), l3 if aux else lab))
        P("s_lshr_b32 %s, %s, 1\ns_lshl_b32 %s, %s, 2\ns_add_u32 %s, %s, %s\ns_mul_i32 %s, %s, %d" % (S(t1), S(sIDX), S(t1), S(t1), S(t1), S(t1), S(sWAVE), S(t1), S(t1), 9 * 3456))
        P("v_min_u32 %s, 26, %s\nv_mul_u32_u24 %s, 1152, %s" % (a, L, a, a))
        ld("buffer_load_dword %s, %s, %s, %s offen offset:512" % (V(255), a, srd(sWQKV), S(t1)))
        P.label(lab)
        nper = -(-(code_bytes - (4096 if ACFG['hop'] else 0)) // (32 * 128))
        assert nper <= 31
        reps = (0, 1) if aux else (0,)
        P("s_cmp_eq_u32 %s, 3\ns_cbranch_scc1 %s\ns_cmp_eq_u32 %s, 2\ns_cbranch_scc1 %s\ns_cmp_eq_u32 %s, 1\ns_cbranch_scc1 %s" % (S(sWAVE), l1, S(sWAVE), l2, S(sWAVE), l5))
        P("v_min_u32 %s, 60, %s\nv_lshlrev_b32 %s, 7, %s" % (a, L, a, a))
        for r in reps:
            P("s_xor_b32 %s, s2, %d\ns_mul_i32 %s, %s, %d" % (S(t1), 8 * r, S(t1), S(t1), 61 * 128))
            ld("buffer_load_dword %s, %s, %s, %s offen" % (V(255), a, srd(sWQKV), S(t1)))
        P("s_branch %s" % l3)
        P.label(l5)
        P("v_lshrrev_b32 %s, 3, %s\nv_mul_u32_u24 %s, 1152, %s\nv_and_b32 %s, 7, %s\nv_min_u32 %s, 6, %s\nv_lshl_add_u32 %s, %s, 7, %s" % (a, L, a, a, b, L, b, b, a, b, a))
        for r in reps:
            P("s_lshl_b32 %s, %s, 4\ns_add_u32 %s, %s, %s\ns_xor_b32 %s, %s, %d\ns_mul_i32 %s, %s, 9216" % (S(t1), S(sRBK), S(t1), S(t1), S(sHP), S(t1), S(t1), r, S(t1), S(t1)))
            ld("buffer_load_dword %s, %s, %s, %s offen offset:256" % (V(255), a, srd(sX), S(t1)))
        P("s_branch %s" % l3)
        P.label(l1)
        P("s_getpc_b64 s[100:101]\n%s_pc:\ns_add_u32 s100, s100, %s_body-%s_pc\ns_addc_u32 s101, s101, 0" % (C.name, C.name, C.name))
        k = 2 if aux else 1
        P("s_lshr_b32 %s, %s, %d\ns_mul_i32 %s, %s, %d\nv_min_u32 %s, %d, %s\nv_lshl_add_u32 %s, %s, 7, %s\nv_min_u32 %s, %d, %s" %
          (S(t1), S(sIDX), k - 1, S(t1), S(t1), k * nper * 128, a, k * nper - 1, L, a, a, S(t1), a, code_bytes - 4096 - 128, a))
        ld("global_load_dword %s, %s, s[100:101]" % (V(255), a))
        P("s_branch %s" % l3)
        P.label(l2)
        P("v_min_u32 %s, 20, %s\nv_lshlrev_b32 %s, 7, %s" % (a, L, a, a))
        for r in reps:
            P("s_xor_b32 %s, s2, %d\ns_mul_i32 %s, %s, %d" % (S(t1), 8 * r, S(t1), S(t1), 21 * 128))
            ld("buffer_load_dword %s, %s, %s, %s offen" % (V(255), a, srd(sWO), S(t1)))
        P.label(l3)
    if ACFG["touch"] == 0: touch()
    emit_items(P, round_x(P, 0)); emit_items(P, round_w(P, 0, toks[0]))
    if ACFG["touch"] == 1: touch()
    r1 = round_x(P, 1) + round_w(P, 1, toks[1])
    if ACFG["hop"]: C.align_body()
    P("v_and_b32 %s, 15, %s\nv_lshrrev_b32 %s, 4, %s\nv_lshrrev_b32 %s, 1, %s\nv_xor_b32 %s, %s, %s" % (a, L, b, L, c, a, b, b, c))
    P("v_lshlrev_b32 %s, 7, %s\nv_lshl_add_u32 %s, %s, 4, %s\nv_add_u32 %s, %s, %s" % (a, a, a, b, a, V(vXR), S(sW8K), a))
    P("v_xor_b32 %s, 64, %s" % (V(vXR + 1), V(vXR)))
    P("v_lshrrev_b32 %s, 2, %s\nv_mul_u32_u24 %s, 160, %s\ns_and_b32 %s, %s, 1\ns_lshl_b32 %s, %s, 3\nv_add_u32 %s, %s, %s" % (a, L, a, a, S(t0), S(sHP), S(t0), S(t0), a, S(t0), a))
    P("v_and_b32 %s, 3, %s\nv_lshl_add_u32 %s, %s, 3, %s" % (b, L, V(vWR), b, a))
    P("v_cmp_eq_u32 vcc, 1, %s\nv_add_u32 %s, 32, %s\nv_add_u32 %s, 112, %s\nv_cndmask_b32 %s, %s, %s, vcc" % (b, c, a, d, a, V(vWM), c, d))
    for i in range(4): P("v_mov_b32 %s, 0x3f803f80" % V(vONE + i))
    P("s_mul_i32 %s, %s, 40\nv_add_u32 %s, %s, %s" % (S(t0), S(sWAVE), V(vWC), S(t0), V(vWR)))
    X = Rec()
    X("s_movk_i32 %s, 3456" % S(t2))
    for q in range(5):
        r = V(vWQ + q)
        X("v_add_u32 %s, %d, %s\nv_mul_u32_u24 %s, 13108, %s\nv_lshrrev_b32 %s, 16, %s" % (a, 64 * q, L, b, a, b, b))
        X("v_mul_u32_u24 %s, 5, %s\nv_sub_u32 %s, %s, %s" % (c, b, a, a, c))
        perm32(X, c, b, d)
        X("v_and_b32 %s, 32, %s\nv_add_u32 %s, %s, %s" % (d, b, c, c, d))
        X("v_mul_lo_u32 %s, %s, %s\nv_lshl_add_u32 %s, %s, 4, %s" % (r, c, S(t2), r, a, r))
        if q % 4: X("v_subrev_u32 %s, %d, %s" % (r, 1024 * (q % 4), r))
    wq_items = X.items
    X = Rec()
    u1, u2, u3 = S(t1), S(t2), S(t3)
    X("v_and_b32 %s, 15, %s\nv_lshrrev_b32 %s, 2, %s\nv_lshrrev_b32 %s, 4, %s\nv_cmp_eq_u32 %s, %s, %s" % (a, L, b, a, c, L, S(mD, 2), b, c))
    X("v_and_b32 %s, 1, %s\nv_cmp_eq_u32 %s, 1, %s\nv_and_b32 %s, 2, %s\nv_cmp_eq_u32 %s, 2, %s" % (b, a, S(mE, 2), b, b, a, S(mF, 2), b))
    X("s_lshl_b32 %s, %s, 7\ns_add_u32 %s, %s, %d\nv_lshl_add_u32 %s, %s, 2, %s" % (u1, S(sWAVE), u1, u1, L_MEAN, V(vMN), a, u1))
    X("s_lshl_b32 %s, %s, 5\nv_add_u32 %s, %s, %s\nv_mul_u32_u24 %s, 288, %s" % (u1, S(sWAVE), b, u1, a, b, b))
    X("v_mad_u32_u24 %s, %s, 48, %s\nv_lshl_add_u32 %s, %s, 3, %s" % (V(vRW), c, b, V(vRV), c, b))
    X("v_lshrrev_b32 %s, 2, %s\nv_mul_u32_u24 %s, 288, %s\nv_and_b32 %s, 3, %s\nv_lshl_add_u32 %s, %s, 3, %s" % (d, L, d, d, b, L, d, b, d))
    X("s_lshr_b32 %s, %s, 1\ns_mul_i32 %s, %s, 96\nv_add_u32 %s, %s, %s" % (u3, S(sWAVE), u1, u3, V(vPR), u1, d))
    X.items.append(["s_lshl_b32 %s, %s, 5" % (u1, u3), "s_and_b32 %s, %s, 1" % (u2, S(sWAVE)), "s_cmp_eq_u32 %s, 1" % u2, "s_cselect_b32 %s, 64, %s" % (u1, u1)])
    X("v_add_u32 %s, %s, %s" % (V(vVR), u1, d))
    X("s_lshl_b32 %s, %s, 1\nv_add_u32 %s, %s, %s" % (u1, u3, b, u1, a))
    X("s_mul_i32 %s, %s, 18\ns_sub_u32 %s, 12, %s\nv_add_u32 %s, %s, %s" % (u1, u3, u1, u1, c, u1, a))
    X("s_lshl_b32 %s, %s, 1\ns_add_u32 %s, %s, 4\nv_subrev_u32 %s, %s, %s\nv_cmp_gt_u32 vcc, 2, %s" % (u1, u3, u1, u1, d, u1, a, d))
    X("v_mov_b32 %s, 0x100000\nv_cndmask_b32 %s, %s, %s, vcc" % (d, c, d, c))
    X("v_cmp_ne_u32 vcc, 8, %s\nv_cndmask_b32 %s, 18, %s, vcc" % (a, c, c))
    X.items.append(["s_cmp_eq_u32 %s, 1" % u2, "s_cselect_b64 vcc, -1, 0"])
    X("v_cndmask_b32 %s, %s, %s, vcc" % (b, b, c))
    X("s_mul_i32 %s, %s, 19\nv_add_u32 %s, %s, %s\nv_mul_u32_u24 %s, 96, %s" % (u1, u3, b, u1, b, b, b))
    X("v_lshrrev_b32 %s, 4, %s\nv_lshl_add_u32 %s, %s, 3, %s" % (c, L, V(vKO), c, b))
    X("s_lshl_b32 %s, %s, 4\ns_add_u32 %s, %s, %s\ns_lshl_b32 %s, %s, 12\ns_add_u32 %s, %s, %d" % (u1, S(sHP), u1, u1, S(sRBK), u1, u1, S(sKV), u1, WS_KVP))
    for m in range(2):
        X("v_mov_b32 %s, 0\nv_mov_b32 %s, 0" % (V(vF + 8 * m + 6), V(vF + 8 * m + 7)))
        for f in range(3): X("v_mov_b32 %s, 0" % V(vPHI + 12 * m + 4 * f + 3))
    X("v_lshrrev_b32 %s, 4, %s\nv_lshlrev_b32 %s, 4, %s\nv_add_u32 %s, %d, %s" % (c, L, c, c, V(vCA), L_CS, c))
    X("s_lshl_b32 %s, %s, 6\nv_add_u32 %s, %s, %s" % (u1, S(sWAVE), V(vCS), u1, V(vCA)))
    addr_items = X.items
    X = Rec()
    wr = vT + 8
    X("v_cmp_gt_u32 vcc, 8, %s\nv_mov_b32 %s, 0x1000000\nv_cndmask_b32 %s, %s, %s, vcc" % (L, V(vT + 4), V(vT + 4), V(vT + 4), V(vL16)))
    X.items.append(["s_lshl_b32 %s, %s, 1" % (u1, S(sRBK)), "s_add_u32 %s, %s, %s" % (u1, u1, S(sWAVE)), "s_add_u32 %s, %s, 32" % (u2, S(sRBK)),
                    "s_cmp_lt_u32 %s, 2" % S(sWAVE), "s_cselect_b32 %s, %s, %s" % (u1, u1, u2), "s_mul_i32 %s, %s, 36" % (u2, S(sHP)),
                    "s_add_u32 %s, %s, %s" % (u1, u1, u2), "s_mul_i32 %s, %s, 1152" % (u1, u1)])
    X("buffer_load_dwordx4 %s, %s, %s, %s offen" % (V(wr, 4), V(vL16), srd(sWO), u1))
    X("buffer_load_dwordx4 %s, %s, %s, %s offen offset:1024" % (V(wr + 4, 4), V(vT + 4), srd(sWO), u1))
    X("v_lshrrev_b32 %s, 4, %s\nv_cmp_eq_u32 %s, 2, %s" % (V(vT + 5), L, S(mG, 2), V(vT + 5)))
    wb_load = X.items
    X = Rec()
    sm = V(vT + 16)
    X("v_mov_b32 %s, 0" % sm)
    for i in range(8): X("v_dot2c_f32_bf16 %s, %s, %s" % (sm, V(wr + i), V(vONE)))
    for mode in ("quad_perm:[1,0,3,2]", "quad_perm:[2,3,0,1]", "row_half_mirror", "row_mirror"):
        X("v_add_f32_dpp %s, %s, %s %s row_mask:0xf bank_mask:0xf" % (sm, sm, sm, mode))
    for x in allred(vT + 16, vT + 17, "v_add_f32"): X(x)
    X("v_mul_f32 %s, 0x3ae38e39, %s" % (sm, sm))
    X.items.append(["s_lshl_b32 %s, %s, 2" % (u1, S(sWAVE)), "s_add_u32 %s, %s, %s" % (u1, u1, S(sKV)), "s_mov_b64 exec, 1",
                    "buffer_store_dword %s, off, %s, %s offset:3648 sc1" % (sm, srd(sWS), u1), "s_mov_b64 exec, -1"])
    wb_sum = X.items
    rp_addr, rp_go, tokR = repack_items(P)
    if ACFG["early"]:
        emit_items(P, wq_items + addr_items + rp_addr)
        wq_items, addr_items, rp_addr = [], [], []
    emit_items(P, r1[:ACFG['r1pre']])
    for which in ACFG["pf0"]:
        emit_items(P, ffn.hbm_prefetch(P, which, vLANE, vT + 18, vT + 19, vT + 20, 255))
    if ACFG['hop'] == 1: C.hop(None)
    ax = LdsAddr([vXR, vXR + 1]); aw = LdsAddr([vWR, vWM, vWC])
    for rho in range(5):
        P.waittok(toks[rho])
        P("s_waitcnt lgkmcnt(0)\ns_barrier")
        if rho == 0:
            for x in C.stamp("r0"): P.add(x)
            lab = P.newlabel(C.name + "_nr")
            P("s_cmp_eq_u32 %s, 0\ns_cbranch_scc1 %s" % (S(sZ), lab))
            P("s_memrealtime s[100:101]\ns_waitcnt lgkmcnt(0)\ns_or_b32 s100, s100, 1")
            P("v_mov_b32 %s, s100\ns_lshl_b32 %s, %s, 2\ns_sub_u32 %s, %s, 4\ns_mov_b64 exec, 1" % (a, S(t0), S(sZ), S(t0), S(t0)))
            P("buffer_store_dword %s, off, %s, %s sc1" % (a, srd(sDBG), S(t0))).nocount = True
            P("s_mov_b64 exec, -1")
            P.label(lab)
        if rho in ACFG["rst"]:
            for x in C.stamp("r%d" % rho): P.add(x)
        side, extra = [], []
        if rho <= 2: side = round_x(P, rho + 2) + round_w(P, rho + 2, toks[rho + 2])
        if rho == 0: side = r1[ACFG['r1pre']:] + side
        if rho == 0 and ACFG['hop'] == 2: C.hop(None)
        if rho == 0: extra = wphi_items(P)
        if rho == 2: extra = wq_items
        if rho == 1: extra = addr_items + wb_load + rp_addr
        if rho == 3:
            extra = wb_sum
            lab = P.newlabel(C.name + "_nq")
            P("s_mul_i32 %s, %s, 110592\ns_add_u32 %s, %s, %s" % (S(t0), S(sWAVE), S(sWB), S(sWB), S(t0)))
            P("s_cmp_lg_u32 %s, 0\ns_cbranch_scc1 %s" % (S(sWAVE), lab))
            P("s_add_u32 %s, %s, %d" % (S(t0), S(sWB), 16 * 110592))
            for q in range(5):
                if q % 4 == 0: P("s_mov_b32 m0, %d" % (2 * RND + 8 * 5120 + 1024 * q))
                P("buffer_load_dwordx4 %s, %s, %s offen offset:%d lds" % (V(vWQ + q), srd(sWQKV), S(t0), 1024 * (q % 4))).nocount = True
            P.label(lab)
            for pr in range(2):
                for q in range(5):
                    it = []
                    if q == 0: it.append("s_add_u32 %s, %s, %d" % (S(t0), S(sWB), pr * 8 * 110592))
                    if q % 4 == 0: it.append("s_add_u32 m0, %s, %d" % (S(sW5K), 2 * RND + pr * 4 * 5120 + 1024 * q))
                    it.append(P.mk("buffer_load_dwordx4 %s, %s, %s offen offset:%d lds" % (V(vWQ + q), srd(sWQKV), S(t0), 1024 * (q % 4)), toks[5] if (pr, q) == (1, 4) else None))
                    side.append(it)
        if rho == 4:
            side.append(["v_and_b32 %s, 15, %s" % (V(vFA), L), "v_lshlrev_b32 %s, 2, %s" % (V(vFA), V(vFA)),
                         "buffer_load_dword %s, %s, %s, 0 offen sc1" % (V(vFD), V(vFA), srd(sDBG))])
        tail = []
        if rho == 2: side = rp_go + side
        if rho == 4:
            X = Rec(); rst = repack_out(X, vT + 8); extra = X.items + rst
        if rho == 2 and ACFG["rpt"]:
            for job in range(2):
                x = P.mk("buffer_load_dword %s, %s, %s, 0 offen" % (V(255), V(vRP + job), srd(sWN if job == 0 else sWPHI))); x.dst = []
                tail.append(x)
        for which in ACFG["pfR"].get(rho, []):
            tail += ffn.hbm_prefetch(P, which, vLANE, vT + 18, vT + 19, vT + 20, 255)
        base = (rho % 3) * RND
        nk = 4 if rho < 4 else 2
        NT = 6 if ACFG['cs'] else 5
        main, rd, st = [], [], []
        nb = 0
        for kk in range(nk):
            k = 4 * rho + kk
            for T in range(NT):
                st.append(len(main))
                wf = vWF + 4 * (nb % 6); nb += 1
                if T == 5:
                    main.append(mfma(acc(0, 2), wf, vONE, None if k == 0 else acc(0, 2)))
                    continue
                for cidx in range(3 if (T == 2 or NT == 5) else 2):
                    x = mfma(acc(T, cidx), wf, xf(k, cidx) if cidx < 2 else vONE, None if k == 0 else acc(T, cidx))
                    main.append(x)
                if T in (1, 3):
                    m = T >> 1
                    main.append(mfma(vSUM + 4 * m, vONE, xf(k, m), None if k == 0 else vSUM + 4 * m))
                    main.append(mfma(vSSQ + 4 * m, xf(k, m), xf(k, m), None if k == 0 else vSSQ + 4 * m))
        nb = 0
        for kk in range(nk):
            k = 4 * rho + kk
            for T in range(NT):
                bi = kk * NT + T
                lo = st[bi - 4] - 1 if bi >= 4 else -1
                it = []
                if T == 0:
                    it += ax.rebase(base, base + 32768)
                    for m in range(2):
                        it.append("ds_read_b128 %s, %s offset:%d" % (R(xf(k, m), 4), V(vXR + (kk & 1)), ax.off(base + (kk >> 1) * 4096 + m * 2048)))
                    it += aw.rebase(base + 32768, base + RND)
                wf = vWF + 4 * (nb % 6); nb += 1
                reg, col = (vWM, 0) if T == 2 else (vWC, 0) if T == 5 else (vWR, (0, 40, 0, 80, 120)[T])
                for h in range(2):
                    it.append("ds_read_b64_tr_b16 %s, %s offset:%d" % (V(wf + 2 * h, 2), V(reg), aw.off(base + 32768 + kk * 5120 + h * 2560 + col)))
                for x in it: rd.append((lo, st[bi] if bi >= 4 else 0, x))
        multi_interleave(P, main, [rd, spread(side, 0, int(len(main) * ACFG["pace"])), [(4, INF, x) for x in extra]], 2)
        emit_items(P, tail)
    for x in C.stamp("kvg"): P.add(x)
    if ACFG['cs']:
        P("ds_write_b128 %s, %s" % (V(vCS), V(acc(0, 2), 4)))
    for m in range(2):
        q = vSSQ + 4 * m
        ra, rb = vT + 2 * m, vT + 2 * m + 1
        P("v_cndmask_b32 %s, %s, %s, %s\nv_cndmask_b32 %s, %s, %s, %s" % (V(ra), V(q), V(q + 1), S(mE, 2), V(rb), V(q + 2), V(q + 3), S(mE, 2)))
        P("v_cndmask_b32 %s, %s, %s, %s\nv_cndmask_b32 %s, 0, %s, %s" % (V(ra), V(ra), V(rb), S(mF, 2), V(ra), V(ra), S(mD, 2)))
    r0, r1 = allred(vT, vT + 1, "v_add_f32"), allred(vT + 2, vT + 3, "v_add_f32")
    for x, y in zip(r0, r1): P(x); P(y)
    for m in range(2):
        ra, rb = V(vT + 2 * m), V(vT + 2 * m + 1)
        P("v_mul_f32 %s, 0x3ae38e39, %s\nv_mul_f32 %s, 0x3ae38e39, %s" % (rb, V(vSUM + 4 * m), ra, ra))
        P("ds_write_b32 %s, %s offset:%d" % (V(vMN), rb, 64 * m))
        P("v_fma_f32 %s, -%s, %s, %s\nv_max_f32 %s, 0, %s\nv_add_f32 %s, 0x3727c5ac, %s\nv_rsq_f32 %s, %s" % (ra, rb, rb, ra, ra, ra, ra, ra, V(vA + m), ra))
    for m in range(2): P("v_mul_f32 %s, -%s, %s" % (V(vB + m), V(vT + 2 * m + 1), V(vA + m)))
    if ACFG['cs']:
        P("s_waitcnt lgkmcnt(0)\ns_barrier")
        for w, T in enumerate((0, 1, 3, 4)): P("ds_read_b128 %s, %s offset:%d" % (V(acc(T, 2), 4), V(vCA), 64 * w))
    P("s_mov_b32 %s, %d" % (S(t2), LOG2E))
    for m in range(2):
        ln_fix(P, 0, m, vF + 8 * m); ln_fix(P, 1, m, vF + 8 * m + 2); ln_fix(P, 2, m, vF + 8 * m + 4)
        for T in range(3):
            dd = vPP + 12 * m + 4 * T
            P(mfma(dd, vPH + 8 * T, vF + 8 * m)); P(mfma(dd, vPH + 8 * T + 4, vF + 8 * m + 4, dd))
    for m in range(2):
        ln_fix(P, 3, m, vT + 4); ln_fix(P, 4, m, vT + 6)
        P("v_cndmask_b32 %s, %s, %s, %s\nv_cndmask_b32 %s, %s, %s, %s" % (V(vT + 8), V(vF + 8 * m + 4), V(vONE), S(mG, 2), V(vT + 9), V(vF + 8 * m + 5), V(vONE), S(mG, 2)))
        for i in range(3): P("ds_write_b64 %s, %s offset:%d" % (V(vRV), V(vT + 4 + 2 * i, 2), m * 4608 + 192 + 32 * i))
    for m in range(2):
        softmax(P, m)
        for f in range(3): P("ds_write_b128 %s, %s offset:%d" % (V(vRW), V(vPHI + 12 * m + 4 * f, 4), m * 4608 + 16 * f))
    P("s_waitcnt lgkmcnt(0)\ns_barrier")
    for x in C.stamp("phik"): P.add(x)
    for ks in range(4):
        fr = vAC + 16 * ks
        for h in range(2): P("ds_read_b64_tr_b16 %s, %s offset:%d" % (V(fr + 12 + 2 * h, 2), V(vVR), ks * 9216 + h * 4608 + 192))
        for tau in range(3):
            for h in range(2): P("ds_read_b64_tr_b16 %s, %s offset:%d" % (V(fr + 4 * tau + 2 * h, 2), V(vPR), ks * 9216 + h * 4608 + 32 * tau))
        if ks >= 1:
            fr = vAC + 16 * (ks - 1)
            for tau in range(3): P(mfma(vPP + 4 * tau, fr + 4 * tau, fr + 12, None if ks == 1 else vPP + 4 * tau))
    fr = vAC + 48
    for tau in range(3): P(mfma(vPP + 4 * tau, fr + 4 * tau, fr + 12, vPP + 4 * tau))
    tokS = P.newtok()
    for tau in range(3):
        for h in range(2): P("v_cvt_pk_bf16_f32 %s, %s, %s" % (V(vT + 2 * tau + h), V(vPP + 4 * tau + 2 * h), V(vPP + 4 * tau + 2 * h + 1)))
        P("buffer_store_dwordx2 %s, %s, %s, %s offen offset:%d sc1" % (V(vT + 2 * tau, 2), V(vKO), srd(sWS), S(sKV), 32 * tau), tok=tokS if tau == 2 else None)
    lab = P.newlabel(C.name + "_rdy")
    C.slow.append("""%s:
    s_mov_b32 %s, 0
%s_l:
    buffer_load_dword %s, %s, %s, 0 offen sc1
    s_add_u32 %s, %s, 1
    s_waitcnt vmcnt(0)
    v_cmp_eq_u32 vcc, 0, %s
    s_cmp_gt_u32 %s, %d
    s_cbranch_scc1 %s_b
    s_cbranch_vccnz %s_l
    s_branch %s_b
""" % (lab, S(sSPIN), lab, V(vFD), V(vFA), srd(sDBG), S(sSPIN), S(sSPIN), V(vFD), S(sSPIN), SPIN_MAX, lab, lab, lab))
    P("v_cmp_eq_u32 vcc, 0, %s\ns_cbranch_vccnz %s\n%s_b:" % (V(vFD), lab, lab))
    P("v_readfirstlane_b32 %s, %s" % (S(sNON), V(vFD)))
    P.waittok(toks[5])
    P("s_barrier")
    return tokS

def wphi_items(P):
    L = V(vLANE)
    a, b, c, d = V(vT), V(vT + 1), V(vT + 2), V(vT + 3)
    tmp = vT + 4
    it = []
    it += ["v_bfe_u32 %s, %s, 3, 1" % (a, L), "v_cmp_eq_u32 %s, 1, %s" % (S(mA, 2), a),
           "v_bfe_u32 %s, %s, 2, 1" % (b, L), "v_mul_u32_u24 %s, 18, %s" % (b, b), "v_and_b32 %s, 3, %s" % (c, L),
           "v_cmp_eq_u32 %s, 0, %s" % (S(mB, 2), c), "v_lshl_add_u32 %s, %s, 1, %s" % (b, c, b),
           "v_add_u32 %s, %d, %s" % (b, L_PHI, b), "v_lshrrev_b32 %s, 4, %s" % (c, L), "v_cmp_eq_u32 %s, 0, %s" % (S(mC, 2), c),
           "v_mul_u32_u24 %s, 144, %s" % (c, c), "v_mul_u32_u24 %s, 720, %s" % (d, a), "v_add3_u32 %s, %s, %s, %s" % (c, c, d, b),
           "v_mul_u32_u24 %s, 72, %s" % (d, a), "v_add_u32 %s, %s, %s" % (d, d, b)]
    raw = vPP
    for T in range(3):
        for s in range(4):
            it.append("ds_read_u16 %s, %s offset:%d" % (V(raw + 6 * T + s), c, 36 * s + 8 * T))
        for s in range(2):
            it.append("ds_read_u16 %s, %s offset:%d" % (V(raw + 6 * T + 4 + s), d, 576 + 36 * s + 8 * T))
    for i in range(9): it.append("v_lshl_or_b32 %s, %s, 16, %s" % (V(tmp + i), V(raw + 2 * i + 1), V(raw + 2 * i)))
    for i in range(3): it.append("v_cndmask_b32 %s, 0, %s, %s" % (V(tmp + 6 + i), V(tmp + 6 + i), S(mB, 2)))
    for T in range(3):
        f0, f1 = vPH + 8 * T, vPH + 8 * T + 4
        for i in range(2):
            it.append("v_cndmask_b32 %s, %s, 0, %s" % (V(f0 + i), V(tmp + 3 * T + i), S(mA, 2)))
            it.append("v_cndmask_b32 %s, 0, %s, %s" % (V(f0 + 2 + i), V(tmp + 3 * T + i), S(mA, 2)))
        it.append("v_cndmask_b32 %s, 0, %s, %s" % (V(tmp + 3 * T + 2), V(tmp + 3 * T + 2), S(mC, 2)))
        it.append("v_cndmask_b32 %s, %s, 0, %s" % (V(f1), V(tmp + 3 * T + 2), S(mA, 2)))
        it.append("v_cndmask_b32 %s, 0, %s, %s" % (V(f1 + 1), V(tmp + 3 * T + 2), S(mA, 2)))
        it.append("v_mov_b32 %s, 0" % V(f1 + 2)); it.append("v_mov_b32 %s, 0" % V(f1 + 3))
    return it

vOM, vOLf = 128, 133
def wo_addr(P):
    L = V(vLANE)
    a, b, c, d = V(vT + 8), V(vT + 9), V(vT + 10), V(vT + 11)
    e = V(vT + 12)
    P("s_movk_i32 %s, 1152" % S(t2))
    for q in range(5):
        P("v_add_u32 %s, %d, %s\nv_mul_u32_u24 %s, 6554, %s\nv_lshrrev_b32 %s, 16, %s" % (a, 64 * q, L, b, a, b, b))
        P("v_mul_u32_u24 %s, 10, %s\nv_sub_u32 %s, %s, %s\nv_cmp_eq_u32 vcc, 9, %s" % (c, b, a, a, c, a))
        P("v_lshlrev_b32 %s, 4, %s\nv_mov_b32 %s, 0x1000000\nv_cndmask_b32 %s, %s, %s, vcc" % (a, a, c, a, a, c))
        P("v_lshrrev_b32 %s, 4, %s\nv_and_b32 %s, 3, %s\nv_lshl_add_u32 %s, %s, 2, %s" % (c, b, d, b, c, c, d))
        P("v_bfe_u32 %s, %s, 2, 2" % (b, b))
        P("v_lshrrev_b32 %s, 1, %s\nv_lshl_add_u32 %s, %s, 3, %s\nv_lshl_add_u32 %s, %s, 1, %s" % (d, b, e, b, c, e, d, e))
        P("v_mad_u32_u24 %s, %s, %s, %s" % (V(vOM + q), e, S(t2), a))
        P("v_lshrrev_b32 %s, 1, %s\nv_lshl_add_u32 %s, %s, 2, %s\nv_mul_u32_u24 %s, 18, %s" % (d, c, d, b, d, d, d))
        P("v_and_b32 %s, 1, %s\nv_add3_u32 %s, %s, %s, 16\nv_mad_u32_u24 %s, %s, %s, %s" % (c, c, d, d, c, V(vOLf + q), d, S(t2), a))
        if q % 4: P("v_subrev_u32 %s, %d, %s\nv_subrev_u32 %s, %d, %s" % (V(vOM + q), 1024 * q, V(vOM + q), V(vOLf + q), 1024 * q, V(vOLf + q)))

def p1b(C, tokS):
    P = C.P
    L = V(vLANE)
    a, b, c, d = V(vT), V(vT + 1), V(vT + 2), V(vT + 3)
    vQR, vQM = 244, 245
    P("v_lshrrev_b32 %s, 2, %s\nv_mul_u32_u24 %s, 80, %s\ns_and_b32 %s, %s, 1\ns_lshl_b32 %s, %s, 3\ns_add_u32 %s, %s, %d" % (V(vQM), L, V(vQM), V(vQM), S(t0), S(sHP), S(t0), S(t0), S(t0), S(t0), 2 * RND))
    P("v_add_u32 %s, %s, %s\nv_and_b32 %s, 3, %s\nv_lshl_add_u32 %s, %s, 3, %s\nv_add_u32 %s, 32, %s" % (V(vQM), S(t0), V(vQM), V(vQR), L, V(vQR), V(vQR), V(vQM), V(vQM), V(vQM)))
    X = Rec()
    wo_addr(X)
    X("s_and_b32 %s, %s, 7\ns_mul_i32 %s, %s, 144" % (S(sWB), S(sHP), S(sWB), S(sWB)))
    X("s_lshr_b32 %s, %s, 3\ns_lshl_b32 %s, %s, 2\ns_lshl_b32 %s, %s, 3\ns_add_u32 %s, %s, %s\ns_add_u32 %s, %s, %s" %
      (S(t0), S(sHP), S(t0), S(t0), S(t1), S(sRBK), S(t0), S(t0), S(t1), S(sMT), S(t0), S(sWAVE)))
    X("s_mul_i32 %s, %s, %d\ns_add_u32 %s, %s, %s" % (S(t3), S(sWAVE), 36 * 1152, S(t3), S(t3), S(sWB)))
    pre = X.items
    pub = [[WaitTok(tokS)] + C.publish(vT + 7, 1) + C.stamp("pub1")]
    side = []
    lab = P.newlabel(C.name + "_nl")
    it = ["s_cmp_gt_u32 %s, 1" % S(sWAVE), "s_cbranch_scc1 %s" % lab,
          "s_mul_i32 %s, %s, %d" % (S(t0), S(sWAVE), 288 * 1152), "s_add_u32 %s, %s, %s" % (S(t0), S(t0), S(sWB))]
    for q in range(5):
        if q % 4 == 0: it.append("s_add_u32 m0, %s, %d" % (S(sW5K), 16 * 5120 + 1024 * q))
        x = P.mk("buffer_load_dwordx4 %s, %s, %s offen offset:%d lds" % (V(vOLf + q), srd(sWO), S(t0), 1024 * (q % 4))); x.nocount = True
        it.append(x)
    it.append(lab + ":")
    side.append(it)
    for i in range(4):
        for q in range(5):
            it = []
            if q == 0: it.append("s_add_u32 %s, %s, %d" % (S(t0), S(t3), i * 4 * 36 * 1152))
            if q % 4 == 0: it.append("s_add_u32 m0, %s, %d" % (S(sW5K), i * 4 * 5120 + 1024 * q))
            it.append("buffer_load_dwordx4 %s, %s, %s offen offset:%d lds" % (V(vOM + q), srd(sWO), S(t0), 1024 * (q % 4)))
            side.append(it)
    X = Rec()
    e4, e5 = V(vT + 4), V(vT + 5)
    X("v_lshrrev_b32 %s, 2, %s" % (e4, L))
    vf_rb(X, V(vFA), e4, e5)
    f_hp(X, S(t1), S(sHP), S(t2))
    X("v_and_b32 %s, 3, %s\nv_lshl_add_u32 %s, %s, 2, %s\nv_add_u32 %s, %s, %s" % (e4, L, V(vFA), e4, V(vFA), V(vFA), S(t1), V(vFA)))
    for x in flagfix(V(vFA), e4): X(x)
    vRa, vRb, vWa, vWc, vOL, vRS, vXL = 240, 241, 242, 243, 246, 247, 248
    X("v_bfe_u32 %s, %s, 3, 1\nv_lshrrev_b32 %s, 5, %s\nv_cmp_eq_u32 %s, %s, %s" % (a, L, b, L, S(mA, 2), a, b))
    X("v_mul_u32_u24 %s, %d, %s\nv_bfe_u32 %s, %s, 4, 1\nv_mad_u32_u24 %s, %s, 48, %s\nv_add_u32 %s, %d, %s" % (a, 19 * 96, a, b, L, a, b, a, a, L_R, a))
    X("v_bfe_u32 %s, %s, 2, 1\nv_and_b32 %s, 3, %s\nv_lshl_add_u32 %s, %s, 3, %s\nv_mul_u32_u24 %s, 96, %s\nv_add_u32 %s, %s, %s" % (b, L, c, L, b, b, c, b, b, b, b, a))
    X("v_mov_b32 %s, %d\nv_cndmask_b32 %s, %s, %s, %s" % (d, L_ZERO, V(vRa), d, b, S(mA, 2)))
    X("v_add_u32 %s, 15, %s\nv_cmp_ne_u32 vcc, 0, %s\nv_cndmask_b32 %s, 18, %s, vcc\nv_mul_u32_u24 %s, 96, %s\nv_add_u32 %s, %s, %s" % (b, c, c, b, b, b, b, b, b, a))
    X("v_cmp_ne_u32 vcc, 3, %s\ns_and_b64 vcc, vcc, %s\nv_cndmask_b32 %s, %s, %s, vcc" % (c, S(mA, 2), V(vRb), d, b))
    X("v_lshrrev_b32 %s, 5, %s\nv_mul_u32_u24 %s, 80, %s\nv_add_u32 %s, %d, %s\nv_bfe_u32 %s, %s, 4, 1" % (a, L, a, a, a, L_WBAR, a, b, L))
    X("v_cmp_eq_u32 %s, 1, %s\nv_lshl_add_u32 %s, %s, 5, %s" % (S(mB, 2), b, V(vWa), b, a))
    X("v_add_u32 %s, 64, %s\nv_cndmask_b32 %s, %s, %s, %s" % (a, a, V(vWc), a, d, S(mB, 2)))
    X("v_and_b32 %s, 15, %s\nv_lshlrev_b32 %s, 4, %s\nv_lshrrev_b32 %s, 5, %s\nv_lshl_add_u32 %s, %s, 2, %s" % (a, L, a, a, c, L, a, c, a))
    X("v_lshl_add_u32 %s, %s, 3, %s" % (V(vOL), b, a))
    X("v_add_u32 %s, %s, %s\nv_add_u32 %s, %d, %s" % (V(vRS), S(sW1K), V(vL16), V(vRS), L_R, V(vRS)))
    for i in range(4): X("v_mov_b32 %s, 0" % V(vT + 8 + i))
    X("v_and_b32 %s, 0x1f0, %s\nv_add_u32 %s, %d, %s\nds_write_b128 %s, %s" % (c, V(vL16), c, L_ZERO, c, c, V(vT + 8, 4)))
    for q in range(3):
        X("v_add_u32 %s, %d, %s\nv_mul_u32_u24 %s, 7282, %s\nv_lshrrev_b32 %s, 16, %s" % (a, 64 * q, L, b, a, b, b))
        X("v_mul_u32_u24 %s, %d, %s\nv_lshl_add_u32 %s, %s, 4, %s" % (b, 1152 - 144, b, V(vXL + q), a, b))
        if q: X("v_subrev_u32 %s, %d, %s" % (V(vXL + q), 1024 * q, V(vXL + q)))
    X("v_cmp_gt_u32 vcc, 16, %s\nv_mov_b32 %s, 0x1000000\nv_cndmask_b32 %s, %s, %s, vcc" % (L, a, V(vXL + 2), a, V(vXL + 2)))
    post = X.items
    main, rd, st = [], [], []
    for k in range(18):
        for T in range(3):
            bi = len(st); st.append(len(main))
            wf = vWF + 4 * (bi % 6)
            for cidx in range(3):
                main.append(mfma(acc(T, cidx), wf, xf(k, cidx) if cidx < 2 else vONE, None if k == 0 else acc(T, cidx)))
            lo = st[bi - 4] - 1 if bi >= 4 else -1
            for h in range(2):
                rd.append((lo, st[bi] if bi >= 4 else 0, "ds_read_b64_tr_b16 %s, %s offset:%d" % (V(wf + 2 * h, 2), V(vQM if T == 2 else vQR), k * 2560 + h * 1280 + (0, 40, 0)[T])))
    n0 = ACFG["pub1"]
    s2 = [(0, n0, x) for x in pre] + [(n0, n0 + 1, x) for x in pub] + spread(side[:ACFG['woq']], n0 + 1, 155)
    multi_interleave(P, main, [rd, s2, [(n0 + 1, INF, x) for x in post]], 2)
    for x in C.stamp("qg"): P.add(x)
    P.add(C.load_flags(vFD, vFA))
    P("s_mov_b32 %s, %d" % (S(t2), LOG2E))
    for m in range(2):
        ln_fix(P, 0, m, vF + 8 * m); ln_fix(P, 1, m, vF + 8 * m + 2); ln_fix(P, 2, m, vF + 8 * m + 4)
        for T in range(3):
            dd = vPP + 12 * m + 4 * T
            P(mfma(dd, vPH + 8 * T, vF + 8 * m)); P(mfma(dd, vPH + 8 * T + 4, vF + 8 * m + 4, dd))
    softmax(P, 0)
    for x in C.check_flags(vFD, vFA, 1, 255): P.add(x)
    for x in C.stamp("s1"): P.add(x)
    P("s_lshl_b32 %s, %s, 16\ns_add_u32 %s, %s, %d\ns_add_u32 %s, %s, %s" % (S(t1), S(sHP), S(t1), S(t1), WS_KVP, S(t0), S(t1), S(sW1K)))
    for r in range(16):
        P("buffer_load_dwordx4 %s, %s, %s, %s offen sc1" % (V(vAC + 4 * r, 4), V(vL16), srd(sWS), S(t0)))
        if r < 15: P("s_add_u32 %s, %s, 4096" % (S(t0), S(t0)))
    P("v_and_b32 %s, 15, %s\nv_lshlrev_b32 %s, 12, %s" % (V(vF + 1), L, V(vF), V(vF + 1)))
    P("buffer_load_dwordx3 %s, %s, %s, %s offen offset:3648 sc1" % (V(vF + 4, 3), V(vF), srd(sWS), S(t1)))
    for which in ACFG["pfQ"]:
        emit_items(P, ffn.hbm_prefetch(P, which, vLANE, vT + 18, vT + 19, vT + 20, 255))
    main_P = P
    P = Prog(); P._tok, P._lab = main_P._tok, main_P._lab
    softmax(P, 1)
    for x in C.stamp("phiq"): P.add(x)
    sm = vWF
    P("v_mov_b32 %s, 0x3f80\nv_mov_b32 %s, 1.0" % (V(vT + 8), V(vT + 9)))
    for i in range(6): P("v_mov_b32 %s, 0" % V(sm + i))
    P("v_mov_b32 %s, 0" % V(vT + 7))
    P("v_cmp_lt_u32 vcc, 8, %s\nv_addc_co_u32 %s, vcc, 0, %s, vcc\nv_lshlrev_b32 %s, 3, %s\nv_add_u32 %s, %d, %s" % (V(vF + 1), V(vF + 2), V(vF + 1), V(vF + 2), V(vF + 2), V(vF + 2), L_WBAR, V(vF + 2)))
    P("v_lshlrev_b32 %s, 2, %s\nv_add_u32 %s, %d, %s" % (V(vF + 3), V(vF + 1), V(vF + 3), L_WBAR + 136, V(vF + 3)))
    for r in range(16):
        for i in range(6): P("v_dot2c_f32_bf16 %s, %s, %s" % (V(sm + i), V(vAC + 4 * r + (i >> 1)), V(vT + 8 + (i & 1))))
    for i in range(3): P("v_cvt_pk_bf16_f32 %s, %s, %s" % (V(vT + 4 + i), V(sm + 2 * i), V(sm + 2 * i + 1)))
    P("ds_write_b128 %s, %s" % (V(vRS), V(vT + 4, 4)))
    P("ds_write_b64 %s, %s\nds_write_b32 %s, %s" % (V(vF + 2), V(vF + 4, 2), V(vF + 3), V(vF + 6)))
    P("s_waitcnt lgkmcnt(0)\ns_barrier")
    for x in C.stamp("kvred"): P.add(x)
    kf = vAC
    for T in range(3):
        for p in range(3):
            P("ds_read_b128 %s, %s offset:%d" % (V(kf + 12 * T + 4 * p, 4), V(vRb if T == 2 else vRa), (384 if T == 1 else 0) + 16 * p))
    vWb = vAC + 36
    P("ds_read_b128 %s, %s\nds_read_b128 %s, %s offset:16\nds_read_b64 %s, %s" % (V(vWb, 4), V(vWa), V(vWb + 4, 4), V(vWa), V(vWb + 8, 2), V(vWc)))
    P("s_mul_i32 %s, %s, 3072\ns_add_u32 m0, %s, %d\ns_mul_i32 %s, %s, 18432\ns_add_u32 %s, %s, %s" % (S(t0), S(sWAVE), S(t0), L_XR, S(t0), S(sMT), S(t0), S(t0), S(sWB)))
    for q in range(3): P("buffer_load_dwordx4 %s, %s, %s offen offset:%d lds" % (V(vXL + q), srd(sX), S(t0), 1024 * q))
    P("s_lshl_b32 %s, %s, 3\ns_lshl_b32 %s, %s, 1\ns_add_u32 %s, %s, %s\ns_lshl_b32 %s, %s, 4\ns_add_u32 %s, %s, %s" %
      (S(t0), S(sRBK), S(t1), S(sWAVE), S(t0), S(t0), S(t1), S(t0), S(t0), S(t0), S(t0), S(sHP)))
    P("s_lshl_b32 %s, %s, 8\ns_add_u32 %s, %s, %d\ns_lshl_b32 %s, %s, 10\ns_add_u32 %s, %s, %d" % (S(t1), S(t0), S(t1), S(t1), WS_OL, S(t0), S(t0), S(t0), S(t0), WS_OM))
    for m in range(2):
        for T in (2, 0, 1):
            dd = vPP + 12 * m + 4 * T
            for p in range(3): P(mfma(dd, kf + 12 * T + 4 * p, vPHI + 12 * m + 4 * p, None if p == 0 else dd))
    chain = P.ins
    main_P._tok, main_P._lab = P._tok, P._lab
    P = main_P
    rest = side[ACFG['woq']:]
    step = max(1, int(len(chain) * ACFG["wofr"]) // max(len(rest), 1))
    k = 0
    for n, x in enumerate(chain):
        if x.is_dma or (x.kind == "salu" and (("s", "m0") in x.dst or ("s", t0) in x.dst)):
            while k < len(rest): emit_items(P, [rest[k]]); k += 1
        P.add(x)
        if n % step == 0 and k < len(rest) and x.op not in ("s_waitcnt", "s_memrealtime", "s_memtime", "v_cmp_lt_u32"):
            emit_items(P, [rest[k]]); k += 1
    assert k == len(rest)
    a, b, c, d = V(vF), V(vF + 1), V(vF + 2), V(vF + 3)
    for m in range(2):
        o = vPP + 12 * m
        P("v_add_f32 %s, 0x358637bd, %s\nv_rcp_f32 %s, %s" % (a, V(o + 8), a, a))
        P("v_mul_f32 %s, %s, %s\nv_mul_f32 %s, %s, %s" % (V(o + 9), V(o + 9), a, V(o + 10), V(o + 10), a))
        for i in (0, 2, 4, 6): P("v_pk_mul_f32 %s, %s, %s op_sel_hi:[1,0]" % (V(o + i, 2), V(o + i, 2), V(vF, 2)))
        q = vF + 4 + 4 * m
        for i in range(4): P("v_cvt_pk_bf16_f32 %s, %s, %s" % (V(q + i), V(o + 2 * i), V(o + 2 * i + 1)))
        P("buffer_store_dwordx4 %s, %s, %s, %s offen sc1" % (V(q, 4), V(vL16), srd(sWS), S(t0)))
        P("v_pk_mul_f32 %s, %s, %s" % (V(vF + 2, 2), V(o, 2), V(vWb, 2)))
        for i in (2, 4, 6): P("v_pk_fma_f32 %s, %s, %s, %s" % (V(vF + 2, 2), V(o + i, 2), V(vWb + i, 2), V(vF + 2, 2)))
        P("v_fmac_f32 %s, %s, %s\nv_fmac_f32 %s, %s, %s\nv_add_f32 %s, %s, %s" % (c, V(o + 9), V(vWb + 8), d, V(o + 10), V(vWb + 9), b, c, d))
        for x in allred(vF + 1, vF + 2, "v_add_f32"): P(x)
        P("v_cvt_pk_bf16_f32 %s, %s, %s\nv_cndmask_b32 %s, %s, %s, %s" % (c, V(o + 9), V(o + 10), V(vF + 12 + m), c, b, S(mB, 2)))
        P("buffer_store_dword %s, %s, %s, %s offen sc1" % (V(vF + 12 + m), V(vOL), srd(sWS), S(t1)))
        if m == 0: P("s_add_u32 %s, %s, 16384\ns_add_u32 %s, %s, 4096" % (S(t0), S(t0), S(t1), S(t1)))
    P("v_and_b32 %s, 15, %s" % (a, L))
    vf_hp(P, V(vFA), a, b)
    f_rb(P, S(t0), S(sRBK), S(t1))
    P("s_and_b32 %s, %s, 7\ns_lshr_b32 %s, %s, 1\ns_lshl_b32 %s, %s, 2\ns_add_u32 %s, %s, %s\nv_add_u32 %s, %s, %s" % (S(t1), S(sMT), S(t1), S(t1), S(t1), S(t1), S(t0), S(t0), S(t1), V(vFA), S(t0), V(vFA)))
    for x in flagfix(V(vFA), a): P(x)
    P("v_mov_b32 v225, %s" % L)
    ffn.ffn_setup(C, 225)

L_XR = 122880
def code_touch(C, L, a):
    P = C.P
    nper = -(-(C.code_bytes - 4096) // (32 * 128))
    lab = P.newlabel(C.name + "_ct")
    P("s_cmp_lg_u32 %s, 3\ns_cbranch_scc1 %s" % (S(sWAVE), lab))
    P("s_getpc_b64 s[100:101]\n%s_pc:\ns_sub_u32 s100, s100, %s_pc-%s_body\ns_subb_u32 s101, s101, 0" % (lab, lab, C.name))
    P("s_mul_i32 %s, %s, %d\nv_min_u32 %s, %d, %s\nv_lshl_add_u32 %s, %s, 7, %s\nv_min_u32 %s, %d, %s" % (S(t1), S(sIDX), nper * 128, a, nper - 1, L, a, a, S(t1), a, C.code_bytes - 4096 - 128, a))
    P("global_load_dword %s, %s, s[100:101]" % (V(255), a)); P.ins[-1].dst = []; P.ins[-1].nocount = True
    P.label(lab)

def p2(C):
    P = C.P
    vLN = 225
    L = V(vLN)
    vO, vAcc, vMU, vXS, vWV = 0, 72, 92, 96, 108
    vQ = 240
    a, b, c, d = V(vQ), V(vQ + 1), V(vQ + 2), V(vQ + 3)
    vWR2, vLA, vMA, vL8, vMX = 226, 227, 228, 229, 230
    def wreg(i): return AG + 4 * i if i < 64 else vWV + 4 * (i - 64)
    nar = ffn.narrow_items(P, vL16)

    P("v_lshrrev_b32 %s, 2, %s\nv_mul_u32_u24 %s, 160, %s\nv_and_b32 %s, 3, %s\nv_lshl_add_u32 %s, %s, 3, %s" % (a, L, a, a, b, L, V(vWR2), b, a))
    P("v_and_b32 %s, 15, %s\nv_lshrrev_b32 %s, 4, %s\nv_mul_u32_u24 %s, 144, %s\nv_lshl_add_u32 %s, %s, 3, %s" % (a, L, b, L, c, a, c, b, c))
    P("s_mul_i32 %s, %s, 3072\ns_add_u32 %s, %s, %d\nv_add_u32 %s, %s, %s" % (S(t1), S(sWAVE), S(t1), S(t1), L_XR, c, S(t1), c))
    xrd = ["ds_read_b64 %s, %s offset:%d" % (V(vXS + 2 * T, 2), c, 32 * T) for T in range(5)]
    P("v_lshlrev_b32 %s, 4, %s\nv_lshl_add_u32 %s, %s, 9, %s\nv_lshlrev_b32 %s, 3, %s" % (d, a, V(vLA), b, d, V(vL8), L))
    P("v_lshlrev_b32 %s, 2, %s" % (a, a))
    P("s_and_b32 %s, %s, 7\ns_lshl_b32 %s, %s, 6\ns_add_u32 %s, %s, %d\nv_add_u32 %s, %s, %s\nds_read_b32 %s, %s" % (S(t1), S(sMT), S(t1), S(t1), S(t1), S(t1), L_MEAN, a, S(t1), a, V(vMX), a))
    aw = LdsAddr([vWR2])
    main = []
    for f in range(18):
        for T in range(5):
            it = aw.rebase(f * 5120, (f + 1) * 5120)
            it += ["ds_read_b64_tr_b16 %s, %s offset:%d" % (R(wreg(5 * f + T) + 2 * h, 2), V(vWR2), aw.off(f * 5120 + h * 2560 + 32 * T)) for h in range(2)]
            main.append(it)
    pa = ACFG["pa"]
    assert pa <= 6
    k0 = ACFG["prep"]
    emit_items(P, main[:k0])
    P("s_waitcnt vmcnt(0)")
    for x in C.publish(vQ + 3, 2): P.add(x)
    for x in C.stamp("pub2"): P.add(x)
    if ACFG["woq"] < 21: P("s_barrier")
    emit_items(P, xrd)
    if ACFG["ct2"]: code_touch(C, L, a)
    units = ffn.unit_items(P, 0, 30 - ffn.CFG['late'])
    multi_interleave(P, main[k0:], [spread(units[:pa], 0, max(90 - k0 - 5, 1))], 1)
    if ACFG['hop'] and ACFG['hop2'] == 0: C.hop(None)
    for x in (C.stamp("prer") if ACFG["rst"] else []): P.add(x)
    P.add(C.load_flags(vFD, vFA))
    P("s_lshl_b32 %s, %s, 14\ns_add_u32 %s, %s, %d\ns_lshl_b32 %s, %s, 12\ns_add_u32 %s, %s, %d" % (S(t2), S(sMT), S(t2), S(t2), WS_OM, S(t1), S(sMT), S(t1), S(t1), WS_OL))
    P("s_waitcnt lgkmcnt(0)\ns_barrier")
    for x in C.check_flags(vFD, vFA, 2, 255): P.add(x)
    for x in C.stamp("s2"): P.add(x)
    vLQ = 244
    for f in range(16):
        P("buffer_load_dwordx4 %s, %s, %s, %s offen offset:%d sc1" % (V(vO + 4 * f, 4), V(vL16), srd(sWS), S(t2), 1024 * (f % 4)))
        if f == 7:
            for e in range(2):
                P("buffer_load_dwordx3 %s, %s, %s, %s offen offset:%d sc1" % (V(vO + 64 + 4 * e, 3), V(vLA), srd(sWS), S(t1), e * 2048))
                P("buffer_load_dwordx3 %s, %s, %s, %s offen offset:%d sc1" % (V(vLQ + 4 * e, 3), V(vLA), srd(sWS), S(t1), e * 2048 + 256))
        if f % 4 == 3 and f < 15: P("s_add_u32 %s, %s, 4096" % (S(t2), S(t2)))
    main = []
    for f in range(18):
        for T in range(5):
            main.append(mfma(vAcc + 4 * T, wreg(5 * f + T), vO + 4 * f, None if f == 0 else vAcc + 4 * T))
    units = nar + units[pa:]
    pb = ACFG["pb"]
    X = Rec()
    X("s_and_b32 %s, %s, 7" % (S(t3), S(sHP)))
    X("s_mul_i32 %s, %s, 18432\ns_mul_i32 %s, %s, 2304\ns_add_u32 %s, %s, %s\ns_add_u32 %s, %s, %d" % (S(sXB), S(sMT), S(t1), S(t3), S(t1), S(t1), S(sXB), S(t1), S(t1), WS_H))
    X("s_lshl_b32 %s, %s, 11\ns_add_u32 %s, %s, %s\ns_add_u32 %s, %s, %d" % (S(t2), S(t3), S(t2), S(t2), S(sXB), S(t2), S(t2), WS_HC))
    X("v_cmp_gt_u32 %s, 32, %s\nv_mov_b32 %s, 0x8000000\nv_cndmask_b32 %s, %s, %s, %s" % (S(mA, 2), L, a, V(vLA), a, V(vL8), S(mA, 2)))
    X("v_and_b32 %s, 15, %s\nv_lshlrev_b32 %s, 4, %s\nv_lshrrev_b32 %s, 4, %s\nv_lshl_add_u32 %s, %s, 3, %s\nv_cndmask_b32 %s, %s, %s, %s" % (b, L, b, b, c, L, b, c, b, V(vMA), a, b, S(mA, 2)))
    Y = []
    for e in range(2):
        Y += ["v_add_f32 %s, %s, %s" % (V(vMU + e), V(vO + 66 + 4 * e), V(vLQ + 4 * e + 2)),
              "v_mov_b32 %s, %s" % (V(vO + 66 + 4 * e), V(vLQ + 4 * e)), "v_mov_b32 %s, %s" % (V(vO + 67 + 4 * e), V(vLQ + 4 * e + 1))]
    Y += ["v_add_f32 %s, %s, %s" % (V(vMU), V(vMU), V(vMU + 1))] + allred(vMU, vMU + 1, "v_add_f32") + ["v_add_f32 %s, %s, %s" % (V(vMU), V(vMU), V(vMX))]
    multi_interleave(P, main, [paced(units[:pb], ACFG["pbat"], ACFG["pbstep"])[0], [(2, INF, x) for x in X.items] + [(45, 78, x) for x in Y]], 2)
    for x in C.stamp("wog"): P.add(x)
    ss = vMU + 2
    P("v_mov_b32 %s, 0\nv_mov_b32 %s, 0" % (V(ss), V(ss + 1)))
    hq = vO
    for T in range(5):
        r = vAcc + 4 * T
        for h in range(2):
            x = V(vXS + 2 * T + h)
            P("v_lshlrev_b32 %s, 16, %s\nv_and_b32 %s, 0xffff0000, %s" % (a, x, b, x))
            P("v_pk_add_f32 %s, %s, %s" % (V(vQ, 2), V(vQ, 2), V(r + 2 * h, 2)))
            P("v_cvt_pk_bf16_f32 %s, %s, %s" % (V(hq + 2 * T + h), a, b))
            P("v_lshlrev_b32 %s, 16, %s\nv_and_b32 %s, 0xffff0000, %s" % (a, V(hq + 2 * T + h), b, V(hq + 2 * T + h)))
            P("v_pk_add_f32 %s, %s, %s op_sel_hi:[1,0] neg_lo:[0,1] neg_hi:[0,1]" % (V(vQ, 2), V(vQ, 2), V(vMU, 2)))
            P("v_cvt_pk_bf16_f32 %s, %s, %s" % (V(hq + 12 + 2 * T + h), a, b))
            if T == 4: P("v_cndmask_b32 %s, 0, %s, %s\nv_cndmask_b32 %s, 0, %s, %s" % (b, b, S(mA, 2), a, a, S(mA, 2)))
            P("v_pk_fma_f32 %s, %s, %s, %s" % (V(ss, 2), V(vQ, 2), V(vQ, 2), V(ss, 2)))
        if T % 2 == 1:
            P("buffer_store_dwordx4 %s, %s, %s, %s offen offset:%d sc1" % (V(hq + 12 + 2 * (T - 1), 4), V(vL16), srd(sWS), S(t2), 1024 * (T >> 1)))
        if T == 4:
            P("s_lshl_b32 %s, %s, 8\ns_add_u32 %s, %s, %s\ns_add_u32 %s, %s, %d" % (S(t2), S(t3), S(t2), S(t2), S(sXB), S(t2), S(t2), WS_HC + 16384))
            P("buffer_store_dwordx2 %s, %s, %s, %s offen sc1" % (V(hq + 20, 2), V(vMA), srd(sWS), S(t2)))
    P("v_add_f32 %s, %s, %s" % (V(ss), V(ss), V(ss + 1)))
    for x in allred(ss, ss + 1, "v_add_f32"): P(x)
    P("s_lshl_b32 %s, %s, 3\ns_add_u32 %s, %s, %s\ns_lshl_b32 %s, %s, 8\ns_add_u32 %s, %s, %d" % (S(t0), S(sMT), S(t0), S(t0), S(t3), S(t0), S(t0), S(t0), S(t0), WS_SSQ))
    P("v_lshlrev_b32 %s, 2, %s\nbuffer_store_dword %s, %s, %s, %s offen sc1" % (a, L, V(ss), a, srd(sWS), S(t0)))
    for T in range(5):
        P("buffer_store_dwordx2 %s, %s, %s, %s offen offset:%d sc1" % (V(hq + 2 * T, 2), V(vL8 if T < 4 else vLA), srd(sWS), S(t1), 512 * T))
    fa = V(ffn.vFA)
    a, b = V(100), V(101)
    P("s_lshl_b32 %s, %s, 3\ns_lshl_b32 %s, %s, 1\ns_add_u32 %s, %s, %s\ns_lshr_b32 %s, %s, 1\ns_add_u32 %s, %s, %s" % (S(t0), S(sMH), S(t1), S(sRB), S(t0), S(t0), S(t1), S(t1), S(sWAVE), S(t0), S(t0), S(t1)))
    f_rb(P, S(t2), S(t0), S(t1))
    P("s_and_b32 %s, %s, 1\ns_lshl_b32 %s, %s, 3\nv_bfe_u32 %s, %s, 2, 3\nv_add_u32 %s, %s, %s" % (S(t0), S(sWAVE), S(t0), S(t0), a, L, a, S(t0), a))
    vf_hp(P, fa, a, b)
    P("v_and_b32 %s, 3, %s\nv_lshl_add_u32 %s, %s, 2, %s\nv_add_u32 %s, %s, %s" % (a, L, fa, a, fa, fa, S(t2), fa))
    for x in flagfix(fa, a): P(x)
    P("v_mov_b32 v102, %s" % L)
    ffn.ffn_addr2(C, 102)
    P("s_waitcnt vmcnt(0)")
    for x in C.publish(100, 3): P.add(x)
    for x in C.stamp("pub3"): P.add(x)
    emit_items(P, units[pb:])
    for which in ACFG["pfS3"]:
        emit_items(P, ffn.hbm_prefetch(P, which, 102, 103, 104, 105, 106))
    if ACFG['hop'] and ACFG['hop2'] == 1: C.hop(None)
```

```python
from gen import *

WS_FLAGS = 0x0
WS_KVP = 0x20000
WS_OM = 0x120000
WS_OL = 0x320000
WS_HC = 0x3A0000
WS_SSQ = 0x5E0000
WS_H = 0x620000
WS_PART = 0x2800000
WS_HH = 0x1260000
WS_RN = 0x2500000
WS_RD = 0x2640000
WS_TIM = 0x2460000
WS_DBG = 0x2700000
WS_SIZE = 0x4000000

sX, sWQKV, sWPHI, sWO, sWG, sWU, sWD, sOUT, sWS, sDBG, sWN = 4, 8, 12, 16, 20, 24, 28, 32, 36, 40, 44
sWAVE, sW1K, sXCD, sIDX, sFLAG = 48, 49, 50, 51, 52
sSPIN = 53
sNON = 3
sFQ, sMH, sRB, sFS = 54, 55, 56, 57
sT = 80
def srd(b): return S(b, 4)

SPIN_MAX = 50000
GCFG = dict(fl=1, poll=1)
def flagfix(reg, tmp):
    if not GCFG['fl']: return []
    return ['v_and_b32 %s, 12, %s' % (tmp, reg), 'v_and_b32 %s, 0xffffff80, %s' % (reg, reg), 'v_lshlrev_b32 %s, 2, %s' % (reg, reg), 'v_lshl_add_u32 %s, %s, 5, %s' % (reg, tmp, reg)]


class Ctx:
    def __init__(self, name, timing=False):
        self.name = name
        self.P = Prog()
        self.slow = []
        self.timing = timing
        self.nstamp = 0
        self.sbase = 0
        self.hops = []
        self.touch_labels = set()
        self.stamp_names = []
    def check_flags(self, vdata, vaddr, phase, v2=None):
        lab = self.P.newlabel(self.name + "_spin")
        if GCFG["poll"] > 1 and v2 is not None:
            ld = lambda r: "    buffer_load_dword %s, %s, %s, 0 offen sc1\n" % (V(r), V(vaddr), srd(sWS))
            ck = lambda r: "    s_waitcnt vmcnt(1)\n    v_cmp_gt_u32 vcc, %d, %s\n    s_cbranch_vccz %s_d\n" % (phase, V(r), lab)
            self.slow.append("%s:\n    s_mov_b32 %s, 0\n" % (lab, S(sSPIN)) + ld(vdata) + "    s_nop 15\n" * GCFG["poll"] + "%s_l:\n" % lab + ld(v2) + ck(vdata) + ld(vdata) + ck(v2) +
                             "    s_add_u32 %s, %s, 1\n    s_cmp_lt_u32 %s, %d\n    s_cbranch_scc1 %s_l\n%s_d:\n    s_waitcnt vmcnt(0)\n    s_branch %s_b\n" % (S(sSPIN), S(sSPIN), S(sSPIN), SPIN_MAX, lab, lab, lab))
            return ["v_cmp_gt_u32 vcc, %d, %s" % (phase, V(vdata)), "s_cbranch_vccnz %s" % lab, lab + "_b:"]
        self.slow.append("""%s:
    s_mov_b32 %s, 0
%s_l:
    buffer_load_dword %s, %s, %s, 0 offen sc1
    s_add_u32 %s, %s, 1
    s_waitcnt vmcnt(0)
    v_cmp_gt_u32 vcc, %d, %s
    s_cmp_gt_u32 %s, %d
    s_cbranch_scc1 %s_b
    s_cbranch_vccnz %s_l
    s_branch %s_b
""" % (lab, S(sSPIN), lab, V(vdata), V(vaddr), srd(sWS), S(sSPIN), S(sSPIN), phase, V(vdata), S(sSPIN), SPIN_MAX, lab, lab, lab))
        return ["v_cmp_gt_u32 vcc, %d, %s" % (phase, V(vdata)), "s_cbranch_vccnz %s" % lab, lab + "_b:"]
    def load_flags(self, vdata, vaddr):
        return "buffer_load_dword %s, %s, %s, 0 offen sc1" % (V(vdata), V(vaddr), srd(sWS))
    def publish(self, vtmp, phase):
        return ["v_mov_b32 %s, %d" % (V(vtmp), phase), "s_mov_b64 exec, 1",
                "buffer_store_dword %s, off, %s, %s sc1" % (V(vtmp), srd(sWS), S(sFLAG)), "s_mov_b64 exec, -1"]
    def stamp(self, name):
        if not self.timing: return []
        k = self.nstamp; self.nstamp += 1
        self.stamp_names.append(name)
        return [("s_memtime" if self.timing == 2 else "s_memrealtime") + " s[100:101]", "s_waitcnt lgkmcnt(0)", "s_mov_b32 s%d, s100" % (60 + k - self.sbase)]
    def flush_stamps(self, v0, v1):
        if not self.timing: return
        P = self.P
        assert self.nstamp - self.sbase <= 16
        P("v_mov_b32 %s, 0" % V(v0))
        for k in range(self.sbase, self.nstamp):
            P("v_writelane_b32 %s, s%d, %d" % (V(v0), 60 + k - self.sbase, k - self.sbase))
        P("v_mbcnt_lo_u32_b32 %s, -1, 0\nv_mbcnt_hi_u32_b32 %s, -1, %s\nv_lshlrev_b32 %s, 2, %s" % (V(v1), V(v1), V(v1), V(v1), V(v1)))
        P("s_lshl_b32 s100, s2, 2\ns_add_u32 s100, s100, %s\ns_lshl_b32 s100, s100, 8\ns_add_u32 s100, s100, %d" % (S(sWAVE), WS_TIM + 4 * self.sbase))
        P("s_mov_b64 exec, 0xffff\nbuffer_store_dword %s, %s, %s, s100 offen\ns_mov_b64 exec, -1" % (V(v0), V(v1), srd(sWS)))
        self.sbase = self.nstamp
    def finish(self):
        P = self.P
        self.flush_stamps(0, 1)
        P.label(self.name + "_end")
        P("s_endpgm")
        text = P.finalize()
        if self.hops: text = self._place_stubs()
        return kernel_header(self.name) + text + "".join(self.slow)
    def align_body(self):
        self.P("s_branch %s_body" % self.name)
        self.P(".p2align 12")
        self.P.label(self.name + "_body")
    def hop(self, upto):
        k = len(self.hops); self.hops.append(upto)
        self.P("s_mov_b64 exec, 0\ns_branch %s_hop%d_0\n%s_hopback%d:\ns_mov_b64 exec, -1" % (self.name, k, self.name, k))
    def _place_stubs(self):
        import subprocess
        L = self.P.final
        lines = [i.text if i.kind in ("label", "dir") else "    " + i.text for i in L]
        fix = "".join("%s_hop%d_0:\n" % (self.name, k) for k in range(len(self.hops)))
        open("_st.s", "w").write('.amdgcn_target "amdgcn-amd-amdhsa--gfx950"\n.text\n' + "\n".join(lines) + "\n" + fix + "".join(self.slow))
        r = subprocess.run(["clang", "-x", "assembler", "-target", "amdgcn-amd-amdhsa", "-mcpu=gfx950", "-c", "_st.s", "-o", "_st.o"], capture_output=True, text=True)
        if r.returncode: print(r.stderr[:3000]); raise SystemExit(1)
        d = subprocess.run(["llvm-objdump", "-d", "--mcpu=gfx950", "_st.o"], capture_output=True, text=True).stdout
        d = d[d.index("<%s_body>:" % self.name):]
        sizes = [4 * len(l.split("//")[1].split(":")[1].split("<")[0].split()) for l in d.splitlines() if "//" in l]
        b0 = [k for k, i in enumerate(L) if i.text == self.name + "_body:"][0]
        out = lines[:b0 + 1]
        addr, page, si = 0, 1, 0
        chain, cnt, chains = None, {}, {}
        for k in range(b0 + 1, len(L)):
            i = L[k]
            if i.kind == "label" and i.text[:-1] in self.touch_labels and chain is not None:
                out.append(lines[k])
                n = cnt.get(chain, 0); cnt[chain] = n + 1
                out.append("%s_hop%d_%d:" % (self.name, chain, n)); out.append("    s_cbranch_execz %s_hop%d_%d" % (self.name, chain, n + 1)); addr += 4
                continue
            if i.kind == "label":
                for h, upto in enumerate(self.hops):
                    if i.text == "%s_hopback%d:" % (self.name, h): chain = h
                    if upto is not None and i.text == upto + ":" and chain == h: chain = None
                out.append(lines[k]); continue
            if i.kind == "dir":
                out.append(lines[k]); continue
            if addr >= page * 4096:
                page += 1
                if chain is not None:
                    n = cnt.get(chain, 0); cnt[chain] = n + 1
                    out.append("%s_hop%d_%d:" % (self.name, chain, n)); out.append("    s_cbranch_execz %s_hop%d_%d" % (self.name, chain, n + 1)); addr += 4
            out.append(lines[k]); addr += sizes[si]; si += 1
        text = "\n".join(out) + "\n"
        for h in range(len(self.hops)):
            n = cnt.get(h, 0)
            text = text.replace("%s_hop%d_%d\n" % (self.name, h, n), "%s_hopback%d\n" % (self.name, h))
        return text

def prologue(C):
    P = C.P
    P("s_cmp_ge_u32 s2, 256\ns_cbranch_scc1 %s_end" % C.name)
    P("s_load_dwordx2 s[4:5], s[0:1], 0\ns_load_dwordx2 s[8:9], s[0:1], 8\ns_load_dwordx2 s[12:13], s[0:1], 16\ns_load_dwordx2 s[16:17], s[0:1], 24")
    P("s_load_dwordx2 s[20:21], s[0:1], 40\ns_load_dwordx2 s[24:25], s[0:1], 48\ns_load_dwordx2 s[28:29], s[0:1], 56")
    P("s_load_dwordx2 s[32:33], s[0:1], 64\ns_load_dwordx2 s[40:41], s[0:1], 72\ns_load_dwordx2 s[36:37], s[0:1], 80")
    for b, n in ((sX, 2359296), (sWQKV, 1990656), (sWPHI, 20736), (sWO, 663552), (sWG, 5308416), (sWU, 5308416), (sWD, 5308416),
                 (sOUT, 2359296), (sWS, WS_SIZE), (sDBG, 256), (sWN, 5308416)):
        P("s_mov_b32 s%d, %d\ns_mov_b32 s%d, 0x20000" % (b + 2, n, b + 3))
    P("v_lshrrev_b32 v1, 6, v0\nv_and_b32 v0, 63, v0\nv_readfirstlane_b32 %s, v1" % S(sWAVE))
    P("s_and_b32 %s, s2, 7\ns_lshr_b32 %s, s2, 3" % (S(sXCD), S(sIDX)))
    P("s_lshl_b32 %s, %s, 10" % (S(sW1K), S(sWAVE)))
    P("s_lshl_b32 %s, s2, %d\ns_lshl_b32 s80, %s, %d\ns_add_u32 %s, %s, s80" % (S(sFLAG), 9 if GCFG['fl'] else 7, S(sWAVE), 7 if GCFG['fl'] else 2, S(sFLAG), S(sFLAG)))
    P("s_lshr_b32 %s, %s, 1\ns_and_b32 %s, %s, 1\ns_lshr_b32 %s, %s, 3\ns_and_b32 %s, %s, 7" %
      (S(sFQ), S(sXCD), S(sMH), S(sXCD), S(sRB), S(sIDX), S(sFS), S(sIDX)))

def allred(reg, tmp, op):
    return ["v_mov_b32 %s, %s" % (V(tmp), V(reg)), "v_permlane16_swap_b32 %s, %s" % (V(reg), V(tmp)), "%s %s, %s, %s" % (op, V(reg), V(reg), V(tmp)),
            "v_mov_b32 %s, %s" % (V(tmp), V(reg)), "v_permlane32_swap_b32 %s, %s" % (V(reg), V(tmp)), "%s %s, %s, %s" % (op, V(reg), V(reg), V(tmp))]

def mfma(d, a, b, c=None):
    return "v_mfma_f32_16x16x32_bf16 %s, %s, %s, %s" % (R(d, 4), R(a, 4), R(b, 4), "0" if c is None else R(c, 4))

class LdsAddr:
    def __init__(self, regs, base=0):
        self.regs, self.base = regs, base
    def rebase(self, lo, hi):
        if lo >= self.base and hi - self.base <= 65536: return []
        d = lo - self.base
        self.base = lo
        if d > 0: return ["v_add_u32 %s, %d, %s" % (V(r), d, V(r)) for r in self.regs]
        return ["v_subrev_u32 %s, %d, %s" % (V(r), -d, V(r)) for r in self.regs]
    def off(self, addr):
        o = addr - self.base
        assert 0 <= o < 65536, (addr, self.base)
        return o
```

```python
from common import *

vA16 = 0
vG, vU, vP = 32, 96, 160
vWF = 192
vOX = 208
vTRU = 216
vTRN = 220
vDM, vDL = 221, 222
vWD = 223
vL16, vL8 = 232, 233
vWE = 216
vR2 = 234
vFA, vFD = 238, 239
vT = 240
AG = 256

sA, sCOL, sNB, sNL, sWDB, sWD0, sHST, sHSN, sHLD, sMT2 = 76, 77, 78, 79, 80, 81, 82, 83, 84, 85
t0, t1, t2, t3 = 96, 97, 98, 99
sL2, sD2, sE1, sE2 = 92, 93, 94, 95
sKW = 89

CFG = dict(ustep=16, dstep=7, astep=10, hstep=8, hstep2=12, e4=100, otr=1, ptouch=0, ptm='', fbl=36, fbc=72, fbp=36, w2step=10, e2=200, chain=1, fill=620, fstep=10, s5=2, late=0, lateat=310, abl='', hst='sc1', ost='', wdown=0, rsp1=1, rsp2=1, hlead=30, fine=0, pfB=[(2, 300), (30, 480), (31, 580)], w0=7, w1=8)
LDS_N = 120 * 1024
PAIRS = [(16, 17), (14, 15)] + [(2 * i, 2 * i + 1) for i in range(7)]
def areg(phi, m):
    return vA16 + (phi - 16) * 16 + 4 * m if phi >= 16 else AG + phi * 16 + 4 * m
GSLOT = [4, 3, 0, 2, 1, 0, 2, 1, 0, 2, 1, 0]
def slab_addr(sig):
    return GSLOT[sig // 6] * 24576 + (sig % 6) * 4096
def slab_phi(sig):
    r = sig % 18
    return PAIRS[r // 2][r % 2]
WD_SLAB = [[b * 1024 + 9216 * i for i in range(4)] for b in (120, 84, 48, 12)]
def wd_slab(stage, i): return WD_SLAB[stage % 4][i]
def kappa(p):
    st, i = p // 4, p % 4
    if st == 0: return 32 + i
    kw = (i & 1) + 4 * (i >> 1)
    return 8 * (st - 1) + kw if st <= 4 else 8 * (st - 5) + 2 + kw
def oreg(m, n):
    k = m * 9 + n
    if k < 8: return vA16 + 4 * k
    if k < 16: return vP + 4 * (k - 8)
    return vOX + 4 * (k - 16)

def ffn_setup(C, vlane):
    P = C.P
    L = V(vlane)
    a, b, c, d = V(vT), V(vT + 1), V(vT + 2), V(vT + 3)
    P("s_lshl_b32 %s, %s, 6\ns_lshl_b32 %s, %s, 4\ns_add_u32 %s, %s, %s" % (S(t0), S(sMH), S(t1), S(sRB), S(t0), S(t0), S(t1)))
    P("s_lshl_b32 %s, %s, 2\ns_add_u32 %s, %s, %s" % (S(t1), S(sWAVE), S(t1), S(t1), S(t0)))
    P("s_mul_i32 %s, %s, 18432\ns_add_u32 %s, %s, %d" % (S(sA), S(t1), S(sA), S(sA), WS_HC))
    P("s_mul_i32 %s, %s, 147456\ns_mul_i32 %s, %s, 36864\ns_add_u32 %s, %s, %s\ns_add_u32 %s, %s, %d" %
      (S(t1), S(t1), S(t2), S(sFQ), S(t1), S(t1), S(t2), S(t1), S(t1), WS_HH))
    P("s_lshl_b32 %s, %s, 12\ns_add_u32 %s, %s, %s" % (S(t3), S(sFS), S(sHST), S(t1), S(t3)))
    P("s_lshl_b32 %s, %s, 9\ns_add_u32 %s, %s, %s\ns_add_u32 %s, %s, 32768" % (S(t3), S(sFS), S(sHSN), S(t1), S(t3), S(sHSN), S(sHSN)))
    P("s_lshr_b32 %s, %s, 2\ns_lshl_b32 %s, %s, 3\ns_add_u32 %s, %s, %s\ns_lshl_b32 %s, %s, 1\ns_add_u32 %s, %s, %s" %
      (S(t1), S(sFS), S(t1), S(t1), S(t0), S(t0), S(t1), S(t1), S(sWAVE), S(sMT2), S(t0), S(t1)))
    P("s_mul_i32 %s, %s, 147456\ns_add_u32 %s, %s, %s\ns_add_u32 %s, %s, %d" % (S(sHLD), S(sMT2), S(sHLD), S(sHLD), S(t2), S(sHLD), S(sHLD), WS_HH))
    P("s_mul_i32 %s, %s, 2304\ns_lshl_b32 %s, %s, 8\ns_add_u32 %s, %s, %s" % (S(t0), S(sFQ), S(t1), S(sFS), S(sCOL), S(t0), S(t1)))
    P("s_lshl_b32 %s, %s, 3\ns_add_u32 %s, %s, %s\ns_mul_i32 %s, %s, 36864\ns_add_u32 %s, %s, %s\ns_add_u32 %s, %s, %d" %
      (S(t1), S(sFQ), S(t1), S(t1), S(sFS), S(t1), S(t1), S(t1), S(t1), S(sW1K), S(sNB), S(t1), WS_RN))
    P("s_lshr_b32 %s, %s, 1" % (S(t1), S(sWAVE)))
    P("s_mul_i32 %s, %s, %d\ns_and_b32 %s, %s, 3\ns_mul_i32 %s, %s, 147456\ns_lshl_b32 %s, %s, 8\ns_add_u32 %s, %s, %s" %
      (S(t0), S(sFQ), 1152 * 1152, S(t2), S(sFS), S(sNL), S(t2), S(t2), S(t2), S(t0), S(t0), S(t2)))
    P("s_mul_i32 %s, %s, 36864\ns_add_u32 %s, %s, %s\ns_add_u32 %s, %s, %d" % (S(t2), S(sFQ), S(sNL), S(sNL), S(t2), S(sNL), S(sNL), WS_RD))
    P("s_and_b32 %s, %s, 1\ns_lshl_b32 %s, %s, 2\ns_add_u32 %s, %s, %s\ns_mul_i32 %s, %s, 36864\ns_add_u32 %s, %s, %s" %
      (S(t2), S(sWAVE), S(t1), S(t1), S(sKW), S(t2), S(t1), S(t2), S(sKW), S(sWDB), S(t0), S(t2)))
    P("s_lshl_b32 %s, %s, 10\ns_add_u32 %s, %s, %s" % (S(sKW), S(sKW), S(sKW), S(sKW), S(sNL)))
    P("s_add_u32 %s, %s, 32\ns_mul_i32 %s, %s, 36864\ns_add_u32 %s, %s, %s" % (S(t2), S(sWAVE), S(t2), S(t2), S(sWD0), S(t0), S(t2)))
    P("s_movk_i32 %s, 9216" % S(t3))
    def grow(rho, out, tmp):
        P("v_bfe_u32 %s, %s, 2, 2\nv_mul_u32_u24 %s, 72, %s" % (out, rho, out, out))
        P("v_lshrrev_b32 %s, 4, %s\nv_lshl_add_u32 %s, %s, 2, %s" % (tmp, rho, out, tmp, out))
        P("v_and_b32 %s, 3, %s\nv_add3_u32 %s, %s, %s, 64" % (tmp, rho, out, out, tmp))
    P("s_lshl_b32 %s, %s, 3\nv_lshrrev_b32 %s, 3, %s\nv_add_u32 %s, %s, %s" % (S(t2), S(sWAVE), a, L, a, S(t2), a))
    P("v_and_b32 %s, 6, %s\nv_and_b32 %s, 7, %s\nv_xor_b32 %s, %s, %s\nv_lshlrev_b32 %s, 4, %s" % (b, a, c, L, b, b, c, b, b))
    P("v_mad_u32_u24 %s, %s, %s, %s" % (V(vDM), a, S(t3), b))
    grow(a, c, d)
    P("v_mad_u32_u24 %s, %s, %s, %s" % (V(vDL), c, S(t3), b))

def dma_unit(P, sig, tok=None):
    st, phi = sig // 18, slab_phi(sig)
    src = sWG if st % 2 == 0 else sWU
    col = 128 if st >= 2 else 0
    if phi < 16: row, vo = 72 * (phi >> 1) + 32 * (phi & 1), vDM
    else: row, vo = 288 * (phi - 16), vDL
    return ["s_add_u32 m0, %s, %d" % (S(sW1K), slab_addr(sig)), "s_add_u32 %s, %s, %d" % (S(t0), S(sCOL), row * 9216 + col),
            P.mk("buffer_load_dwordx4 %s, %s, %s offen lds" % (V(vo), srd(src), S(t0)), tok)]

def narrow_items(P, vl16):
    out = []
    for it in [8, 7] + list(range(7)):
        out.append(["s_add_u32 m0, %s, %d" % (S(sW1K), LDS_N + it * 4096), "s_add_u32 %s, %s, %d" % (S(t0), S(sNB), it * 4096),
                    "buffer_load_dwordx4 %s, %s, %s offen sc1 lds" % (V(vl16), srd(sWS), S(t0))])
    return out
def unit_items(P, lo, hi):
    return [dma_unit(P, sig) for sig in range(lo, hi)]

def hbm_prefetch(P, which, vl, ta, tb, tc, dst, mklane=False, s0=None, s1=None):
    L, a, b, c = V(vl), V(ta), V(tb), V(tc)
    if s0 is None: s0, s1 = S(t0), S(t1)
    om = "s_lshl_b32 %s, %s, 6\ns_lshl_b32 %s, %s, 1\ns_add_u32 %s, %s, %s\ns_add_u32 %s, %s, %s" % (s0, S(sWAVE), s1, S(sIDX), s0, s0, s1, s0, s0, S(sMH))
    it = [om]
    if mklane: it.append("v_lshrrev_b32 %s, 4, %s" % (L, V(vL16)))
    def ld(sr):
        x = P.mk("buffer_load_dword %s, %s, %s, %s offen" % (V(dst), a, srd(sr), s1)); x.dst = []
        return x
    if which in (1, 2):
        per, rows = (8, 8)
        nw = 576 // rows
        it.append("v_lshrrev_b32 %s, 3, %s\nv_and_b32 %s, 7, %s\nv_lshl_add_u32 %s, %s, 1, %d" % (a, L, b, L, b, b, which - 1))
        it.append("v_mul_u32_u24 %s, 9216, %s\nv_lshl_add_u32 %s, %s, 7, %s" % (a, a, a, b, a))
        it.append("s_cmp_ge_u32 %s, %d\ns_cselect_b32 %s, %s, %s\ns_cselect_b32 %s, %s, %s\ns_cselect_b32 %s, %d, 0\ns_sub_u32 %s, %s, %s" %
                  (s0, nw, S(sWN), S(sWU), S(sWG), S(sWN + 1), S(sWU + 1), S(sWG + 1), s1, nw, s0, s0, s1))
        it.append("s_mul_i32 %s, %s, %d\ns_mul_i32 %s, %s, 2304\ns_add_u32 %s, %s, %s" % (s0, s0, rows * 9216, s1, S(sFQ), s1, s1, s0))
        it.append(ld(sWN))
    else:
        if which == 4: it.append("s_xor_b32 %s, %s, 1" % (s0, s0))
        if which >= 30:
            k, n = which % 10, (which // 10) - 1
            per = -(-41 // n)
            it.append("v_min_u32 %s, %d, %s\nv_add_u32 %s, %d, %s\nv_min_u32 %s, 40, %s\nv_lshlrev_b32 %s, 7, %s" % (a, per - 1, L, a, k * per, a, a, a, a, a))
        else:
            it.append("v_min_u32 %s, 40, %s\nv_lshlrev_b32 %s, 7, %s" % (a, L, a, a))
        it.append("s_mul_i32 %s, %s, %d\ns_mul_i32 %s, %s, %d\ns_add_u32 %s, %s, %s" % (s0, s0, 41 * 128, s1, S(sFQ), 1152 * 1152, s1, s1, s0))
        it.append(ld(sWD))
    return it

def part_prefill(P, vq, vl16, vl8, t0, t1):
    it = ["s_lshl_b32 %s, s2, 4" % S(t0), "s_add_u32 %s, %s, %s" % (S(t0), S(t0), S(sWAVE)), "s_mul_i32 %s, %s, 2560" % (S(t0), S(t0)),
          "s_add_u32 %s, %s, %d" % (S(t0), S(t0), WS_PART)]
    for i in range(1, 4):
        it += ["s_add_u32 %s, %s, %d" % (S(t1), S(sFQ), i), "s_and_b32 %s, %s, 3" % (S(t1), S(t1)), "s_mul_i32 %s, %s, %d" % (S(t1), S(t1), 4 * 2560),
               "s_add_u32 %s, %s, %s" % (S(t1), S(t1), S(t0)),
               "buffer_store_dwordx4 %s, %s, %s, %s offen sc1" % (V(vq, 4), V(vl16), srd(sWS), S(t1)),
               "buffer_store_dwordx4 %s, %s, %s, %s offen offset:1024 sc1" % (V(vq, 4), V(vl16), srd(sWS), S(t1)),
               "buffer_store_dwordx2 %s, %s, %s, %s offen offset:2048 sc1" % (V(vq, 2), V(vl8), srd(sWS), S(t1))]
    return it

def ffn_addr2(C, vlane):
    P = C.P
    L = V(vlane)
    a, b, c, d = V(vT), V(vT + 1), V(vT + 2), V(vT + 3)
    P("v_lshlrev_b32 %s, 4, %s\nv_lshlrev_b32 %s, 3, %s" % (V(vL16), L, V(vL8), L))
    P("v_lshrrev_b32 %s, 2, %s\nv_and_b32 %s, 3, %s" % (a, L, b, L))
    P("v_add_u32 %s, %d, %s" % (V(vTRN), LDS_N, V(vL16)))
    P("v_bfe_u32 %s, %s, 1, 2" % (c, a))
    P("v_lshlrev_b32 %s, 7, %s\nv_lshl_add_u32 %s, %s, 3, %s" % (d, a, d, b, d))
    for T in range(4):
        P("v_xor_b32 %s, %d, %s\nv_lshl_add_u32 %s, %s, 5, %s" % (V(vTRU + T), T, c, V(vTRU + T), V(vTRU + T), d))
    P("v_bfe_u32 %s, %s, 2, 2\nv_mul_u32_u24 %s, 1152, %s\nv_lshrrev_b32 %s, 4, %s\nv_lshl_add_u32 %s, %s, 6, %s" % (a, L, a, a, c, L, a, c, a))
    P("v_lshl_add_u32 %s, %s, 4, %s\nv_xor_b32 %s, 32, %s" % (c, b, a, d, c))
    for q in range(8):
        P("v_add_u32 %s, %d, %s" % (V(vWD + q), q * 4608 - 1024 * (q % 4), d if q & 1 else c))

def ffn_main(C, vlane_src=None, s3_addr_ready=True):
    P = C.P
    a, b, c, d = V(vT), V(vT + 1), V(vT + 2), V(vT + 3)
    P.add(C.load_flags(vFD, vFA))
    P("s_waitcnt vmcnt(0)")
    for x in C.check_flags(vFD, vFA, 3, vT + 15): P.add(x)
    for x in C.stamp("s3done"): P.add(x)
    def aload(phi, m):
        return ["s_add_u32 %s, %s, %d" % (S(t1), S(sA), m * 18432 + phi * 1024),
                "buffer_load_dwordx4 %s, %s, %s, %s offen sc1" % (R(areg(phi, m), 4), V(vL16), srd(sWS), S(t1)),
                "buffer_load_dwordx4 %s, %s, %s, %s offen offset:1024 sc1" % (R(areg(phi + 1, m), 4), V(vL16), srd(sWS), S(t1))]
    for pr in PAIRS[:2]:
        for m in range(4):
            for x in aload(pr[0], m): P.add(x)
    it = ["v_lshrrev_b32 %s, 4, %s" % (V(vFA), V(vL16)), "v_and_b32 %s, 7, %s" % (V(vFA), V(vFA)), "v_lshlrev_b32 %s, 10, %s" % (V(vFA), V(vFA)),
          "s_lshl_b32 %s, %s, 13" % (S(t1), S(sRB)), "s_lshl_b32 %s, %s, 7" % (S(sL2), S(sXCD)), "s_add_u32 %s, %s, %s" % (S(t1), S(t1), S(sL2)),
          "s_lshr_b32 %s, %s, 2" % (S(sL2), S(sFS)), "s_lshl_b32 %s, %s, 3" % (S(sL2), S(sL2)), "s_add_u32 %s, %s, %s" % (S(t1), S(t1), S(sL2)),
          "s_lshr_b32 %s, %s, 1" % (S(sL2), S(sWAVE)), "s_lshl_b32 %s, %s, 2" % (S(sL2), S(sL2)), "s_add_u32 %s, %s, %s" % (S(t1), S(t1), S(sL2)),
          "v_add_u32 %s, %s, %s" % (V(vFA), S(t1), V(vFA))] + flagfix(V(vFA), V(vFD))
    for x in it: P.add(x)
    P("s_barrier")
    main, blocks = [], []
    for st in range(4):
        tiles = [0, 1, 2, 3] + (["ng", "nu"] if st == 0 else [])
        for pi, pr in enumerate(PAIRS):
            for T in tiles:
                bi = len(blocks)
                wf = vWF + 8 * (bi % 3)
                blocks.append(dict(start=len(main), g=1, st=st, pi=pi, T=T, wf=wf))
                for m in range(4):
                    if T == "ng": acc = vP + 4 * m
                    elif T == "nu": acc = vP + 16 + 4 * m
                    else: acc = (vG if st % 2 == 0 else vU) + 16 * T + 4 * m
                    order = (0, 1) if (m % 2 == 0 or not CFG['chain']) else (1, 0)
                    for q, i in enumerate(order):
                        x = mfma(acc, wf + 4 * i, areg(pr[i], m), None if (pi == 0 and q == 0) else acc)
                        if m == 0 and q == 0:
                            w = list(range(wf, wf + 8))
                            if st == 0 and T == 0 and pi > 0:
                                for mm in range(4): w += [areg(pr[0], mm), areg(pr[1], mm)]
                            x = [WaitRegs(w), x]
                        main.append(x)
    nb1 = len(blocks)
    def hreg(p, m): return AG + 8 * (p % 28) + 4 * m
    for st in range(9):
        for pp in range(2):
            for n in range(9):
                bi = len(blocks)
                wf = AG + 224 + 8 * ((bi - nb1) % 4)
                blocks.append(dict(start=len(main), g=2, st=st, pp=pp, n=n, wf=wf))
                for m in range(2):
                    order = (0, 1) if (m % 2 == 0 or not CFG['chain']) else (1, 0)
                    for q, i in enumerate(order):
                        p = 4 * st + 2 * pp + i
                        x = mfma(oreg(m, n), wf + 4 * i, hreg(p, m), None if (st == 0 and pp == 0 and q == 0) else oreg(m, n))
                        if m == 0 and q == 0:
                            w = list(range(wf, wf + 8))
                            if n == 0:
                                for mm in range(2):
                                    for ii in range(2): w += list(range(hreg(p + ii, mm), hreg(p + ii, mm) + 4))
                            x = [WaitRegs(w), x]
                        main.append(x)
    NM = len(main)
    start = [bl["start"] for bl in blocks] + [NM]
    stage1 = [min(bl["start"] for bl in blocks if bl["g"] == 1 and bl["st"] == s_) for s_ in range(4)] + [start[nb1]]
    stage2 = [min(bl["start"] for bl in blocks if bl["g"] == 2 and bl["st"] == s_) for s_ in range(9)] + [NM]
    def pair_end(st, pi):
        return max(start[i + 1] for i, bl in enumerate(blocks) if bl["g"] == 1 and bl["st"] == st and bl["pi"] == pi) - 1

    rd, dm = [], []
    au = LdsAddr([vTRU + T for T in range(4)], 0)
    aw = LdsAddr([vTRN, vWE, vWE + 1], 0)
    toks = {}
    def wd_dma(stage, nb, step):
        tok = P.newtok(); toks[("d", stage)] = tok
        it = []
        if stage == 0:
            so = S(sWD0)
            it.append("s_add_u32 %s, %s, %s" % (S(t3), S(sNL), S(sW1K))); it.append("s_add_u32 %s, %s, 32768" % (S(t3), S(t3)))
        else:
            k = 8 * (stage - 1) if stage <= 4 else 8 * (stage - 5) + 2
            it.append("s_add_u32 %s, %s, %d" % (S(t2), S(sWDB), k * 36864)); so = S(t2)
            it.append("s_add_u32 %s, %s, %d" % (S(t3), S(sKW), k * 1024))
        base = WD_SLAB[stage % 4][0]
        for q in range(9):
            if q % 4 == 0: it.append("s_add_u32 m0, %s, %d" % (S(sD2), base + 1024 * q))
            if q < 8: it.append("buffer_load_dwordx4 %s, %s, %s offen offset:%d lds" % (V(vWD + q), srd(sWD), so, 1024 * (q % 4)))
            else: it.append(P.mk("buffer_load_dwordx4 %s, %s, %s offen sc1 lds" % (V(vL16), srd(sWS), S(t3)), tok))
        dm.extend(paced(it, nb + 1, step)[0])
    P("s_mul_i32 %s, %s, 9216" % (S(sD2), S(sWAVE)))
    if CFG["late"]:
        lo = 30 - CFG["late"]
        its = []
        for s2 in range(lo, 30):
            tok = None
            if s2 % 6 == 5:
                tok = P.newtok(); toks[("u", s2 // 6)] = tok
            its.append(dma_unit(P, s2, tok))
        dm.extend(paced(its, CFG["lateat"], 5, 400)[0])
    prev_nb = -1
    for bi, bl in enumerate(blocks):
        lead = 2 if bl["g"] == 1 else 3
        nb = start[bi - lead] - 1 if bi >= lead else -1
        dl = start[bi - lead + 1] if bi >= lead else 0
        if bl["g"] == 1:
            st, pi, T = bl["st"], bl["pi"], bl["T"]
            sig = st * 18 + 2 * pi
            if T == 0 and sig % 6 == 0 and sig >= 18:
                g = sig // 6
                it = []
                if ("u", g) in toks: it.append(WaitTok(toks[("u", g)]))
                it += ["s_waitcnt lgkmcnt(0)", "s_barrier"]
                rd.append((nb, nb + 1, it))
                if g + 2 < 12:
                    tok = P.newtok(); toks[("u", g + 2)] = tok
                    dm.extend(paced([dma_unit(P, s2, tok if s2 % 6 == 5 else None) for s2 in range(6 * (g + 2), 6 * (g + 3))], nb + 3, CFG["ustep"])[0])
                if g == CFG['w0']: wd_dma(0, nb + 1 + 6 * CFG['ustep'], 5)
                if g == CFG['w1']: wd_dma(1, nb + 1 + 6 * CFG['ustep'], 5)
                if g == 10: wd_dma(2, nb + 1, CFG['w2step'])
                nb += 1
            items = []
            for i in range(2):
                if T in ("ng", "nu"):
                    o = PAIRS[pi][i] * 2048 + (1024 if T == "nu" else 0)
                    items += ["ds_read_b128 %s, %s offset:%d" % (R(bl["wf"] + 4 * i, 4), V(vTRN), o)]
                else:
                    ad = slab_addr(sig + i)
                    gbase = slab_addr(sig - sig % 6)
                    items += au.rebase(gbase, gbase + 24576)
                    items += ["ds_read_b64_tr_b16 %s, %s offset:%d" % (R(bl["wf"] + 4 * i + 2 * h, 2), V(vTRU + T), au.off(ad + 2048 * h)) for h in range(2)]
        else:
            st, pp, n = bl["st"], bl["pp"], bl["n"]
            if bi == nb1:
                nb = start[bi - 2] - 1; dl = start[bi - 1]
            if bi == nb1 + 1:
                nb = start[bi - 3] - 1; dl = start[bi - 1]
            if bi == nb1 + 2:
                dl = start[bi - 1]
            if pp == 0 and n == 0:
                it = [WaitTok(toks[("d", st)]), "s_waitcnt lgkmcnt(0)", "s_barrier"]
                rd.append((nb, nb + 1, it))
                if st == 0:
                    x0, x1 = V(vWE), V(vWE + 1)
                    for x in ["v_and_b32 %s, 0xc0, %s" % (x0, V(vL16)), "v_and_b32 %s, 24, %s" % (x1, V(vL8)), "v_add_u32 %s, %s, %s" % (x0, x0, x1),
                              "v_lshrrev_b32 %s, 8, %s" % (x1, V(vL16)), "v_lshl_add_u32 %s, %s, 10, %s" % (x0, x1, x0), "v_and_b32 %s, 1, %s" % (x1, x1),
                              "v_lshl_add_u32 %s, %s, 5, %s" % (x0, x1, x0), "v_xor_b32 %s, 32, %s" % (x1, x0), "v_mov_b32 %s, %s" % (V(vTRN), V(vL16))]:
                        rd.append((nb + 1, dl, x))
                if st + 3 < 9: wd_dma(st + 3, nb + 1, CFG['dstep'])
                nb += 1
            items = []
            for i in range(2):
                ad = wd_slab(st, 2 * pp + i)
                lo = wd_slab(st, 2 * pp)
                items += aw.rebase(lo, lo + 2 * 9216)
                if n < 8: items += ["ds_read_b64_tr_b16 %s, %s offset:%d" % (R(bl["wf"] + 4 * i + 2 * h, 2), V(vWE + (n & 1)), aw.off(ad + 4096 * h + 256 * (n >> 1))) for h in range(2)]
                else: items += ["ds_read_b128 %s, %s offset:%d" % (R(bl["wf"] + 4 * i, 4), V(vTRN), aw.off(ad + 8192))]
        nb = max(nb, prev_nb); prev_nb = nb
        dl = max(dl, nb + 1)
        k = 0
        for x in items:
            rd.append((min(nb + k * (CFG["rsp1"] if bl["g"] == 1 else CFG["rsp2"]), dl - 1) if nb >= 0 else nb, dl, x))
            if x.startswith("ds_"): k += 1

    ld = []
    apos = 0
    for pi in range(2, 9):
        use = [bl["start"] for bl in blocks if bl["g"] == 1 and bl["st"] == 0 and bl["pi"] == pi][0]
        x, apos = paced([aload(PAIRS[pi][0], m) for m in range(4)], apos, CFG['astep'] / 2, use)
        ld += x
        if pi == 8:
            it = ["v_lshrrev_b32 %s, 2, %s" % (V(vT + 8), V(vL16)), "v_and_b32 %s, 0x3c, %s" % (V(vT + 8), V(vT + 8)),
                  "v_lshrrev_b32 %s, 8, %s" % (V(vT + 9), V(vL16)), "v_lshl_add_u32 %s, %s, 9, %s" % (V(vT + 8), V(vT + 9), V(vT + 8)),
                  "s_sub_u32 %s, %s, %d" % (S(t1), S(sA), WS_HC), "s_mul_hi_u32 %s, %s, %d" % (S(t1), S(t1), 477218589),
                  "s_add_u32 %s, %s, %d" % (S(t1), S(t1), WS_SSQ)]
            for m in range(4):
                if m == 2: it.append("s_add_u32 %s, %s, 4096" % (S(t1), S(t1)))
                for h in range(2):
                    it.append("buffer_load_dword %s, %s, %s, %s offen offset:%d sc1" % (V(vT + 2 * m + h), V(vT + 8), srd(sWS), S(t1), 2048 * (m % 2) + 256 * h))
            x, apos = paced(it, apos, 3)
            ld += x
    for which, at in CFG['pfB']:
        assert at <= 400 or at >= 436
        rg = (vT + 13, vT + 10, vT + 11, vT + 12) if at <= 400 else (vT + 7, vT + 4, vT + 3, vT + 2)
        ld.append((at, 420 if at <= 400 else INF, hbm_prefetch(P, which, rg[0], rg[1], rg[2], rg[3], vFD, True, S(sL2), S(t1))))
    s4 = stage1[3]
    def hload(p):
        k = kappa(p); it = []
        if p < 4:
            for m in range(2):
                it.append("s_add_u32 %s, %s, %d" % (S(t1), S(sHLD), m * 147456 + k * 1024))
                for h in range(2):
                    it.append("buffer_load_dwordx2 %s, %s, %s, %s offen offset:%d sc1" % (R(hreg(p, m) + 2 * h, 2), V(vL8), srd(sWS), S(t1), 512 * h))
            return [it[:3], it[3:]]
        assert p % 2 == 0 and kappa(p + 1) == k + 1
        out = []
        for m in range(2):
            out.append(["s_add_u32 %s, %s, %d" % (S(t1), S(sHLD), m * 147456 + k * 1024),
                        "buffer_load_dwordx4 %s, %s, %s, %s offen sc1" % (R(hreg(p, m), 4), V(vL16), srd(sWS), S(t1)),
                        "buffer_load_dwordx4 %s, %s, %s, %s offen offset:1024 sc1" % (R(hreg(p + 1, m), 4), V(vL16), srd(sWS), S(t1))])
        return out
    def use2(p): return stage2[p // 4] + 36 * ((p % 4) // 2)
    ld.append((s4 + 40, INF, C.load_flags(vFD, vFA)))
    ld.append((pair_end(3, 2), INF, C.check_flags(vFD, vFA, 4) + ([] if CFG["fine"] else C.stamp("s4a"))))
    hn = 0
    for p in list(range(4)) + list(range(4, 20, 2)):
        dead = pair_end(3, 2 + (p + 1) // 4)
        x, hn = paced(hload(p), max(hn, dead), CFG['hstep'] / 2, use2(p) - CFG['hlead'])
        ld += x
    FB_LOAD, FB_CHECK = stage2[3] + CFG['fbl'], stage2[3] + CFG['fbc']
    ld.append((FB_LOAD, INF, C.load_flags(vFD, vFA)))
    ld.append((FB_CHECK, INF, C.check_flags(vFD, vFA, 5) + ([] if CFG["fine"] else C.stamp("s4b"))))
    for p in range(20, 36, 2):
        x, hn = paced(hload(p), max(hn, FB_CHECK + 1), CFG['hstep2'] / 2, use2(p) - CFG['hlead'])
        ld += x

    ep = []
    nb = pair_end(0, 7)
    for m in range(4):
        r = vR2 + m
        it = ["v_add_f32 %s, %s, %s" % (V(r), V(vT + 2 * m), V(vT + 2 * m + 1))] + allred(r, vT + 9, "v_add_f32")
        it += ["v_mov_b32 %s, 0x3727c5ac" % V(vT + 9), "v_fmac_f32 %s, 0x3ae38e39, %s" % (V(vT + 9), V(r)), "v_rcp_f32 %s, %s" % (V(r), V(vT + 9))]
        for x in it: ep.append((nb, stage1[1], x))
    stq = [vT + 8, vT + 12]
    nb = stage1[1] + 3
    for m in range(4):
        g, u, q = vP + 4 * m, vP + 16 + 4 * m, stq[m % 2]
        for j in range(4):
            ep.append((nb, INF, "v_max_f32 %s, 0, %s" % (V(g + j), V(g + j))))
            ep.append((nb, INF, "v_mul_f32 %s, %s, %s" % (V(u + j), V(vR2 + m), V(u + j))))
            ep.append((nb, INF, "v_mul_f32 %s, %s, %s" % (V(g + j), V(g + j), V(u + j))))
        for h in range(2): ep.append((nb, INF, "v_cvt_pk_bf16_f32 %s, %s, %s" % (V(q + h), V(g + 2 * h), V(g + 2 * h + 1))))
        ep.append((nb, INF, "s_add_u32 %s, %s, %d" % (S(sE1), S(sHSN), m * 147456)))
        ep.append((nb, INF, "buffer_store_dwordx2 %s, %s, %s, %s offen %s" % (V(q, 2), V(vL8), srd(sWS), S(sE1), CFG["hst"])))
    for T in range(4):
        for m in range(4):
            g, pk = vG + 16 * T + 4 * m, vP + 2 * (4 * T + m)
            for j in range(4): ep.append((nb, stage1[2], "v_mul_f32 %s, %s, %s" % (V(g + j), V(vR2 + m), V(g + j))))
            for h in range(2): ep.append((nb, stage1[2], "v_cvt_pk_bf16_f32 %s, %s, %s" % (V(pk + h), V(g + 2 * h), V(g + 2 * h + 1))))
            for h in range(2): ep.append((nb, stage1[2], "v_pk_max_i16 %s, %s, 0" % (V(pk + h), V(pk + h))))
    nb = stage1[2] + 3
    tokA = P.newtok()
    k = 0
    for m in range(4):
        for i in range(2):
            q = stq[k % 2]; k += 1
            for tt in range(2):
                T = 2 * i + tt
                u, pk = vU + 16 * T + 4 * m, vP + 2 * (4 * T + m)
                for h in range(2):
                    ep.append((nb, stage1[3], "v_lshlrev_b32 %s, 16, %s" % (V(vT + 5), V(pk + h))))
                    ep.append((nb, stage1[3], "v_and_b32 %s, 0xffff0000, %s" % (V(vT + 6), V(pk + h))))
                    ep.append((nb, stage1[3], "v_mul_f32 %s, %s, %s" % (V(vT + 5), V(vT + 5), V(u + 2 * h))))
                    ep.append((nb, stage1[3], "v_mul_f32 %s, %s, %s" % (V(vT + 6), V(vT + 6), V(u + 2 * h + 1))))
                    ep.append((nb, stage1[3], "v_cvt_pk_bf16_f32 %s, %s, %s" % (V(q + 2 * tt + h), V(vT + 5), V(vT + 6))))
            it = []
            if i == 0: it.append("s_add_u32 %s, %s, %d" % (S(sE2), S(sHST), m * 147456))
            it.append(P.mk("buffer_store_dwordx4 %s, %s, %s, %s offen offset:%d %s" % (V(q, 4), V(vL16), srd(sWS), S(sE2), 1024 * i, CFG["hst"]), tokA if (m, i) == (3, 1) else None))
            for x in it: ep.append((nb, stage1[3], x))
    ep.append((stage1[3] - 24, stage1[3] + 8, [WaitTok(tokA)] + C.publish(vT + 5, 4)))
    nb = stage1[3] + 9
    for T in range(4):
        for m in range(4):
            g = vG + 16 * T + 4 * m
            for j in range(4):
                ep.append((nb, stage1[4], "v_mul_f32 %s, %s, %s" % (V(g + j), V(vR2 + m), V(g + j))))
                ep.append((nb, stage1[4], "v_max_f32 %s, 0, %s" % (V(g + j), V(g + j))))
    nb = stage1[4] + 3
    tokB = P.newtok()
    k = 0
    for m in range(4):
        for i in range(2):
            q = stq[k % 2]; k += 1
            for tt in range(2):
                T = 2 * i + tt
                u, g = vU + 16 * T + 4 * m, vG + 16 * T + 4 * m
                for j in range(4): ep.append((nb, INF, "v_mul_f32 %s, %s, %s" % (V(u + j), V(u + j), V(g + j))))
                for h in range(2): ep.append((nb, INF, "v_cvt_pk_bf16_f32 %s, %s, %s" % (V(q + 2 * tt + h), V(u + 2 * h), V(u + 2 * h + 1))))
            it = []
            if i == 0: it.append("s_add_u32 %s, %s, %d" % (S(sE2), S(sHST), m * 147456 + 2048))
            it.append(P.mk("buffer_store_dwordx4 %s, %s, %s, %s offen offset:%d %s" % (V(q, 4), V(vL16), srd(sWS), S(sE2), 1024 * i, CFG["hst"]), tokB if (m, i) == (3, 1) else None))
            for x in it: ep.append((nb, INF, x))
    ep.append((stage2[2] + CFG['fbp'], FB_LOAD, [WaitTok(tokB)] + C.publish(vT + 5, 5)))
    it = ["s_lshr_b32 %s, %s, 1" % (S(sE1), S(sFQ)), "s_add_u32 %s, %s, %s" % (S(sMT2), S(sMT2), S(sE1)),
          "s_mul_i32 %s, %s, 18432" % (S(sE1), S(sMT2)), "s_add_u32 %s, %s, %d" % (S(sE1), S(sE1), WS_H),
          "s_and_b32 %s, %s, 3" % (S(sE2), S(sFS)), "s_lshl_b32 %s, %s, 9" % (S(sE2), S(sE2)), "s_add_u32 %s, %s, %s" % (S(sA), S(sE1), S(sE2)),
          "s_add_u32 %s, %s, 16384" % (S(sA), S(sA)), "s_lshl_b32 %s, %s, 3" % (S(sE2), S(sE2)), "s_add_u32 %s, %s, %s" % (S(sE1), S(sE1), S(sE2)),
          "s_and_b32 %s, %s, 1" % (S(sE2), S(sFQ)), "s_mul_i32 %s, %s, 2048" % (S(sE2), S(sE2)), "s_add_u32 %s, %s, %s" % (S(sE1), S(sE1), S(sE2))]
    it += ["buffer_load_dwordx2 %s, %s, %s, %s offen offset:%d sc1" % (V(vG + 2 * n, 2), V(vL8), srd(sWS), S(sE1), 512 * n) for n in range(4)]
    it += ["buffer_load_dwordx2 %s, %s, %s, %s offen sc1" % (V(vG + 10, 2), V(vL8), srd(sWS), S(sA))]
    ep += paced(it, stage2[6] + 30, 5)[0]
    it = ["v_lshrrev_b32 %s, 4, %s" % (V(vFA), V(vL16)), "v_and_b32 %s, 3, %s" % (V(vFA), V(vFA)), "v_lshlrev_b32 %s, 8, %s" % (V(vFA), V(vFA)),
          "s_lshl_b32 %s, %s, 10" % (S(sE1), S(sIDX)), "s_lshl_b32 %s, %s, 7" % (S(sE2), S(sMH)), "s_add_u32 %s, %s, %s" % (S(sE1), S(sE1), S(sE2)),
          "s_lshl_b32 %s, %s, 2" % (S(sE2), S(sWAVE)), "s_add_u32 %s, %s, %s" % (S(sE1), S(sE1), S(sE2)), "v_add_u32 %s, %s, %s" % (V(vFA), S(sE1), V(vFA))] + flagfix(V(vFA), V(vFD))
    for x in it: ep.append((stage2[7] + 10, INF, x))
    if CFG["ptouch"]:
        x0, x1 = V(vT + 2), V(vT + 3)
        it = ["v_lshrrev_b32 %s, 4, %s" % (x0, V(vL16)), "v_mul_u32_u24 %s, 2979, %s" % (x1, x0), "v_lshrrev_b32 %s, 16, %s" % (x1, x1),
              "v_mul_u32_u24 %s, 22, %s" % (V(vT + 4), x1), "v_sub_u32 %s, %s, %s" % (x0, x0, V(vT + 4)),
              "v_add_u32 %s, %s, %s" % (x1, S(sFQ), x1), "v_add_u32 %s, 1, %s" % (x1, x1), "v_and_b32 %s, 3, %s" % (x1, x1),
              "v_mul_u32_u24 %s, 12288, %s" % (x1, x1), "v_lshl_add_u32 %s, %s, 7, %s" % (x0, x0, x1),
              "s_lshl_b32 %s, s2, 4" % S(sE1), "s_add_u32 %s, %s, %s" % (S(sE1), S(sE1), S(sWAVE)), "s_mul_i32 %s, %s, 3072" % (S(sE1), S(sE1)),
              "s_add_u32 %s, %s, %d" % (S(sE1), S(sE1), WS_PART)]
        x = P.mk("buffer_load_dword %s, %s, %s, %s offen %s" % (V(vT + 4), x0, srd(sWS), S(sE1), CFG["ptm"])); x.dst = []
        at = CFG["ptouch"]
        k = [i for i, e in enumerate(ep) if e[0] <= at][-1] + 1
        ep[k:k] = [(at, INF, y) for y in it + [x]]
    for x in final_setup(): ep.append((stage2[8] + 4, INF, x))
    def respread(lo, hi):
        idx = [k for k, e in enumerate(ep) if e[0] == lo]
        for c_, k in enumerate(idx): ep[k] = (lo + (hi - lo) * c_ // len(idx), ep[k][1], ep[k][2])
    respread(pair_end(0, 7), stage1[1] - 2)
    respread(stage1[1] + 3, stage1[2] - 8)
    respread(stage1[2] + 3, stage1[2] + CFG['e2'])
    respread(stage1[3] + 9, stage1[4] - 8)
    respread(stage1[4] + 3, stage1[4] + CFG["e4"])
    if C.timing:
        for s_ in range(1, 5): ep.append((stage1[s_], INF, C.stamp("g1s%d" % s_)))
        if CFG["fine"] == 1:
            for s_ in range(1, 9): ep.append((stage2[s_], INF, C.stamp("b%d" % s_)))
        ep.sort(key=lambda x: x[0])

    def per(i):
        k = 1 if (i + 1 < NM and isinstance(main[i + 1], list)) else 2
        if stage1[4] <= i < stage1[4] + CFG["e4"]: k += 1
        return k
    def txt(x): return x.text if isinstance(x, Ins) else x if isinstance(x, str) else ""
    if "h" in CFG["abl"]: ld = [e for e in ld if not (e[0] >= s4 + 60 and txt(e[2]).startswith("buffer_load_dwordx"))]
    if "a" in CFG["abl"]: ld = [e for e in ld if not (e[0] < s4 and txt(e[2]).startswith("buffer_load_dwordx4"))]
    if "w" in CFG["abl"]: dm = [e for e in dm if not ("s[28:31]" in txt(e[2]) and not (isinstance(e[2], Ins) and e[2].tok))]
    if "u" in CFG["abl"]: dm = [e for e in dm if not (("s[20:23]" in txt(e[2]) or "s[24:27]" in txt(e[2])) and not (isinstance(e[2], Ins) and e[2].tok))]
    if "e" in CFG["abl"]: ep = [e for e in ep if not txt(e[2]).startswith("v_")]
    if "s" in CFG["abl"]: ep = [e for e in ep if not (txt(e[2]).startswith("buffer_store") and not (isinstance(e[2], Ins) and e[2].tok))]
    if "b" in CFG["abl"]: rd = [(e[0], e[1], [y for y in e[2] if y != "s_barrier"] if isinstance(e[2], list) else e[2]) for e in rd]
    if "r" in CFG["abl"]: rd = [e for e in rd if not txt(e[2]).startswith("ds_read")]
    multi_interleave(P, main, [rd, ld, dm, ep], per)
    for x in C.stamp("g2done"): P.add(x)
    ffn_final(C)

def final_setup():
    it = ("s_lshl_b32 %s, %s, 3\ns_add_u32 %s, %s, %s\ns_lshl_b32 %s, %s, 4\ns_add_u32 %s, %s, %s" %
          (S(t0), S(sIDX), S(t0), S(t0), S(sMH), S(t0), S(t0), S(t0), S(t0), S(sWAVE))).split("\n")
    it += ("s_mul_i32 %s, %s, 3072\ns_add_u32 %s, %s, %d" % (S(t0), S(t0), S(t0), S(t0), WS_PART)).split("\n")
    it += ("v_lshrrev_b32 %s, 4, %s\nv_and_b32 %s, 15, %s\nv_mul_u32_u24 %s, 1152, %s" % (V(vT), V(vL16), V(vT + 1), V(vT), V(vT + 1), V(vT + 1))).split("\n")
    it += ("v_mul_u32_u24 %s, 12, %s\nv_lshlrev_b32 %s, 2, %s" % (V(vT + 6), V(vT), V(vT + 7), V(vT))).split("\n")
    it += ("v_lshrrev_b32 %s, 4, %s\nv_lshl_add_u32 %s, %s, 3, %s" % (V(vT), V(vT), V(vT), V(vT), V(vT + 1))).split("\n")
    it += ("s_mul_i32 %s, %s, 18432\ns_and_b32 %s, %s, 3\ns_lshl_b32 %s, %s, 5\ns_add_u32 %s, %s, %s" % (S(t2), S(sMT2), S(t3), S(sFS), S(t3), S(t3), S(sA), S(t2), S(t3))).split("\n")
    it += ("s_lshl_b32 %s, %s, 3\ns_add_u32 %s, %s, %s" % (S(t3), S(t3), S(t2), S(t2), S(t3))).split("\n")
    w, r, o, x = V(vWD), V(vWD + 1), V(vWD + 2), V(vWD + 3)
    it += ["s_mul_i32 %s, %s, 2304" % (S(t3), S(sWAVE)), "v_lshrrev_b32 %s, 4, %s" % (x, V(vL16)), "v_and_b32 %s, 15, %s" % (w, x), "v_mul_u32_u24 %s, 144, %s" % (w, w),
           "v_lshrrev_b32 %s, 4, %s" % (r, x), "v_lshl_add_u32 %s, %s, 3, %s" % (w, r, w), "v_add_u32 %s, %s, %s" % (w, S(t3), w),
           "v_lshrrev_b32 %s, 3, %s" % (x, x), "v_and_b32 %s, 0x70, %s" % (o, V(vL16)), "v_mul_u32_u24 %s, 144, %s" % (r, x), "v_add3_u32 %s, %s, %s, %s" % (r, r, o, S(t3)),
           "v_mul_u32_u24 %s, 1152, %s" % (x, x), "v_add_u32 %s, %s, %s" % (o, o, x),
           "s_and_b32 %s, %s, 1" % (S(t3), S(sFQ)), "s_lshl_b32 %s, %s, 7" % (S(t3), S(t3)), "s_add_u32 %s, %s, %s" % (S(t2), S(t2), S(t3)), "s_add_u32 %s, %s, 9216" % (S(t3), S(t2))]
    return it

def ffn_final(C):
    P = C.P
    labs = [P.newlabel(C.name + "_fin") for _ in range(4)]
    done = P.newlabel(C.name + "_findone")
    C.touch_labels |= set(labs[1:])
    ck = CFG["s5"]
    P.add(WaitRegs(list(range(vG, vG + 8)) + [vG + 10, vG + 11]))
    for fq in range(1, 4):
        P("s_cmp_eq_u32 %s, %d\ns_cbranch_scc1 %s" % (S(sFQ), fq, labs[fq]))
    def part(f): return [(f >> 1, n) for n in ((4, 5, 6, 7) if f & 1 else (0, 1, 2, 3, 8))]
    names = ("f0", "f1", "", "f3", "") if ck else ("f0", "f1", "f2", "f3", "f4")
    fst = [C.stamp(n) if (CFG["fine"] == 2 and n) else [] for n in names]
    def xfer(op, st, n, so):
        P("buffer_%s_dwordx4 %s, %s, %s, %s offen sc1" % (op, V(st, 4), V(vL16), srd(sWS), so))
        P("buffer_%s_dwordx4 %s, %s, %s, %s offen offset:1024 sc1" % (op, V(st + 4, 4), V(vL16), srd(sWS), so))
        if ck:
            if n == 5: P("buffer_%s_dwordx3 %s, %s, %s, %s offen offset:2048 sc1" % (op, V(st + 8, 3), V(vT + 6), srd(sWS), so))
            else: P("buffer_%s_dword %s, %s, %s, %s offen offset:2048 sc1" % (op, V(st + 8), V(vT + 7), srd(sWS), so))
        elif n == 5: P("buffer_%s_dwordx2 %s, %s, %s, %s offen offset:2048 sc1" % (op, V(st + 8, 2), V(vL8), srd(sWS), so))
    def csum(dst, st, n):
        P("v_add3_u32 %s, %s, %s, %s" % (V(dst), V(st), V(st + 1), S(sNON)))
        for k in range(2, 2 * n, 2): P("v_add3_u32 %s, %s, %s, %s" % (V(dst), V(st + k), V(st + k + 1), V(dst)))
    for fq in range(4):
        P.label(labs[fq])
        if fq: P("s_nop 4")
        for x in fst[0]: P.add(x)
        st = vU
        for d in range(4):
            if d == fq: continue
            tl = part(d)
            for i, (m, n) in enumerate(tl):
                for h in range(2):
                    P("v_cvt_pk_bf16_f32 %s, %s, %s" % (V(st + 2 * i + h), V(oreg(m, n) + 2 * h), V(oreg(m, n) + 2 * h + 1)))
            P("s_add_u32 %s, %s, %d" % (S(t1), S(t0), (d * 2 * 16 + fq * 4) * 3072))
            if ck: csum(st + 2 * len(tl), st, len(tl))
            xfer("store", st, len(tl), S(t1))
            st += 12
        tl = part(fq)
        if ck == 2:
            for x in C.publish(vT + 5, 6): P.add(x)
        for i, (m, n) in enumerate(tl):
            o = oreg(m, n)
            for h in range(2):
                hr = V(vG + (10 if n == 8 else 2 * i) + h)
                P("v_lshlrev_b32 %s, 16, %s\nv_and_b32 %s, 0xffff0000, %s" % (V(vT + 2), hr, V(vT + 3), hr))
                P("v_pk_add_f32 %s, %s, %s" % (V(o + 2 * h, 2), V(o + 2 * h, 2), V(vT + 2, 2)))
        for x in fst[1]: P.add(x)
        stl = [vU + 40, vU + 52, vG + 12]
        srcs = [d for d in range(4) if d != fq]
        if ck == 2:
            P.add(C.load_flags(vFD, vFA))
            for x in C.check_flags(vFD, vFA, 6, vT + 15): P.add(x)
        if ck:
            loop, ok = P.newlabel(C.name + "_s5"), P.newlabel(C.name + "_s5ok")
            P("s_mov_b32 %s, 0" % S(sSPIN))
            P.label(loop)
        else:
            P("s_waitcnt vmcnt(0)")
            for x in fst[2]: P.add(x)
            for x in C.publish(vT + 5, 6): P.add(x)
            P.add(C.load_flags(vFD, vFA))
            P("s_waitcnt vmcnt(0)")
            for x in C.check_flags(vFD, vFA, 6, vT + 15): P.add(x)
            for x in fst[3]: P.add(x)
        for k, d in enumerate(srcs):
            P("s_add_u32 %s, %s, %d" % (S(t1), S(t0), (fq * 2 * 16 + d * 4) * 3072))
            xfer("load", stl[k], len(tl), S(t1))
        if ck:
            P("s_add_u32 %s, %s, 1" % (S(sSPIN), S(sSPIN)))
            for k in range(3):
                csum(vT + 8 + k, stl[k], len(tl))
                P("v_xor_b32 %s, %s, %s" % (V(vT + 8 + k), V(vT + 8 + k), V(stl[k] + 2 * len(tl))))
            P("v_or3_b32 %s, %s, %s, %s" % (V(vT + 8), V(vT + 8), V(vT + 9), V(vT + 10)))
            P("v_cmp_ne_u32 vcc, 0, %s\ns_cmp_gt_u32 %s, %d\ns_cbranch_scc1 %s\ns_cbranch_vccnz %s" % (V(vT + 8), S(sSPIN), SPIN_MAX, ok, loop))
            P.label(ok)
            for x in fst[3]: P.add(x)
        elif CFG["fine"] == 2:
            P("s_waitcnt vmcnt(0)")
            for x in fst[4]: P.add(x)
        for k in range(3):
            st = stl[k]
            for i, (m, n) in enumerate(tl):
                o = oreg(m, n)
                for h in range(2):
                    P("v_lshlrev_b32 %s, 16, %s\nv_and_b32 %s, 0xffff0000, %s" % (V(vT + 2), V(st + 2 * i + h), V(vT + 3), V(st + 2 * i + h)))
                    P("v_pk_add_f32 %s, %s, %s" % (V(o + 2 * h, 2), V(o + 2 * h, 2), V(vT + 2, 2)))
                if k == 2:
                    for h in range(2): P("v_cvt_pk_bf16_f32 %s, %s, %s" % (V(o + h), V(o + 2 * h), V(o + 2 * h + 1)))
                    if n == 8: P("buffer_store_dwordx2 %s, %s, %s, %s offen offset:1024 %s" % (V(o, 2), V(vT), srd(sOUT), S(sA), CFG["ost"]))
                    elif CFG["otr"]:
                        P("ds_write_b64 %s, %s offset:%d" % (V(vWD), V(o, 2), 32 * i))
                        if i == 3:
                            for h in range(2): P("ds_read_b128 %s, %s offset:%d" % (V(vU + 4 * h, 4), V(vWD + 1), 1152 * h))
                    else: P("buffer_store_dwordx2 %s, %s, %s, %s offen offset:%d %s" % (V(o, 2), V(vT), srd(sOUT), S(t2), 32 * i, CFG["ost"]))
        if CFG["otr"]:
            for h in range(2): P("buffer_store_dwordx4 %s, %s, %s, %s offen %s" % (V(vU + 4 * h, 4), V(vWD + 2), srd(sOUT), S(t3 if h else t2), CFG["ost"]))
        if C.timing: P("s_waitcnt vmcnt(0)")
        if fq < 3:
            P("s_branch %s" % done)
            P.reset()
    P.label(done)
    for x in C.stamp("end"): P.add(x)
```

```python
from common import *
import ffn
from ffn import AG

ACFG = dict(map="4x8", pace=1.0, pfR={}, pa=6, pb=15, pub1=32, touch=0, xfirst=0, tab=0, mw=1, wqe=0, wqfr=1.0, pf3=[1], r0e=13, r1w=0, wfirst=0, r1e=0, aux=1, woq=18, wofr=0.4, early=1, rpt=0, pbat=40, pbstep=3, prep=0, fillat=4, pf0=[], pfQ=[], pfS2=[], pfS3=[], ct2=1, hop2=1, l4=1, tlb=0, hop=1, r1pre=13, cs=1, rst=[])
sRBK, sHP = 58, 59
sZ = 53
sW8K, sW5K, sKV = 76, 77, 78
mD, mE, mF, mG = 80, 82, 84, 94
sXB, sWB, sMT = 86, 87, 88
mA, mB, mC = 90, 92, 94
t0, t1, t2, t3 = 96, 97, 98, 99
RND = 53248
L_PHI, L_WBAR, L_MEAN = 159744, 161792, 162048
L_R, L_ZERO = 92160, 96256
vAC = 0
vSUM, vSSQ = 60, 68
vONE = 76
vWF = 80
vPH = 104
vXD, vXR, vWK, vWR, vWM = 128, 130, 132, 137, 138
vLANE, vA, vB = 139, 140, 142
vF = 144
vPP = 160
vPHI = 184
vT = 208
vFA, vFD = 232, 233
vL16 = 234
vWQ = 235
vX2 = 240
LOG2E = 0x3fb8aa3b
def acc(T, c): return vAC + 12 * T + 4 * c
def xf(k, m): return AG + 8 * k + 4 * m

def f_rb(P, dst, rb, tmp):
    if ACFG["map"] == "4x8":
        P("s_and_b32 %s, %s, 3\ns_lshl_b32 %s, %s, 13\ns_lshr_b32 %s, %s, 2\ns_lshl_b32 %s, %s, 8\ns_add_u32 %s, %s, %s" % (dst, rb, dst, dst, tmp, rb, tmp, tmp, dst, dst, tmp))
    else:
        P("s_and_b32 %s, %s, 1\ns_lshl_b32 %s, %s, 14\ns_lshr_b32 %s, %s, 1\ns_lshl_b32 %s, %s, 7\ns_add_u32 %s, %s, %s" % (dst, rb, dst, dst, tmp, rb, tmp, tmp, dst, dst, tmp))
def f_hp(P, dst, hp, tmp):
    if ACFG["map"] == "4x8":
        P("s_and_b32 %s, %s, 7\ns_lshl_b32 %s, %s, 10\ns_lshr_b32 %s, %s, 3\ns_lshl_b32 %s, %s, 7\ns_add_u32 %s, %s, %s" % (dst, hp, dst, dst, tmp, hp, tmp, tmp, dst, dst, tmp))
    else:
        P("s_lshl_b32 %s, %s, 10" % (dst, hp))
def vf_rb(P, dst, rb, tmp):
    if ACFG["map"] == "4x8":
        P("v_and_b32 %s, 3, %s\nv_lshlrev_b32 %s, 13, %s\nv_lshrrev_b32 %s, 2, %s\nv_lshl_add_u32 %s, %s, 8, %s" % (dst, rb, dst, dst, tmp, rb, dst, tmp, dst))
    else:
        P("v_and_b32 %s, 1, %s\nv_lshlrev_b32 %s, 14, %s\nv_lshrrev_b32 %s, 1, %s\nv_lshl_add_u32 %s, %s, 7, %s" % (dst, rb, dst, dst, tmp, rb, dst, tmp, dst))
def vf_hp(P, dst, hp, tmp):
    if ACFG["map"] == "4x8":
        P("v_and_b32 %s, 7, %s\nv_lshlrev_b32 %s, 10, %s\nv_lshrrev_b32 %s, 3, %s\nv_lshl_add_u32 %s, %s, 7, %s" % (dst, hp, dst, dst, tmp, hp, dst, tmp, dst))
    else:
        P("v_lshlrev_b32 %s, 10, %s" % (dst, hp))

def perm32(P, out, rho, tmp):
    P("v_bfe_u32 %s, %s, 2, 2\nv_lshlrev_b32 %s, 3, %s" % (out, rho, out, out))
    P("v_bfe_u32 %s, %s, 4, 1\nv_lshl_add_u32 %s, %s, 2, %s" % (tmp, rho, out, tmp, out))
    P("v_and_b32 %s, 3, %s\nv_add_u32 %s, %s, %s" % (tmp, rho, out, out, tmp))

def round_x(P, rho):
    base = (rho % 3) * RND
    out = []
    for cb in range(2 if rho < 4 else 1):
        for rg in range(4):
            it = []
            if rg == 0: it.append("s_add_u32 m0, %s, %d" % (S(sW8K), base + cb * 4096))
            if rg % 2 == 0:
                it.append("s_add_u32 %s, %s, %d" % (S(t0), S(sXB), (2 * rho + cb) * 128 + (rg >> 1) * (18432 - 2048)))
            it.append("buffer_load_dwordx4 %s, %s, %s offen offset:%d lds" % (V(vXD + (rg & 1)), srd(sX), S(t0), 1024 * rg))
            out.append(it)
    return out
def round_w(P, rho, tok):
    base = (rho % 3) * RND
    out = []
    for q in range(5):
        it = []
        if q == 0: it.append("s_add_u32 %s, %s, %d" % (S(t0), S(sWB), rho * 4 * 110592 + 1152))
        if q % 4 == 0: it.append("s_add_u32 m0, %s, %d" % (S(sW5K), base + 32768 + 1024 * q))
        it.append(P.mk("buffer_load_dwordx4 %s, %s, %s offen offset:%d lds" % (V(vWK + q), srd(sWQKV), S(t0), 1024 * (q % 4)), tok if q == 4 else None))
        out.append(it)
    return out
def emit_items(P, items):
    for it in items:
        if isinstance(it, (list, tuple)):
            for x in it: P.add(x)
        else: P.add(it)
class Rec:
    def __init__(self): self.items = []
    def __call__(self, text):
        self.items += [l for l in text.split("\n") if l.strip()]

def softmax(P, m):
    p0 = vPP + 12 * m
    p = [p0 + i for i in range(9)]
    mx, mn, a, b = vT, vT + 1, vT + 2, vT + 3
    ep, en = vT + 4, vT + 14
    P("v_max3_f32 %s, %s, %s, %s\nv_min3_f32 %s, %s, %s, %s" % (V(mx), V(p[0]), V(p[1]), V(p[2]), V(mn), V(p[0]), V(p[1]), V(p[2])))
    for i in (3, 5, 7):
        P("v_max3_f32 %s, %s, %s, %s\nv_min3_f32 %s, %s, %s, %s" % (V(mx), V(mx), V(p[i]), V(p[i + 1]), V(mn), V(mn), V(p[i]), V(p[i + 1])))
    P("v_mov_b32 %s, %s\nv_mov_b32 %s, %s" % (V(a), V(mx), V(b), V(mn)))
    P("v_permlane16_swap_b32 %s, %s\nv_permlane16_swap_b32 %s, %s" % (V(mx), V(a), V(mn), V(b)))
    P("v_max_f32 %s, %s, %s\nv_min_f32 %s, %s, %s" % (V(mx), V(mx), V(a), V(mn), V(mn), V(b)))
    P("v_pk_mul_f32 %s, %s, %s op_sel_hi:[1,0]" % (V(mx, 2), V(mx, 2), S(t2, 2)))
    for i in range(0, 8, 2):
        P("v_pk_fma_f32 %s, %s, %s, %s op_sel_hi:[1,0,0] neg_lo:[0,0,1] neg_hi:[0,0,1]" % (V(ep + i, 2), V(p0 + i, 2), S(t2, 2), V(mx, 2)))
        P("v_pk_fma_f32 %s, %s, %s, %s op_sel:[0,0,1] op_sel_hi:[1,0,1] neg_lo:[1,0,0] neg_hi:[1,0,0]" % (V(en + i, 2), V(p0 + i, 2), S(t2, 2), V(mx, 2)))
    P("v_fma_f32 %s, %s, %s, -%s\nv_fma_f32 %s, -%s, %s, %s" % (V(ep + 8), V(p[8]), S(t2), V(mx), V(en + 8), V(p[8]), S(t2), V(mn)))
    for i in range(9): P("v_exp_f32 %s, %s\nv_exp_f32 %s, %s" % (V(ep + i), V(ep + i), V(en + i), V(en + i)))
    for e, q in ((ep, mx), (en, a)):
        P("v_pk_add_f32 %s, %s, %s" % (V(q, 2), V(e, 2), V(e + 2, 2)))
    for k in (4, 6):
        for e, q in ((ep, mx), (en, a)):
            P("v_pk_add_f32 %s, %s, %s" % (V(q, 2), V(q, 2), V(e + k, 2)))
    P("v_add_f32 %s, %s, %s\nv_add_f32 %s, %s, %s" % (V(mx), V(mx), V(mn), V(mn), V(a), V(b)))
    P("v_add_f32 %s, %s, %s\nv_add_f32 %s, %s, %s" % (V(mx), V(mx), V(ep + 8), V(mn), V(mn), V(en + 8)))
    P("v_mov_b32 %s, %s\nv_mov_b32 %s, %s" % (V(a), V(mx), V(b), V(mn)))
    P("v_permlane16_swap_b32 %s, %s\nv_permlane16_swap_b32 %s, %s" % (V(mx), V(a), V(mn), V(b)))
    P("v_pk_add_f32 %s, %s, %s" % (V(mx, 2), V(mx, 2), V(a, 2)))
    P("v_rcp_f32 %s, %s\nv_rcp_f32 %s, %s" % (V(mx), V(mx), V(mn), V(mn)))
    P("v_mul_f32 %s, %s, %s\nv_mul_f32 %s, %s, %s" % (V(ep + 8), V(ep + 8), V(mx), V(en + 8), V(en + 8), V(mn)))
    for i in range(0, 8, 2):
        P("v_pk_mul_f32 %s, %s, %s op_sel_hi:[1,0]" % (V(ep + i, 2), V(ep + i, 2), V(mx, 2)))
        P("v_pk_mul_f32 %s, %s, %s op_sel:[0,1] op_sel_hi:[1,1]" % (V(en + i, 2), V(en + i, 2), V(mx, 2)))
    e = [ep + i for i in range(9)] + [en + i for i in range(9)]
    for i in range(9):
        P("v_cvt_pk_bf16_f32 %s, %s, %s" % (V(vPHI + 12 * m + 4 * (i // 3) + i % 3), V(e[2 * i]), V(e[2 * i + 1])))

def ln_fix(P, T, m, dst):
    s2 = "op_sel_hi:[1,0]" if m == 0 else "op_sel:[0,1] op_sel_hi:[1,1]"
    s3 = "op_sel_hi:[1,0,1]" if m == 0 else "op_sel:[0,1,0] op_sel_hi:[1,1,1]"
    for h in range(2):
        P("v_pk_mul_f32 %s, %s, %s %s" % (V(vT + 2 * h, 2), V(acc(T, 2) + 2 * h, 2), V(vB, 2), s2))
    for h in range(2):
        r = acc(T, m) + 2 * h
        P("v_pk_fma_f32 %s, %s, %s, %s %s" % (V(r, 2), V(r, 2), V(vA, 2), V(vT + 2 * h, 2), s3))
    for h in range(2):
        P("v_cvt_pk_bf16_f32 %s, %s, %s" % (V(dst + h), V(acc(T, m) + 2 * h), V(acc(T, m) + 2 * h + 1)))

def feature_map(P):
    for m in range(2):
        for T in range(3):
            d = vPP + 12 * m + 4 * T
            P(mfma(d, vPH + 8 * T, vF + 8 * m)); P(mfma(d, vPH + 8 * T + 4, vF + 8 * m + 4, d))
    for m in range(2): softmax(P, m)

vRW, vRV, vPR, vVR, vKO, vMN = 240, 241, 242, 243, 253, 254
vWC, vCS, vCA = 251, 252, 250
vWX = 248
L_CS = 162560
def wo_rows(P, rho, main, left, t_, u_):
    P("v_lshrrev_b32 %s, 4, %s\nv_and_b32 %s, 3, %s\nv_lshl_add_u32 %s, %s, 2, %s" % (t_, rho, u_, rho, t_, t_, u_))
    P("v_bfe_u32 %s, %s, 2, 2\nv_lshl_add_u32 %s, %s, 3, %s\nv_lshrrev_b32 %s, 1, %s\nv_lshl_add_u32 %s, %s, 1, %s" % (u_, rho, main, u_, t_, left, u_, main, left, main))
    P("v_lshrrev_b32 %s, 1, %s\nv_lshl_add_u32 %s, %s, 2, %s\nv_mul_u32_u24 %s, 18, %s\nv_and_b32 %s, 1, %s\nv_add3_u32 %s, %s, %s, 16" % (left, t_, left, u_, left, left, left, t_, t_, left, left, t_))
L_RP = 53248 + 4096
vRP, vRT = 246, 249
sRS, sRO = 79, 3
def repack_items(P):
    L = V(vLANE)
    a, b, c, d = V(vT + 18), V(vT + 19), V(vT + 20), V(vT + 21)
    u0, u1, u2, u3 = S(89), S(t1), S(t2), S(t3)
    out, go = [], []
    X = Rec()
    X("s_lshl_b32 %s, %s, 3\nv_lshrrev_b32 %s, 3, %s\nv_add_u32 %s, %s, %s" % (u0, S(sWAVE), a, L, a, u0, a))
    X("v_and_b32 %s, 6, %s\nv_and_b32 %s, 7, %s\nv_xor_b32 %s, %s, %s\nv_lshlrev_b32 %s, 4, %s" % (b, a, c, L, b, b, c, b, b))
    perm32(X, c, a, d)
    X("v_lshrrev_b32 %s, 2, %s\nv_bfe_u32 %s, %s, 1, 2\nv_xor_b32 %s, %s, %s\nv_lshlrev_b32 %s, 5, %s" % (d, L, V(vRT), d, V(vRT), S(sWAVE), V(vRT), V(vRT), V(vRT)))
    X("v_lshl_add_u32 %s, %s, 7, %s\nv_and_b32 %s, 3, %s\nv_lshl_add_u32 %s, %s, 3, %s" % (V(vRT), d, V(vRT), d, L, V(vRT), d, V(vRT)))
    X("v_add_u32 %s, %d, %s" % (V(vRT), L_RP, V(vRT)))
    out += X.items
    tok = P.newtok()
    for job in range(2):
        dst = S(sRS if job == 0 else sRO)
        ln, ld_ = P.newlabel("rp_n"), P.newlabel("rp_d")
        sr = sWN if job == 0 else sWPHI
        vr_ = V(vRP + job)
        it = ["s_add_u32 %s, s2, %d" % (u0, 256 * job), "s_mov_b32 %s, 5308416" % S(sr + 2)]
        if job == 1:
            lw = P.newlabel("rp_w")
            e, f = V(vT + 22), V(vT + 23)
            it += ["s_cmp_lt_u32 %s, 432" % u0, "s_cbranch_scc1 %s" % lw,
                   "s_sub_u32 %s, %s, 432" % (u0, u0), "s_mul_i32 %s, %s, 18" % (u2, S(sWAVE)), "s_add_u32 %s, %s, %s" % (u2, u2, u0), "s_lshl_b32 %s, %s, 10" % (u2, u2),
                   "s_add_u32 %s, %s, %d" % (u2, u2, WS_RW), "s_cmp_lt_u32 %s, 18" % u0, "s_cselect_b32 %s, %s, 0x7000000" % (dst, u2),
                   "s_mov_b32 %s, %s" % (S(sr), S(sWO)), "s_mov_b32 %s, %s" % (S(sr + 1), S(sWO + 1)), "s_mov_b32 %s, 663552" % S(sr + 2)]
            X = Rec(); wo_rows(X, a, vr_, e, f, d); it += X.items
            it += ["s_mul_i32 %s, %s, 36" % (u1, u0), "s_sub_u32 %s, %s, 16" % (u2, u0), "s_mul_i32 %s, %s, 288" % (u2, u2),
                   "s_cmp_lt_u32 %s, 16" % u0, "s_cselect_b32 %s, %s, %s" % (u1, u1, u2), "s_cselect_b64 vcc, -1, 0",
                   "s_mul_i32 %s, %s, 1152" % (u1, u1), "s_add_u32 %s, %s, 1024" % (u1, u1),
                   "v_cndmask_b32 %s, %s, %s, vcc" % (vr_, e, vr_), "v_mul_u32_u24 %s, 1152, %s" % (vr_, vr_), "v_add_u32 %s, %s, %s" % (vr_, vr_, b),
                   "s_branch %s" % ld_, lw + ":"]
        if job == 1: it += ["s_cmp_lt_u32 %s, 288" % u0, "s_cbranch_scc1 %s" % ln,
                            "s_sub_u32 %s, %s, 288" % (u0, u0), "s_mul_i32 %s, %s, 36864" % (u1, u0), "s_add_u32 %s, %s, 1024" % (u1, u1),
                            "s_mul_i32 %s, %s, 147456" % (u2, S(sWAVE)), "s_lshl_b32 %s, %s, 10" % (u3, u0), "s_add_u32 %s, %s, %s" % (u2, u2, u3),
                            "s_add_u32 %s, %s, %d" % (u2, u2, WS_RD), "s_cmp_lt_u32 %s, 144" % u0, "s_cselect_b32 %s, %s, 0x7000000" % (dst, u2),
                            "s_mov_b32 %s, %s" % (S(sr), S(sWD)), "s_mov_b32 %s, %s" % (S(sr + 1), S(sWD + 1)),
                            "v_mul_u32_u24 %s, 1152, %s" % (vr_, a), "v_add_u32 %s, %s, %s" % (vr_, vr_, b), "s_branch %s" % ld_, ln + ":"]
        it += ["s_mul_i32 %s, %s, 3641" % (u1, u0), "s_lshr_b32 %s, %s, 16" % (u1, u1),
               "s_mul_i32 %s, %s, 18" % (u2, u1), "s_sub_u32 %s, %s, %s" % (u0, u0, u2),
               "s_and_b32 %s, %s, 1" % (u2, u1), "s_cmp_eq_u32 %s, 0" % u2,
               "s_cselect_b32 %s, %s, %s" % (S(sr), S(sWG), S(sWU)), "s_cselect_b32 %s, %s, %s" % (S(sr + 1), S(sWG + 1), S(sWU + 1)),
               "s_lshl_b32 %s, %s, 1" % (u3, u0), "s_add_u32 %s, %s, %s" % (u2, u2, u3),
               "s_lshr_b32 %s, %s, 1" % (u1, u1),
               "s_lshl_b32 %s, %s, 2" % (u3, u1), "s_add_u32 %s, %s, %s" % (u3, u3, S(sWAVE)), "s_mul_i32 %s, %s, 36" % (u3, u3),
               "s_add_u32 %s, %s, %s" % (u2, u2, u3), "s_lshl_b32 %s, %s, 10" % (u2, u2), "s_add_u32 %s, %s, %d" % (dst, u2, WS_RN),
               "s_lshr_b32 %s, %s, 1" % (u2, u1), "s_mul_i32 %s, %s, 2304" % (u2, u2), "s_and_b32 %s, %s, 1" % (u1, u1), "s_lshl_b32 %s, %s, 7" % (u1, u1),
               "s_add_u32 %s, %s, %s" % (u1, u1, u2), "s_add_u32 %s, %s, 2048" % (u1, u1),
               "s_cmp_lt_u32 %s, 16" % u0, "s_cselect_b64 vcc, -1, 0",
               "s_mul_i32 %s, %s, %d" % (u2, u0, 32 * 9216), "s_add_u32 %s, %s, %s" % (u1, u1, u2),
               "v_cndmask_b32 %s, %s, %s, vcc" % (vr_, c, a), "v_mul_u32_u24 %s, 9216, %s" % (vr_, vr_), "v_add_u32 %s, %s, %s" % (vr_, vr_, b)]
        if job == 1: it.append(ld_ + ":")
        it.append("v_add_u32 %s, %s, %s" % (vr_, u1, vr_))
        out.append(it)
        go.append(["s_add_u32 m0, %s, %d" % (S(sW1K), L_RP + 8192 * job), P.mk("buffer_load_dwordx4 %s, %s, 0 offen lds" % (vr_, srd(sr)), tok if job == 1 else None)])
    return out, go, tok
def repack_out(P, r0):
    for job in range(2):
        for h in range(2): P("ds_read_b64_tr_b16 %s, %s offset:%d" % (V(r0 + 4 * job + 2 * h, 2), V(vRT), 8192 * job + 2048 * h))
    return ["buffer_store_dwordx4 %s, %s, %s, %s offen sc1" % (V(r0 + 4 * job, 4), V(vL16), srd(sWS), S(sRS if job == 0 else sRO)) for job in range(2)]

def p1(C, code_bytes):
    C.code_bytes = code_bytes
    P = C.P
    L = V(vLANE)
    a, b, c, d = V(vT), V(vT + 1), V(vT + 2), V(vT + 3)
    P("v_mov_b32 %s, v0\nv_lshlrev_b32 %s, 4, v0" % (L, V(vL16)))
    if ACFG["map"] == "4x8":
        P("s_lshr_b32 %s, %s, 1\ns_lshl_b32 %s, %s, 2\ns_lshr_b32 %s, %s, 3\ns_add_u32 %s, %s, %s" % (S(t0), S(sXCD), S(t0), S(t0), S(t1), S(sIDX), S(sRBK), S(t0), S(t1)))
        P("s_and_b32 %s, %s, 1\ns_lshl_b32 %s, %s, 3\ns_and_b32 %s, %s, 7\ns_add_u32 %s, %s, %s" % (S(t0), S(sXCD), S(t0), S(t0), S(t1), S(sIDX), S(sHP), S(t0), S(t1)))
    else:
        P("s_lshl_b32 %s, %s, 1\ns_lshr_b32 %s, %s, 4\ns_add_u32 %s, %s, %s\ns_and_b32 %s, %s, 15" % (S(t0), S(sXCD), S(t1), S(sIDX), S(sRBK), S(t0), S(t1), S(sHP), S(sIDX)))
    P("s_lshl_b32 %s, %s, 13\ns_mul_i32 %s, %s, 5120" % (S(sW8K), S(sWAVE), S(sW5K), S(sWAVE)))
    P("s_lshl_b32 %s, %s, 2\ns_add_u32 %s, %s, %s\ns_mul_i32 %s, %s, 36864" % (S(t0), S(sRBK), S(t0), S(t0), S(sWAVE), S(sXB), S(t0)))
    P("s_movk_i32 %s, 1152" % S(t2))
    P("v_lshrrev_b32 %s, 3, %s\nv_and_b32 %s, 7, %s\nv_lshrrev_b32 %s, 4, %s\nv_xor_b32 %s, %s, %s" % (a, L, b, L, c, L, b, b, c))
    P("v_lshlrev_b32 %s, 4, %s\nv_mad_u32_u24 %s, %s, %s, %s" % (c, b, V(vXD), a, S(t2), c))
    P("v_xor_b32 %s, 64, %s\nv_add_u32 %s, %d, %s" % (V(vXD + 1), V(vXD), V(vXD + 1), 9216 - 1024, V(vXD + 1)))
    def w_offsets():
        P("s_mul_i32 %s, %s, 72\ns_and_b32 %s, %s, -16\ns_mul_i32 %s, %s, 110592\ns_add_u32 %s, %s, %s" % (S(t3), S(sHP), S(t3), S(t3), S(t1), S(sWAVE), S(sWB), S(t3), S(t1)))
        P("s_movk_i32 %s, 3456" % S(t2))
        for q in range(5):
            r = V(vWK + q)
            P("v_add_u32 %s, %d, %s\nv_mul_u32_u24 %s, 6554, %s\nv_lshrrev_b32 %s, 16, %s" % (a, 64 * q, L, b, a, b, b))
            P("v_mul_u32_u24 %s, 10, %s\nv_sub_u32 %s, %s, %s" % (c, b, a, a, c))
            perm32(P, c, b, d)
            P("v_mul_lo_u32 %s, %s, %s\nv_lshl_add_u32 %s, %s, 4, %s" % (r, c, S(t2), r, a, r))
            P("v_cmp_lt_u32 vcc, 4, %s\nv_add_u32 %s, %d, %s\nv_cndmask_b32 %s, %s, %s, vcc" % (a, b, 1152 - 80, r, r, r, b))
            if q % 4: P("v_subrev_u32 %s, %d, %s" % (r, 1024 * (q % 4), r))
    if not ACFG['xfirst']: w_offsets()
    P("s_waitcnt lgkmcnt(0)")
    for x in C.stamp("start"): P.add(x)
    l0, l1, l2, l3, l4, l5 = [P.newlabel(C.name + "_w") for _ in range(6)]
    P("s_cmp_gt_u32 %s, 1\ns_cbranch_scc1 %s" % (S(sWAVE), l0))
    P("s_mul_i32 %s, %s, 1296\ns_add_u32 %s, %s, %s\ns_add_u32 m0, %s, %d" % (S(t0), S(sHP), S(t0), S(t0), S(sW1K), S(sW1K), L_PHI))
    P("buffer_load_dwordx4 %s, %s, %s offen lds" % (V(vL16), srd(sWPHI), S(t0))).nocount = True
    P.label(l0)
    P("s_xor_b32 %s, %s, %s\ns_and_b32 %s, %s, 1\ns_lshr_b32 %s, %s, 2\ns_or_b32 %s, %s, %s\ns_or_b32 %s, %s, %s" %
      (S(t0), S(sIDX), S(sXCD), S(t0), S(t0), S(t1), S(sIDX), S(t0), S(t0), S(t1), S(t0), S(t0), S(sWAVE)))
    P("s_lshl_b32 %s, %s, 1\ns_lshr_b32 %s, %s, 1\ns_add_u32 %s, %s, %s\ns_add_u32 %s, %s, 1" % (S(t1), S(sXCD), S(t3), S(sIDX), S(t1), S(t1), S(t3), S(t3), S(t1)))
    P("s_cmp_eq_u32 %s, 0\ns_cselect_b32 %s, %s, 0\ns_cbranch_scc0 %s" % (S(t0), S(sZ), S(t3), l4))
    P("v_mov_b32 v4, 0\nv_lshlrev_b32 v1, 7, v0\ns_lshl_b32 %s, %s, 13" % (S(t1), S(t1)))
    P("buffer_store_dword v4, v1, %s, %s offen sc1" % (srd(sWS), S(t1))).nocount = True
    P("s_mov_b32 %s, %d\nbuffer_load_dword %s, off, %s, %s sc1" % (S(t1), WS_NONCE, V(vFD), srd(sWS), S(t1)))
    P.ins[-1].dst = []; P.ins[-1].nocount = True
    P.label(l4)
    toks = [P.newtok() for _ in range(6)]
    def touch():
        def ld(text):
            P(text); P.ins[-1].dst = []; P.ins[-1].nocount = True
        aux = ACFG["aux"]
        lab = P.newlabel(C.name + "_l4")
        P("s_lshr_b32 %s, %s, 3\ns_xor_b32 %s, %s, %s\ns_and_b32 %s, %s, 1\ns_cbranch_scc1 %s" % (S(t1), S(sHP), S(t1), S(t1), S(sHP), S(t1), S(t1), l3 if aux else lab))
        P("s_lshr_b32 %s, %s, 1\ns_lshl_b32 %s, %s, 2\ns_add_u32 %s, %s, %s\ns_mul_i32 %s, %s, %d" % (S(t1), S(sIDX), S(t1), S(t1), S(t1), S(t1), S(sWAVE), S(t1), S(t1), 9 * 3456))
        P("v_min_u32 %s, 26, %s\nv_mul_u32_u24 %s, 1152, %s" % (a, L, a, a))
        ld("buffer_load_dword %s, %s, %s, %s offen offset:512" % (V(255), a, srd(sWQKV), S(t1)))
        P.label(lab)
        nper = -(-(code_bytes - (4096 if ACFG['hop'] else 0)) // (32 * 128))
        assert nper <= 31
        reps = (0, 1) if aux else (0,)
        P("s_cmp_eq_u32 %s, 3\ns_cbranch_scc1 %s\ns_cmp_eq_u32 %s, 2\ns_cbranch_scc1 %s\ns_cmp_eq_u32 %s, 1\ns_cbranch_scc1 %s" % (S(sWAVE), l1, S(sWAVE), l2, S(sWAVE), l5))
        P("v_min_u32 %s, 60, %s\nv_lshlrev_b32 %s, 7, %s" % (a, L, a, a))
        for r in reps:
            P("s_xor_b32 %s, s2, %d\ns_mul_i32 %s, %s, %d" % (S(t1), 8 * r, S(t1), S(t1), 61 * 128))
            ld("buffer_load_dword %s, %s, %s, %s offen" % (V(255), a, srd(sWQKV), S(t1)))
        P("s_branch %s" % l3)
        P.label(l5)
        P("v_lshrrev_b32 %s, 3, %s\nv_mul_u32_u24 %s, 1152, %s\nv_and_b32 %s, 7, %s\nv_min_u32 %s, 6, %s\nv_lshl_add_u32 %s, %s, 7, %s" % (a, L, a, a, b, L, b, b, a, b, a))
        for r in reps:
            P("s_lshl_b32 %s, %s, 4\ns_add_u32 %s, %s, %s\ns_xor_b32 %s, %s, %d\ns_mul_i32 %s, %s, 9216" % (S(t1), S(sRBK), S(t1), S(t1), S(sHP), S(t1), S(t1), r, S(t1), S(t1)))
            ld("buffer_load_dword %s, %s, %s, %s offen offset:256" % (V(255), a, srd(sX), S(t1)))
        P("s_branch %s" % l3)
        P.label(l1)
        P("s_getpc_b64 s[100:101]\n%s_pc:\ns_add_u32 s100, s100, %s_body-%s_pc\ns_addc_u32 s101, s101, 0" % (C.name, C.name, C.name))
        k = 2 if aux else 1
        P("s_lshr_b32 %s, %s, %d\ns_mul_i32 %s, %s, %d\nv_min_u32 %s, %d, %s\nv_lshl_add_u32 %s, %s, 7, %s\nv_min_u32 %s, %d, %s" %
          (S(t1), S(sIDX), k - 1, S(t1), S(t1), k * nper * 128, a, k * nper - 1, L, a, a, S(t1), a, code_bytes - 4096 - 128, a))
        ld("global_load_dword %s, %s, s[100:101]" % (V(255), a))
        P("s_branch %s" % l3)
        P.label(l2)
        P("v_min_u32 %s, 20, %s\nv_lshlrev_b32 %s, 7, %s" % (a, L, a, a))
        for r in reps:
            P("s_xor_b32 %s, s2, %d\ns_mul_i32 %s, %s, %d" % (S(t1), 8 * r, S(t1), S(t1), 21 * 128))
            ld("buffer_load_dword %s, %s, %s, %s offen" % (V(255), a, srd(sWO), S(t1)))
        P.label(l3)
    if ACFG["touch"] == 0: touch()
    for x in C.stamp("x_touch"): P.add(x)
    r0 = round_x(P, 0) + round_w(P, 0, toks[0])
    if ACFG["wfirst"]: r0 = round_w(P, 0, None) + round_x(P, 0); r0[-1][-1] = P.mk(r0[-1][-1], toks[0])
    if ACFG['xfirst']:
        k = ACFG['xfirst']
        emit_items(P, r0[:k]); w_offsets(); emit_items(P, r0[k:]); r0 = []
    emit_items(P, r0[:ACFG["r0e"]]); r0 = r0[ACFG["r0e"]:]
    if ACFG["touch"] == 1: touch()
    r1 = round_x(P, 1) + round_w(P, 1, toks[1])
    emit_items(P, r1[:ACFG['r1e']]); r1 = r1[ACFG['r1e']:]
    for x in C.stamp("x_r0iss"): P.add(x)
    if ACFG["hop"]: C.align_body()
    for x in C.stamp("x_body"): P.add(x)
    main_P = P
    P = Prog(); P._tok, P._lab = main_P._tok, main_P._lab
    P("v_and_b32 %s, 15, %s\nv_lshrrev_b32 %s, 4, %s\nv_lshrrev_b32 %s, 1, %s\nv_xor_b32 %s, %s, %s" % (a, L, b, L, c, a, b, b, c))
    P("v_lshlrev_b32 %s, 7, %s\nv_lshl_add_u32 %s, %s, 4, %s\nv_add_u32 %s, %s, %s" % (a, a, a, b, a, V(vXR), S(sW8K), a))
    P("v_xor_b32 %s, 64, %s" % (V(vXR + 1), V(vXR)))
    P("v_lshrrev_b32 %s, 2, %s\nv_mul_u32_u24 %s, 160, %s\ns_and_b32 %s, %s, 1\ns_lshl_b32 %s, %s, 3\nv_add_u32 %s, %s, %s" % (a, L, a, a, S(t1), S(sHP), S(t1), S(t1), a, S(t1), a))
    P("v_and_b32 %s, 3, %s\nv_lshl_add_u32 %s, %s, 3, %s" % (b, L, V(vWR), b, a))
    P("v_cmp_eq_u32 vcc, 1, %s\nv_add_u32 %s, 32, %s\nv_add_u32 %s, 112, %s\nv_cndmask_b32 %s, %s, %s, vcc" % (b, c, a, d, a, V(vWM), c, d))
    for i in range(4): P("v_mov_b32 %s, 0x3f803f80" % V(vONE + i))
    P("s_mul_i32 %s, %s, 40\nv_add_u32 %s, %s, %s" % (S(t1), S(sWAVE), V(vWC), S(t1), V(vWR)))
    X = Rec()
    X("s_movk_i32 %s, 3456" % S(t2))
    for q in range(5):
        r = V(vWQ + q)
        X("v_add_u32 %s, %d, %s\nv_mul_u32_u24 %s, 13108, %s\nv_lshrrev_b32 %s, 16, %s" % (a, 64 * q, L, b, a, b, b))
        X("v_mul_u32_u24 %s, 5, %s\nv_sub_u32 %s, %s, %s" % (c, b, a, a, c))
        perm32(X, c, b, d)
        X("v_and_b32 %s, 32, %s\nv_add_u32 %s, %s, %s" % (d, b, c, c, d))
        X("v_mul_lo_u32 %s, %s, %s\nv_lshl_add_u32 %s, %s, 4, %s" % (r, c, S(t2), r, a, r))
        if q % 4: X("v_subrev_u32 %s, %d, %s" % (r, 1024 * (q % 4), r))
    r = V(vWX)
    X("s_lshl_b32 %s, %s, 6\nv_add_u32 %s, %s, %s\nv_mul_u32_u24 %s, 13108, %s\nv_lshrrev_b32 %s, 16, %s" % (S(t1), S(sWAVE), a, S(t1), L, b, a, b, b))
    X("v_mul_u32_u24 %s, 5, %s\nv_sub_u32 %s, %s, %s" % (c, b, a, a, c))
    perm32(X, c, b, d)
    X("v_and_b32 %s, 32, %s\nv_add_u32 %s, %s, %s" % (d, b, c, c, d))
    X("v_mul_lo_u32 %s, %s, %s\nv_lshl_add_u32 %s, %s, 4, %s" % (r, c, S(t2), r, a, r))
    wq_items = X.items
    X = Rec()
    u1, u2, u3 = S(t1), S(t2), S(t3)
    X("v_and_b32 %s, 15, %s\nv_lshrrev_b32 %s, 2, %s\nv_lshrrev_b32 %s, 4, %s\nv_cmp_eq_u32 %s, %s, %s" % (a, L, b, a, c, L, S(mD, 2), b, c))
    X("v_and_b32 %s, 1, %s\nv_cmp_eq_u32 %s, 1, %s\nv_and_b32 %s, 2, %s\nv_cmp_eq_u32 %s, 2, %s" % (b, a, S(mE, 2), b, b, a, S(mF, 2), b))
    X("s_lshl_b32 %s, %s, 7\ns_add_u32 %s, %s, %d\nv_lshl_add_u32 %s, %s, 2, %s" % (u1, S(sWAVE), u1, u1, L_MEAN, V(vMN), a, u1))
    X("s_lshl_b32 %s, %s, 5\nv_add_u32 %s, %s, %s\nv_mul_u32_u24 %s, 288, %s" % (u1, S(sWAVE), b, u1, a, b, b))
    X("v_mad_u32_u24 %s, %s, 48, %s\nv_lshl_add_u32 %s, %s, 3, %s" % (V(vRW), c, b, V(vRV), c, b))
    X("v_lshrrev_b32 %s, 2, %s\nv_mul_u32_u24 %s, 288, %s\nv_and_b32 %s, 3, %s\nv_lshl_add_u32 %s, %s, 3, %s" % (d, L, d, d, b, L, d, b, d))
    X("s_lshr_b32 %s, %s, 1\ns_mul_i32 %s, %s, 96\nv_add_u32 %s, %s, %s" % (u3, S(sWAVE), u1, u3, V(vPR), u1, d))
    X.items.append(["s_lshl_b32 %s, %s, 5" % (u1, u3), "s_and_b32 %s, %s, 1" % (u2, S(sWAVE)), "s_cmp_eq_u32 %s, 1" % u2, "s_cselect_b32 %s, 64, %s" % (u1, u1)])
    X("v_add_u32 %s, %s, %s" % (V(vVR), u1, d))
    X("s_lshl_b32 %s, %s, 1\nv_add_u32 %s, %s, %s" % (u1, u3, b, u1, a))
    X("s_mul_i32 %s, %s, 18\ns_sub_u32 %s, 12, %s\nv_add_u32 %s, %s, %s" % (u1, u3, u1, u1, c, u1, a))
    X("s_lshl_b32 %s, %s, 1\ns_add_u32 %s, %s, 4\nv_subrev_u32 %s, %s, %s\nv_cmp_gt_u32 vcc, 2, %s" % (u1, u3, u1, u1, d, u1, a, d))
    X("v_mov_b32 %s, 0x100000\nv_cndmask_b32 %s, %s, %s, vcc" % (d, c, d, c))
    X("v_cmp_ne_u32 vcc, 8, %s\nv_cndmask_b32 %s, 18, %s, vcc" % (a, c, c))
    X.items.append(["s_cmp_eq_u32 %s, 1" % u2, "s_cselect_b64 vcc, -1, 0"])
    X("v_cndmask_b32 %s, %s, %s, vcc" % (b, b, c))
    X("s_mul_i32 %s, %s, 19\nv_add_u32 %s, %s, %s\nv_mul_u32_u24 %s, 96, %s" % (u1, u3, b, u1, b, b, b))
    X("v_lshrrev_b32 %s, 4, %s\nv_lshl_add_u32 %s, %s, 3, %s" % (c, L, V(vKO), c, b))
    X("s_lshl_b32 %s, %s, 4\ns_add_u32 %s, %s, %s\ns_lshl_b32 %s, %s, 12\ns_add_u32 %s, %s, %d" % (u1, S(sHP), u1, u1, S(sRBK), u1, u1, S(sKV), u1, WS_KVP))
    for m in range(2):
        X("v_mov_b32 %s, 0\nv_mov_b32 %s, 0" % (V(vF + 8 * m + 6), V(vF + 8 * m + 7)))
        for f in range(3): X("v_mov_b32 %s, 0" % V(vPHI + 12 * m + 4 * f + 3))
    X("v_lshrrev_b32 %s, 4, %s\nv_lshlrev_b32 %s, 4, %s\nv_add_u32 %s, %d, %s" % (c, L, c, c, V(vCA), L_CS, c))
    X("s_lshl_b32 %s, %s, 6\nv_add_u32 %s, %s, %s" % (u1, S(sWAVE), V(vCS), u1, V(vCA)))
    addr_items = X.items
    X = Rec()
    wr = vT + 8
    X("v_cmp_gt_u32 vcc, 8, %s\nv_mov_b32 %s, 0x1000000\nv_cndmask_b32 %s, %s, %s, vcc" % (L, V(vT + 4), V(vT + 4), V(vT + 4), V(vL16)))
    X.items.append(["s_lshl_b32 %s, %s, 1" % (u1, S(sRBK)), "s_add_u32 %s, %s, %s" % (u1, u1, S(sWAVE)), "s_add_u32 %s, %s, 32" % (u2, S(sRBK)),
                    "s_cmp_lt_u32 %s, 2" % S(sWAVE), "s_cselect_b32 %s, %s, %s" % (u1, u1, u2), "s_mul_i32 %s, %s, 36" % (u2, S(sHP)),
                    "s_add_u32 %s, %s, %s" % (u1, u1, u2), "s_mul_i32 %s, %s, 1152" % (u1, u1)])
    X("buffer_load_dwordx4 %s, %s, %s, %s offen" % (V(wr, 4), V(vL16), srd(sWO), u1))
    X("buffer_load_dwordx4 %s, %s, %s, %s offen offset:1024" % (V(wr + 4, 4), V(vT + 4), srd(sWO), u1))
    X("v_lshrrev_b32 %s, 4, %s\nv_cmp_eq_u32 %s, 2, %s" % (V(vT + 5), L, S(mG, 2), V(vT + 5)))
    wb_load = X.items
    X = Rec()
    sm = V(vT + 16)
    X("v_mov_b32 %s, 0" % sm)
    for i in range(8): X("v_dot2c_f32_bf16 %s, %s, %s" % (sm, V(wr + i), V(vONE)))
    for mode in ("quad_perm:[1,0,3,2]", "quad_perm:[2,3,0,1]", "row_half_mirror", "row_mirror"):
        X("v_add_f32_dpp %s, %s, %s %s row_mask:0xf bank_mask:0xf" % (sm, sm, sm, mode))
    for x in allred(vT + 16, vT + 17, "v_add_f32"): X(x)
    X("v_mul_f32 %s, 0x3ae38e39, %s" % (sm, sm))
    X.items.append(["s_lshl_b32 %s, %s, 2" % (u1, S(sWAVE)), "s_add_u32 %s, %s, %s" % (u1, u1, S(sKV)), "s_mov_b64 exec, 1",
                    "buffer_store_dword %s, off, %s, %s offset:3648 sc1" % (sm, srd(sWS), u1), "s_mov_b64 exec, -1"])
    wb_sum = X.items
    rp_addr, rp_go, tokR = repack_items(P)
    if ACFG["early"]:
        emit_items(P, wq_items + addr_items + rp_addr)
        wq_items, addr_items, rp_addr = [], [], []
    chain = P.ins
    main_P._tok, main_P._lab = P._tok, P._lab
    P = main_P
    weave = r0 + r1[:ACFG["r1w"]]; r1 = r1[ACFG["r1w"]:]
    step = max(1, len(chain) // (len(weave) + 1))
    k, since, inbr = 0, 0, set()
    for n, x in enumerate(chain):
        P.add(x); since += 1
        if x.kind == "br": inbr.add(x.text.split()[-1])
        if x.kind == "label": inbr.discard(x.text[:-1])
        if k < len(weave) and since >= step and not inbr and x.kind == "valu" and not x.op.startswith("v_cmp"):
            emit_items(P, [weave[k]]); k += 1; since = 0
    emit_items(P, weave[k:])
    for x in C.stamp("x_addr"): P.add(x)
    emit_items(P, r1[:ACFG['r1pre']])
    for x in C.stamp("x_r1iss"): P.add(x)
    for which in ACFG["pf0"]:
        emit_items(P, ffn.hbm_prefetch(P, which, vLANE, vT + 18, vT + 19, vT + 20, 255))
    if ACFG['hop'] == 1: C.hop(None)
    for x in C.stamp("x_hop"): P.add(x)
    ax = LdsAddr([vXR, vXR + 1]); aw = LdsAddr([vWR, vWM, vWC])
    P.waittok(toks[0])
    P("s_barrier")
    for x in C.stamp("r0"): P.add(x)
    lab = P.newlabel(C.name + "_nr")
    P("s_cmp_eq_u32 %s, 0\ns_cbranch_scc1 %s" % (S(sZ), lab))
    P("v_add_u32 %s, 1, %s\nv_max_u32 %s, 1, %s\ns_lshl_b32 %s, %s, 2\ns_sub_u32 %s, %s, 4\ns_mov_b64 exec, 1" % (a, V(vFD), a, a, S(t0), S(sZ), S(t0), S(t0)))
    P("buffer_store_dword %s, off, %s, %s sc1" % (a, srd(sDBG), S(t0))).nocount = True
    P("s_mov_b32 %s, 0x7000000\ns_cmp_eq_u32 %s, 1\ns_cselect_b32 %s, %d, %s" % (S(t0), S(sZ), S(t0), WS_NONCE, S(t0)))
    P("buffer_store_dword %s, off, %s, %s sc1" % (a, srd(sWS), S(t0))).nocount = True
    P("s_mov_b64 exec, -1")
    P.label(lab)
    if ACFG['hop'] == 2: C.hop(None)
    wq = []
    lq = P.newlabel(C.name + "_nq")
    it = ["s_cmp_lg_u32 %s, 0" % S(sWAVE), "s_cbranch_scc1 %s" % lq, "s_add_u32 %s, %s, %d" % (S(t0), S(sWB), 16 * 110592), "s_mov_b32 m0, %d" % (2 * RND + 8 * 5120 + 4096)]
    x = P.mk("buffer_load_dwordx4 %s, %s, %s offen lds" % (V(vWQ + 4), srd(sWQKV), S(t0))); x.nocount = True
    wq.append(it + [x, lq + ":"])
    wq.append(["s_mul_i32 %s, %s, 221184" % (S(t0), S(sWAVE)), "s_sub_u32 %s, %s, %s" % (S(t0), S(sWB), S(t0)), "s_add_u32 %s, %s, %d" % (S(t0), S(t0), 16 * 110592),
               "s_add_u32 m0, %s, %d" % (S(sW1K), 2 * RND + 8 * 5120), "buffer_load_dwordx4 %s, %s, %s offen lds" % (V(vWX), srd(sWQKV), S(t0))])
    for pr in range(2):
        for q in range(5):
            it = []
            if q == 0: it.append("s_add_u32 %s, %s, %d" % (S(t0), S(sWB), pr * 8 * 110592))
            if q % 4 == 0: it.append("s_add_u32 m0, %s, %d" % (S(sW5K), 2 * RND + pr * 4 * 5120 + 1024 * q))
            it.append(P.mk("buffer_load_dwordx4 %s, %s, %s offen offset:%d lds" % (V(vWQ + q), srd(sWQKV), S(t0), 1024 * (q % 4)), toks[5] if (pr, q) == (1, 4) else None))
            wq.append(it)
    NT = 6
    main, st = [], []
    for k in range(18):
        for T in range(NT):
            bi = len(st); st.append(len(main))
            wf = vWF + 4 * (bi % 6)
            if T == 5:
                main.append(mfma(acc(0, 2), wf, vONE, None if k == 0 else acc(0, 2)))
                continue
            for cidx in range(3 if T == 2 else 2):
                main.append(mfma(acc(T, cidx), wf, xf(k, cidx) if cidx < 2 else vONE, None if k == 0 else acc(T, cidx)))
            if T in (1, 3):
                m = T >> 1
                main.append(mfma(vSUM + 4 * m, vONE, xf(k, m), None if k == 0 else vSUM + 4 * m))
                main.append(mfma(vSSQ + 4 * m, xf(k, m), xf(k, m), None if k == 0 else vSSQ + 4 * m))
    for bi in range(0, len(st), 2):
        w = list(range(vWF + 4 * (bi % 6), vWF + 4 * (bi % 6) + 8))
        if bi % NT == 0: w += list(range(xf(bi // NT, 0), xf(bi // NT, 0) + 8))
        main[st[bi]] = [WaitRegs(w), main[st[bi]]]
    rd, bar = [], [-1]
    for k in range(18):
        rho, kk = k // 4, k % 4
        base = (rho % 3) * RND
        for T in range(NT):
            bi = k * NT + T
            lo = st[bi - 4] - 1 if bi >= 4 else -1
            dl = st[bi - (bi & 1)] if bi >= 4 else 0
            if T == 0 and kk == 0 and rho > 0:
                rd.append((lo, lo + 1, [WaitTok(toks[rho]), "s_waitcnt lgkmcnt(0)", "s_barrier"] + (C.stamp("r%d" % rho) if rho in ACFG["rst"] else [])))
                bar.append(lo + 1); lo += 1
            it = []
            if T == 0:
                it += ax.rebase(base, base + 32768)
                for m in range(2):
                    it.append("ds_read_b128 %s, %s offset:%d" % (R(xf(k, m), 4), V(vXR + (kk & 1)), ax.off(base + (kk >> 1) * 4096 + m * 2048)))
                it += aw.rebase(base + 32768, base + RND)
            wf = vWF + 4 * (bi % 6)
            reg, col = (vWM, 0) if T == 2 else (vWC, 0) if T == 5 else (vWR, (0, 40, 0, 80, 120)[T])
            for h in range(2):
                it.append("ds_read_b64_tr_b16 %s, %s offset:%d" % (V(wf + 2 * h, 2), V(reg), aw.off(base + 32768 + kk * 5120 + h * 2560 + col)))
            nxt = ((bi // (4 * NT)) + 1) * 4 * NT
            if nxt < len(st) and bi >= nxt - 4: dl = min(dl, st[nxt - 4])
            for x in it: rd.append((min(lo, dl - 1), dl, x))
    bar.append(len(main))
    side, extra = [], []
    for rho in range(5):
        its = []
        if rho == 0: its += r1[ACFG['r1pre']:]
        if rho == 2: its += rp_go
        if rho <= 2: its += round_x(P, rho + 2) + round_w(P, rho + 2, toks[rho + 2])
        if rho == 3:
            its.append(["s_mul_i32 %s, %s, 110592" % (S(t0), S(sWAVE)), "s_add_u32 %s, %s, %s" % (S(sWB), S(sWB), S(t0))])
            for which in ACFG["pf3"]: its.append(ffn.hbm_prefetch(P, which, vLANE, vT + 18, vT + 19, vT + 20, 255, False, S(t0), S(89)))
        if rho == 4:
            its.append(["v_and_b32 %s, 15, %s" % (V(vFA), L), "v_lshlrev_b32 %s, 2, %s" % (V(vFA), V(vFA)),
                        "buffer_load_dword %s, %s, %s, 0 offen sc1" % (V(vFD), V(vFA), srd(sDBG))])
        lo, hi = max(bar[rho], 0), bar[rho + 1]
        side += spread(its, lo, lo + int((hi - lo - 2) * (ACFG["pace"] if rho < 3 else 0.2)), hi - 1 if rho < 4 else None)
        ex = {0: lambda: wphi_items(P), 1: lambda: addr_items + wb_load + rp_addr, 2: lambda: wq_items, 3: lambda: wb_sum}.get(rho, lambda: [])()
        if rho == 4:
            X = Rec(); rst = repack_out(X, vT + 8); ex = X.items + rst
        extra += [(lo + 4, INF, x) for x in ex]
    multi_interleave(P, main, [rd, side, extra], 2)
    for x in C.stamp("kvg"): P.add(x)
    main_P = P
    P = Prog(); P._tok, P._lab = main_P._tok, main_P._lab
    if ACFG['cs']:
        P("ds_write_b128 %s, %s" % (V(vCS), V(acc(0, 2), 4)))
    for m in range(2):
        q = vSSQ + 4 * m
        ra, rb = vT + 2 * m, vT + 2 * m + 1
        P("v_cndmask_b32 %s, %s, %s, %s\nv_cndmask_b32 %s, %s, %s, %s" % (V(ra), V(q), V(q + 1), S(mE, 2), V(rb), V(q + 2), V(q + 3), S(mE, 2)))
        P("v_cndmask_b32 %s, %s, %s, %s\nv_cndmask_b32 %s, 0, %s, %s" % (V(ra), V(ra), V(rb), S(mF, 2), V(ra), V(ra), S(mD, 2)))
    r0, r1 = allred(vT, vT + 1, "v_add_f32"), allred(vT + 2, vT + 3, "v_add_f32")
    for x, y in zip(r0, r1): P(x); P(y)
    for m in range(2):
        ra, rb = V(vT + 2 * m), V(vT + 2 * m + 1)
        P("v_mul_f32 %s, 0x3ae38e39, %s\nv_mul_f32 %s, 0x3ae38e39, %s" % (rb, V(vSUM + 4 * m), ra, ra))
        P("ds_write_b32 %s, %s offset:%d" % (V(vMN), rb, 64 * m))
        P("v_fma_f32 %s, -%s, %s, %s\nv_max_f32 %s, 0, %s\nv_add_f32 %s, 0x3727c5ac, %s\nv_rsq_f32 %s, %s" % (ra, rb, rb, ra, ra, ra, ra, ra, V(vA + m), ra))
    for m in range(2): P("v_mul_f32 %s, -%s, %s" % (V(vB + m), V(vT + 2 * m + 1), V(vA + m)))
    if ACFG['cs']:
        P("s_waitcnt lgkmcnt(0)\ns_barrier")
        for w, T in enumerate((0, 1, 3, 4)): P("ds_read_b128 %s, %s offset:%d" % (V(acc(T, 2), 4), V(vCA), 64 * w))
    if ACFG["tab"] == 1: emit_items(P, lane_tables(C))
    P("s_mov_b32 %s, %d" % (S(t2), LOG2E))
    for m in range(2):
        ln_fix(P, 0, m, vF + 8 * m); ln_fix(P, 1, m, vF + 8 * m + 2); ln_fix(P, 2, m, vF + 8 * m + 4)
        for T in range(3):
            dd = vPP + 12 * m + 4 * T
            P(mfma(dd, vPH + 8 * T, vF + 8 * m)); P(mfma(dd, vPH + 8 * T + 4, vF + 8 * m + 4, dd))
    for m in range(2):
        ln_fix(P, 3, m, vT + 4); ln_fix(P, 4, m, vT + 6)
        P("v_cndmask_b32 %s, %s, %s, %s\nv_cndmask_b32 %s, %s, %s, %s" % (V(vT + 8), V(vF + 8 * m + 4), V(vONE), S(mG, 2), V(vT + 9), V(vF + 8 * m + 5), V(vONE), S(mG, 2)))
        for i in range(3): P("ds_write_b64 %s, %s offset:%d" % (V(vRV), V(vT + 4 + 2 * i, 2), m * 4608 + 192 + 32 * i))
    for m in range(2):
        softmax(P, m)
        for f in range(3): P("ds_write_b128 %s, %s offset:%d" % (V(vRW), V(vPHI + 12 * m + 4 * f, 4), m * 4608 + 16 * f))
    P("s_waitcnt lgkmcnt(0)\ns_barrier")
    for x in C.stamp("phik"): P.add(x)
    for ks in range(4):
        fr = vAC + 16 * ks
        for h in range(2): P("ds_read_b64_tr_b16 %s, %s offset:%d" % (V(fr + 12 + 2 * h, 2), V(vVR), ks * 9216 + h * 4608 + 192))
        for tau in range(3):
            for h in range(2): P("ds_read_b64_tr_b16 %s, %s offset:%d" % (V(fr + 4 * tau + 2 * h, 2), V(vPR), ks * 9216 + h * 4608 + 32 * tau))
        if ks >= 1:
            fr = vAC + 16 * (ks - 1)
            for tau in range(3): P(mfma(vPP + 4 * tau, fr + 4 * tau, fr + 12, None if ks == 1 else vPP + 4 * tau))
    fr = vAC + 48
    for tau in range(3): P(mfma(vPP + 4 * tau, fr + 4 * tau, fr + 12, vPP + 4 * tau))
    chain = P.ins
    main_P._tok, main_P._lab = P._tok, P._lab
    P = main_P
    if ACFG["tab"] == 2:
        t = lane_tables(C)[0]
        t = [t[:5]] + [[x] for x in t[5:]]
        wq = wq[:6] + [y for pr in zip(wq[6:], t) for y in pr]
    step = max(1, int(len(chain) * ACFG["wqfr"]) // max(len(wq), 1))
    k, since = 0, step
    for n, x in enumerate(chain):
        P.add(x); since += 1
        if k < len(wq) and since >= step and x.kind in ("valu", "lds"):
            emit_items(P, [wq[k]]); k += 1; since = 0
    emit_items(P, wq[k:])
    tokS = P.newtok()
    for tau in range(3):
        for h in range(2): P("v_cvt_pk_bf16_f32 %s, %s, %s" % (V(vT + 2 * tau + h), V(vPP + 4 * tau + 2 * h), V(vPP + 4 * tau + 2 * h + 1)))
        P("buffer_store_dwordx2 %s, %s, %s, %s offen offset:%d sc1" % (V(vT + 2 * tau, 2), V(vKO), srd(sWS), S(sKV), 32 * tau), tok=tokS if tau == 2 else None)
    lab = P.newlabel(C.name + "_rdy")
    C.slow.append("""%s:
    s_mov_b32 %s, 0
%s_l:
    buffer_load_dword %s, %s, %s, 0 offen sc1
    s_add_u32 %s, %s, 1
    s_waitcnt vmcnt(0)
    v_cmp_eq_u32 vcc, 0, %s
    s_cmp_gt_u32 %s, %d
    s_cbranch_scc1 %s_b
    s_cbranch_vccnz %s_l
    s_branch %s_b
""" % (lab, S(sSPIN), lab, V(vFD), V(vFA), srd(sDBG), S(sSPIN), S(sSPIN), V(vFD), S(sSPIN), SPIN_MAX, lab, lab, lab))
    P("v_cmp_eq_u32 vcc, 0, %s\ns_cbranch_vccnz %s\n%s_b:" % (V(vFD), lab, lab))
    P("v_readfirstlane_b32 %s, %s" % (S(sNON), V(vFD)))
    P.waittok(toks[5])
    P("s_barrier")
    return tokS

def wphi_items(P):
    L = V(vLANE)
    a, b, c, d = V(vT), V(vT + 1), V(vT + 2), V(vT + 3)
    tmp = vT + 4
    it = []
    it += ["v_bfe_u32 %s, %s, 3, 1" % (a, L), "v_cmp_eq_u32 %s, 1, %s" % (S(mA, 2), a),
           "v_bfe_u32 %s, %s, 2, 1" % (b, L), "v_mul_u32_u24 %s, 18, %s" % (b, b), "v_and_b32 %s, 3, %s" % (c, L),
           "v_cmp_eq_u32 %s, 0, %s" % (S(mB, 2), c), "v_lshl_add_u32 %s, %s, 1, %s" % (b, c, b),
           "v_add_u32 %s, %d, %s" % (b, L_PHI, b), "v_lshrrev_b32 %s, 4, %s" % (c, L), "v_cmp_eq_u32 %s, 0, %s" % (S(mC, 2), c),
           "v_mul_u32_u24 %s, 144, %s" % (c, c), "v_mul_u32_u24 %s, 720, %s" % (d, a), "v_add3_u32 %s, %s, %s, %s" % (c, c, d, b),
           "v_mul_u32_u24 %s, 72, %s" % (d, a), "v_add_u32 %s, %s, %s" % (d, d, b)]
    raw = vPP
    for T in range(3):
        for s in range(4):
            it.append("ds_read_u16 %s, %s offset:%d" % (V(raw + 6 * T + s), c, 36 * s + 8 * T))
        for s in range(2):
            it.append("ds_read_u16 %s, %s offset:%d" % (V(raw + 6 * T + 4 + s), d, 576 + 36 * s + 8 * T))
    for i in range(9): it.append("v_lshl_or_b32 %s, %s, 16, %s" % (V(tmp + i), V(raw + 2 * i + 1), V(raw + 2 * i)))
    for i in range(3): it.append("v_cndmask_b32 %s, 0, %s, %s" % (V(tmp + 6 + i), V(tmp + 6 + i), S(mB, 2)))
    for T in range(3):
        f0, f1 = vPH + 8 * T, vPH + 8 * T + 4
        for i in range(2):
            it.append("v_cndmask_b32 %s, %s, 0, %s" % (V(f0 + i), V(tmp + 3 * T + i), S(mA, 2)))
            it.append("v_cndmask_b32 %s, 0, %s, %s" % (V(f0 + 2 + i), V(tmp + 3 * T + i), S(mA, 2)))
        it.append("v_cndmask_b32 %s, 0, %s, %s" % (V(tmp + 3 * T + 2), V(tmp + 3 * T + 2), S(mC, 2)))
        it.append("v_cndmask_b32 %s, %s, 0, %s" % (V(f1), V(tmp + 3 * T + 2), S(mA, 2)))
        it.append("v_cndmask_b32 %s, 0, %s, %s" % (V(f1 + 1), V(tmp + 3 * T + 2), S(mA, 2)))
        it.append("v_mov_b32 %s, 0" % V(f1 + 2)); it.append("v_mov_b32 %s, 0" % V(f1 + 3))
    return it

def lane_tables(C):
    def wo(q, left):
        def f(l):
            pi = 64 * q + l; rho, pc = pi // 10, pi % 10
            s_, g = 4 * (rho >> 4) + (rho & 3), (rho >> 2) & 3
            row = 18 * (4 * g + (s_ >> 1)) + 16 + (s_ & 1) if left else 8 * g + 2 * (g >> 1) + s_
            return row * 1152 + (0x1000000 if pc == 9 else 16 * pc) - 1024 * (q % 4)
        return f
    w = [wo(q, 0) for q in range(5)] + [wo(q, 1) for q in range(5)]
    def fa(l):
        rb = l >> 2
        x = (((rb & 3) << 13) + ((rb >> 2) << 8)) if ACFG["map"] == "4x8" else (((rb & 1) << 14) + ((rb >> 1) << 7))
        return (x << 2) + ((l & 3) << 7)
    def rbase(l): return L_R + ((l >> 3) & 1) * 19 * 96 + ((l >> 4) & 1) * 48
    ok = lambda l: ((l >> 3) & 1) == (l >> 5)
    ra = lambda l: rbase(l) + (8 * ((l >> 2) & 1) + (l & 3)) * 96 if ok(l) else L_ZERO
    rb_ = lambda l: rbase(l) + (18 if (l & 3) == 0 else 15 + (l & 3)) * 96 if ok(l) and (l & 3) != 3 else L_ZERO
    wa = lambda l: L_WBAR + (l >> 5) * 80 + ((l >> 4) & 1) * 32
    wc = lambda l: L_ZERO if (l >> 4) & 1 else L_WBAR + (l >> 5) * 80 + 64
    ol = lambda l: (l & 15) * 16 + (l >> 5) * 4 + ((l >> 4) & 1) * 8
    def xl(q):
        def f(l):
            pi = 64 * q + l
            return 0x1000000 if pi >= 144 else (pi // 9) * 1008 + pi * 16 - 1024 * q
        return f
    qr = lambda l: 2 * RND + (l >> 2) * 80 + (l & 3) * 8
    qm = lambda l: 2 * RND + (l >> 2) * 80 + 32
    sp = 90
    it = [C.table_base(sp) + [C.table_load(64, [qr, qm, fa, ra], vL16, sp), C.table_load(128, w[0:4], vL16, sp), C.table_load(132, w[4:8], vL16, sp),
          C.table_load(136, w[8:10], vL16, sp), C.table_load(68, [rb_, wa, wc, ol], vL16, sp), C.table_load(72, [lambda l: L_R + 16 * l, xl(0), xl(1), xl(2)], vL16, sp)]]
    return it
vFB = 251
vOM, vOLf = 128, 133
def wo_addr(P):
    L = V(vLANE)
    a, b, c, d = V(vT + 8), V(vT + 9), V(vT + 10), V(vT + 11)
    P("s_lshl_b32 %s, %s, 3\nv_lshrrev_b32 %s, 3, %s\nv_add_u32 %s, %s, %s" % (S(t2), S(sWAVE), a, L, a, S(t2), a))
    P("v_and_b32 %s, 6, %s\nv_and_b32 %s, 7, %s\nv_xor_b32 %s, %s, %s\nv_lshlrev_b32 %s, 4, %s" % (b, a, c, L, b, b, c, b, b))
    wo_rows(P, a, V(vOM), V(vOM + 1), c, d)
    P("s_movk_i32 %s, 1152\nv_mad_u32_u24 %s, %s, %s, %s\nv_mad_u32_u24 %s, %s, %s, %s" % (S(t2), V(vOM), V(vOM), S(t2), b, V(vOM + 1), V(vOM + 1), S(t2), b))

def p1b(C, tokS):
    P = C.P
    L = V(vLANE)
    a, b, c, d = V(vT), V(vT + 1), V(vT + 2), V(vT + 3)
    if ACFG["tab"]:
        vQR, vQM = 64, 65
        P("s_and_b32 %s, %s, 1\ns_lshl_b32 %s, %s, 3\nv_add_u32 %s, %s, %s\nv_add_u32 %s, %s, %s" % (S(t0), S(sHP), S(t0), S(t0), V(vQR), S(t0), V(vQR), V(vQM), S(t0), V(vQM)))
        X = Rec()
    else:
        vQR, vQM = 244, 245
        P("v_lshrrev_b32 %s, 2, %s\nv_mul_u32_u24 %s, 80, %s\ns_and_b32 %s, %s, 1\ns_lshl_b32 %s, %s, 3\ns_add_u32 %s, %s, %d" % (V(vQM), L, V(vQM), V(vQM), S(t0), S(sHP), S(t0), S(t0), S(t0), S(t0), 2 * RND))
        P("v_add_u32 %s, %s, %s\nv_and_b32 %s, 3, %s\nv_lshl_add_u32 %s, %s, 3, %s\nv_add_u32 %s, 32, %s" % (V(vQM), S(t0), V(vQM), V(vQR), L, V(vQR), V(vQR), V(vQM), V(vQM), V(vQM)))
        X = Rec()
        wo_addr(X)
    X("s_and_b32 %s, %s, 7\ns_lshl_b32 %s, %s, 7" % (S(sWB), S(sHP), S(sWB), S(sWB)))
    X("s_lshr_b32 %s, %s, 3\ns_lshl_b32 %s, %s, 2\ns_lshl_b32 %s, %s, 3\ns_add_u32 %s, %s, %s\ns_add_u32 %s, %s, %s" %
      (S(t0), S(sHP), S(t0), S(t0), S(t1), S(sRBK), S(t0), S(t0), S(t1), S(sMT), S(t0), S(sWAVE)))
    pre = X.items
    pub = [[WaitTok(tokS)] + C.publish(vT + 7, 1) + C.stamp("pub1")]
    side = []
    for f in range(18):
        row = 36 * f if f < 16 else 288 * (f - 16)
        side.append(["s_add_u32 %s, %s, %d" % (S(t0), S(sWB), row * 1152), "s_add_u32 m0, %s, %d" % (S(sW1K), f * 4096),
                     "buffer_load_dwordx4 %s, %s, %s offen lds" % (V(vOM + (f >= 16)), srd(sWO), S(t0))])
    if ACFG["tab"]:
        X = Rec()
        vRa, vRb, vWa, vWc, vOL, vRS, vXL = 67, 68, 69, 70, 71, 72, 73
        f_hp(X, S(t1), S(sHP), S(t2))
        X("s_lshl_b32 %s, %s, 2\nv_add_u32 %s, %s, v66\nv_add_u32 %s, %s, %s" % (S(t1), S(t1), V(vFA), S(t1), V(vRS), S(sW1K), V(vRS)))
        X("v_bfe_u32 %s, %s, 4, 1\nv_cmp_eq_u32 %s, 1, %s" % (b, L, S(mB, 2), b))
        for i in range(4): X("v_mov_b32 %s, 0" % V(vT + 8 + i))
        X("v_and_b32 %s, 0x1f0, %s\nv_add_u32 %s, %d, %s\nds_write_b128 %s, %s" % (c, V(vL16), c, L_ZERO, c, c, V(vT + 8, 4)))
    else:
        X = Rec()
        e4, e5 = V(vT + 4), V(vT + 5)
        X("v_lshrrev_b32 %s, 2, %s" % (e4, L))
        vf_rb(X, V(vFA), e4, e5)
        f_hp(X, S(t1), S(sHP), S(t2))
        X("v_and_b32 %s, 3, %s\nv_lshl_add_u32 %s, %s, 2, %s\nv_add_u32 %s, %s, %s" % (e4, L, V(vFA), e4, V(vFA), V(vFA), S(t1), V(vFA)))
        for x in flagfix(V(vFA), e4): X(x)
        vRa, vRb, vWa, vWc, vOL, vRS, vXL = 240, 241, 242, 243, 246, 247, 248
        X("v_bfe_u32 %s, %s, 3, 1\nv_lshrrev_b32 %s, 5, %s\nv_cmp_eq_u32 %s, %s, %s" % (a, L, b, L, S(mA, 2), a, b))
        X("v_mul_u32_u24 %s, %d, %s\nv_bfe_u32 %s, %s, 4, 1\nv_mad_u32_u24 %s, %s, 48, %s\nv_add_u32 %s, %d, %s" % (a, 19 * 96, a, b, L, a, b, a, a, L_R, a))
        X("v_bfe_u32 %s, %s, 2, 1\nv_and_b32 %s, 3, %s\nv_lshl_add_u32 %s, %s, 3, %s\nv_mul_u32_u24 %s, 96, %s\nv_add_u32 %s, %s, %s" % (b, L, c, L, b, b, c, b, b, b, b, a))
        X("v_mov_b32 %s, %d\nv_cndmask_b32 %s, %s, %s, %s" % (d, L_ZERO, V(vRa), d, b, S(mA, 2)))
        X("v_add_u32 %s, 15, %s\nv_cmp_ne_u32 vcc, 0, %s\nv_cndmask_b32 %s, 18, %s, vcc\nv_mul_u32_u24 %s, 96, %s\nv_add_u32 %s, %s, %s" % (b, c, c, b, b, b, b, b, b, a))
        X("v_cmp_ne_u32 vcc, 3, %s\ns_and_b64 vcc, vcc, %s\nv_cndmask_b32 %s, %s, %s, vcc" % (c, S(mA, 2), V(vRb), d, b))
        X("v_lshrrev_b32 %s, 5, %s\nv_mul_u32_u24 %s, 80, %s\nv_add_u32 %s, %d, %s\nv_bfe_u32 %s, %s, 4, 1" % (a, L, a, a, a, L_WBAR, a, b, L))
        X("v_cmp_eq_u32 %s, 1, %s\nv_lshl_add_u32 %s, %s, 5, %s" % (S(mB, 2), b, V(vWa), b, a))
        X("v_add_u32 %s, 64, %s\nv_cndmask_b32 %s, %s, %s, %s" % (a, a, V(vWc), a, d, S(mB, 2)))
        X("v_and_b32 %s, 15, %s\nv_lshlrev_b32 %s, 4, %s\nv_lshrrev_b32 %s, 5, %s\nv_lshl_add_u32 %s, %s, 2, %s" % (a, L, a, a, c, L, a, c, a))
        X("v_lshl_add_u32 %s, %s, 3, %s" % (V(vOL), b, a))
        X("v_add_u32 %s, %s, %s\nv_add_u32 %s, %d, %s" % (V(vRS), S(sW1K), V(vL16), V(vRS), L_R, V(vRS)))
        for i in range(4): X("v_mov_b32 %s, 0" % V(vT + 8 + i))
        X("v_and_b32 %s, 0x1f0, %s\nv_add_u32 %s, %d, %s\nds_write_b128 %s, %s" % (c, V(vL16), c, L_ZERO, c, c, V(vT + 8, 4)))
        X("v_min_u32 %s, 17, %s\nv_add_u32 %s, 176, %s\nv_lshlrev_b32 %s, 9, %s\ns_lshr_b32 %s, %s, 8\ns_lshl_b32 %s, %s, 7\nv_add_u32 %s, %s, %s" %
          (V(vFB), L, V(vFB), V(vFB), V(vFB), V(vFB), S(t1), S(sWB), S(t1), S(t1), V(vFB), S(t1), V(vFB)))
        X("s_lshr_b32 %s, %s, 3\ns_sub_u32 %s, %s, %s\ns_add_u32 %s, %s, 896" % (S(t1), S(sWB), S(t1), S(t1), S(sWB), S(t1), S(t1)))
        for q in range(3):
            X("v_add_u32 %s, %d, %s\nv_mul_u32_u24 %s, 7282, %s\nv_lshrrev_b32 %s, 16, %s" % (a, 64 * q, L, b, a, b, b))
            X("v_mov_b32 %s, %s\nv_mul_u32_u24 %s, %d, %s\nv_lshl_add_u32 %s, %s, 4, %s" % (c, b, b, 1152 - 144, b, V(vXL + q), a, b))
            X("v_mul_u32_u24 %s, 9, %s\nv_sub_u32 %s, %s, %s\nv_cmp_eq_u32 vcc, 8, %s\nv_add_u32 %s, %s, %s\nv_cndmask_b32 %s, %s, %s, vcc" % (c, c, a, a, c, a, a, S(t1), V(vXL + q), V(vXL + q), V(vXL + q), a))
            if q: X("v_subrev_u32 %s, %d, %s" % (V(vXL + q), 1024 * q, V(vXL + q)))
        X("v_cmp_gt_u32 vcc, 16, %s\nv_mov_b32 %s, 0x1000000\nv_cndmask_b32 %s, %s, %s, vcc" % (L, a, V(vXL + 2), a, V(vXL + 2)))
    post = X.items
    main, rd, st = [], [], []
    for k in range(18):
        for T in range(3):
            bi = len(st); st.append(len(main))
            wf = vWF + 4 * (bi % 6)
            for cidx in range(3):
                main.append(mfma(acc(T, cidx), wf, xf(k, cidx) if cidx < 2 else vONE, None if k == 0 else acc(T, cidx)))
            lo = st[bi - 4] - 1 if bi >= 4 else -1
            for h in range(2):
                rd.append((lo, st[bi - (bi & 1) * ACFG['mw']] if bi >= 4 else 0, "ds_read_b64_tr_b16 %s, %s offset:%d" % (V(wf + 2 * h, 2), V(vQM if T == 2 else vQR), k * 2560 + h * 1280 + (0, 40, 0)[T])))
    if ACFG["mw"]:
        for bi in range(0, len(st), 2):
            main[st[bi]] = [WaitRegs(range(vWF + 4 * (bi % 6), vWF + 4 * (bi % 6) + 8)), main[st[bi]]]
    n0 = ACFG["pub1"]
    s2 = [(0, n0, x) for x in pre] + [(n0, n0 + 1, x) for x in pub] + spread(side[:ACFG['woq']], n0 + 1, 155)
    multi_interleave(P, main, [rd, s2, [(n0 + 1, INF, x) for x in post]], 2)
    for x in C.stamp("qg"): P.add(x)
    P.add(C.load_flags(vFD, vFA))
    P.add(C.load_flags(vFB + 1, vFB))
    P("s_mov_b32 %s, %d" % (S(t2), LOG2E))
    for m in range(2):
        ln_fix(P, 0, m, vF + 8 * m); ln_fix(P, 1, m, vF + 8 * m + 2); ln_fix(P, 2, m, vF + 8 * m + 4)
        for T in range(3):
            dd = vPP + 12 * m + 4 * T
            P(mfma(dd, vPH + 8 * T, vF + 8 * m)); P(mfma(dd, vPH + 8 * T + 4, vF + 8 * m + 4, dd))
    softmax(P, 0)
    for x in C.check_flags(vFD, vFA, 1, 255): P.add(x)
    for x in C.stamp("s1"): P.add(x)
    P("s_lshl_b32 %s, %s, 16\ns_add_u32 %s, %s, %d\ns_add_u32 %s, %s, %s" % (S(t1), S(sHP), S(t1), S(t1), WS_KVP, S(t0), S(t1), S(sW1K)))
    for r in range(16):
        P("buffer_load_dwordx4 %s, %s, %s, %s offen sc1" % (V(vAC + 4 * r, 4), V(vL16), srd(sWS), S(t0)))
        if r < 15: P("s_add_u32 %s, %s, 4096" % (S(t0), S(t0)))
    P("v_and_b32 %s, 15, %s\nv_lshlrev_b32 %s, 12, %s" % (V(vF + 1), L, V(vF), V(vF + 1)))
    P("buffer_load_dwordx3 %s, %s, %s, %s offen offset:3648 sc1" % (V(vF + 4, 3), V(vF), srd(sWS), S(t1)))
    for x in C.check_flags(vFB + 1, vFB, 1): P.add(x)
    P("s_lshr_b32 %s, %s, 8\ns_mul_i32 %s, %s, 18432\ns_add_u32 %s, %s, %s\ns_add_u32 %s, %s, %d" % (S(t0), S(sWB), S(t0), S(t0), S(t0), S(t0), S(sW1K), S(t0), S(t0), WS_RW))
    lab = P.newlabel(C.name + "_nl")
    P("s_cmp_gt_u32 %s, 1\ns_cbranch_scc1 %s\ns_add_u32 m0, %s, %d\ns_add_u32 %s, %s, 16384" % (S(sWAVE), lab, S(sW1K), 73728 + 16384, S(t1), S(t0)))
    P("buffer_load_dwordx4 %s, %s, %s offen sc1 lds" % (V(vL16), srd(sWS), S(t1))).nocount = True
    P.label(lab)
    rwd = [["s_add_u32 m0, %s, %d" % (S(sW1K), 73728 + 4096 * i), "s_add_u32 %s, %s, %d" % (S(t1), S(t0), 4096 * i),
            "buffer_load_dwordx4 %s, %s, %s offen sc1 lds" % (V(vL16), srd(sWS), S(t1))] for i in range(4)]
    for which in ACFG["pfQ"]:
        emit_items(P, ffn.hbm_prefetch(P, which, vLANE, vT + 18, vT + 19, vT + 20, 255))
    main_P = P
    P = Prog(); P._tok, P._lab = main_P._tok, main_P._lab
    softmax(P, 1)
    for x in C.stamp("phiq"): P.add(x)
    sm = vWF
    P("v_mov_b32 %s, 0x3f80\nv_mov_b32 %s, 1.0" % (V(vT + 8), V(vT + 9)))
    for i in range(6): P("v_mov_b32 %s, 0" % V(sm + i))
    P("v_mov_b32 %s, 0" % V(vT + 7))
    P("v_cmp_lt_u32 vcc, 8, %s\nv_addc_co_u32 %s, vcc, 0, %s, vcc\nv_lshlrev_b32 %s, 3, %s\nv_add_u32 %s, %d, %s" % (V(vF + 1), V(vF + 2), V(vF + 1), V(vF + 2), V(vF + 2), V(vF + 2), L_WBAR, V(vF + 2)))
    P("v_lshlrev_b32 %s, 2, %s\nv_add_u32 %s, %d, %s" % (V(vF + 3), V(vF + 1), V(vF + 3), L_WBAR + 136, V(vF + 3)))
    for r in range(16):
        for i in range(6): P("v_dot2c_f32_bf16 %s, %s, %s" % (V(sm + i), V(vAC + 4 * r + (i >> 1)), V(vT + 8 + (i & 1))))
    for i in range(3): P("v_cvt_pk_bf16_f32 %s, %s, %s" % (V(vT + 4 + i), V(sm + 2 * i), V(sm + 2 * i + 1)))
    P("ds_write_b128 %s, %s" % (V(vRS), V(vT + 4, 4)))
    P("ds_write_b64 %s, %s\nds_write_b32 %s, %s" % (V(vF + 2), V(vF + 4, 2), V(vF + 3), V(vF + 6)))
    P("s_waitcnt lgkmcnt(0)\ns_barrier")
    for x in C.stamp("kvred"): P.add(x)
    kf = vAC
    for T in range(3):
        for p in range(3):
            P("ds_read_b128 %s, %s offset:%d" % (V(kf + 12 * T + 4 * p, 4), V(vRb if T == 2 else vRa), (384 if T == 1 else 0) + 16 * p))
    vWb = vAC + 36
    P("ds_read_b128 %s, %s\nds_read_b128 %s, %s offset:16\nds_read_b64 %s, %s" % (V(vWb, 4), V(vWa), V(vWb + 4, 4), V(vWa), V(vWb + 8, 2), V(vWc)))
    P("s_mul_i32 %s, %s, 3072\ns_add_u32 m0, %s, %d\ns_mul_i32 %s, %s, 18432\ns_add_u32 %s, %s, %s" % (S(t0), S(sWAVE), S(t0), L_XR, S(t0), S(sMT), S(t0), S(t0), S(sWB)))
    for q in range(3): P("buffer_load_dwordx4 %s, %s, %s offen offset:%d lds" % (V(vXL + q), srd(sX), S(t0), 1024 * q))
    P("s_lshl_b32 %s, %s, 3\ns_lshl_b32 %s, %s, 1\ns_add_u32 %s, %s, %s\ns_lshl_b32 %s, %s, 4\ns_add_u32 %s, %s, %s" %
      (S(t0), S(sRBK), S(t1), S(sWAVE), S(t0), S(t0), S(t1), S(t0), S(t0), S(t0), S(t0), S(sHP)))
    P("s_lshl_b32 %s, %s, 8\ns_add_u32 %s, %s, %d\ns_lshl_b32 %s, %s, 10\ns_add_u32 %s, %s, %d" % (S(t1), S(t0), S(t1), S(t1), WS_OL, S(t0), S(t0), S(t0), S(t0), WS_OM))
    for m in range(2):
        for T in (2, 0, 1):
            dd = vPP + 12 * m + 4 * T
            for p in range(3): P(mfma(dd, kf + 12 * T + 4 * p, vPHI + 12 * m + 4 * p, None if p == 0 else dd))
    chain = P.ins
    main_P._tok, main_P._lab = P._tok, P._lab
    P = main_P
    rest = side[ACFG['woq']:] + rwd
    step = max(1, int(len(chain) * ACFG["wofr"]) // max(len(rest), 1))
    k = 0
    for n, x in enumerate(chain):
        if x.is_dma or (x.kind == "salu" and (("s", "m0") in x.dst or ("s", t0) in x.dst or ("s", t1) in x.dst)):
            while k < len(rest): emit_items(P, [rest[k]]); k += 1
        P.add(x)
        if n % step == 0 and k < len(rest) and x.op not in ("s_waitcnt", "s_memrealtime", "s_memtime", "v_cmp_lt_u32"):
            emit_items(P, [rest[k]]); k += 1
    assert k == len(rest)
    a, b, c, d = V(vF), V(vF + 1), V(vF + 2), V(vF + 3)
    for m in range(2):
        o = vPP + 12 * m
        P("v_add_f32 %s, 0x358637bd, %s\nv_rcp_f32 %s, %s" % (a, V(o + 8), a, a))
        P("v_mul_f32 %s, %s, %s\nv_mul_f32 %s, %s, %s" % (V(o + 9), V(o + 9), a, V(o + 10), V(o + 10), a))
        for i in (0, 2, 4, 6): P("v_pk_mul_f32 %s, %s, %s op_sel_hi:[1,0]" % (V(o + i, 2), V(o + i, 2), V(vF, 2)))
        q = vF + 4 + 4 * m
        for i in range(4): P("v_cvt_pk_bf16_f32 %s, %s, %s" % (V(q + i), V(o + 2 * i), V(o + 2 * i + 1)))
        P("buffer_store_dwordx4 %s, %s, %s, %s offen sc1" % (V(q, 4), V(vL16), srd(sWS), S(t0)))
        P("v_pk_mul_f32 %s, %s, %s" % (V(vF + 2, 2), V(o, 2), V(vWb, 2)))
        for i in (2, 4, 6): P("v_pk_fma_f32 %s, %s, %s, %s" % (V(vF + 2, 2), V(o + i, 2), V(vWb + i, 2), V(vF + 2, 2)))
        P("v_fmac_f32 %s, %s, %s\nv_fmac_f32 %s, %s, %s\nv_add_f32 %s, %s, %s" % (c, V(o + 9), V(vWb + 8), d, V(o + 10), V(vWb + 9), b, c, d))
        for x in allred(vF + 1, vF + 2, "v_add_f32"): P(x)
        P("v_cvt_pk_bf16_f32 %s, %s, %s\nv_cndmask_b32 %s, %s, %s, %s" % (c, V(o + 9), V(o + 10), V(vF + 12 + m), c, b, S(mB, 2)))
        P("buffer_store_dword %s, %s, %s, %s offen sc1" % (V(vF + 12 + m), V(vOL), srd(sWS), S(t1)))
        if m == 0: P("s_add_u32 %s, %s, 16384\ns_add_u32 %s, %s, 4096" % (S(t0), S(t0), S(t1), S(t1)))
    P("v_and_b32 %s, 15, %s" % (a, L))
    vf_hp(P, V(vFA), a, b)
    f_rb(P, S(t0), S(sRBK), S(t1))
    P("s_and_b32 %s, %s, 7\ns_lshr_b32 %s, %s, 1\ns_lshl_b32 %s, %s, 2\ns_add_u32 %s, %s, %s\nv_add_u32 %s, %s, %s" % (S(t1), S(sMT), S(t1), S(t1), S(t1), S(t1), S(t0), S(t0), S(t1), V(vFA), S(t0), V(vFA)))
    for x in flagfix(V(vFA), a): P(x)
    P("v_mov_b32 v225, %s" % L)
    ffn.ffn_setup(C, 225)

L_XR = 122880
def code_touch(C, L, a):
    P = C.P
    nper = -(-(C.code_bytes - 4096) // (32 * 128))
    lab = P.newlabel(C.name + "_ct")
    P("s_cmp_lg_u32 %s, 3\ns_cbranch_scc1 %s" % (S(sWAVE), lab))
    P("s_getpc_b64 s[100:101]\n%s_pc:\ns_sub_u32 s100, s100, %s_pc-%s_body\ns_subb_u32 s101, s101, 0" % (lab, lab, C.name))
    P("s_mul_i32 %s, %s, %d\nv_min_u32 %s, %d, %s\nv_lshl_add_u32 %s, %s, 7, %s\nv_min_u32 %s, %d, %s" % (S(t1), S(sIDX), nper * 128, a, nper - 1, L, a, a, S(t1), a, C.code_bytes - 4096 - 128, a))
    P("global_load_dword %s, %s, s[100:101]" % (V(255), a)); P.ins[-1].dst = []; P.ins[-1].nocount = True
    P.label(lab)

def p2(C):
    P = C.P
    vLN = 225
    L = V(vLN)
    vO, vAcc, vMU, vXS, vWV = 0, 72, 92, 96, 108
    vQ = 240
    a, b, c, d = V(vQ), V(vQ + 1), V(vQ + 2), V(vQ + 3)
    vWR2, vLA, vMA, vL8, vMX = 226, 227, 228, 229, 230
    def wreg(i): return AG + 4 * i if i < 64 else vWV + 4 * (i - 64)
    nar = ffn.narrow_items(P, vL16)

    vW4 = 212
    P("v_lshrrev_b32 %s, 2, %s\nv_and_b32 %s, 3, %s\nv_bfe_u32 %s, %s, 1, 2\nv_lshlrev_b32 %s, 7, %s\nv_lshl_add_u32 %s, %s, 3, %s" % (a, L, b, L, c, a, d, a, d, b, d))
    for T in range(4): P("v_xor_b32 %s, %d, %s\nv_lshl_add_u32 %s, %s, 5, %s" % (V(vW4 + T), T, c, V(vW4 + T), V(vW4 + T), d))
    P("v_add_u32 %s, 73728, %s" % (V(vWR2), V(vL16)))
    P("v_and_b32 %s, 15, %s\nv_lshrrev_b32 %s, 4, %s\nv_mul_u32_u24 %s, 144, %s\nv_lshl_add_u32 %s, %s, 3, %s" % (a, L, b, L, c, a, c, b, c))
    P("s_mul_i32 %s, %s, 3072\ns_add_u32 %s, %s, %d\nv_add_u32 %s, %s, %s" % (S(t1), S(sWAVE), S(t1), S(t1), L_XR, c, S(t1), c))
    P("v_lshrrev_b32 %s, 1, %s\nv_lshlrev_b32 %s, 4, %s\nv_sub_u32 %s, %s, %s" % (V(vQ + 4), b, V(vQ + 4), V(vQ + 4), V(vQ + 4), c, V(vQ + 4)))
    xrd = ["ds_read_b64 %s, %s offset:%d" % (V(vXS + 2 * T, 2), c if T < 4 else V(vQ + 4), 32 * T) for T in range(5)]
    P("v_lshlrev_b32 %s, 4, %s\nv_lshl_add_u32 %s, %s, 9, %s\nv_lshlrev_b32 %s, 3, %s" % (d, a, V(vLA), b, d, V(vL8), L))
    P("v_lshlrev_b32 %s, 2, %s" % (a, a))
    P("s_and_b32 %s, %s, 7\ns_lshl_b32 %s, %s, 6\ns_add_u32 %s, %s, %d\nv_add_u32 %s, %s, %s\nds_read_b32 %s, %s" % (S(t1), S(sMT), S(t1), S(t1), S(t1), S(t1), L_MEAN, a, S(t1), a, V(vMX), a))
    aw = LdsAddr([vW4 + T for T in range(4)])
    main = []
    for f in range(18):
        for T in range(4):
            it = aw.rebase(f * 4096, (f + 1) * 4096)
            it += ["ds_read_b64_tr_b16 %s, %s offset:%d" % (R(wreg(5 * f + T) + 2 * h, 2), V(vW4 + T), aw.off(f * 4096 + h * 2048)) for h in range(2)]
            main.append(it)
    for f in range(18): main.append(["ds_read_b128 %s, %s offset:%d" % (R(wreg(5 * f + 4), 4), V(vWR2), f * 1024)])
    main.insert(72, ["s_barrier"])
    pa = ACFG["pa"]
    assert pa <= 6
    k0 = ACFG["prep"]
    emit_items(P, main[:k0])
    P("s_waitcnt vmcnt(0)")
    for x in C.publish(vQ + 3, 2): P.add(x)
    for x in C.stamp("pub2"): P.add(x)
    emit_items(P, xrd)
    if ACFG["ct2"]: code_touch(C, L, a)
    units = ffn.unit_items(P, 0, 30 - ffn.CFG['late'])
    multi_interleave(P, main[k0:], [spread(units[:pa], 0, max(90 - k0 - 5, 1))], 1)
    if ACFG['hop'] and ACFG['hop2'] == 0: C.hop(None)
    for x in (C.stamp("prer") if ACFG["rst"] else []): P.add(x)
    P.add(C.load_flags(vFD, vFA))
    P("s_lshl_b32 %s, %s, 14\ns_add_u32 %s, %s, %d\ns_lshl_b32 %s, %s, 12\ns_add_u32 %s, %s, %d" % (S(t2), S(sMT), S(t2), S(t2), WS_OM, S(t1), S(sMT), S(t1), S(t1), WS_OL))
    P("s_waitcnt lgkmcnt(0)\ns_barrier")
    for x in C.check_flags(vFD, vFA, 2, 255): P.add(x)
    for x in C.stamp("s2"): P.add(x)
    vLQ = 244
    for f in range(16):
        P("buffer_load_dwordx4 %s, %s, %s, %s offen offset:%d sc1" % (V(vO + 4 * f, 4), V(vL16), srd(sWS), S(t2), 1024 * (f % 4)))
        if f == 7:
            for e in range(2):
                P("buffer_load_dwordx3 %s, %s, %s, %s offen offset:%d sc1" % (V(vO + 64 + 4 * e, 3), V(vLA), srd(sWS), S(t1), e * 2048))
                P("buffer_load_dwordx3 %s, %s, %s, %s offen offset:%d sc1" % (V(vLQ + 4 * e, 3), V(vLA), srd(sWS), S(t1), e * 2048 + 256))
        if f % 4 == 3 and f < 15: P("s_add_u32 %s, %s, 4096" % (S(t2), S(t2)))
    main = []
    for f in range(18):
        for T in range(5):
            main.append(mfma(vAcc + 4 * T, wreg(5 * f + T), vO + 4 * f, None if f == 0 else vAcc + 4 * T))
    units = nar + units[pa:]
    pb = ACFG["pb"]
    X = Rec()
    X("s_and_b32 %s, %s, 7" % (S(t3), S(sHP)))
    X("s_mul_i32 %s, %s, 18432\ns_lshl_b32 %s, %s, 11\ns_add_u32 %s, %s, %s\ns_add_u32 %s, %s, %d" % (S(sXB), S(sMT), S(t1), S(t3), S(t1), S(t1), S(sXB), S(t1), S(t1), WS_H))
    X("s_lshl_b32 %s, %s, 11\ns_add_u32 %s, %s, %s\ns_add_u32 %s, %s, %d" % (S(t2), S(t3), S(t2), S(t2), S(sXB), S(t2), S(t2), WS_HC))
    X("s_and_b32 %s, %s, 1\nv_lshrrev_b32 %s, 5, %s" % (S(sWB), S(t3), a, L))
    X("v_cmp_eq_u32 %s, %s, %s\nv_mov_b32 %s, 0x8000000\nv_cndmask_b32 %s, %s, %s, %s" % (S(mA, 2), S(sWB), a, a, V(vLA), a, V(vL8), S(mA, 2)))
    X("v_and_b32 %s, 15, %s\nv_lshlrev_b32 %s, 4, %s\nv_bfe_u32 %s, %s, 4, 1\nv_lshl_add_u32 %s, %s, 3, %s\nv_cndmask_b32 %s, %s, %s, %s" % (b, L, b, b, c, L, b, c, b, V(vMA), a, b, S(mA, 2)))
    Y = []
    for e in range(2):
        Y += ["v_add_f32 %s, %s, %s" % (V(vMU + e), V(vO + 66 + 4 * e), V(vLQ + 4 * e + 2)),
              "v_mov_b32 %s, %s" % (V(vO + 66 + 4 * e), V(vLQ + 4 * e)), "v_mov_b32 %s, %s" % (V(vO + 67 + 4 * e), V(vLQ + 4 * e + 1))]
    Y += ["v_add_f32 %s, %s, %s" % (V(vMU), V(vMU), V(vMU + 1))] + allred(vMU, vMU + 1, "v_add_f32") + ["v_add_f32 %s, %s, %s" % (V(vMU), V(vMU), V(vMX))]
    multi_interleave(P, main, [paced(units[:pb], ACFG["pbat"], ACFG["pbstep"])[0], [(2, INF, x) for x in X.items] + [(45, 78, x) for x in Y]], 2)
    for x in C.stamp("wog"): P.add(x)
    ss = vMU + 2
    P("v_mov_b32 %s, 0\nv_mov_b32 %s, 0" % (V(ss), V(ss + 1)))
    hq = vO
    for T in range(5):
        r = vAcc + 4 * T
        for h in range(2):
            x = V(vXS + 2 * T + h)
            P("v_lshlrev_b32 %s, 16, %s\nv_and_b32 %s, 0xffff0000, %s" % (a, x, b, x))
            P("v_pk_add_f32 %s, %s, %s" % (V(vQ, 2), V(vQ, 2), V(r + 2 * h, 2)))
            P("v_cvt_pk_bf16_f32 %s, %s, %s" % (V(hq + 2 * T + h), a, b))
            P("v_lshlrev_b32 %s, 16, %s\nv_and_b32 %s, 0xffff0000, %s" % (a, V(hq + 2 * T + h), b, V(hq + 2 * T + h)))
            P("v_pk_add_f32 %s, %s, %s op_sel_hi:[1,0] neg_lo:[0,1] neg_hi:[0,1]" % (V(vQ, 2), V(vQ, 2), V(vMU, 2)))
            P("v_cvt_pk_bf16_f32 %s, %s, %s" % (V(hq + 12 + 2 * T + h), a, b))
            if T == 4: P("v_cndmask_b32 %s, 0, %s, %s\nv_cndmask_b32 %s, 0, %s, %s" % (b, b, S(mA, 2), a, a, S(mA, 2)))
            P("v_pk_fma_f32 %s, %s, %s, %s" % (V(ss, 2), V(vQ, 2), V(vQ, 2), V(ss, 2)))
        if T % 2 == 1:
            P("buffer_store_dwordx4 %s, %s, %s, %s offen offset:%d sc1" % (V(hq + 12 + 2 * (T - 1), 4), V(vL16), srd(sWS), S(t2), 1024 * (T >> 1)))
        if T == 4:
            P("s_lshl_b32 %s, %s, 8\ns_add_u32 %s, %s, %s\ns_add_u32 %s, %s, %d" % (S(t2), S(t3), S(t2), S(t2), S(sXB), S(t2), S(t2), WS_HC + 16384))
            P("buffer_store_dwordx2 %s, %s, %s, %s offen sc1" % (V(hq + 20, 2), V(vMA), srd(sWS), S(t2)))
    P("v_add_f32 %s, %s, %s" % (V(ss), V(ss), V(ss + 1)))
    for x in allred(ss, ss + 1, "v_add_f32"): P(x)
    P("s_lshl_b32 %s, %s, 3\ns_add_u32 %s, %s, %s\ns_lshl_b32 %s, %s, 8\ns_add_u32 %s, %s, %d" % (S(t0), S(sMT), S(t0), S(t0), S(t3), S(t0), S(t0), S(t0), S(t0), WS_SSQ))
    P("v_lshlrev_b32 %s, 2, %s\nbuffer_store_dword %s, %s, %s, %s offen sc1" % (a, L, V(ss), a, srd(sWS), S(t0)))
    for T in range(4):
        P("buffer_store_dwordx2 %s, %s, %s, %s offen offset:%d sc1" % (V(hq + 2 * T, 2), V(vL8), srd(sWS), S(t1), 512 * T))
    P("s_lshr_b32 %s, %s, 1\ns_lshl_b32 %s, %s, 9\ns_add_u32 %s, %s, %s\ns_add_u32 %s, %s, %d" % (S(t1), S(t3), S(t1), S(t1), S(t1), S(t1), S(sXB), S(t1), S(t1), WS_H + 16384))
    P("buffer_store_dwordx2 %s, %s, %s, %s offen sc1" % (V(hq + 8, 2), V(vLA), srd(sWS), S(t1)))
    fa = V(ffn.vFA)
    a, b = V(100), V(101)
    P("s_lshl_b32 %s, %s, 3\ns_lshl_b32 %s, %s, 1\ns_add_u32 %s, %s, %s\ns_lshr_b32 %s, %s, 1\ns_add_u32 %s, %s, %s" % (S(t0), S(sMH), S(t1), S(sRB), S(t0), S(t0), S(t1), S(t1), S(sWAVE), S(t0), S(t0), S(t1)))
    f_rb(P, S(t2), S(t0), S(t1))
    P("s_and_b32 %s, %s, 1\ns_lshl_b32 %s, %s, 3\nv_bfe_u32 %s, %s, 2, 3\nv_add_u32 %s, %s, %s" % (S(t0), S(sWAVE), S(t0), S(t0), a, L, a, S(t0), a))
    vf_hp(P, fa, a, b)
    P("v_and_b32 %s, 3, %s\nv_lshl_add_u32 %s, %s, 2, %s\nv_add_u32 %s, %s, %s" % (a, L, fa, a, fa, fa, S(t2), fa))
    for x in flagfix(fa, a): P(x)
    P("v_mov_b32 v102, %s" % L)
    ffn.ffn_addr2(C, 102)
    P("s_waitcnt vmcnt(0)")
    for x in C.publish(100, 3): P.add(x)
    for x in C.stamp("pub3"): P.add(x)
    emit_items(P, units[pb:])
    for which in ACFG["pfS3"]:
        emit_items(P, ffn.hbm_prefetch(P, which, 102, 103, 104, 105, 106))
    if ACFG['hop'] and ACFG['hop2'] == 1: C.hop(None)
```

```python
from gen import *

WS_FLAGS = 0x0
WS_KVP = 0x20000
WS_OM = 0x120000
WS_OL = 0x320000
WS_HC = 0x3A0000
WS_SSQ = 0x5E0000
WS_H = 0x620000
WS_PART = 0x2800000
WS_HH = 0x1260000
WS_RN = 0x2500000
WS_RD = 0x2640000
WS_RW = 0x26D0000
WS_NONCE = 0x26F0000
WS_TIM = 0x2460000
WS_DBG = 0x2700000
WS_SIZE = 0x4000000

sX, sWQKV, sWPHI, sWO, sWG, sWU, sWD, sOUT, sWS, sDBG, sWN = 4, 8, 12, 16, 20, 24, 28, 32, 36, 40, 44
sWAVE, sW1K, sXCD, sIDX, sFLAG = 48, 49, 50, 51, 52
sSPIN = 53
sNON = 3
sFQ, sMH, sRB, sFS = 54, 55, 56, 57
sT = 80
def srd(b): return S(b, 4)

SPIN_MAX = 50000
GCFG = dict(fl=1, poll=1, only=[], xr=0)
def flagfix(reg, tmp):
    if not GCFG['fl']: return []
    return ['v_and_b32 %s, 12, %s' % (tmp, reg), 'v_and_b32 %s, 0xffffff80, %s' % (reg, reg), 'v_lshlrev_b32 %s, 2, %s' % (reg, reg), 'v_lshl_add_u32 %s, %s, 5, %s' % (reg, tmp, reg)]


class Ctx:
    def __init__(self, name, timing=False):
        self.name = name
        self.P = Prog()
        self.slow = []
        self.timing = timing
        self.nstamp = 0
        self.sbase = 0
        self.hops = []
        self.touch_labels = set()
        self.tables = []
        self.stamp_names = []
    def check_flags(self, vdata, vaddr, phase, v2=None):
        lab = self.P.newlabel(self.name + "_spin")
        if GCFG["poll"] > 1 and v2 is not None:
            ld = lambda r: "    buffer_load_dword %s, %s, %s, 0 offen sc1\n" % (V(r), V(vaddr), srd(sWS))
            ck = lambda r: "    s_waitcnt vmcnt(1)\n    v_cmp_gt_u32 vcc, %d, %s\n    s_cbranch_vccz %s_d\n" % (phase, V(r), lab)
            self.slow.append("%s:\n    s_mov_b32 %s, 0\n" % (lab, S(sSPIN)) + ld(vdata) + "    s_nop 15\n" * GCFG["poll"] + "%s_l:\n" % lab + ld(v2) + ck(vdata) + ld(vdata) + ck(v2) +
                             "    s_add_u32 %s, %s, 1\n    s_cmp_lt_u32 %s, %d\n    s_cbranch_scc1 %s_l\n%s_d:\n    s_waitcnt vmcnt(0)\n    s_branch %s_b\n" % (S(sSPIN), S(sSPIN), S(sSPIN), SPIN_MAX, lab, lab, lab))
            return ["v_cmp_gt_u32 vcc, %d, %s" % (phase, V(vdata)), "s_cbranch_vccnz %s" % lab, lab + "_b:"]
        self.slow.append("""%s:
    s_mov_b32 %s, 0
%s_l:
    buffer_load_dword %s, %s, %s, 0 offen sc1
    s_add_u32 %s, %s, 1
    s_waitcnt vmcnt(0)
    v_cmp_gt_u32 vcc, %d, %s
    s_cmp_gt_u32 %s, %d
    s_cbranch_scc1 %s_b
    s_cbranch_vccnz %s_l
    s_branch %s_b
""" % (lab, S(sSPIN), lab, V(vdata), V(vaddr), srd(sWS), S(sSPIN), S(sSPIN), phase, V(vdata), S(sSPIN), SPIN_MAX, lab, lab, lab))
        return ["v_cmp_gt_u32 vcc, %d, %s" % (phase, V(vdata)), "s_cbranch_vccnz %s" % lab, lab + "_b:"]
    def load_flags(self, vdata, vaddr):
        return "buffer_load_dword %s, %s, %s, 0 offen sc1" % (V(vdata), V(vaddr), srd(sWS))
    def publish(self, vtmp, phase):
        return ["v_mov_b32 %s, %d" % (V(vtmp), phase), "s_mov_b64 exec, 1",
                "buffer_store_dword %s, off, %s, %s sc1" % (V(vtmp), srd(sWS), S(sFLAG)), "s_mov_b64 exec, -1"]
    def stamp(self, name):
        if not self.timing: return []
        if GCFG["only"] and name not in GCFG["only"]: return []
        if not GCFG["only"] and name.startswith("x_"): return []
        k = self.nstamp; self.nstamp += 1
        self.stamp_names.append(name)
        return [("s_memtime" if self.timing == 2 else "s_memrealtime") + " s[100:101]", "s_waitcnt lgkmcnt(0)", "s_mov_b32 s%d, s100" % (60 + k - self.sbase)]
    def flush_stamps(self, v0, v1):
        if not self.timing: return
        P = self.P
        assert self.nstamp - self.sbase <= 16
        P("v_mov_b32 %s, 0" % V(v0))
        for k in range(self.sbase, self.nstamp):
            P("v_writelane_b32 %s, s%d, %d" % (V(v0), 60 + k - self.sbase, k - self.sbase))
        P("v_mbcnt_lo_u32_b32 %s, -1, 0\nv_mbcnt_hi_u32_b32 %s, -1, %s\nv_lshlrev_b32 %s, 2, %s" % (V(v1), V(v1), V(v1), V(v1), V(v1)))
        P("s_lshl_b32 s100, s2, 2\ns_add_u32 s100, s100, %s\ns_lshl_b32 s100, s100, 8\ns_add_u32 s100, s100, %d" % (S(sWAVE), WS_TIM + 4 * self.sbase))
        P("s_mov_b64 exec, 0xffff\nbuffer_store_dword %s, %s, %s, s100 offen\ns_mov_b64 exec, -1" % (V(v0), V(v1), srd(sWS)))
        self.sbase = self.nstamp
    def finish(self):
        P = self.P
        self.flush_stamps(0, 1)
        P.label(self.name + "_end")
        P("s_endpgm")
        text = P.finalize()
        if self.hops: text = self._place_stubs()
        tab = ""
        if self.tables:
            tab = ".p2align 7\n.type %s_tab,@object\n%s_tab:\n" % (self.name, self.name)
            for row in self.tables: tab += "".join("    .long 0x%x, 0x%x, 0x%x, 0x%x\n" % tuple(row[4 * i:4 * i + 4]) for i in range(64))
            tab += ".size %s_tab, %d\n" % (self.name, 1024 * len(self.tables))
        return kernel_header(self.name) + text + "".join(self.slow) + tab
    def table_load(self, dst, fns, vl16, sp):
        k = len(self.tables)
        self.tables.append([fns[j](l) & 0xffffffff if j < len(fns) else 0 for l in range(64) for j in range(4)])
        assert k < 8
        n = len(fns)
        return "global_load_dword%s %s, %s, %s offset:%d" % ("x%d" % n if n > 1 else "", V(dst, n), V(vl16), S(sp, 2), 1024 * k - 4096)
    def table_base(self, sp):
        lab = self.P.newlabel(self.name + "_tb")
        return ["s_getpc_b64 %s" % S(sp, 2), lab + ":", "s_add_u32 %s, %s, %s_tab-%s+4096" % (S(sp), S(sp), self.name, lab), "s_addc_u32 %s, %s, 0" % (S(sp + 1), S(sp + 1))]
    def align_body(self):
        self.P("s_branch %s_body" % self.name)
        self.P(".p2align 12")
        self.P.label(self.name + "_body")
    def hop(self, upto):
        k = len(self.hops); self.hops.append(upto)
        self.P("s_mov_b64 exec, 0\ns_branch %s_hop%d_0\n%s_hopback%d:\ns_mov_b64 exec, -1" % (self.name, k, self.name, k))
    def _place_stubs(self):
        import subprocess
        L = self.P.final
        lines = [i.text if i.kind in ("label", "dir") else "    " + i.text for i in L]
        fix = "".join("%s_hop%d_0:\n" % (self.name, k) for k in range(len(self.hops)))
        open("_st.s", "w").write('.amdgcn_target "amdgcn-amd-amdhsa--gfx950"\n.text\n' + "\n".join(lines) + "\n" + fix + "".join(self.slow) + "%s_tab:\n" % self.name)
        r = subprocess.run(["clang", "-x", "assembler", "-target", "amdgcn-amd-amdhsa", "-mcpu=gfx950", "-c", "_st.s", "-o", "_st.o"], capture_output=True, text=True)
        if r.returncode: print(r.stderr[:3000]); raise SystemExit(1)
        d = subprocess.run(["llvm-objdump", "-d", "--mcpu=gfx950", "_st.o"], capture_output=True, text=True).stdout
        d = d[d.index("<%s_body>:" % self.name):]
        sizes = [4 * len(l.split("//")[1].split(":")[1].split("<")[0].split()) for l in d.splitlines() if "//" in l]
        b0 = [k for k, i in enumerate(L) if i.text == self.name + "_body:"][0]
        out = lines[:b0 + 1]
        addr, page, si = 0, 1, 0
        chain, cnt, chains = None, {}, {}
        for k in range(b0 + 1, len(L)):
            i = L[k]
            if i.kind == "label" and i.text[:-1] in self.touch_labels and chain is not None:
                out.append(lines[k])
                n = cnt.get(chain, 0); cnt[chain] = n + 1
                out.append("%s_hop%d_%d:" % (self.name, chain, n)); out.append("    s_cbranch_execz %s_hop%d_%d" % (self.name, chain, n + 1)); addr += 4
                continue
            if i.kind == "label":
                for h, upto in enumerate(self.hops):
                    if i.text == "%s_hopback%d:" % (self.name, h): chain = h
                    if upto is not None and i.text == upto + ":" and chain == h: chain = None
                out.append(lines[k]); continue
            if i.kind == "dir":
                out.append(lines[k]); continue
            if addr >= page * 4096:
                page += 1
                if chain is not None:
                    n = cnt.get(chain, 0); cnt[chain] = n + 1
                    out.append("%s_hop%d_%d:" % (self.name, chain, n)); out.append("    s_cbranch_execz %s_hop%d_%d" % (self.name, chain, n + 1)); addr += 4
            out.append(lines[k]); addr += sizes[si]; si += 1
        text = "\n".join(out) + "\n"
        for h in range(len(self.hops)):
            n = cnt.get(h, 0)
            text = text.replace("%s_hop%d_%d\n" % (self.name, h, n), "%s_hopback%d\n" % (self.name, h))
        return text

def prologue(C):
    P = C.P
    P("s_cmp_ge_u32 s2, 256\ns_cbranch_scc1 %s_end" % C.name)
    if GCFG["xr"]: P("s_xor_b32 s2, s2, %d" % GCFG["xr"])
    for x in C.stamp("x_first"): P.add(x)
    P("s_load_dwordx2 s[4:5], s[0:1], 0\ns_load_dwordx2 s[8:9], s[0:1], 8\ns_load_dwordx2 s[12:13], s[0:1], 16\ns_load_dwordx2 s[16:17], s[0:1], 24")
    P("s_load_dwordx2 s[20:21], s[0:1], 40\ns_load_dwordx2 s[24:25], s[0:1], 48\ns_load_dwordx2 s[28:29], s[0:1], 56")
    P("s_load_dwordx2 s[32:33], s[0:1], 64\ns_load_dwordx2 s[40:41], s[0:1], 72\ns_load_dwordx2 s[36:37], s[0:1], 80")
    for b, n in ((sX, 2359296), (sWQKV, 1990656), (sWPHI, 20736), (sWO, 663552), (sWG, 5308416), (sWU, 5308416), (sWD, 5308416),
                 (sOUT, 2359296), (sWS, WS_SIZE), (sDBG, 256), (sWN, 5308416)):
        P("s_mov_b32 s%d, %d\ns_mov_b32 s%d, 0x20000" % (b + 2, n, b + 3))
    P("v_lshrrev_b32 v1, 6, v0\nv_and_b32 v0, 63, v0\nv_readfirstlane_b32 %s, v1" % S(sWAVE))
    P("s_and_b32 %s, s2, 7\ns_lshr_b32 %s, s2, 3" % (S(sXCD), S(sIDX)))
    P("s_lshl_b32 %s, %s, 10" % (S(sW1K), S(sWAVE)))
    P("s_lshl_b32 %s, s2, %d\ns_lshl_b32 s80, %s, %d\ns_add_u32 %s, %s, s80" % (S(sFLAG), 9 if GCFG['fl'] else 7, S(sWAVE), 7 if GCFG['fl'] else 2, S(sFLAG), S(sFLAG)))
    P("s_lshr_b32 %s, %s, 1\ns_and_b32 %s, %s, 1\ns_lshr_b32 %s, %s, 3\ns_and_b32 %s, %s, 7" %
      (S(sFQ), S(sXCD), S(sMH), S(sXCD), S(sRB), S(sIDX), S(sFS), S(sIDX)))

def allred(reg, tmp, op):
    return ["v_mov_b32 %s, %s" % (V(tmp), V(reg)), "v_permlane16_swap_b32 %s, %s" % (V(reg), V(tmp)), "%s %s, %s, %s" % (op, V(reg), V(reg), V(tmp)),
            "v_mov_b32 %s, %s" % (V(tmp), V(reg)), "v_permlane32_swap_b32 %s, %s" % (V(reg), V(tmp)), "%s %s, %s, %s" % (op, V(reg), V(reg), V(tmp))]

def mfma(d, a, b, c=None):
    return "v_mfma_f32_16x16x32_bf16 %s, %s, %s, %s" % (R(d, 4), R(a, 4), R(b, 4), "0" if c is None else R(c, 4))

class LdsAddr:
    def __init__(self, regs, base=0):
        self.regs, self.base = regs, base
    def rebase(self, lo, hi):
        if lo >= self.base and hi - self.base <= 65536: return []
        d = lo - self.base
        self.base = lo
        if d > 0: return ["v_add_u32 %s, %d, %s" % (V(r), d, V(r)) for r in self.regs]
        return ["v_subrev_u32 %s, %d, %s" % (V(r), -d, V(r)) for r in self.regs]
    def off(self, addr):
        o = addr - self.base
        assert 0 <= o < 65536, (addr, self.base)
        return o
```

```python
from common import *

vA16 = 0
vG, vU, vP = 32, 96, 160
vWF = 192
vOX = 208
vTRU = 216
vTRN = 220
vDM, vDL = 221, 222
vWD = 223
vL16, vL8 = 232, 233
vWE = 216
vR2 = 234
vFA, vFD = 238, 239
vT = 240
AG = 256

sA, sCOL, sNB, sNL, sWDB, sWD0, sHST, sHSN, sHLD, sMT2 = 76, 77, 78, 79, 80, 81, 82, 83, 84, 85
t0, t1, t2, t3 = 96, 97, 98, 99
sL2, sD2, sE1, sE2 = 92, 93, 94, 95
sKW = 89

CFG = dict(ustep=16, dstep=7, astep=10, hstep=8, hstep2=12, e4=100, otr=1, ptouch=0, ptm='', fbl=36, fbc=72, fbp=36, w2step=10, e2=200, chain=1, fill=620, fstep=10, s5=2, late=0, lateat=310, abl='', hst='sc1', ost='', wdown=0, rsp1=1, rsp2=1, hlead=30, fine=0, pfB=[(2, 300), (30, 480), (31, 580)], w0=7, w1=8)
LDS_N = 120 * 1024
PAIRS = [(16, 17), (14, 15)] + [(2 * i, 2 * i + 1) for i in range(7)]
def areg(phi, m):
    return vA16 + (phi - 16) * 16 + 4 * m if phi >= 16 else AG + phi * 16 + 4 * m
GSLOT = [4, 3, 0, 2, 1, 0, 2, 1, 0, 2, 1, 0]
def slab_addr(sig):
    return GSLOT[sig // 6] * 24576 + (sig % 6) * 4096
def slab_phi(sig):
    r = sig % 18
    return PAIRS[r // 2][r % 2]
WD_SLAB = [[b * 1024 + 9216 * i for i in range(4)] for b in (120, 84, 48, 12)]
def wd_slab(stage, i): return WD_SLAB[stage % 4][i]
def kappa(p):
    st, i = p // 4, p % 4
    if st == 0: return 32 + i
    kw = (i & 1) + 4 * (i >> 1)
    return 8 * (st - 1) + kw if st <= 4 else 8 * (st - 5) + 2 + kw
def oreg(m, n):
    k = m * 9 + n
    if k < 8: return vA16 + 4 * k
    if k < 16: return vP + 4 * (k - 8)
    return vOX + 4 * (k - 16)

def ffn_setup(C, vlane):
    P = C.P
    L = V(vlane)
    a, b, c, d = V(vT), V(vT + 1), V(vT + 2), V(vT + 3)
    P("s_lshl_b32 %s, %s, 6\ns_lshl_b32 %s, %s, 4\ns_add_u32 %s, %s, %s" % (S(t0), S(sMH), S(t1), S(sRB), S(t0), S(t0), S(t1)))
    P("s_lshl_b32 %s, %s, 2\ns_add_u32 %s, %s, %s" % (S(t1), S(sWAVE), S(t1), S(t1), S(t0)))
    P("s_mul_i32 %s, %s, 18432\ns_add_u32 %s, %s, %d" % (S(sA), S(t1), S(sA), S(sA), WS_HC))
    P("s_mul_i32 %s, %s, 147456\ns_mul_i32 %s, %s, 36864\ns_add_u32 %s, %s, %s\ns_add_u32 %s, %s, %d" %
      (S(t1), S(t1), S(t2), S(sFQ), S(t1), S(t1), S(t2), S(t1), S(t1), WS_HH))
    P("s_lshl_b32 %s, %s, 12\ns_add_u32 %s, %s, %s" % (S(t3), S(sFS), S(sHST), S(t1), S(t3)))
    P("s_lshl_b32 %s, %s, 9\ns_add_u32 %s, %s, %s\ns_add_u32 %s, %s, 32768" % (S(t3), S(sFS), S(sHSN), S(t1), S(t3), S(sHSN), S(sHSN)))
    P("s_lshr_b32 %s, %s, 2\ns_lshl_b32 %s, %s, 3\ns_add_u32 %s, %s, %s\ns_lshl_b32 %s, %s, 1\ns_add_u32 %s, %s, %s" %
      (S(t1), S(sFS), S(t1), S(t1), S(t0), S(t0), S(t1), S(t1), S(sWAVE), S(sMT2), S(t0), S(t1)))
    P("s_mul_i32 %s, %s, 147456\ns_add_u32 %s, %s, %s\ns_add_u32 %s, %s, %d" % (S(sHLD), S(sMT2), S(sHLD), S(sHLD), S(t2), S(sHLD), S(sHLD), WS_HH))
    P("s_mul_i32 %s, %s, 2304\ns_lshl_b32 %s, %s, 8\ns_add_u32 %s, %s, %s" % (S(t0), S(sFQ), S(t1), S(sFS), S(sCOL), S(t0), S(t1)))
    P("s_lshl_b32 %s, %s, 3\ns_add_u32 %s, %s, %s\ns_mul_i32 %s, %s, 36864\ns_add_u32 %s, %s, %s\ns_add_u32 %s, %s, %d" %
      (S(t1), S(sFQ), S(t1), S(t1), S(sFS), S(t1), S(t1), S(t1), S(t1), S(sW1K), S(sNB), S(t1), WS_RN))
    P("s_lshr_b32 %s, %s, 1" % (S(t1), S(sWAVE)))
    P("s_mul_i32 %s, %s, %d\ns_and_b32 %s, %s, 3\ns_mul_i32 %s, %s, 147456\ns_lshl_b32 %s, %s, 8\ns_add_u32 %s, %s, %s" %
      (S(t0), S(sFQ), 1152 * 1152, S(t2), S(sFS), S(sNL), S(t2), S(t2), S(t2), S(t0), S(t0), S(t2)))
    P("s_mul_i32 %s, %s, 36864\ns_add_u32 %s, %s, %s\ns_add_u32 %s, %s, %d" % (S(t2), S(sFQ), S(sNL), S(sNL), S(t2), S(sNL), S(sNL), WS_RD))
    P("s_and_b32 %s, %s, 1\ns_lshl_b32 %s, %s, 2\ns_add_u32 %s, %s, %s\ns_mul_i32 %s, %s, 36864\ns_add_u32 %s, %s, %s" %
      (S(t2), S(sWAVE), S(t1), S(t1), S(sKW), S(t2), S(t1), S(t2), S(sKW), S(sWDB), S(t0), S(t2)))
    P("s_lshl_b32 %s, %s, 10\ns_add_u32 %s, %s, %s" % (S(sKW), S(sKW), S(sKW), S(sKW), S(sNL)))
    P("s_add_u32 %s, %s, 32\ns_mul_i32 %s, %s, 36864\ns_add_u32 %s, %s, %s" % (S(t2), S(sWAVE), S(t2), S(t2), S(sWD0), S(t0), S(t2)))
    P("s_movk_i32 %s, 9216" % S(t3))
    def grow(rho, out, tmp):
        P("v_bfe_u32 %s, %s, 2, 2\nv_lshlrev_b32 %s, 3, %s" % (out, rho, out, out))
        P("v_lshrrev_b32 %s, 4, %s\nv_lshl_add_u32 %s, %s, 2, %s" % (tmp, rho, out, tmp, out))
        P("v_and_b32 %s, 3, %s\nv_add_u32 %s, %s, %s" % (tmp, rho, out, out, tmp))
    P("s_lshl_b32 %s, %s, 3\nv_lshrrev_b32 %s, 3, %s\nv_add_u32 %s, %s, %s" % (S(t2), S(sWAVE), a, L, a, S(t2), a))
    P("v_and_b32 %s, 6, %s\nv_and_b32 %s, 7, %s\nv_xor_b32 %s, %s, %s\nv_lshlrev_b32 %s, 4, %s" % (b, a, c, L, b, b, c, b, b))
    P("v_mad_u32_u24 %s, %s, %s, %s" % (V(vDM), a, S(t3), b))
    grow(a, c, d)
    P("v_mad_u32_u24 %s, %s, %s, %s" % (V(vDL), c, S(t3), b))

def dma_unit(P, sig, tok=None):
    st, phi = sig // 18, slab_phi(sig)
    src = sWG if st % 2 == 0 else sWU
    col = 128 if st >= 2 else 0
    row, vo = 32 * phi, (vDM if phi < 16 else vDL)
    return ["s_add_u32 m0, %s, %d" % (S(sW1K), slab_addr(sig)), "s_add_u32 %s, %s, %d" % (S(t0), S(sCOL), row * 9216 + col),
            P.mk("buffer_load_dwordx4 %s, %s, %s offen lds" % (V(vo), srd(src), S(t0)), tok)]

def narrow_items(P, vl16):
    out = []
    for it in [8, 7] + list(range(7)):
        out.append(["s_add_u32 m0, %s, %d" % (S(sW1K), LDS_N + it * 4096), "s_add_u32 %s, %s, %d" % (S(t0), S(sNB), it * 4096),
                    "buffer_load_dwordx4 %s, %s, %s offen sc1 lds" % (V(vl16), srd(sWS), S(t0))])
    return out
def unit_items(P, lo, hi):
    return [dma_unit(P, sig) for sig in range(lo, hi)]

def hbm_prefetch(P, which, vl, ta, tb, tc, dst, mklane=False, s0=None, s1=None):
    L, a, b, c = V(vl), V(ta), V(tb), V(tc)
    if s0 is None: s0, s1 = S(t0), S(t1)
    om = "s_lshl_b32 %s, %s, 6\ns_lshl_b32 %s, %s, 1\ns_add_u32 %s, %s, %s\ns_add_u32 %s, %s, %s" % (s0, S(sWAVE), s1, S(sIDX), s0, s0, s1, s0, s0, S(sMH))
    it = [om]
    if mklane: it.append("v_lshrrev_b32 %s, 4, %s" % (L, V(vL16)))
    def ld(sr):
        x = P.mk("buffer_load_dword %s, %s, %s, %s offen" % (V(dst), a, srd(sr), s1)); x.dst = []
        return x
    if which in (1, 2):
        per, rows = (8, 8)
        nw = 576 // rows
        it.append("v_lshrrev_b32 %s, 3, %s\nv_and_b32 %s, 7, %s\nv_lshl_add_u32 %s, %s, 1, %d" % (a, L, b, L, b, b, which - 1))
        it.append("v_mul_u32_u24 %s, 9216, %s\nv_lshl_add_u32 %s, %s, 7, %s" % (a, a, a, b, a))
        it.append("s_cmp_ge_u32 %s, %d\ns_cselect_b32 %s, %s, %s\ns_cselect_b32 %s, %s, %s\ns_cselect_b32 %s, %d, 0\ns_sub_u32 %s, %s, %s" %
                  (s0, nw, S(sWN), S(sWU), S(sWG), S(sWN + 1), S(sWU + 1), S(sWG + 1), s1, nw, s0, s0, s1))
        it.append("s_mul_i32 %s, %s, %d\ns_mul_i32 %s, %s, 2304\ns_add_u32 %s, %s, %s" % (s0, s0, rows * 9216, s1, S(sFQ), s1, s1, s0))
        it.append(ld(sWN))
    else:
        if which == 4: it.append("s_xor_b32 %s, %s, 1" % (s0, s0))
        if which >= 30:
            k, n = which % 10, (which // 10) - 1
            per = -(-41 // n)
            it.append("v_min_u32 %s, %d, %s\nv_add_u32 %s, %d, %s\nv_min_u32 %s, 40, %s\nv_lshlrev_b32 %s, 7, %s" % (a, per - 1, L, a, k * per, a, a, a, a, a))
        else:
            it.append("v_min_u32 %s, 40, %s\nv_lshlrev_b32 %s, 7, %s" % (a, L, a, a))
        it.append("s_mul_i32 %s, %s, %d\ns_mul_i32 %s, %s, %d\ns_add_u32 %s, %s, %s" % (s0, s0, 41 * 128, s1, S(sFQ), 1152 * 1152, s1, s1, s0))
        it.append(ld(sWD))
    return it

def part_prefill(P, vq, vl16, vl8, t0, t1):
    it = ["s_lshl_b32 %s, s2, 4" % S(t0), "s_add_u32 %s, %s, %s" % (S(t0), S(t0), S(sWAVE)), "s_mul_i32 %s, %s, 2560" % (S(t0), S(t0)),
          "s_add_u32 %s, %s, %d" % (S(t0), S(t0), WS_PART)]
    for i in range(1, 4):
        it += ["s_add_u32 %s, %s, %d" % (S(t1), S(sFQ), i), "s_and_b32 %s, %s, 3" % (S(t1), S(t1)), "s_mul_i32 %s, %s, %d" % (S(t1), S(t1), 4 * 2560),
               "s_add_u32 %s, %s, %s" % (S(t1), S(t1), S(t0)),
               "buffer_store_dwordx4 %s, %s, %s, %s offen sc1" % (V(vq, 4), V(vl16), srd(sWS), S(t1)),
               "buffer_store_dwordx4 %s, %s, %s, %s offen offset:1024 sc1" % (V(vq, 4), V(vl16), srd(sWS), S(t1)),
               "buffer_store_dwordx2 %s, %s, %s, %s offen offset:2048 sc1" % (V(vq, 2), V(vl8), srd(sWS), S(t1))]
    return it

def ffn_addr2(C, vlane):
    P = C.P
    L = V(vlane)
    a, b, c, d = V(vT), V(vT + 1), V(vT + 2), V(vT + 3)
    P("v_lshlrev_b32 %s, 4, %s\nv_lshlrev_b32 %s, 3, %s" % (V(vL16), L, V(vL8), L))
    P("v_lshrrev_b32 %s, 2, %s\nv_and_b32 %s, 3, %s" % (a, L, b, L))
    P("v_add_u32 %s, %d, %s" % (V(vTRN), LDS_N, V(vL16)))
    P("v_bfe_u32 %s, %s, 1, 2" % (c, a))
    P("v_lshlrev_b32 %s, 7, %s\nv_lshl_add_u32 %s, %s, 3, %s" % (d, a, d, b, d))
    for T in range(4):
        P("v_xor_b32 %s, %d, %s\nv_lshl_add_u32 %s, %s, 5, %s" % (V(vTRU + T), T, c, V(vTRU + T), V(vTRU + T), d))
    P("v_bfe_u32 %s, %s, 2, 2\nv_mul_u32_u24 %s, 1152, %s\nv_lshrrev_b32 %s, 4, %s\nv_lshl_add_u32 %s, %s, 6, %s" % (a, L, a, a, c, L, a, c, a))
    P("v_lshl_add_u32 %s, %s, 4, %s\nv_xor_b32 %s, 32, %s" % (c, b, a, d, c))
    for q in range(8):
        P("v_add_u32 %s, %d, %s" % (V(vWD + q), q * 4608 - 1024 * (q % 4), d if q & 1 else c))

def ffn_main(C, vlane_src=None, s3_addr_ready=True):
    P = C.P
    a, b, c, d = V(vT), V(vT + 1), V(vT + 2), V(vT + 3)
    P.add(C.load_flags(vFD, vFA))
    P("s_waitcnt vmcnt(0)")
    for x in C.check_flags(vFD, vFA, 3, vT + 15): P.add(x)
    for x in C.stamp("s3done"): P.add(x)
    def aload(phi, m):
        return ["s_add_u32 %s, %s, %d" % (S(t1), S(sA), m * 18432 + phi * 1024),
                "buffer_load_dwordx4 %s, %s, %s, %s offen sc1" % (R(areg(phi, m), 4), V(vL16), srd(sWS), S(t1)),
                "buffer_load_dwordx4 %s, %s, %s, %s offen offset:1024 sc1" % (R(areg(phi + 1, m), 4), V(vL16), srd(sWS), S(t1))]
    for pr in PAIRS[:2]:
        for m in range(4):
            for x in aload(pr[0], m): P.add(x)
    it = ["v_lshrrev_b32 %s, 4, %s" % (V(vFA), V(vL16)), "v_and_b32 %s, 7, %s" % (V(vFA), V(vFA)), "v_lshlrev_b32 %s, 10, %s" % (V(vFA), V(vFA)),
          "s_lshl_b32 %s, %s, 13" % (S(t1), S(sRB)), "s_lshl_b32 %s, %s, 7" % (S(sL2), S(sXCD)), "s_add_u32 %s, %s, %s" % (S(t1), S(t1), S(sL2)),
          "s_lshr_b32 %s, %s, 2" % (S(sL2), S(sFS)), "s_lshl_b32 %s, %s, 3" % (S(sL2), S(sL2)), "s_add_u32 %s, %s, %s" % (S(t1), S(t1), S(sL2)),
          "s_lshr_b32 %s, %s, 1" % (S(sL2), S(sWAVE)), "s_lshl_b32 %s, %s, 2" % (S(sL2), S(sL2)), "s_add_u32 %s, %s, %s" % (S(t1), S(t1), S(sL2)),
          "v_add_u32 %s, %s, %s" % (V(vFA), S(t1), V(vFA))] + flagfix(V(vFA), V(vFD))
    for x in it: P.add(x)
    P("s_barrier")
    main, blocks = [], []
    for st in range(4):
        tiles = [0, 1, 2, 3] + (["ng", "nu"] if st == 0 else [])
        for pi, pr in enumerate(PAIRS):
            for T in tiles:
                bi = len(blocks)
                wf = vWF + 8 * (bi % 3)
                blocks.append(dict(start=len(main), g=1, st=st, pi=pi, T=T, wf=wf))
                for m in range(4):
                    if T == "ng": acc = vP + 4 * m
                    elif T == "nu": acc = vP + 16 + 4 * m
                    else: acc = (vG if st % 2 == 0 else vU) + 16 * T + 4 * m
                    order = (0, 1) if (m % 2 == 0 or not CFG['chain']) else (1, 0)
                    for q, i in enumerate(order):
                        x = mfma(acc, wf + 4 * i, areg(pr[i], m), None if (pi == 0 and q == 0) else acc)
                        if m == 0 and q == 0:
                            w = list(range(wf, wf + 8))
                            if st == 0 and T == 0 and pi > 0:
                                for mm in range(4): w += [areg(pr[0], mm), areg(pr[1], mm)]
                            x = [WaitRegs(w), x]
                        main.append(x)
    nb1 = len(blocks)
    def hreg(p, m): return AG + 8 * (p % 28) + 4 * m
    for st in range(9):
        for pp in range(2):
            for n in range(9):
                bi = len(blocks)
                wf = AG + 224 + 8 * ((bi - nb1) % 4)
                blocks.append(dict(start=len(main), g=2, st=st, pp=pp, n=n, wf=wf))
                for m in range(2):
                    order = (0, 1) if (m % 2 == 0 or not CFG['chain']) else (1, 0)
                    for q, i in enumerate(order):
                        p = 4 * st + 2 * pp + i
                        x = mfma(oreg(m, n), wf + 4 * i, hreg(p, m), None if (st == 0 and pp == 0 and q == 0) else oreg(m, n))
                        if m == 0 and q == 0:
                            w = list(range(wf, wf + 8))
                            if n == 0:
                                for mm in range(2):
                                    for ii in range(2): w += list(range(hreg(p + ii, mm), hreg(p + ii, mm) + 4))
                            x = [WaitRegs(w), x]
                        main.append(x)
    NM = len(main)
    start = [bl["start"] for bl in blocks] + [NM]
    stage1 = [min(bl["start"] for bl in blocks if bl["g"] == 1 and bl["st"] == s_) for s_ in range(4)] + [start[nb1]]
    stage2 = [min(bl["start"] for bl in blocks if bl["g"] == 2 and bl["st"] == s_) for s_ in range(9)] + [NM]
    def pair_end(st, pi):
        return max(start[i + 1] for i, bl in enumerate(blocks) if bl["g"] == 1 and bl["st"] == st and bl["pi"] == pi) - 1

    rd, dm = [], []
    au = LdsAddr([vTRU + T for T in range(4)], 0)
    aw = LdsAddr([vTRN, vWE, vWE + 1], 0)
    toks = {}
    def wd_dma(stage, nb, step):
        tok = P.newtok(); toks[("d", stage)] = tok
        it = []
        if stage == 0:
            so = S(sWD0)
            it.append("s_add_u32 %s, %s, %s" % (S(t3), S(sNL), S(sW1K))); it.append("s_add_u32 %s, %s, 32768" % (S(t3), S(t3)))
        else:
            k = 8 * (stage - 1) if stage <= 4 else 8 * (stage - 5) + 2
            it.append("s_add_u32 %s, %s, %d" % (S(t2), S(sWDB), k * 36864)); so = S(t2)
            it.append("s_add_u32 %s, %s, %d" % (S(t3), S(sKW), k * 1024))
        base = WD_SLAB[stage % 4][0]
        for q in range(9):
            if q % 4 == 0: it.append("s_add_u32 m0, %s, %d" % (S(sD2), base + 1024 * q))
            if q < 8: it.append("buffer_load_dwordx4 %s, %s, %s offen offset:%d lds" % (V(vWD + q), srd(sWD), so, 1024 * (q % 4)))
            else: it.append(P.mk("buffer_load_dwordx4 %s, %s, %s offen sc1 lds" % (V(vL16), srd(sWS), S(t3)), tok))
        dm.extend(paced(it, nb + 1, step)[0])
    P("s_mul_i32 %s, %s, 9216" % (S(sD2), S(sWAVE)))
    if CFG["late"]:
        lo = 30 - CFG["late"]
        its = []
        for s2 in range(lo, 30):
            tok = None
            if s2 % 6 == 5:
                tok = P.newtok(); toks[("u", s2 // 6)] = tok
            its.append(dma_unit(P, s2, tok))
        dm.extend(paced(its, CFG["lateat"], 5, 400)[0])
    prev_nb = -1
    for bi, bl in enumerate(blocks):
        lead = 2 if bl["g"] == 1 else 3
        nb = start[bi - lead] - 1 if bi >= lead else -1
        dl = start[bi - lead + 1] if bi >= lead else 0
        if bl["g"] == 1:
            st, pi, T = bl["st"], bl["pi"], bl["T"]
            sig = st * 18 + 2 * pi
            if T == 0 and sig % 6 == 0 and sig >= 18:
                g = sig // 6
                it = []
                if ("u", g) in toks: it.append(WaitTok(toks[("u", g)]))
                it += ["s_waitcnt lgkmcnt(0)", "s_barrier"]
                rd.append((nb, nb + 1, it))
                if g + 2 < 12:
                    tok = P.newtok(); toks[("u", g + 2)] = tok
                    dm.extend(paced([dma_unit(P, s2, tok if s2 % 6 == 5 else None) for s2 in range(6 * (g + 2), 6 * (g + 3))], nb + 3, CFG["ustep"])[0])
                if g == CFG['w0']: wd_dma(0, nb + 1 + 6 * CFG['ustep'], 5)
                if g == CFG['w1']: wd_dma(1, nb + 1 + 6 * CFG['ustep'], 5)
                if g == 10: wd_dma(2, nb + 1, CFG['w2step'])
                nb += 1
            items = []
            for i in range(2):
                if T in ("ng", "nu"):
                    o = PAIRS[pi][i] * 2048 + (1024 if T == "nu" else 0)
                    items += ["ds_read_b128 %s, %s offset:%d" % (R(bl["wf"] + 4 * i, 4), V(vTRN), o)]
                else:
                    ad = slab_addr(sig + i)
                    gbase = slab_addr(sig - sig % 6)
                    items += au.rebase(gbase, gbase + 24576)
                    items += ["ds_read_b64_tr_b16 %s, %s offset:%d" % (R(bl["wf"] + 4 * i + 2 * h, 2), V(vTRU + T), au.off(ad + 2048 * h)) for h in range(2)]
        else:
            st, pp, n = bl["st"], bl["pp"], bl["n"]
            if bi == nb1:
                nb = start[bi - 2] - 1; dl = start[bi - 1]
            if bi == nb1 + 1:
                nb = start[bi - 3] - 1; dl = start[bi - 1]
            if bi == nb1 + 2:
                dl = start[bi - 1]
            if pp == 0 and n == 0:
                it = [WaitTok(toks[("d", st)]), "s_waitcnt lgkmcnt(0)", "s_barrier"]
                rd.append((nb, nb + 1, it))
                if st == 0:
                    x0, x1 = V(vWE), V(vWE + 1)
                    for x in ["v_and_b32 %s, 0xc0, %s" % (x0, V(vL16)), "v_and_b32 %s, 24, %s" % (x1, V(vL8)), "v_add_u32 %s, %s, %s" % (x0, x0, x1),
                              "v_lshrrev_b32 %s, 8, %s" % (x1, V(vL16)), "v_lshl_add_u32 %s, %s, 10, %s" % (x0, x1, x0), "v_and_b32 %s, 1, %s" % (x1, x1),
                              "v_lshl_add_u32 %s, %s, 5, %s" % (x0, x1, x0), "v_xor_b32 %s, 32, %s" % (x1, x0), "v_mov_b32 %s, %s" % (V(vTRN), V(vL16))]:
                        rd.append((nb + 1, dl, x))
                if st + 3 < 9: wd_dma(st + 3, nb + 1, CFG['dstep'])
                nb += 1
            items = []
            for i in range(2):
                ad = wd_slab(st, 2 * pp + i)
                lo = wd_slab(st, 2 * pp)
                items += aw.rebase(lo, lo + 2 * 9216)
                if n < 8: items += ["ds_read_b64_tr_b16 %s, %s offset:%d" % (R(bl["wf"] + 4 * i + 2 * h, 2), V(vWE + (n & 1)), aw.off(ad + 4096 * h + 256 * (n >> 1))) for h in range(2)]
                else: items += ["ds_read_b128 %s, %s offset:%d" % (R(bl["wf"] + 4 * i, 4), V(vTRN), aw.off(ad + 8192))]
        nb = max(nb, prev_nb); prev_nb = nb
        dl = max(dl, nb + 1)
        k = 0
        for x in items:
            rd.append((min(nb + k * (CFG["rsp1"] if bl["g"] == 1 else CFG["rsp2"]), dl - 1) if nb >= 0 else nb, dl, x))
            if x.startswith("ds_"): k += 1

    ld = []
    apos = 0
    for pi in range(2, 9):
        use = [bl["start"] for bl in blocks if bl["g"] == 1 and bl["st"] == 0 and bl["pi"] == pi][0]
        x, apos = paced([aload(PAIRS[pi][0], m) for m in range(4)], apos, CFG['astep'] / 2, use)
        ld += x
        if pi == 8:
            it = ["v_lshrrev_b32 %s, 2, %s" % (V(vT + 8), V(vL16)), "v_and_b32 %s, 0x3c, %s" % (V(vT + 8), V(vT + 8)),
                  "v_lshrrev_b32 %s, 8, %s" % (V(vT + 9), V(vL16)), "v_lshl_add_u32 %s, %s, 9, %s" % (V(vT + 8), V(vT + 9), V(vT + 8)),
                  "s_sub_u32 %s, %s, %d" % (S(t1), S(sA), WS_HC), "s_mul_hi_u32 %s, %s, %d" % (S(t1), S(t1), 477218589),
                  "s_add_u32 %s, %s, %d" % (S(t1), S(t1), WS_SSQ)]
            for m in range(4):
                if m == 2: it.append("s_add_u32 %s, %s, 4096" % (S(t1), S(t1)))
                for h in range(2):
                    it.append("buffer_load_dword %s, %s, %s, %s offen offset:%d sc1" % (V(vT + 2 * m + h), V(vT + 8), srd(sWS), S(t1), 2048 * (m % 2) + 256 * h))
            x, apos = paced(it, apos, 3)
            ld += x
    for which, at in CFG['pfB']:
        assert at <= 400 or at >= 436
        rg = (vT + 13, vT + 10, vT + 11, vT + 12) if at <= 400 else (vT + 7, vT + 4, vT + 3, vT + 2)
        ld.append((at, 420 if at <= 400 else INF, hbm_prefetch(P, which, rg[0], rg[1], rg[2], rg[3], vFD, True, S(sL2), S(t1))))
    s4 = stage1[3]
    def hload(p):
        k = kappa(p); it = []
        if p < 4:
            for m in range(2):
                it.append("s_add_u32 %s, %s, %d" % (S(t1), S(sHLD), m * 147456 + k * 1024))
                for h in range(2):
                    it.append("buffer_load_dwordx2 %s, %s, %s, %s offen offset:%d sc1" % (R(hreg(p, m) + 2 * h, 2), V(vL8), srd(sWS), S(t1), 512 * h))
            return [it[:3], it[3:]]
        assert p % 2 == 0 and kappa(p + 1) == k + 1
        out = []
        for m in range(2):
            out.append(["s_add_u32 %s, %s, %d" % (S(t1), S(sHLD), m * 147456 + k * 1024),
                        "buffer_load_dwordx4 %s, %s, %s, %s offen sc1" % (R(hreg(p, m), 4), V(vL16), srd(sWS), S(t1)),
                        "buffer_load_dwordx4 %s, %s, %s, %s offen offset:1024 sc1" % (R(hreg(p + 1, m), 4), V(vL16), srd(sWS), S(t1))])
        return out
    def use2(p): return stage2[p // 4] + 36 * ((p % 4) // 2)
    ld.append((s4 + 40, INF, C.load_flags(vFD, vFA)))
    ld.append((pair_end(3, 2), INF, C.check_flags(vFD, vFA, 4) + ([] if CFG["fine"] else C.stamp("s4a"))))
    hn = 0
    for p in list(range(4)) + list(range(4, 20, 2)):
        dead = pair_end(3, 2 + (p + 1) // 4)
        x, hn = paced(hload(p), max(hn, dead), CFG['hstep'] / 2, use2(p) - CFG['hlead'])
        ld += x
    FB_LOAD, FB_CHECK = stage2[3] + CFG['fbl'], stage2[3] + CFG['fbc']
    ld.append((FB_LOAD, INF, C.load_flags(vFD, vFA)))
    ld.append((FB_CHECK, INF, C.check_flags(vFD, vFA, 5) + ([] if CFG["fine"] else C.stamp("s4b"))))
    for p in range(20, 36, 2):
        x, hn = paced(hload(p), max(hn, FB_CHECK + 1), CFG['hstep2'] / 2, use2(p) - CFG['hlead'])
        ld += x

    ep = []
    nb = pair_end(0, 7)
    for m in range(4):
        r = vR2 + m
        it = ["v_add_f32 %s, %s, %s" % (V(r), V(vT + 2 * m), V(vT + 2 * m + 1))] + allred(r, vT + 9, "v_add_f32")
        it += ["v_mov_b32 %s, 0x3727c5ac" % V(vT + 9), "v_fmac_f32 %s, 0x3ae38e39, %s" % (V(vT + 9), V(r)), "v_rcp_f32 %s, %s" % (V(r), V(vT + 9))]
        for x in it: ep.append((nb, stage1[1], x))
    stq = [vT + 8, vT + 12]
    nb = stage1[1] + 3
    for m in range(4):
        g, u, q = vP + 4 * m, vP + 16 + 4 * m, stq[m % 2]
        for j in range(4):
            ep.append((nb, INF, "v_max_f32 %s, 0, %s" % (V(g + j), V(g + j))))
            ep.append((nb, INF, "v_mul_f32 %s, %s, %s" % (V(u + j), V(vR2 + m), V(u + j))))
            ep.append((nb, INF, "v_mul_f32 %s, %s, %s" % (V(g + j), V(g + j), V(u + j))))
        for h in range(2): ep.append((nb, INF, "v_cvt_pk_bf16_f32 %s, %s, %s" % (V(q + h), V(g + 2 * h), V(g + 2 * h + 1))))
        ep.append((nb, INF, "s_add_u32 %s, %s, %d" % (S(sE1), S(sHSN), m * 147456)))
        ep.append((nb, INF, "buffer_store_dwordx2 %s, %s, %s, %s offen %s" % (V(q, 2), V(vL8), srd(sWS), S(sE1), CFG["hst"])))
    for T in range(4):
        for m in range(4):
            g, pk = vG + 16 * T + 4 * m, vP + 2 * (4 * T + m)
            for j in range(4): ep.append((nb, stage1[2], "v_mul_f32 %s, %s, %s" % (V(g + j), V(vR2 + m), V(g + j))))
            for h in range(2): ep.append((nb, stage1[2], "v_cvt_pk_bf16_f32 %s, %s, %s" % (V(pk + h), V(g + 2 * h), V(g + 2 * h + 1))))
            for h in range(2): ep.append((nb, stage1[2], "v_pk_max_i16 %s, %s, 0" % (V(pk + h), V(pk + h))))
    nb = stage1[2] + 3
    tokA = P.newtok()
    k = 0
    for m in range(4):
        for i in range(2):
            q = stq[k % 2]; k += 1
            for tt in range(2):
                T = 2 * i + tt
                u, pk = vU + 16 * T + 4 * m, vP + 2 * (4 * T + m)
                for h in range(2):
                    ep.append((nb, stage1[3], "v_lshlrev_b32 %s, 16, %s" % (V(vT + 5), V(pk + h))))
                    ep.append((nb, stage1[3], "v_and_b32 %s, 0xffff0000, %s" % (V(vT + 6), V(pk + h))))
                    ep.append((nb, stage1[3], "v_mul_f32 %s, %s, %s" % (V(vT + 5), V(vT + 5), V(u + 2 * h))))
                    ep.append((nb, stage1[3], "v_mul_f32 %s, %s, %s" % (V(vT + 6), V(vT + 6), V(u + 2 * h + 1))))
                    ep.append((nb, stage1[3], "v_cvt_pk_bf16_f32 %s, %s, %s" % (V(q + 2 * tt + h), V(vT + 5), V(vT + 6))))
            it = []
            if i == 0: it.append("s_add_u32 %s, %s, %d" % (S(sE2), S(sHST), m * 147456))
            it.append(P.mk("buffer_store_dwordx4 %s, %s, %s, %s offen offset:%d %s" % (V(q, 4), V(vL16), srd(sWS), S(sE2), 1024 * i, CFG["hst"]), tokA if (m, i) == (3, 1) else None))
            for x in it: ep.append((nb, stage1[3], x))
    ep.append((stage1[3] - 24, stage1[3] + 8, [WaitTok(tokA)] + C.publish(vT + 5, 4)))
    nb = stage1[3] + 9
    for T in range(4):
        for m in range(4):
            g = vG + 16 * T + 4 * m
            for j in range(4):
                ep.append((nb, stage1[4], "v_mul_f32 %s, %s, %s" % (V(g + j), V(vR2 + m), V(g + j))))
                ep.append((nb, stage1[4], "v_max_f32 %s, 0, %s" % (V(g + j), V(g + j))))
    nb = stage1[4] + 3
    tokB = P.newtok()
    k = 0
    for m in range(4):
        for i in range(2):
            q = stq[k % 2]; k += 1
            for tt in range(2):
                T = 2 * i + tt
                u, g = vU + 16 * T + 4 * m, vG + 16 * T + 4 * m
                for j in range(4): ep.append((nb, INF, "v_mul_f32 %s, %s, %s" % (V(u + j), V(u + j), V(g + j))))
                for h in range(2): ep.append((nb, INF, "v_cvt_pk_bf16_f32 %s, %s, %s" % (V(q + 2 * tt + h), V(u + 2 * h), V(u + 2 * h + 1))))
            it = []
            if i == 0: it.append("s_add_u32 %s, %s, %d" % (S(sE2), S(sHST), m * 147456 + 2048))
            it.append(P.mk("buffer_store_dwordx4 %s, %s, %s, %s offen offset:%d %s" % (V(q, 4), V(vL16), srd(sWS), S(sE2), 1024 * i, CFG["hst"]), tokB if (m, i) == (3, 1) else None))
            for x in it: ep.append((nb, INF, x))
    ep.append((stage2[2] + CFG['fbp'], FB_LOAD, [WaitTok(tokB)] + C.publish(vT + 5, 5)))
    it = ["s_lshr_b32 %s, %s, 1" % (S(sE1), S(sFQ)), "s_add_u32 %s, %s, %s" % (S(sMT2), S(sMT2), S(sE1)),
          "s_mul_i32 %s, %s, 18432" % (S(sE1), S(sMT2)), "s_add_u32 %s, %s, %d" % (S(sE1), S(sE1), WS_H),
          "s_and_b32 %s, %s, 3" % (S(sE2), S(sFS)), "s_lshl_b32 %s, %s, 9" % (S(sE2), S(sE2)), "s_add_u32 %s, %s, %s" % (S(sA), S(sE1), S(sE2)),
          "s_add_u32 %s, %s, 16384" % (S(sA), S(sA)), "s_lshl_b32 %s, %s, 3" % (S(sE2), S(sE2)), "s_add_u32 %s, %s, %s" % (S(sE1), S(sE1), S(sE2)),
          "s_and_b32 %s, %s, 1" % (S(sE2), S(sFQ)), "s_mul_i32 %s, %s, 2048" % (S(sE2), S(sE2)), "s_add_u32 %s, %s, %s" % (S(sE1), S(sE1), S(sE2))]
    it += ["buffer_load_dwordx2 %s, %s, %s, %s offen offset:%d sc1" % (V(vG + 2 * n, 2), V(vL8), srd(sWS), S(sE1), 512 * n) for n in range(4)]
    it += ["buffer_load_dwordx2 %s, %s, %s, %s offen sc1" % (V(vG + 10, 2), V(vL8), srd(sWS), S(sA))]
    ep += paced(it, stage2[6] + 30, 5)[0]
    it = ["v_lshrrev_b32 %s, 4, %s" % (V(vFA), V(vL16)), "v_and_b32 %s, 3, %s" % (V(vFA), V(vFA)), "v_lshlrev_b32 %s, 8, %s" % (V(vFA), V(vFA)),
          "s_lshl_b32 %s, %s, 10" % (S(sE1), S(sIDX)), "s_lshl_b32 %s, %s, 7" % (S(sE2), S(sMH)), "s_add_u32 %s, %s, %s" % (S(sE1), S(sE1), S(sE2)),
          "s_lshl_b32 %s, %s, 2" % (S(sE2), S(sWAVE)), "s_add_u32 %s, %s, %s" % (S(sE1), S(sE1), S(sE2)), "v_add_u32 %s, %s, %s" % (V(vFA), S(sE1), V(vFA))] + flagfix(V(vFA), V(vFD))
    for x in it: ep.append((stage2[7] + 10, INF, x))
    if CFG["ptouch"]:
        x0, x1 = V(vT + 2), V(vT + 3)
        it = ["v_lshrrev_b32 %s, 4, %s" % (x0, V(vL16)), "v_mul_u32_u24 %s, 2979, %s" % (x1, x0), "v_lshrrev_b32 %s, 16, %s" % (x1, x1),
              "v_mul_u32_u24 %s, 22, %s" % (V(vT + 4), x1), "v_sub_u32 %s, %s, %s" % (x0, x0, V(vT + 4)),
              "v_add_u32 %s, %s, %s" % (x1, S(sFQ), x1), "v_add_u32 %s, 1, %s" % (x1, x1), "v_and_b32 %s, 3, %s" % (x1, x1),
              "v_mul_u32_u24 %s, 12288, %s" % (x1, x1), "v_lshl_add_u32 %s, %s, 7, %s" % (x0, x0, x1),
              "s_lshl_b32 %s, s2, 4" % S(sE1), "s_add_u32 %s, %s, %s" % (S(sE1), S(sE1), S(sWAVE)), "s_mul_i32 %s, %s, 3072" % (S(sE1), S(sE1)),
              "s_add_u32 %s, %s, %d" % (S(sE1), S(sE1), WS_PART)]
        x = P.mk("buffer_load_dword %s, %s, %s, %s offen %s" % (V(vT + 4), x0, srd(sWS), S(sE1), CFG["ptm"])); x.dst = []
        at = CFG["ptouch"]
        k = [i for i, e in enumerate(ep) if e[0] <= at][-1] + 1
        ep[k:k] = [(at, INF, y) for y in it + [x]]
    for x in final_setup(): ep.append((stage2[8] + 4, INF, x))
    def respread(lo, hi):
        idx = [k for k, e in enumerate(ep) if e[0] == lo]
        for c_, k in enumerate(idx): ep[k] = (lo + (hi - lo) * c_ // len(idx), ep[k][1], ep[k][2])
    respread(pair_end(0, 7), stage1[1] - 2)
    respread(stage1[1] + 3, stage1[2] - 8)
    respread(stage1[2] + 3, stage1[2] + CFG['e2'])
    respread(stage1[3] + 9, stage1[4] - 8)
    respread(stage1[4] + 3, stage1[4] + CFG["e4"])
    if C.timing:
        for s_ in range(1, 5): ep.append((stage1[s_], INF, C.stamp("g1s%d" % s_)))
        if CFG["fine"] == 1:
            for s_ in range(1, 9): ep.append((stage2[s_], INF, C.stamp("b%d" % s_)))
        ep.sort(key=lambda x: x[0])

    def per(i):
        k = 1 if (i + 1 < NM and isinstance(main[i + 1], list)) else 2
        if stage1[4] <= i < stage1[4] + CFG["e4"]: k += 1
        return k
    def txt(x): return x.text if isinstance(x, Ins) else x if isinstance(x, str) else ""
    if "h" in CFG["abl"]: ld = [e for e in ld if not (e[0] >= s4 + 60 and txt(e[2]).startswith("buffer_load_dwordx"))]
    if "a" in CFG["abl"]: ld = [e for e in ld if not (e[0] < s4 and txt(e[2]).startswith("buffer_load_dwordx4"))]
    if "w" in CFG["abl"]: dm = [e for e in dm if not ("s[28:31]" in txt(e[2]) and not (isinstance(e[2], Ins) and e[2].tok))]
    if "u" in CFG["abl"]: dm = [e for e in dm if not (("s[20:23]" in txt(e[2]) or "s[24:27]" in txt(e[2])) and not (isinstance(e[2], Ins) and e[2].tok))]
    if "e" in CFG["abl"]: ep = [e for e in ep if not txt(e[2]).startswith("v_")]
    if "s" in CFG["abl"]: ep = [e for e in ep if not (txt(e[2]).startswith("buffer_store") and not (isinstance(e[2], Ins) and e[2].tok))]
    if "b" in CFG["abl"]: rd = [(e[0], e[1], [y for y in e[2] if y != "s_barrier"] if isinstance(e[2], list) else e[2]) for e in rd]
    if "r" in CFG["abl"]: rd = [e for e in rd if not txt(e[2]).startswith("ds_read")]
    multi_interleave(P, main, [rd, ld, dm, ep], per)
    for x in C.stamp("g2done"): P.add(x)
    ffn_final(C)

def final_setup():
    it = ("s_lshl_b32 %s, %s, 3\ns_add_u32 %s, %s, %s\ns_lshl_b32 %s, %s, 4\ns_add_u32 %s, %s, %s" %
          (S(t0), S(sIDX), S(t0), S(t0), S(sMH), S(t0), S(t0), S(t0), S(t0), S(sWAVE))).split("\n")
    it += ("s_mul_i32 %s, %s, 3072\ns_add_u32 %s, %s, %d" % (S(t0), S(t0), S(t0), S(t0), WS_PART)).split("\n")
    it += ("v_lshrrev_b32 %s, 4, %s\nv_and_b32 %s, 15, %s\nv_mul_u32_u24 %s, 1152, %s" % (V(vT), V(vL16), V(vT + 1), V(vT), V(vT + 1), V(vT + 1))).split("\n")
    it += ("v_mul_u32_u24 %s, 12, %s\nv_lshlrev_b32 %s, 2, %s" % (V(vT + 6), V(vT), V(vT + 7), V(vT))).split("\n")
    it += ("v_lshrrev_b32 %s, 4, %s\nv_lshl_add_u32 %s, %s, 3, %s" % (V(vT), V(vT), V(vT), V(vT), V(vT + 1))).split("\n")
    it += ("s_mul_i32 %s, %s, 18432\ns_and_b32 %s, %s, 3\ns_lshl_b32 %s, %s, 5\ns_add_u32 %s, %s, %s" % (S(t2), S(sMT2), S(t3), S(sFS), S(t3), S(t3), S(sA), S(t2), S(t3))).split("\n")
    it += ("s_lshl_b32 %s, %s, 3\ns_add_u32 %s, %s, %s" % (S(t3), S(t3), S(t2), S(t2), S(t3))).split("\n")
    w, r, o, x = V(vWD), V(vWD + 1), V(vWD + 2), V(vWD + 3)
    it += ["s_mul_i32 %s, %s, 2304" % (S(t3), S(sWAVE)), "v_lshrrev_b32 %s, 4, %s" % (x, V(vL16)), "v_and_b32 %s, 15, %s" % (w, x), "v_mul_u32_u24 %s, 144, %s" % (w, w),
           "v_lshrrev_b32 %s, 4, %s" % (r, x), "v_lshl_add_u32 %s, %s, 3, %s" % (w, r, w), "v_add_u32 %s, %s, %s" % (w, S(t3), w),
           "v_lshrrev_b32 %s, 3, %s" % (x, x), "v_and_b32 %s, 0x70, %s" % (o, V(vL16)), "v_mul_u32_u24 %s, 144, %s" % (r, x), "v_add3_u32 %s, %s, %s, %s" % (r, r, o, S(t3)),
           "v_mul_u32_u24 %s, 1152, %s" % (x, x), "v_add_u32 %s, %s, %s" % (o, o, x),
           "s_and_b32 %s, %s, 1" % (S(t3), S(sFQ)), "s_lshl_b32 %s, %s, 7" % (S(t3), S(t3)), "s_add_u32 %s, %s, %s" % (S(t2), S(t2), S(t3)), "s_add_u32 %s, %s, 9216" % (S(t3), S(t2))]
    return it

def ffn_final(C):
    P = C.P
    labs = [P.newlabel(C.name + "_fin") for _ in range(4)]
    done = P.newlabel(C.name + "_findone")
    C.touch_labels |= set(labs[1:])
    ck = CFG["s5"]
    P.add(WaitRegs(list(range(vG, vG + 8)) + [vG + 10, vG + 11]))
    for fq in range(1, 4):
        P("s_cmp_eq_u32 %s, %d\ns_cbranch_scc1 %s" % (S(sFQ), fq, labs[fq]))
    def part(f): return [(f >> 1, n) for n in ((4, 5, 6, 7) if f & 1 else (0, 1, 2, 3, 8))]
    names = ("f0", "f1", "", "f3", "") if ck else ("f0", "f1", "f2", "f3", "f4")
    fst = [C.stamp(n) if (CFG["fine"] == 2 and n) else [] for n in names]
    def xfer(op, st, n, so):
        P("buffer_%s_dwordx4 %s, %s, %s, %s offen sc1" % (op, V(st, 4), V(vL16), srd(sWS), so))
        P("buffer_%s_dwordx4 %s, %s, %s, %s offen offset:1024 sc1" % (op, V(st + 4, 4), V(vL16), srd(sWS), so))
        if ck:
            if n == 5: P("buffer_%s_dwordx3 %s, %s, %s, %s offen offset:2048 sc1" % (op, V(st + 8, 3), V(vT + 6), srd(sWS), so))
            else: P("buffer_%s_dword %s, %s, %s, %s offen offset:2048 sc1" % (op, V(st + 8), V(vT + 7), srd(sWS), so))
        elif n == 5: P("buffer_%s_dwordx2 %s, %s, %s, %s offen offset:2048 sc1" % (op, V(st + 8, 2), V(vL8), srd(sWS), so))
    def csum(dst, st, n):
        P("v_add3_u32 %s, %s, %s, %s" % (V(dst), V(st), V(st + 1), S(sNON)))
        for k in range(2, 2 * n, 2): P("v_add3_u32 %s, %s, %s, %s" % (V(dst), V(st + k), V(st + k + 1), V(dst)))
    for fq in range(4):
        P.label(labs[fq])
        if fq: P("s_nop 4")
        for x in fst[0]: P.add(x)
        st = vU
        for d in range(4):
            if d == fq: continue
            tl = part(d)
            for i, (m, n) in enumerate(tl):
                for h in range(2):
                    P("v_cvt_pk_bf16_f32 %s, %s, %s" % (V(st + 2 * i + h), V(oreg(m, n) + 2 * h), V(oreg(m, n) + 2 * h + 1)))
            P("s_add_u32 %s, %s, %d" % (S(t1), S(t0), (d * 2 * 16 + fq * 4) * 3072))
            if ck: csum(st + 2 * len(tl), st, len(tl))
            xfer("store", st, len(tl), S(t1))
            st += 12
        tl = part(fq)
        if ck == 2:
            for x in C.publish(vT + 5, 6): P.add(x)
        for i, (m, n) in enumerate(tl):
            o = oreg(m, n)
            for h in range(2):
                hr = V(vG + (10 if n == 8 else 2 * i) + h)
                P("v_lshlrev_b32 %s, 16, %s\nv_and_b32 %s, 0xffff0000, %s" % (V(vT + 2), hr, V(vT + 3), hr))
                P("v_pk_add_f32 %s, %s, %s" % (V(o + 2 * h, 2), V(o + 2 * h, 2), V(vT + 2, 2)))
        for x in fst[1]: P.add(x)
        stl = [vU + 40, vU + 52, vG + 12]
        srcs = [d for d in range(4) if d != fq]
        if ck == 2:
            P.add(C.load_flags(vFD, vFA))
            for x in C.check_flags(vFD, vFA, 6, vT + 15): P.add(x)
        if ck:
            loop, ok = P.newlabel(C.name + "_s5"), P.newlabel(C.name + "_s5ok")
            P("s_mov_b32 %s, 0" % S(sSPIN))
            P.label(loop)
        else:
            P("s_waitcnt vmcnt(0)")
            for x in fst[2]: P.add(x)
            for x in C.publish(vT + 5, 6): P.add(x)
            P.add(C.load_flags(vFD, vFA))
            P("s_waitcnt vmcnt(0)")
            for x in C.check_flags(vFD, vFA, 6, vT + 15): P.add(x)
            for x in fst[3]: P.add(x)
        for k, d in enumerate(srcs):
            P("s_add_u32 %s, %s, %d" % (S(t1), S(t0), (fq * 2 * 16 + d * 4) * 3072))
            xfer("load", stl[k], len(tl), S(t1))
        if ck:
            P("s_add_u32 %s, %s, 1" % (S(sSPIN), S(sSPIN)))
            for k in range(3):
                csum(vT + 8 + k, stl[k], len(tl))
                P("v_xor_b32 %s, %s, %s" % (V(vT + 8 + k), V(vT + 8 + k), V(stl[k] + 2 * len(tl))))
            P("v_or3_b32 %s, %s, %s, %s" % (V(vT + 8), V(vT + 8), V(vT + 9), V(vT + 10)))
            P("v_cmp_ne_u32 vcc, 0, %s\ns_cmp_gt_u32 %s, %d\ns_cbranch_scc1 %s\ns_cbranch_vccnz %s" % (V(vT + 8), S(sSPIN), SPIN_MAX, ok, loop))
            P.label(ok)
            for x in fst[3]: P.add(x)
        elif CFG["fine"] == 2:
            P("s_waitcnt vmcnt(0)")
            for x in fst[4]: P.add(x)
        for k in range(3):
            st = stl[k]
            for i, (m, n) in enumerate(tl):
                o = oreg(m, n)
                for h in range(2):
                    P("v_lshlrev_b32 %s, 16, %s\nv_and_b32 %s, 0xffff0000, %s" % (V(vT + 2), V(st + 2 * i + h), V(vT + 3), V(st + 2 * i + h)))
                    P("v_pk_add_f32 %s, %s, %s" % (V(o + 2 * h, 2), V(o + 2 * h, 2), V(vT + 2, 2)))
                if k == 2:
                    for h in range(2): P("v_cvt_pk_bf16_f32 %s, %s, %s" % (V(o + h), V(o + 2 * h), V(o + 2 * h + 1)))
                    if n == 8: P("buffer_store_dwordx2 %s, %s, %s, %s offen offset:1024 %s" % (V(o, 2), V(vT), srd(sOUT), S(sA), CFG["ost"]))
                    elif CFG["otr"]:
                        P("ds_write_b64 %s, %s offset:%d" % (V(vWD), V(o, 2), 32 * i))
                        if i == 3:
                            for h in range(2): P("ds_read_b128 %s, %s offset:%d" % (V(vU + 4 * h, 4), V(vWD + 1), 1152 * h))
                    else: P("buffer_store_dwordx2 %s, %s, %s, %s offen offset:%d %s" % (V(o, 2), V(vT), srd(sOUT), S(t2), 32 * i, CFG["ost"]))
        if CFG["otr"]:
            for h in range(2): P("buffer_store_dwordx4 %s, %s, %s, %s offen %s" % (V(vU + 4 * h, 4), V(vWD + 2), srd(sOUT), S(t3 if h else t2), CFG["ost"]))
        if C.timing: P("s_waitcnt vmcnt(0)")
        if fq < 3:
            P("s_branch %s" % done)
            P.reset()
    P.label(done)
    for x in C.stamp("end"): P.add(x)
```

```python
from gen import *

WS_FLAGS = 0x0
WS_KVP = 0x20000
WS_OM = 0x120000
WS_OL = 0x320000
WS_HC = 0x3A0000
WS_SSQ = 0x5E0000
WS_H = 0x620000
WS_PART = 0x2800000
WS_HH = 0x1260000
WS_RN = 0x2500000
WS_RD = 0x2640000
WS_NONCE = 0x26F0000
WS_TIM = 0x2460000
WS_DBG = 0x2700000
WS_SIZE = 0x4000000

sX, sWQKV, sWPHI, sWO, sWG, sWU, sWD, sOUT, sWS, sDBG, sWN = 4, 8, 12, 16, 20, 24, 28, 32, 36, 40, 44
sWAVE, sW1K, sXCD, sIDX, sFLAG = 48, 49, 50, 51, 52
sSPIN = 53
sNON = 3
sFQ, sMH, sRB, sFS = 54, 55, 56, 57
sT = 80
def srd(b): return S(b, 4)

SPIN_MAX = 50000
GCFG = dict(fl=1, poll=1, only=[])
def flagfix(reg, tmp):
    if not GCFG['fl']: return []
    return ['v_and_b32 %s, 12, %s' % (tmp, reg), 'v_and_b32 %s, 0xffffff80, %s' % (reg, reg), 'v_lshlrev_b32 %s, 2, %s' % (reg, reg), 'v_lshl_add_u32 %s, %s, 5, %s' % (reg, tmp, reg)]


class Ctx:
    def __init__(self, name, timing=False):
        self.name = name
        self.P = Prog()
        self.slow = []
        self.timing = timing
        self.nstamp = 0
        self.sbase = 0
        self.hops = []
        self.touch_labels = set()
        self.tables = []
        self.stamp_names = []
    def check_flags(self, vdata, vaddr, phase, v2=None):
        lab = self.P.newlabel(self.name + "_spin")
        if GCFG["poll"] > 1 and v2 is not None:
            ld = lambda r: "    buffer_load_dword %s, %s, %s, 0 offen sc1\n" % (V(r), V(vaddr), srd(sWS))
            ck = lambda r: "    s_waitcnt vmcnt(1)\n    v_cmp_gt_u32 vcc, %d, %s\n    s_cbranch_vccz %s_d\n" % (phase, V(r), lab)
            self.slow.append("%s:\n    s_mov_b32 %s, 0\n" % (lab, S(sSPIN)) + ld(vdata) + "    s_nop 15\n" * GCFG["poll"] + "%s_l:\n" % lab + ld(v2) + ck(vdata) + ld(vdata) + ck(v2) +
                             "    s_add_u32 %s, %s, 1\n    s_cmp_lt_u32 %s, %d\n    s_cbranch_scc1 %s_l\n%s_d:\n    s_waitcnt vmcnt(0)\n    s_branch %s_b\n" % (S(sSPIN), S(sSPIN), S(sSPIN), SPIN_MAX, lab, lab, lab))
            return ["v_cmp_gt_u32 vcc, %d, %s" % (phase, V(vdata)), "s_cbranch_vccnz %s" % lab, lab + "_b:"]
        self.slow.append("""%s:
    s_mov_b32 %s, 0
%s_l:
    buffer_load_dword %s, %s, %s, 0 offen sc1
    s_add_u32 %s, %s, 1
    s_waitcnt vmcnt(0)
    v_cmp_gt_u32 vcc, %d, %s
    s_cmp_gt_u32 %s, %d
    s_cbranch_scc1 %s_b
    s_cbranch_vccnz %s_l
    s_branch %s_b
""" % (lab, S(sSPIN), lab, V(vdata), V(vaddr), srd(sWS), S(sSPIN), S(sSPIN), phase, V(vdata), S(sSPIN), SPIN_MAX, lab, lab, lab))
        return ["v_cmp_gt_u32 vcc, %d, %s" % (phase, V(vdata)), "s_cbranch_vccnz %s" % lab, lab + "_b:"]
    def load_flags(self, vdata, vaddr):
        return "buffer_load_dword %s, %s, %s, 0 offen sc1" % (V(vdata), V(vaddr), srd(sWS))
    def publish(self, vtmp, phase):
        return ["v_mov_b32 %s, %d" % (V(vtmp), phase), "s_mov_b64 exec, 1",
                "buffer_store_dword %s, off, %s, %s sc1" % (V(vtmp), srd(sWS), S(sFLAG)), "s_mov_b64 exec, -1"]
    def stamp(self, name):
        if not self.timing: return []
        if GCFG["only"] and name not in GCFG["only"]: return []
        if not GCFG["only"] and name.startswith("x_"): return []
        k = self.nstamp; self.nstamp += 1
        self.stamp_names.append(name)
        return [("s_memtime" if self.timing == 2 else "s_memrealtime") + " s[100:101]", "s_waitcnt lgkmcnt(0)", "s_mov_b32 s%d, s100" % (60 + k - self.sbase)]
    def flush_stamps(self, v0, v1):
        if not self.timing: return
        P = self.P
        assert self.nstamp - self.sbase <= 16
        P("v_mov_b32 %s, 0" % V(v0))
        for k in range(self.sbase, self.nstamp):
            P("v_writelane_b32 %s, s%d, %d" % (V(v0), 60 + k - self.sbase, k - self.sbase))
        P("v_mbcnt_lo_u32_b32 %s, -1, 0\nv_mbcnt_hi_u32_b32 %s, -1, %s\nv_lshlrev_b32 %s, 2, %s" % (V(v1), V(v1), V(v1), V(v1), V(v1)))
        P("s_lshl_b32 s100, s2, 2\ns_add_u32 s100, s100, %s\ns_lshl_b32 s100, s100, 8\ns_add_u32 s100, s100, %d" % (S(sWAVE), WS_TIM + 4 * self.sbase))
        P("s_mov_b64 exec, 0xffff\nbuffer_store_dword %s, %s, %s, s100 offen\ns_mov_b64 exec, -1" % (V(v0), V(v1), srd(sWS)))
        self.sbase = self.nstamp
    def finish(self):
        P = self.P
        self.flush_stamps(0, 1)
        P.label(self.name + "_end")
        P("s_endpgm")
        text = P.finalize()
        if self.hops: text = self._place_stubs()
        tab = ""
        if self.tables:
            tab = ".p2align 7\n.type %s_tab,@object\n%s_tab:\n" % (self.name, self.name)
            for row in self.tables: tab += "".join("    .long 0x%x, 0x%x, 0x%x, 0x%x\n" % tuple(row[4 * i:4 * i + 4]) for i in range(64))
            tab += ".size %s_tab, %d\n" % (self.name, 1024 * len(self.tables))
        return kernel_header(self.name) + text + "".join(self.slow) + tab
    def table_load(self, dst, fns, vl16, sp):
        k = len(self.tables)
        self.tables.append([fns[j](l) & 0xffffffff if j < len(fns) else 0 for l in range(64) for j in range(4)])
        assert k < 8
        n = len(fns)
        return "global_load_dword%s %s, %s, %s offset:%d" % ("x%d" % n if n > 1 else "", V(dst, n), V(vl16), S(sp, 2), 1024 * k - 4096)
    def table_base(self, sp):
        lab = self.P.newlabel(self.name + "_tb")
        return ["s_getpc_b64 %s" % S(sp, 2), lab + ":", "s_add_u32 %s, %s, %s_tab-%s+4096" % (S(sp), S(sp), self.name, lab), "s_addc_u32 %s, %s, 0" % (S(sp + 1), S(sp + 1))]
    def align_body(self):
        self.P("s_branch %s_body" % self.name)
        self.P(".p2align 12")
        self.P.label(self.name + "_body")
    def hop(self, upto):
        k = len(self.hops); self.hops.append(upto)
        self.P("s_mov_b64 exec, 0\ns_branch %s_hop%d_0\n%s_hopback%d:\ns_mov_b64 exec, -1" % (self.name, k, self.name, k))
    def _place_stubs(self):
        import subprocess
        L = self.P.final
        lines = [i.text if i.kind in ("label", "dir") else "    " + i.text for i in L]
        fix = "".join("%s_hop%d_0:\n" % (self.name, k) for k in range(len(self.hops)))
        open("_st.s", "w").write('.amdgcn_target "amdgcn-amd-amdhsa--gfx950"\n.text\n' + "\n".join(lines) + "\n" + fix + "".join(self.slow) + "%s_tab:\n" % self.name)
        r = subprocess.run(["clang", "-x", "assembler", "-target", "amdgcn-amd-amdhsa", "-mcpu=gfx950", "-c", "_st.s", "-o", "_st.o"], capture_output=True, text=True)
        if r.returncode: print(r.stderr[:3000]); raise SystemExit(1)
        d = subprocess.run(["llvm-objdump", "-d", "--mcpu=gfx950", "_st.o"], capture_output=True, text=True).stdout
        d = d[d.index("<%s_body>:" % self.name):]
        sizes = [4 * len(l.split("//")[1].split(":")[1].split("<")[0].split()) for l in d.splitlines() if "//" in l]
        b0 = [k for k, i in enumerate(L) if i.text == self.name + "_body:"][0]
        out = lines[:b0 + 1]
        addr, page, si = 0, 1, 0
        chain, cnt, chains = None, {}, {}
        for k in range(b0 + 1, len(L)):
            i = L[k]
            if i.kind == "label" and i.text[:-1] in self.touch_labels and chain is not None:
                out.append(lines[k])
                n = cnt.get(chain, 0); cnt[chain] = n + 1
                out.append("%s_hop%d_%d:" % (self.name, chain, n)); out.append("    s_cbranch_execz %s_hop%d_%d" % (self.name, chain, n + 1)); addr += 4
                continue
            if i.kind == "label":
                for h, upto in enumerate(self.hops):
                    if i.text == "%s_hopback%d:" % (self.name, h): chain = h
                    if upto is not None and i.text == upto + ":" and chain == h: chain = None
                out.append(lines[k]); continue
            if i.kind == "dir":
                out.append(lines[k]); continue
            if addr >= page * 4096:
                page += 1
                if chain is not None:
                    n = cnt.get(chain, 0); cnt[chain] = n + 1
                    out.append("%s_hop%d_%d:" % (self.name, chain, n)); out.append("    s_cbranch_execz %s_hop%d_%d" % (self.name, chain, n + 1)); addr += 4
            out.append(lines[k]); addr += sizes[si]; si += 1
        text = "\n".join(out) + "\n"
        for h in range(len(self.hops)):
            n = cnt.get(h, 0)
            text = text.replace("%s_hop%d_%d\n" % (self.name, h, n), "%s_hopback%d\n" % (self.name, h))
        return text

def prologue(C):
    P = C.P
    P("s_cmp_ge_u32 s2, 256\ns_cbranch_scc1 %s_end" % C.name)
    for x in C.stamp("x_first"): P.add(x)
    P("s_load_dwordx2 s[4:5], s[0:1], 0\ns_load_dwordx2 s[8:9], s[0:1], 8\ns_load_dwordx2 s[12:13], s[0:1], 16\ns_load_dwordx2 s[16:17], s[0:1], 24")
    P("s_load_dwordx2 s[20:21], s[0:1], 40\ns_load_dwordx2 s[24:25], s[0:1], 48\ns_load_dwordx2 s[28:29], s[0:1], 56")
    P("s_load_dwordx2 s[32:33], s[0:1], 64\ns_load_dwordx2 s[40:41], s[0:1], 72\ns_load_dwordx2 s[36:37], s[0:1], 80")
    for b, n in ((sX, 2359296), (sWQKV, 1990656), (sWPHI, 20736), (sWO, 663552), (sWG, 5308416), (sWU, 5308416), (sWD, 5308416),
                 (sOUT, 2359296), (sWS, WS_SIZE), (sDBG, 256), (sWN, 5308416)):
        P("s_mov_b32 s%d, %d\ns_mov_b32 s%d, 0x20000" % (b + 2, n, b + 3))
    P("v_lshrrev_b32 v1, 6, v0\nv_and_b32 v0, 63, v0\nv_readfirstlane_b32 %s, v1" % S(sWAVE))
    P("s_and_b32 %s, s2, 7\ns_lshr_b32 %s, s2, 3" % (S(sXCD), S(sIDX)))
    P("s_lshl_b32 %s, %s, 10" % (S(sW1K), S(sWAVE)))
    P("s_lshl_b32 %s, s2, %d\ns_lshl_b32 s80, %s, %d\ns_add_u32 %s, %s, s80" % (S(sFLAG), 9 if GCFG['fl'] else 7, S(sWAVE), 7 if GCFG['fl'] else 2, S(sFLAG), S(sFLAG)))
    P("s_lshr_b32 %s, %s, 1\ns_and_b32 %s, %s, 1\ns_lshr_b32 %s, %s, 3\ns_and_b32 %s, %s, 7" %
      (S(sFQ), S(sXCD), S(sMH), S(sXCD), S(sRB), S(sIDX), S(sFS), S(sIDX)))

def allred(reg, tmp, op):
    return ["v_mov_b32 %s, %s" % (V(tmp), V(reg)), "v_permlane16_swap_b32 %s, %s" % (V(reg), V(tmp)), "%s %s, %s, %s" % (op, V(reg), V(reg), V(tmp)),
            "v_mov_b32 %s, %s" % (V(tmp), V(reg)), "v_permlane32_swap_b32 %s, %s" % (V(reg), V(tmp)), "%s %s, %s, %s" % (op, V(reg), V(reg), V(tmp))]

def mfma(d, a, b, c=None):
    return "v_mfma_f32_16x16x32_bf16 %s, %s, %s, %s" % (R(d, 4), R(a, 4), R(b, 4), "0" if c is None else R(c, 4))

class LdsAddr:
    def __init__(self, regs, base=0):
        self.regs, self.base = regs, base
    def rebase(self, lo, hi):
        if lo >= self.base and hi - self.base <= 65536: return []
        d = lo - self.base
        self.base = lo
        if d > 0: return ["v_add_u32 %s, %d, %s" % (V(r), d, V(r)) for r in self.regs]
        return ["v_subrev_u32 %s, %d, %s" % (V(r), -d, V(r)) for r in self.regs]
    def off(self, addr):
        o = addr - self.base
        assert 0 <= o < 65536, (addr, self.base)
        return o
```

```python
from common import *
import ffn
from ffn import AG

ACFG = dict(map="4x8", pace=1.0, pfR={}, pa=6, pb=15, pub1=32, touch=0, lset=0, s2c=0, kvt=0, xpol='', kpol='', s1c=0, s1at=0, xfirst=0, tab=0, mw=1, wqe=0, wqfr=1.0, pf3=[1], r0e=13, r1w=0, wfirst=0, r1e=0, aux=1, woq=18, wofr=0.4, early=1, rpt=0, pbat=40, pbstep=3, prep=0, fillat=4, pf0=[], pfQ=[], pfS2=[], pfS3=[], ct2=1, hop2=1, l4=1, tlb=0, hop=1, r1pre=13, cs=1, rst=[])
sRBK, sHP = 58, 59
sZ = 53
sW8K, sW5K, sKV = 76, 77, 78
mD, mE, mF, mG = 80, 82, 84, 94
sXB, sWB, sMT = 86, 87, 88
mA, mB, mC = 90, 92, 94
t0, t1, t2, t3 = 96, 97, 98, 99
RND = 53248
L_PHI, L_WBAR, L_MEAN = 159744, 161792, 162048
L_R, L_ZERO = 92160, 96256
vAC = 0
vSUM, vSSQ = 60, 68
vONE = 76
vWF = 80
vPH = 104
vXD, vXR, vWK, vWR, vWM = 128, 130, 132, 137, 138
vLANE, vA, vB = 139, 140, 142
vF = 144
vPP = 160
vPHI = 184
vT = 208
vFA, vFD = 232, 233
vL16 = 234
vWQ = 235
vX2 = 240
LOG2E = 0x3fb8aa3b
def acc(T, c): return vAC + 12 * T + 4 * c
def xf(k, m): return AG + 8 * k + 4 * m

def f_rb(P, dst, rb, tmp):
    if ACFG["map"] == "4x8":
        P("s_and_b32 %s, %s, 3\ns_lshl_b32 %s, %s, 13\ns_lshr_b32 %s, %s, 2\ns_lshl_b32 %s, %s, 8\ns_add_u32 %s, %s, %s" % (dst, rb, dst, dst, tmp, rb, tmp, tmp, dst, dst, tmp))
    else:
        P("s_and_b32 %s, %s, 1\ns_lshl_b32 %s, %s, 14\ns_lshr_b32 %s, %s, 1\ns_lshl_b32 %s, %s, 7\ns_add_u32 %s, %s, %s" % (dst, rb, dst, dst, tmp, rb, tmp, tmp, dst, dst, tmp))
def f_hp(P, dst, hp, tmp):
    if ACFG["map"] == "4x8":
        P("s_and_b32 %s, %s, 7\ns_lshl_b32 %s, %s, 10\ns_lshr_b32 %s, %s, 3\ns_lshl_b32 %s, %s, 7\ns_add_u32 %s, %s, %s" % (dst, hp, dst, dst, tmp, hp, tmp, tmp, dst, dst, tmp))
    else:
        P("s_lshl_b32 %s, %s, 10" % (dst, hp))
def vf_rb(P, dst, rb, tmp):
    if ACFG["map"] == "4x8":
        P("v_and_b32 %s, 3, %s\nv_lshlrev_b32 %s, 13, %s\nv_lshrrev_b32 %s, 2, %s\nv_lshl_add_u32 %s, %s, 8, %s" % (dst, rb, dst, dst, tmp, rb, dst, tmp, dst))
    else:
        P("v_and_b32 %s, 1, %s\nv_lshlrev_b32 %s, 14, %s\nv_lshrrev_b32 %s, 1, %s\nv_lshl_add_u32 %s, %s, 7, %s" % (dst, rb, dst, dst, tmp, rb, dst, tmp, dst))
def vf_hp(P, dst, hp, tmp):
    if ACFG["map"] == "4x8":
        P("v_and_b32 %s, 7, %s\nv_lshlrev_b32 %s, 10, %s\nv_lshrrev_b32 %s, 3, %s\nv_lshl_add_u32 %s, %s, 7, %s" % (dst, hp, dst, dst, tmp, hp, dst, tmp, dst))
    else:
        P("v_lshlrev_b32 %s, 10, %s" % (dst, hp))

def perm32(P, out, rho, tmp):
    P("v_bfe_u32 %s, %s, 2, 2\nv_lshlrev_b32 %s, 3, %s" % (out, rho, out, out))
    P("v_bfe_u32 %s, %s, 4, 1\nv_lshl_add_u32 %s, %s, 2, %s" % (tmp, rho, out, tmp, out))
    P("v_and_b32 %s, 3, %s\nv_add_u32 %s, %s, %s" % (tmp, rho, out, out, tmp))

def round_x(P, rho):
    base = (rho % 3) * RND
    out = []
    for cb in range(2 if rho < 4 else 1):
        for rg in range(4):
            it = []
            if rg == 0: it.append("s_add_u32 m0, %s, %d" % (S(sW8K), base + cb * 4096))
            if rg % 2 == 0:
                it.append("s_add_u32 %s, %s, %d" % (S(t0), S(sXB), (2 * rho + cb) * 128 + (rg >> 1) * (18432 - 2048)))
            it.append("buffer_load_dwordx4 %s, %s, %s offen offset:%d %s lds" % (V(vXD + (rg & 1)), srd(sX), S(t0), 1024 * rg, ACFG["xpol"]))
            out.append(it)
    return out
def round_w(P, rho, tok):
    base = (rho % 3) * RND
    out = []
    for q in range(5):
        it = []
        if q == 0: it.append("s_add_u32 %s, %s, %d" % (S(t0), S(sWB), rho * 4 * 110592 + 1152))
        if q % 4 == 0: it.append("s_add_u32 m0, %s, %d" % (S(sW5K), base + 32768 + 1024 * q))
        it.append(P.mk("buffer_load_dwordx4 %s, %s, %s offen offset:%d %s lds" % (V(vWK + q), srd(sWQKV), S(t0), 1024 * (q % 4), ACFG["kpol"]), tok if q == 4 else None))
        out.append(it)
    return out
def emit_items(P, items):
    for it in items:
        if isinstance(it, (list, tuple)):
            for x in it: P.add(x)
        else: P.add(it)
class Rec:
    def __init__(self): self.items = []
    def __call__(self, text):
        self.items += [l for l in text.split("\n") if l.strip()]

def softmax(P, m):
    p0 = vPP + 12 * m
    p = [p0 + i for i in range(9)]
    mx, mn, a, b = vT, vT + 1, vT + 2, vT + 3
    ep, en = vT + 4, vT + 14
    P("v_max3_f32 %s, %s, %s, %s\nv_min3_f32 %s, %s, %s, %s" % (V(mx), V(p[0]), V(p[1]), V(p[2]), V(mn), V(p[0]), V(p[1]), V(p[2])))
    for i in (3, 5, 7):
        P("v_max3_f32 %s, %s, %s, %s\nv_min3_f32 %s, %s, %s, %s" % (V(mx), V(mx), V(p[i]), V(p[i + 1]), V(mn), V(mn), V(p[i]), V(p[i + 1])))
    P("v_mov_b32 %s, %s\nv_mov_b32 %s, %s" % (V(a), V(mx), V(b), V(mn)))
    P("v_permlane16_swap_b32 %s, %s\nv_permlane16_swap_b32 %s, %s" % (V(mx), V(a), V(mn), V(b)))
    P("v_max_f32 %s, %s, %s\nv_min_f32 %s, %s, %s" % (V(mx), V(mx), V(a), V(mn), V(mn), V(b)))
    P("v_pk_mul_f32 %s, %s, %s op_sel_hi:[1,0]" % (V(mx, 2), V(mx, 2), S(t2, 2)))
    for i in range(0, 8, 2):
        P("v_pk_fma_f32 %s, %s, %s, %s op_sel_hi:[1,0,0] neg_lo:[0,0,1] neg_hi:[0,0,1]" % (V(ep + i, 2), V(p0 + i, 2), S(t2, 2), V(mx, 2)))
        P("v_pk_fma_f32 %s, %s, %s, %s op_sel:[0,0,1] op_sel_hi:[1,0,1] neg_lo:[1,0,0] neg_hi:[1,0,0]" % (V(en + i, 2), V(p0 + i, 2), S(t2, 2), V(mx, 2)))
    P("v_fma_f32 %s, %s, %s, -%s\nv_fma_f32 %s, -%s, %s, %s" % (V(ep + 8), V(p[8]), S(t2), V(mx), V(en + 8), V(p[8]), S(t2), V(mn)))
    for i in range(9): P("v_exp_f32 %s, %s\nv_exp_f32 %s, %s" % (V(ep + i), V(ep + i), V(en + i), V(en + i)))
    for e, q in ((ep, mx), (en, a)):
        P("v_pk_add_f32 %s, %s, %s" % (V(q, 2), V(e, 2), V(e + 2, 2)))
    for k in (4, 6):
        for e, q in ((ep, mx), (en, a)):
            P("v_pk_add_f32 %s, %s, %s" % (V(q, 2), V(q, 2), V(e + k, 2)))
    P("v_add_f32 %s, %s, %s\nv_add_f32 %s, %s, %s" % (V(mx), V(mx), V(mn), V(mn), V(a), V(b)))
    P("v_add_f32 %s, %s, %s\nv_add_f32 %s, %s, %s" % (V(mx), V(mx), V(ep + 8), V(mn), V(mn), V(en + 8)))
    P("v_mov_b32 %s, %s\nv_mov_b32 %s, %s" % (V(a), V(mx), V(b), V(mn)))
    P("v_permlane16_swap_b32 %s, %s\nv_permlane16_swap_b32 %s, %s" % (V(mx), V(a), V(mn), V(b)))
    P("v_pk_add_f32 %s, %s, %s" % (V(mx, 2), V(mx, 2), V(a, 2)))
    P("v_rcp_f32 %s, %s\nv_rcp_f32 %s, %s" % (V(mx), V(mx), V(mn), V(mn)))
    P("v_mul_f32 %s, %s, %s\nv_mul_f32 %s, %s, %s" % (V(ep + 8), V(ep + 8), V(mx), V(en + 8), V(en + 8), V(mn)))
    for i in range(0, 8, 2):
        P("v_pk_mul_f32 %s, %s, %s op_sel_hi:[1,0]" % (V(ep + i, 2), V(ep + i, 2), V(mx, 2)))
        P("v_pk_mul_f32 %s, %s, %s op_sel:[0,1] op_sel_hi:[1,1]" % (V(en + i, 2), V(en + i, 2), V(mx, 2)))
    e = [ep + i for i in range(9)] + [en + i for i in range(9)]
    for i in range(9):
        P("v_cvt_pk_bf16_f32 %s, %s, %s" % (V(vPHI + 12 * m + 4 * (i // 3) + i % 3), V(e[2 * i]), V(e[2 * i + 1])))

def ln_fix(P, T, m, dst):
    s2 = "op_sel_hi:[1,0]" if m == 0 else "op_sel:[0,1] op_sel_hi:[1,1]"
    s3 = "op_sel_hi:[1,0,1]" if m == 0 else "op_sel:[0,1,0] op_sel_hi:[1,1,1]"
    for h in range(2):
        P("v_pk_mul_f32 %s, %s, %s %s" % (V(vT + 2 * h, 2), V(acc(T, 2) + 2 * h, 2), V(vB, 2), s2))
    for h in range(2):
        r = acc(T, m) + 2 * h
        P("v_pk_fma_f32 %s, %s, %s, %s %s" % (V(r, 2), V(r, 2), V(vA, 2), V(vT + 2 * h, 2), s3))
    for h in range(2):
        P("v_cvt_pk_bf16_f32 %s, %s, %s" % (V(dst + h), V(acc(T, m) + 2 * h), V(acc(T, m) + 2 * h + 1)))

def feature_map(P):
    for m in range(2):
        for T in range(3):
            d = vPP + 12 * m + 4 * T
            P(mfma(d, vPH + 8 * T, vF + 8 * m)); P(mfma(d, vPH + 8 * T + 4, vF + 8 * m + 4, d))
    for m in range(2): softmax(P, m)

vRW, vRV, vPR, vVR, vKO, vMN = 240, 241, 242, 243, 253, 254
vWC, vCS, vCA = 251, 252, 250
vWX = 248
L_CS = 162560
def wo_rows(P, rho, main, left, t_, u_):
    P("v_lshrrev_b32 %s, 4, %s\nv_and_b32 %s, 3, %s\nv_lshl_add_u32 %s, %s, 2, %s" % (t_, rho, u_, rho, t_, t_, u_))
    P("v_bfe_u32 %s, %s, 2, 2\nv_lshl_add_u32 %s, %s, 3, %s\nv_lshrrev_b32 %s, 1, %s\nv_lshl_add_u32 %s, %s, 1, %s" % (u_, rho, main, u_, t_, left, u_, main, left, main))
    P("v_lshrrev_b32 %s, 1, %s\nv_lshl_add_u32 %s, %s, 2, %s\nv_mul_u32_u24 %s, 18, %s\nv_and_b32 %s, 1, %s\nv_add3_u32 %s, %s, %s, 16" % (left, t_, left, u_, left, left, left, t_, t_, left, left, t_))
L_RP = 53248 + 4096
vRP, vRT = 246, 249
sRS, sRO = 79, 3
def repack_items(P):
    L = V(vLANE)
    a, b, c, d = V(vT + 18), V(vT + 19), V(vT + 20), V(vT + 21)
    u0, u1, u2, u3 = S(89), S(t1), S(t2), S(t3)
    out, go = [], []
    X = Rec()
    X("s_lshl_b32 %s, %s, 3\nv_lshrrev_b32 %s, 3, %s\nv_add_u32 %s, %s, %s" % (u0, S(sWAVE), a, L, a, u0, a))
    X("v_and_b32 %s, 6, %s\nv_and_b32 %s, 7, %s\nv_xor_b32 %s, %s, %s\nv_lshlrev_b32 %s, 4, %s" % (b, a, c, L, b, b, c, b, b))
    perm32(X, c, a, d)
    X("v_lshrrev_b32 %s, 2, %s\nv_bfe_u32 %s, %s, 1, 2\nv_xor_b32 %s, %s, %s\nv_lshlrev_b32 %s, 5, %s" % (d, L, V(vRT), d, V(vRT), S(sWAVE), V(vRT), V(vRT), V(vRT)))
    X("v_lshl_add_u32 %s, %s, 7, %s\nv_and_b32 %s, 3, %s\nv_lshl_add_u32 %s, %s, 3, %s" % (V(vRT), d, V(vRT), d, L, V(vRT), d, V(vRT)))
    X("v_add_u32 %s, %d, %s" % (V(vRT), L_RP, V(vRT)))
    out += X.items
    tok = P.newtok()
    for job in range(2):
        dst = S(sRS if job == 0 else sRO)
        ln, ld_ = P.newlabel("rp_n"), P.newlabel("rp_d")
        sr = sWN if job == 0 else sWPHI
        vr_ = V(vRP + job)
        it = ["s_add_u32 %s, s2, %d" % (u0, 256 * job), "s_mov_b32 %s, 5308416" % S(sr + 2)]
        if job == 1:
            lw = P.newlabel("rp_w")
            e, f = V(vT + 22), V(vT + 23)
            it += ["s_cmp_lt_u32 %s, 432" % u0, "s_cbranch_scc1 %s" % lw,
                   "s_sub_u32 %s, %s, 432" % (u0, u0), "s_mul_i32 %s, %s, 18" % (u2, S(sWAVE)), "s_add_u32 %s, %s, %s" % (u2, u2, u0), "s_lshl_b32 %s, %s, 10" % (u2, u2),
                   "s_add_u32 %s, %s, %d" % (u2, u2, WS_RW), "s_cmp_lt_u32 %s, 18" % u0, "s_cselect_b32 %s, %s, 0x7000000" % (dst, u2),
                   "s_mov_b32 %s, %s" % (S(sr), S(sWO)), "s_mov_b32 %s, %s" % (S(sr + 1), S(sWO + 1)), "s_mov_b32 %s, 663552" % S(sr + 2)]
            X = Rec(); wo_rows(X, a, vr_, e, f, d); it += X.items
            it += ["s_mul_i32 %s, %s, 36" % (u1, u0), "s_sub_u32 %s, %s, 16" % (u2, u0), "s_mul_i32 %s, %s, 288" % (u2, u2),
                   "s_cmp_lt_u32 %s, 16" % u0, "s_cselect_b32 %s, %s, %s" % (u1, u1, u2), "s_cselect_b64 vcc, -1, 0",
                   "s_mul_i32 %s, %s, 1152" % (u1, u1), "s_add_u32 %s, %s, 1024" % (u1, u1),
                   "v_cndmask_b32 %s, %s, %s, vcc" % (vr_, e, vr_), "v_mul_u32_u24 %s, 1152, %s" % (vr_, vr_), "v_add_u32 %s, %s, %s" % (vr_, vr_, b),
                   "s_branch %s" % ld_, lw + ":"]
        if job == 1: it += ["s_cmp_lt_u32 %s, 288" % u0, "s_cbranch_scc1 %s" % ln,
                            "s_sub_u32 %s, %s, 288" % (u0, u0), "s_mul_i32 %s, %s, 36864" % (u1, u0), "s_add_u32 %s, %s, 1024" % (u1, u1),
                            "s_mul_i32 %s, %s, 147456" % (u2, S(sWAVE)), "s_lshl_b32 %s, %s, 10" % (u3, u0), "s_add_u32 %s, %s, %s" % (u2, u2, u3),
                            "s_add_u32 %s, %s, %d" % (u2, u2, WS_RD), "s_cmp_lt_u32 %s, 144" % u0, "s_cselect_b32 %s, %s, 0x7000000" % (dst, u2),
                            "s_mov_b32 %s, %s" % (S(sr), S(sWD)), "s_mov_b32 %s, %s" % (S(sr + 1), S(sWD + 1)),
                            "v_mul_u32_u24 %s, 1152, %s" % (vr_, a), "v_add_u32 %s, %s, %s" % (vr_, vr_, b), "s_branch %s" % ld_, ln + ":"]
        it += ["s_mul_i32 %s, %s, 3641" % (u1, u0), "s_lshr_b32 %s, %s, 16" % (u1, u1),
               "s_mul_i32 %s, %s, 18" % (u2, u1), "s_sub_u32 %s, %s, %s" % (u0, u0, u2),
               "s_and_b32 %s, %s, 1" % (u2, u1), "s_cmp_eq_u32 %s, 0" % u2,
               "s_cselect_b32 %s, %s, %s" % (S(sr), S(sWG), S(sWU)), "s_cselect_b32 %s, %s, %s" % (S(sr + 1), S(sWG + 1), S(sWU + 1)),
               "s_lshl_b32 %s, %s, 1" % (u3, u0), "s_add_u32 %s, %s, %s" % (u2, u2, u3),
               "s_lshr_b32 %s, %s, 1" % (u1, u1),
               "s_lshl_b32 %s, %s, 2" % (u3, u1), "s_add_u32 %s, %s, %s" % (u3, u3, S(sWAVE)), "s_mul_i32 %s, %s, 36" % (u3, u3),
               "s_add_u32 %s, %s, %s" % (u2, u2, u3), "s_lshl_b32 %s, %s, 10" % (u2, u2), "s_add_u32 %s, %s, %d" % (dst, u2, WS_RN),
               "s_lshr_b32 %s, %s, 1" % (u2, u1), "s_mul_i32 %s, %s, 2304" % (u2, u2), "s_and_b32 %s, %s, 1" % (u1, u1), "s_lshl_b32 %s, %s, 7" % (u1, u1),
               "s_add_u32 %s, %s, %s" % (u1, u1, u2), "s_add_u32 %s, %s, 2048" % (u1, u1),
               "s_cmp_lt_u32 %s, 16" % u0, "s_cselect_b64 vcc, -1, 0",
               "s_mul_i32 %s, %s, %d" % (u2, u0, 32 * 9216), "s_add_u32 %s, %s, %s" % (u1, u1, u2),
               "v_cndmask_b32 %s, %s, %s, vcc" % (vr_, c, a), "v_mul_u32_u24 %s, 9216, %s" % (vr_, vr_), "v_add_u32 %s, %s, %s" % (vr_, vr_, b)]
        if job == 1: it.append(ld_ + ":")
        it.append("v_add_u32 %s, %s, %s" % (vr_, u1, vr_))
        out.append(it)
        go.append(["s_add_u32 m0, %s, %d" % (S(sW1K), L_RP + 8192 * job), P.mk("buffer_load_dwordx4 %s, %s, 0 offen lds" % (vr_, srd(sr)), tok if job == 1 else None)])
    return out, go, tok
def repack_out(P, r0):
    for job in range(2):
        for h in range(2): P("ds_read_b64_tr_b16 %s, %s offset:%d" % (V(r0 + 4 * job + 2 * h, 2), V(vRT), 8192 * job + 2048 * h))
    return ["buffer_store_dwordx4 %s, %s, %s, %s offen sc1" % (V(r0 + 4 * job, 4), V(vL16), srd(sWS), S(sRS if job == 0 else sRO)) for job in range(2)]

def p1(C, code_bytes):
    C.code_bytes = code_bytes
    P = C.P
    L = V(vLANE)
    a, b, c, d = V(vT), V(vT + 1), V(vT + 2), V(vT + 3)
    P("v_mov_b32 %s, v0\nv_lshlrev_b32 %s, 4, v0" % (L, V(vL16)))
    if ACFG["map"] == "4x8":
        P("s_lshr_b32 %s, %s, 1\ns_lshl_b32 %s, %s, 2\ns_lshr_b32 %s, %s, 3\ns_add_u32 %s, %s, %s" % (S(t0), S(sXCD), S(t0), S(t0), S(t1), S(sIDX), S(sRBK), S(t0), S(t1)))
        P("s_and_b32 %s, %s, 1\ns_lshl_b32 %s, %s, 3\ns_and_b32 %s, %s, 7\ns_add_u32 %s, %s, %s" % (S(t0), S(sXCD), S(t0), S(t0), S(t1), S(sIDX), S(sHP), S(t0), S(t1)))
    else:
        P("s_lshl_b32 %s, %s, 1\ns_lshr_b32 %s, %s, 4\ns_add_u32 %s, %s, %s\ns_and_b32 %s, %s, 15" % (S(t0), S(sXCD), S(t1), S(sIDX), S(sRBK), S(t0), S(t1), S(sHP), S(sIDX)))
    P("s_lshl_b32 %s, %s, 13\ns_mul_i32 %s, %s, 5120" % (S(sW8K), S(sWAVE), S(sW5K), S(sWAVE)))
    P("s_lshl_b32 %s, %s, 2\ns_add_u32 %s, %s, %s\ns_mul_i32 %s, %s, 36864" % (S(t0), S(sRBK), S(t0), S(t0), S(sWAVE), S(sXB), S(t0)))
    P("s_movk_i32 %s, 1152" % S(t2))
    P("v_lshrrev_b32 %s, 3, %s\nv_and_b32 %s, 7, %s\nv_lshrrev_b32 %s, 4, %s\nv_xor_b32 %s, %s, %s" % (a, L, b, L, c, L, b, b, c))
    P("v_lshlrev_b32 %s, 4, %s\nv_mad_u32_u24 %s, %s, %s, %s" % (c, b, V(vXD), a, S(t2), c))
    P("v_xor_b32 %s, 64, %s\nv_add_u32 %s, %d, %s" % (V(vXD + 1), V(vXD), V(vXD + 1), 9216 - 1024, V(vXD + 1)))
    def w_offsets():
        P("s_mul_i32 %s, %s, 72\ns_and_b32 %s, %s, -16\ns_mul_i32 %s, %s, 110592\ns_add_u32 %s, %s, %s" % (S(t3), S(sHP), S(t3), S(t3), S(t1), S(sWAVE), S(sWB), S(t3), S(t1)))
        P("s_movk_i32 %s, 3456" % S(t2))
        for q in range(5):
            r = V(vWK + q)
            P("v_add_u32 %s, %d, %s\nv_mul_u32_u24 %s, 6554, %s\nv_lshrrev_b32 %s, 16, %s" % (a, 64 * q, L, b, a, b, b))
            P("v_mul_u32_u24 %s, 10, %s\nv_sub_u32 %s, %s, %s" % (c, b, a, a, c))
            perm32(P, c, b, d)
            P("v_mul_lo_u32 %s, %s, %s\nv_lshl_add_u32 %s, %s, 4, %s" % (r, c, S(t2), r, a, r))
            P("v_cmp_lt_u32 vcc, 4, %s\nv_add_u32 %s, %d, %s\nv_cndmask_b32 %s, %s, %s, vcc" % (a, b, 1152 - 80, r, r, r, b))
            if q % 4: P("v_subrev_u32 %s, %d, %s" % (r, 1024 * (q % 4), r))
    if not ACFG['xfirst']: w_offsets()
    P("s_waitcnt lgkmcnt(0)")
    for x in C.stamp("start"): P.add(x)
    l0, l1, l2, l3, l4, l5 = [P.newlabel(C.name + "_w") for _ in range(6)]
    P("s_cmp_gt_u32 %s, 1\ns_cbranch_scc1 %s" % (S(sWAVE), l0))
    P("s_mul_i32 %s, %s, 1296\ns_add_u32 %s, %s, %s\ns_add_u32 m0, %s, %d" % (S(t0), S(sHP), S(t0), S(t0), S(sW1K), S(sW1K), L_PHI))
    P("buffer_load_dwordx4 %s, %s, %s offen lds" % (V(vL16), srd(sWPHI), S(t0))).nocount = True
    P.label(l0)
    P("s_xor_b32 %s, %s, %s\ns_and_b32 %s, %s, 1\ns_lshr_b32 %s, %s, 2\ns_or_b32 %s, %s, %s\ns_or_b32 %s, %s, %s" %
      (S(t0), S(sIDX), S(sXCD), S(t0), S(t0), S(t1), S(sIDX), S(t0), S(t0), S(t1), S(t0), S(t0), S(sWAVE)))
    P("s_lshl_b32 %s, %s, 1\ns_lshr_b32 %s, %s, 1\ns_add_u32 %s, %s, %s\ns_add_u32 %s, %s, 1" % (S(t1), S(sXCD), S(t3), S(sIDX), S(t1), S(t1), S(t3), S(t3), S(t1)))
    P("s_cmp_eq_u32 %s, 0\ns_cselect_b32 %s, %s, 0\ns_cbranch_scc0 %s" % (S(t0), S(sZ), S(t3), l4))
    P("v_mov_b32 v4, 0\nv_lshlrev_b32 v1, 7, v0\ns_lshl_b32 %s, %s, 13" % (S(t1), S(t1)))
    P("buffer_store_dword v4, v1, %s, %s offen sc1" % (srd(sWS), S(t1))).nocount = True
    P("s_mov_b32 %s, %d\nbuffer_load_dword %s, off, %s, %s sc1" % (S(t1), WS_NONCE, V(vFD), srd(sWS), S(t1)))
    P.ins[-1].dst = []; P.ins[-1].nocount = True
    P.label(l4)
    toks = [P.newtok() for _ in range(6)]
    def touch():
        def ld(text):
            P(text); P.ins[-1].dst = []; P.ins[-1].nocount = True
        aux = ACFG["aux"]
        lab = P.newlabel(C.name + "_l4")
        P("s_lshr_b32 %s, %s, 3\ns_xor_b32 %s, %s, %s\ns_and_b32 %s, %s, 1\ns_cbranch_scc1 %s" % (S(t1), S(sHP), S(t1), S(t1), S(sHP), S(t1), S(t1), l3 if aux else lab))
        P("s_lshr_b32 %s, %s, 1\ns_lshl_b32 %s, %s, 2\ns_add_u32 %s, %s, %s\ns_mul_i32 %s, %s, %d" % (S(t1), S(sIDX), S(t1), S(t1), S(t1), S(t1), S(sWAVE), S(t1), S(t1), 9 * 3456))
        P("v_min_u32 %s, 26, %s\nv_mul_u32_u24 %s, 1152, %s" % (a, L, a, a))
        ld("buffer_load_dword %s, %s, %s, %s offen offset:512" % (V(255), a, srd(sWQKV), S(t1)))
        P.label(lab)
        nper = -(-(code_bytes - (4096 if ACFG['hop'] else 0)) // (32 * 128))
        assert nper <= 31
        reps = (0, 1) if aux else (0,)
        P("s_cmp_eq_u32 %s, 3\ns_cbranch_scc1 %s\ns_cmp_eq_u32 %s, 2\ns_cbranch_scc1 %s\ns_cmp_eq_u32 %s, 1\ns_cbranch_scc1 %s" % (S(sWAVE), l1, S(sWAVE), l2, S(sWAVE), l5))
        if ACFG["kvt"]:
            P("v_min_u32 %s, 53, %s\nv_mul_u32_u24 %s, 3641, %s\nv_lshrrev_b32 %s, 16, %s\nv_mul_u32_u24 %s, 1152, %s\nv_lshl_add_u32 %s, %s, 7, %s" % (a, L, b, a, b, b, b, b, a, a, b))
        else:
            P("v_min_u32 %s, 60, %s\nv_lshlrev_b32 %s, 7, %s" % (a, L, a, a))
        for r in reps:
            P("s_xor_b32 %s, s2, %d\ns_mul_i32 %s, %s, %d" % (S(t1), 8 * r, S(t1), S(t1), 3 * 3456 if ACFG["kvt"] else 61 * 128))
            ld("buffer_load_dword %s, %s, %s, %s offen offset:%d" % (V(255), a, srd(sWQKV), S(t1), 1152 if ACFG["kvt"] else 0))
        P("s_branch %s" % l3)
        P.label(l5)
        P("v_lshrrev_b32 %s, 3, %s\nv_mul_u32_u24 %s, 1152, %s\nv_and_b32 %s, 7, %s\nv_min_u32 %s, 6, %s\nv_lshl_add_u32 %s, %s, 7, %s" % (a, L, a, a, b, L, b, b, a, b, a))
        for r in reps:
            P("s_lshl_b32 %s, %s, 4\ns_add_u32 %s, %s, %s\ns_xor_b32 %s, %s, %d\ns_mul_i32 %s, %s, 9216" % (S(t1), S(sRBK), S(t1), S(t1), S(sHP), S(t1), S(t1), r, S(t1), S(t1)))
            ld("buffer_load_dword %s, %s, %s, %s offen offset:256" % (V(255), a, srd(sX), S(t1)))
        P("s_branch %s" % l3)
        P.label(l1)
        P("s_getpc_b64 s[100:101]\n%s_pc:\ns_add_u32 s100, s100, %s_body-%s_pc\ns_addc_u32 s101, s101, 0" % (C.name, C.name, C.name))
        k = 2 if aux else 1
        P("s_lshr_b32 %s, %s, %d\ns_mul_i32 %s, %s, %d\nv_min_u32 %s, %d, %s\nv_lshl_add_u32 %s, %s, 7, %s\nv_min_u32 %s, %d, %s" %
          (S(t1), S(sIDX), k - 1, S(t1), S(t1), k * nper * 128, a, k * nper - 1, L, a, a, S(t1), a, code_bytes - 4096 - 128, a))
        ld("global_load_dword %s, %s, s[100:101]" % (V(255), a))
        P("s_branch %s" % l3)
        P.label(l2)
        P("v_min_u32 %s, 20, %s\nv_lshlrev_b32 %s, 7, %s" % (a, L, a, a))
        for r in (reps if not ACFG["kvt"] else ()):
            P("s_xor_b32 %s, s2, %d\ns_mul_i32 %s, %s, %d" % (S(t1), 8 * r, S(t1), S(t1), 21 * 128))
            ld("buffer_load_dword %s, %s, %s, %s offen" % (V(255), a, srd(sWO), S(t1)))
        P.label(l3)
    if ACFG["touch"] == 0: touch()
    for x in C.stamp("x_touch"): P.add(x)
    r0 = round_x(P, 0) + round_w(P, 0, toks[0])
    if ACFG["wfirst"]: r0 = round_w(P, 0, None) + round_x(P, 0); r0[-1][-1] = P.mk(r0[-1][-1], toks[0])
    if ACFG['xfirst']:
        k = ACFG['xfirst']
        emit_items(P, r0[:k]); w_offsets(); emit_items(P, r0[k:]); r0 = []
    emit_items(P, r0[:ACFG["r0e"]]); r0 = r0[ACFG["r0e"]:]
    if ACFG["touch"] == 1: touch()
    r1 = round_x(P, 1) + round_w(P, 1, toks[1])
    emit_items(P, r1[:ACFG['r1e']]); r1 = r1[ACFG['r1e']:]
    for x in C.stamp("x_r0iss"): P.add(x)
    if ACFG["hop"]: C.align_body()
    for x in C.stamp("x_body"): P.add(x)
    main_P = P
    P = Prog(); P._tok, P._lab = main_P._tok, main_P._lab
    P("v_and_b32 %s, 15, %s\nv_lshrrev_b32 %s, 4, %s\nv_lshrrev_b32 %s, 1, %s\nv_xor_b32 %s, %s, %s" % (a, L, b, L, c, a, b, b, c))
    P("v_lshlrev_b32 %s, 7, %s\nv_lshl_add_u32 %s, %s, 4, %s\nv_add_u32 %s, %s, %s" % (a, a, a, b, a, V(vXR), S(sW8K), a))
    P("v_xor_b32 %s, 64, %s" % (V(vXR + 1), V(vXR)))
    P("v_lshrrev_b32 %s, 2, %s\nv_mul_u32_u24 %s, 160, %s\ns_and_b32 %s, %s, 1\ns_lshl_b32 %s, %s, 3\nv_add_u32 %s, %s, %s" % (a, L, a, a, S(t1), S(sHP), S(t1), S(t1), a, S(t1), a))
    P("v_and_b32 %s, 3, %s\nv_lshl_add_u32 %s, %s, 3, %s" % (b, L, V(vWR), b, a))
    P("v_cmp_eq_u32 vcc, 1, %s\nv_add_u32 %s, 32, %s\nv_add_u32 %s, 112, %s\nv_cndmask_b32 %s, %s, %s, vcc" % (b, c, a, d, a, V(vWM), c, d))
    for i in range(4): P("v_mov_b32 %s, 0x3f803f80" % V(vONE + i))
    P("s_mul_i32 %s, %s, 40\nv_add_u32 %s, %s, %s" % (S(t1), S(sWAVE), V(vWC), S(t1), V(vWR)))
    X = Rec()
    X("s_movk_i32 %s, 3456" % S(t2))
    for q in range(5):
        r = V(vWQ + q)
        X("v_add_u32 %s, %d, %s\nv_mul_u32_u24 %s, 13108, %s\nv_lshrrev_b32 %s, 16, %s" % (a, 64 * q, L, b, a, b, b))
        X("v_mul_u32_u24 %s, 5, %s\nv_sub_u32 %s, %s, %s" % (c, b, a, a, c))
        perm32(X, c, b, d)
        X("v_and_b32 %s, 32, %s\nv_add_u32 %s, %s, %s" % (d, b, c, c, d))
        X("v_mul_lo_u32 %s, %s, %s\nv_lshl_add_u32 %s, %s, 4, %s" % (r, c, S(t2), r, a, r))
        if q % 4: X("v_subrev_u32 %s, %d, %s" % (r, 1024 * (q % 4), r))
    r = V(vWX)
    X("s_lshl_b32 %s, %s, 6\nv_add_u32 %s, %s, %s\nv_mul_u32_u24 %s, 13108, %s\nv_lshrrev_b32 %s, 16, %s" % (S(t1), S(sWAVE), a, S(t1), L, b, a, b, b))
    X("v_mul_u32_u24 %s, 5, %s\nv_sub_u32 %s, %s, %s" % (c, b, a, a, c))
    perm32(X, c, b, d)
    X("v_and_b32 %s, 32, %s\nv_add_u32 %s, %s, %s" % (d, b, c, c, d))
    X("v_mul_lo_u32 %s, %s, %s\nv_lshl_add_u32 %s, %s, 4, %s" % (r, c, S(t2), r, a, r))
    wq_items = X.items
    X = Rec()
    u1, u2, u3 = S(t1), S(t2), S(t3)
    X("v_and_b32 %s, 15, %s\nv_lshrrev_b32 %s, 2, %s\nv_lshrrev_b32 %s, 4, %s\nv_cmp_eq_u32 %s, %s, %s" % (a, L, b, a, c, L, S(mD, 2), b, c))
    X("v_and_b32 %s, 1, %s\nv_cmp_eq_u32 %s, 1, %s\nv_and_b32 %s, 2, %s\nv_cmp_eq_u32 %s, 2, %s" % (b, a, S(mE, 2), b, b, a, S(mF, 2), b))
    X("s_lshl_b32 %s, %s, 7\ns_add_u32 %s, %s, %d\nv_lshl_add_u32 %s, %s, 2, %s" % (u1, S(sWAVE), u1, u1, L_MEAN, V(vMN), a, u1))
    X("s_lshl_b32 %s, %s, 5\nv_add_u32 %s, %s, %s\nv_mul_u32_u24 %s, 288, %s" % (u1, S(sWAVE), b, u1, a, b, b))
    X("v_mad_u32_u24 %s, %s, 48, %s\nv_lshl_add_u32 %s, %s, 3, %s" % (V(vRW), c, b, V(vRV), c, b))
    X("v_lshrrev_b32 %s, 2, %s\nv_mul_u32_u24 %s, 288, %s\nv_and_b32 %s, 3, %s\nv_lshl_add_u32 %s, %s, 3, %s" % (d, L, d, d, b, L, d, b, d))
    X("s_lshr_b32 %s, %s, 1\ns_mul_i32 %s, %s, 96\nv_add_u32 %s, %s, %s" % (u3, S(sWAVE), u1, u3, V(vPR), u1, d))
    X.items.append(["s_lshl_b32 %s, %s, 5" % (u1, u3), "s_and_b32 %s, %s, 1" % (u2, S(sWAVE)), "s_cmp_eq_u32 %s, 1" % u2, "s_cselect_b32 %s, 64, %s" % (u1, u1)])
    X("v_add_u32 %s, %s, %s" % (V(vVR), u1, d))
    X("s_lshl_b32 %s, %s, 1\nv_add_u32 %s, %s, %s" % (u1, u3, b, u1, a))
    X("s_mul_i32 %s, %s, 18\ns_sub_u32 %s, 12, %s\nv_add_u32 %s, %s, %s" % (u1, u3, u1, u1, c, u1, a))
    X("s_lshl_b32 %s, %s, 1\ns_add_u32 %s, %s, 4\nv_subrev_u32 %s, %s, %s\nv_cmp_gt_u32 vcc, 2, %s" % (u1, u3, u1, u1, d, u1, a, d))
    X("v_mov_b32 %s, 0x100000\nv_cndmask_b32 %s, %s, %s, vcc" % (d, c, d, c))
    X("v_cmp_ne_u32 vcc, 8, %s\nv_cndmask_b32 %s, 18, %s, vcc" % (a, c, c))
    X.items.append(["s_cmp_eq_u32 %s, 1" % u2, "s_cselect_b64 vcc, -1, 0"])
    X("v_cndmask_b32 %s, %s, %s, vcc" % (b, b, c))
    X("s_mul_i32 %s, %s, 19\nv_add_u32 %s, %s, %s\nv_mul_u32_u24 %s, 96, %s" % (u1, u3, b, u1, b, b, b))
    X("v_lshrrev_b32 %s, 4, %s\nv_lshl_add_u32 %s, %s, 3, %s" % (c, L, V(vKO), c, b))
    X("s_lshl_b32 %s, %s, 4\ns_add_u32 %s, %s, %s\ns_lshl_b32 %s, %s, 12\ns_add_u32 %s, %s, %d" % (u1, S(sHP), u1, u1, S(sRBK), u1, u1, S(sKV), u1, WS_KVP))
    for m in range(2):
        X("v_mov_b32 %s, 0\nv_mov_b32 %s, 0" % (V(vF + 8 * m + 6), V(vF + 8 * m + 7)))
        for f in range(3): X("v_mov_b32 %s, 0" % V(vPHI + 12 * m + 4 * f + 3))
    X("v_lshrrev_b32 %s, 4, %s\nv_lshlrev_b32 %s, 4, %s\nv_add_u32 %s, %d, %s" % (c, L, c, c, V(vCA), L_CS, c))
    X("s_lshl_b32 %s, %s, 6\nv_add_u32 %s, %s, %s" % (u1, S(sWAVE), V(vCS), u1, V(vCA)))
    addr_items = X.items
    X = Rec()
    wr = vT + 8
    X("v_cmp_gt_u32 vcc, 8, %s\nv_mov_b32 %s, 0x1000000\nv_cndmask_b32 %s, %s, %s, vcc" % (L, V(vT + 4), V(vT + 4), V(vT + 4), V(vL16)))
    X.items.append(["s_lshl_b32 %s, %s, 1" % (u1, S(sRBK)), "s_add_u32 %s, %s, %s" % (u1, u1, S(sWAVE)), "s_add_u32 %s, %s, 32" % (u2, S(sRBK)),
                    "s_cmp_lt_u32 %s, 2" % S(sWAVE), "s_cselect_b32 %s, %s, %s" % (u1, u1, u2), "s_mul_i32 %s, %s, 36" % (u2, S(sHP)),
                    "s_add_u32 %s, %s, %s" % (u1, u1, u2), "s_mul_i32 %s, %s, 1152" % (u1, u1)])
    X("buffer_load_dwordx4 %s, %s, %s, %s offen" % (V(wr, 4), V(vL16), srd(sWO), u1))
    X("buffer_load_dwordx4 %s, %s, %s, %s offen offset:1024" % (V(wr + 4, 4), V(vT + 4), srd(sWO), u1))
    X("v_lshrrev_b32 %s, 4, %s\nv_cmp_eq_u32 %s, 2, %s" % (V(vT + 5), L, S(mG, 2), V(vT + 5)))
    wb_load = X.items
    X = Rec()
    sm = V(vT + 16)
    X("v_mov_b32 %s, 0" % sm)
    for i in range(8): X("v_dot2c_f32_bf16 %s, %s, %s" % (sm, V(wr + i), V(vONE)))
    for mode in ("quad_perm:[1,0,3,2]", "quad_perm:[2,3,0,1]", "row_half_mirror", "row_mirror"):
        X("v_add_f32_dpp %s, %s, %s %s row_mask:0xf bank_mask:0xf" % (sm, sm, sm, mode))
    for x in allred(vT + 16, vT + 17, "v_add_f32"): X(x)
    X("v_mul_f32 %s, 0x3ae38e39, %s" % (sm, sm))
    X.items.append(["s_lshl_b32 %s, %s, 2" % (u1, S(sWAVE)), "s_add_u32 %s, %s, %s" % (u1, u1, S(sKV)), "s_mov_b64 exec, 1",
                    "buffer_store_dword %s, off, %s, %s offset:3648 sc1" % (sm, srd(sWS), u1), "s_mov_b64 exec, -1"])
    wb_sum = X.items
    rp_addr, rp_go, tokR = repack_items(P)
    if ACFG["early"]:
        emit_items(P, wq_items + addr_items + rp_addr)
        wq_items, addr_items, rp_addr = [], [], []
    chain = P.ins
    main_P._tok, main_P._lab = P._tok, P._lab
    P = main_P
    weave = r0 + r1[:ACFG["r1w"]]; r1 = r1[ACFG["r1w"]:]
    step = max(1, len(chain) // (len(weave) + 1))
    k, since, inbr = 0, 0, set()
    for n, x in enumerate(chain):
        P.add(x); since += 1
        if x.kind == "br": inbr.add(x.text.split()[-1])
        if x.kind == "label": inbr.discard(x.text[:-1])
        if k < len(weave) and since >= step and not inbr and x.kind == "valu" and not x.op.startswith("v_cmp"):
            emit_items(P, [weave[k]]); k += 1; since = 0
    emit_items(P, weave[k:])
    for x in C.stamp("x_addr"): P.add(x)
    emit_items(P, r1[:ACFG['r1pre']])
    for x in C.stamp("x_r1iss"): P.add(x)
    for which in ACFG["pf0"]:
        emit_items(P, ffn.hbm_prefetch(P, which, vLANE, vT + 18, vT + 19, vT + 20, 255))
    if ACFG['hop'] == 1: C.hop(None)
    for x in C.stamp("x_hop"): P.add(x)
    ax = LdsAddr([vXR, vXR + 1]); aw = LdsAddr([vWR, vWM, vWC])
    P.waittok(toks[0])
    P("s_barrier")
    for x in C.stamp("r0"): P.add(x)
    lab = P.newlabel(C.name + "_nr")
    P("s_cmp_eq_u32 %s, 0\ns_cbranch_scc1 %s" % (S(sZ), lab))
    P("v_add_u32 %s, 1, %s\nv_max_u32 %s, 1, %s\ns_lshl_b32 %s, %s, 2\ns_sub_u32 %s, %s, 4\ns_mov_b64 exec, 1" % (a, V(vFD), a, a, S(t0), S(sZ), S(t0), S(t0)))
    P("buffer_store_dword %s, off, %s, %s sc1" % (a, srd(sDBG), S(t0))).nocount = True
    P("s_mov_b32 %s, 0x7000000\ns_cmp_eq_u32 %s, 1\ns_cselect_b32 %s, %d, %s" % (S(t0), S(sZ), S(t0), WS_NONCE, S(t0)))
    P("buffer_store_dword %s, off, %s, %s sc1" % (a, srd(sWS), S(t0))).nocount = True
    P("s_mov_b64 exec, -1")
    P.label(lab)
    if ACFG['hop'] == 2: C.hop(None)
    wq = []
    lq = P.newlabel(C.name + "_nq")
    it = ["s_cmp_lg_u32 %s, 0" % S(sWAVE), "s_cbranch_scc1 %s" % lq, "s_add_u32 %s, %s, %d" % (S(t0), S(sWB), 16 * 110592), "s_mov_b32 m0, %d" % (2 * RND + 8 * 5120 + 4096)]
    x = P.mk("buffer_load_dwordx4 %s, %s, %s offen lds" % (V(vWQ + 4), srd(sWQKV), S(t0))); x.nocount = True
    wq.append(it + [x, lq + ":"])
    wq.append(["s_mul_i32 %s, %s, 221184" % (S(t0), S(sWAVE)), "s_sub_u32 %s, %s, %s" % (S(t0), S(sWB), S(t0)), "s_add_u32 %s, %s, %d" % (S(t0), S(t0), 16 * 110592),
               "s_add_u32 m0, %s, %d" % (S(sW1K), 2 * RND + 8 * 5120), "buffer_load_dwordx4 %s, %s, %s offen lds" % (V(vWX), srd(sWQKV), S(t0))])
    for pr in range(2):
        for q in range(5):
            it = []
            if q == 0: it.append("s_add_u32 %s, %s, %d" % (S(t0), S(sWB), pr * 8 * 110592))
            if q % 4 == 0: it.append("s_add_u32 m0, %s, %d" % (S(sW5K), 2 * RND + pr * 4 * 5120 + 1024 * q))
            it.append(P.mk("buffer_load_dwordx4 %s, %s, %s offen offset:%d lds" % (V(vWQ + q), srd(sWQKV), S(t0), 1024 * (q % 4)), toks[5] if (pr, q) == (1, 4) else None))
            wq.append(it)
    NT = 6
    main, st = [], []
    for k in range(18):
        for T in range(NT):
            bi = len(st); st.append(len(main))
            wf = vWF + 4 * (bi % 6)
            if T == 5:
                main.append(mfma(acc(0, 2), wf, vONE, None if k == 0 else acc(0, 2)))
                continue
            for cidx in range(3 if T == 2 else 2):
                main.append(mfma(acc(T, cidx), wf, xf(k, cidx) if cidx < 2 else vONE, None if k == 0 else acc(T, cidx)))
            if T in (1, 3):
                m = T >> 1
                main.append(mfma(vSUM + 4 * m, vONE, xf(k, m), None if k == 0 else vSUM + 4 * m))
                main.append(mfma(vSSQ + 4 * m, xf(k, m), xf(k, m), None if k == 0 else vSSQ + 4 * m))
    for bi in range(0, len(st), 2):
        w = list(range(vWF + 4 * (bi % 6), vWF + 4 * (bi % 6) + 8))
        if bi % NT == 0: w += list(range(xf(bi // NT, 0), xf(bi // NT, 0) + 8))
        main[st[bi]] = [WaitRegs(w), main[st[bi]]]
    rd, bar = [], [-1]
    for k in range(18):
        rho, kk = k // 4, k % 4
        base = (rho % 3) * RND
        for T in range(NT):
            bi = k * NT + T
            lo = st[bi - 4] - 1 if bi >= 4 else -1
            dl = st[bi - (bi & 1)] if bi >= 4 else 0
            if T == 0 and kk == 0 and rho > 0:
                rd.append((lo, lo + 1, [WaitTok(toks[rho]), "s_waitcnt lgkmcnt(0)", "s_barrier"] + (C.stamp("r%d" % rho) if rho in ACFG["rst"] else [])))
                bar.append(lo + 1); lo += 1
            it = []
            if T == 0:
                it += ax.rebase(base, base + 32768)
                for m in range(2):
                    it.append("ds_read_b128 %s, %s offset:%d" % (R(xf(k, m), 4), V(vXR + (kk & 1)), ax.off(base + (kk >> 1) * 4096 + m * 2048)))
                it += aw.rebase(base + 32768, base + RND)
            wf = vWF + 4 * (bi % 6)
            reg, col = (vWM, 0) if T == 2 else (vWC, 0) if T == 5 else (vWR, (0, 40, 0, 80, 120)[T])
            for h in range(2):
                it.append("ds_read_b64_tr_b16 %s, %s offset:%d" % (V(wf + 2 * h, 2), V(reg), aw.off(base + 32768 + kk * 5120 + h * 2560 + col)))
            nxt = ((bi // (4 * NT)) + 1) * 4 * NT
            if nxt < len(st) and bi >= nxt - 4: dl = min(dl, st[nxt - 4])
            for x in it: rd.append((min(lo, dl - 1), dl, x))
    bar.append(len(main))
    side, extra = [], []
    for rho in range(5):
        its = []
        if rho == 0: its += r1[ACFG['r1pre']:]
        if rho == ACFG["kvt"] - 1:
            ta, tb = V(vT + 18), V(vT + 19)
            x1 = P.mk("buffer_load_dword %s, %s, %s, %s offen" % (V(255), ta, srd(sWQKV), S(89))); x1.dst = []; x1.nocount = True
            x2 = P.mk("buffer_load_dword %s, %s, %s, %s offen" % (V(255), ta, srd(sWO), S(89))); x2.dst = []; x2.nocount = True
            la, lb = P.newlabel(C.name + "_t"), P.newlabel(C.name + "_t")
            its.append(["v_min_u32 %s, 20, %s" % (ta, L), "s_cmp_eq_u32 %s, 1" % S(sWAVE), "s_cbranch_scc1 %s" % la, "s_cmp_lg_u32 %s, 0" % S(sWAVE), "s_cbranch_scc1 %s" % lb,
                        "s_mul_i32 %s, s2, 21" % S(89), "v_add_u32 %s, %s, %s" % (ta, S(89), ta), "v_mul_u32_u24 %s, 7282, %s" % (tb, ta), "v_lshrrev_b32 %s, 16, %s" % (tb, tb),
                        "v_mul_u32_u24 %s, 2304, %s" % (tb, tb), "v_lshl_add_u32 %s, %s, 7, %s" % (ta, ta, tb), "s_mov_b32 %s, 0" % S(89), x1, "s_branch %s" % lb,
                        la + ":", "v_lshlrev_b32 %s, 7, %s" % (ta, ta), "s_mul_i32 %s, s2, %d" % (S(89), 21 * 128), x2, lb + ":"])
        if rho == 2: its += rp_go
        if rho <= 2: its += round_x(P, rho + 2) + round_w(P, rho + 2, toks[rho + 2])
        if rho == 3:
            its.append(["s_mul_i32 %s, %s, 110592" % (S(t0), S(sWAVE)), "s_add_u32 %s, %s, %s" % (S(sWB), S(sWB), S(t0))])
            for which in ACFG["pf3"]: its.append(ffn.hbm_prefetch(P, which, vLANE, vT + 18, vT + 19, vT + 20, 255, False, S(t0), S(89)))
        if rho == 4:
            its.append(["v_and_b32 %s, 15, %s" % (V(vFA), L), "v_lshlrev_b32 %s, 2, %s" % (V(vFA), V(vFA)),
                        "buffer_load_dword %s, %s, %s, 0 offen sc1" % (V(vFD), V(vFA), srd(sDBG))])
        lo, hi = max(bar[rho], 0), bar[rho + 1]
        side += spread(its, lo, lo + int((hi - lo - 2) * (ACFG["pace"] if rho < 3 else 0.2)), hi - 1 if rho < 4 else None)
        ex = {0: lambda: wphi_items(P), 1: lambda: addr_items + wb_load + rp_addr, 2: lambda: wq_items, 3: lambda: wb_sum}.get(rho, lambda: [])()
        if rho == 4:
            X = Rec(); rst = repack_out(X, vT + 8); ex = X.items + rst
        extra += [(lo + 4, INF, x) for x in ex]
    multi_interleave(P, main, [rd, side, extra], 2)
    for x in C.stamp("kvg"): P.add(x)
    main_P = P
    P = Prog(); P._tok, P._lab = main_P._tok, main_P._lab
    if ACFG['cs']:
        P("ds_write_b128 %s, %s" % (V(vCS), V(acc(0, 2), 4)))
    for m in range(2):
        q = vSSQ + 4 * m
        ra, rb = vT + 2 * m, vT + 2 * m + 1
        P("v_cndmask_b32 %s, %s, %s, %s\nv_cndmask_b32 %s, %s, %s, %s" % (V(ra), V(q), V(q + 1), S(mE, 2), V(rb), V(q + 2), V(q + 3), S(mE, 2)))
        P("v_cndmask_b32 %s, %s, %s, %s\nv_cndmask_b32 %s, 0, %s, %s" % (V(ra), V(ra), V(rb), S(mF, 2), V(ra), V(ra), S(mD, 2)))
    r0, r1 = allred(vT, vT + 1, "v_add_f32"), allred(vT + 2, vT + 3, "v_add_f32")
    for x, y in zip(r0, r1): P(x); P(y)
    for m in range(2):
        ra, rb = V(vT + 2 * m), V(vT + 2 * m + 1)
        P("v_mul_f32 %s, 0x3ae38e39, %s\nv_mul_f32 %s, 0x3ae38e39, %s" % (rb, V(vSUM + 4 * m), ra, ra))
        P("ds_write_b32 %s, %s offset:%d" % (V(vMN), rb, 64 * m))
        P("v_fma_f32 %s, -%s, %s, %s\nv_max_f32 %s, 0, %s\nv_add_f32 %s, 0x3727c5ac, %s\nv_rsq_f32 %s, %s" % (ra, rb, rb, ra, ra, ra, ra, ra, V(vA + m), ra))
    for m in range(2): P("v_mul_f32 %s, -%s, %s" % (V(vB + m), V(vT + 2 * m + 1), V(vA + m)))
    if ACFG['cs']:
        P("s_waitcnt lgkmcnt(0)\ns_barrier")
        for w, T in enumerate((0, 1, 3, 4)): P("ds_read_b128 %s, %s offset:%d" % (V(acc(T, 2), 4), V(vCA), 64 * w))
    if ACFG["tab"] == 1: emit_items(P, lane_tables(C))
    P("s_mov_b32 %s, %d" % (S(t2), LOG2E))
    for m in range(2):
        ln_fix(P, 0, m, vF + 8 * m); ln_fix(P, 1, m, vF + 8 * m + 2); ln_fix(P, 2, m, vF + 8 * m + 4)
        for T in range(3):
            dd = vPP + 12 * m + 4 * T
            P(mfma(dd, vPH + 8 * T, vF + 8 * m)); P(mfma(dd, vPH + 8 * T + 4, vF + 8 * m + 4, dd))
    for m in range(2):
        ln_fix(P, 3, m, vT + 4); ln_fix(P, 4, m, vT + 6)
        P("v_cndmask_b32 %s, %s, %s, %s\nv_cndmask_b32 %s, %s, %s, %s" % (V(vT + 8), V(vF + 8 * m + 4), V(vONE), S(mG, 2), V(vT + 9), V(vF + 8 * m + 5), V(vONE), S(mG, 2)))
        for i in range(3): P("ds_write_b64 %s, %s offset:%d" % (V(vRV), V(vT + 4 + 2 * i, 2), m * 4608 + 192 + 32 * i))
    for m in range(2):
        softmax(P, m)
        for f in range(3): P("ds_write_b128 %s, %s offset:%d" % (V(vRW), V(vPHI + 12 * m + 4 * f, 4), m * 4608 + 16 * f))
    P("s_waitcnt lgkmcnt(0)\ns_barrier")
    for x in C.stamp("phik"): P.add(x)
    for ks in range(4):
        fr = vAC + 16 * ks
        for h in range(2): P("ds_read_b64_tr_b16 %s, %s offset:%d" % (V(fr + 12 + 2 * h, 2), V(vVR), ks * 9216 + h * 4608 + 192))
        for tau in range(3):
            for h in range(2): P("ds_read_b64_tr_b16 %s, %s offset:%d" % (V(fr + 4 * tau + 2 * h, 2), V(vPR), ks * 9216 + h * 4608 + 32 * tau))
        if ks >= 1:
            fr = vAC + 16 * (ks - 1)
            for tau in range(3): P(mfma(vPP + 4 * tau, fr + 4 * tau, fr + 12, None if ks == 1 else vPP + 4 * tau))
    fr = vAC + 48
    for tau in range(3): P(mfma(vPP + 4 * tau, fr + 4 * tau, fr + 12, vPP + 4 * tau))
    chain = P.ins
    main_P._tok, main_P._lab = P._tok, P._lab
    P = main_P
    if ACFG["tab"] == 2:
        t = lane_tables(C)[0]
        t = [t[:5]] + [[x] for x in t[5:]]
        wq = wq[:6] + [y for pr in zip(wq[6:], t) for y in pr]
    step = max(1, int(len(chain) * ACFG["wqfr"]) // max(len(wq), 1))
    k, since = 0, step
    for n, x in enumerate(chain):
        P.add(x); since += 1
        if k < len(wq) and since >= step and x.kind in ("valu", "lds"):
            emit_items(P, [wq[k]]); k += 1; since = 0
    emit_items(P, wq[k:])
    lab = P.newlabel(C.name + "_rdy")
    C.slow.append("""%s:
    s_mov_b32 %s, 0
%s_l:
    buffer_load_dword %s, %s, %s, 0 offen sc1
    s_add_u32 %s, %s, 1
    s_waitcnt vmcnt(0)
    v_cmp_eq_u32 vcc, 0, %s
    s_cmp_gt_u32 %s, %d
    s_cbranch_scc1 %s_b
    s_cbranch_vccnz %s_l
    s_branch %s_b
""" % (lab, S(sSPIN), lab, V(vFD), V(vFA), srd(sDBG), S(sSPIN), S(sSPIN), V(vFD), S(sSPIN), SPIN_MAX, lab, lab, lab))
    P("v_cmp_eq_u32 vcc, 0, %s\ns_cbranch_vccnz %s\n%s_b:" % (V(vFD), lab, lab))
    P("v_readfirstlane_b32 %s, %s" % (S(sNON), V(vFD)))
    if ACFG["s1c"]: P("v_bfe_u32 %s, %s, 4, 1\nv_cmp_eq_u32 %s, 1, %s" % (V(vT + 8), L, S(mD, 2), V(vT + 8)))
    tokS = P.newtok()
    for tau in range(3):
        for h in range(2): P("v_cvt_pk_bf16_f32 %s, %s, %s" % (V(vT + 2 * tau + h), V(vPP + 4 * tau + 2 * h), V(vPP + 4 * tau + 2 * h + 1)))
    if ACFG["s1c"]:
        for tau in range(3): P("v_add_u32 %s, %s, %s\nv_mov_b32 %s, 0" % (V(vT + 8 + tau), V(vT + 2 * tau), V(vT + 2 * tau + 1), V(vT + 12 + tau)))
        for tau in range(3): P("v_permlane16_swap_b32 %s, %s" % (V(vT + 12 + tau), V(vT + 8 + tau)))
        for tau in range(3):
            P("v_add3_u32 %s, %s, %s, %s" % (V(vT + 12 + tau), V(vT + 12 + tau), V(vT + 2 * tau), S(sNON)))
            P("v_cndmask_b32 %s, %s, %s, %s" % (V(vT + 2 * tau + 1), V(vT + 2 * tau + 1), V(vT + 12 + tau), S(mD, 2)))
    for tau in range(3):
        P("buffer_store_dwordx2 %s, %s, %s, %s offen offset:%d sc1" % (V(vT + 2 * tau, 2), V(vKO), srd(sWS), S(sKV), 32 * tau), tok=tokS if tau == 2 else None)
    P.waittok(toks[5])
    if ACFG["s1c"]:
        for x in C.publish(vT + 7, 1) + C.stamp("pub1"): P.add(x)
    P("s_barrier")
    return tokS

def wphi_items(P):
    L = V(vLANE)
    a, b, c, d = V(vT), V(vT + 1), V(vT + 2), V(vT + 3)
    tmp = vT + 4
    it = []
    it += ["v_bfe_u32 %s, %s, 3, 1" % (a, L), "v_cmp_eq_u32 %s, 1, %s" % (S(mA, 2), a),
           "v_bfe_u32 %s, %s, 2, 1" % (b, L), "v_mul_u32_u24 %s, 18, %s" % (b, b), "v_and_b32 %s, 3, %s" % (c, L),
           "v_cmp_eq_u32 %s, 0, %s" % (S(mB, 2), c), "v_lshl_add_u32 %s, %s, 1, %s" % (b, c, b),
           "v_add_u32 %s, %d, %s" % (b, L_PHI, b), "v_lshrrev_b32 %s, 4, %s" % (c, L), "v_cmp_eq_u32 %s, 0, %s" % (S(mC, 2), c),
           "v_mul_u32_u24 %s, 144, %s" % (c, c), "v_mul_u32_u24 %s, 720, %s" % (d, a), "v_add3_u32 %s, %s, %s, %s" % (c, c, d, b),
           "v_mul_u32_u24 %s, 72, %s" % (d, a), "v_add_u32 %s, %s, %s" % (d, d, b)]
    raw = vPP
    for T in range(3):
        for s in range(4):
            it.append("ds_read_u16 %s, %s offset:%d" % (V(raw + 6 * T + s), c, 36 * s + 8 * T))
        for s in range(2):
            it.append("ds_read_u16 %s, %s offset:%d" % (V(raw + 6 * T + 4 + s), d, 576 + 36 * s + 8 * T))
    for i in range(9): it.append("v_lshl_or_b32 %s, %s, 16, %s" % (V(tmp + i), V(raw + 2 * i + 1), V(raw + 2 * i)))
    for i in range(3): it.append("v_cndmask_b32 %s, 0, %s, %s" % (V(tmp + 6 + i), V(tmp + 6 + i), S(mB, 2)))
    for T in range(3):
        f0, f1 = vPH + 8 * T, vPH + 8 * T + 4
        for i in range(2):
            it.append("v_cndmask_b32 %s, %s, 0, %s" % (V(f0 + i), V(tmp + 3 * T + i), S(mA, 2)))
            it.append("v_cndmask_b32 %s, 0, %s, %s" % (V(f0 + 2 + i), V(tmp + 3 * T + i), S(mA, 2)))
        it.append("v_cndmask_b32 %s, 0, %s, %s" % (V(tmp + 3 * T + 2), V(tmp + 3 * T + 2), S(mC, 2)))
        it.append("v_cndmask_b32 %s, %s, 0, %s" % (V(f1), V(tmp + 3 * T + 2), S(mA, 2)))
        it.append("v_cndmask_b32 %s, 0, %s, %s" % (V(f1 + 1), V(tmp + 3 * T + 2), S(mA, 2)))
        it.append("v_mov_b32 %s, 0" % V(f1 + 2)); it.append("v_mov_b32 %s, 0" % V(f1 + 3))
    return it

def lane_tables(C):
    def wo(q, left):
        def f(l):
            pi = 64 * q + l; rho, pc = pi // 10, pi % 10
            s_, g = 4 * (rho >> 4) + (rho & 3), (rho >> 2) & 3
            row = 18 * (4 * g + (s_ >> 1)) + 16 + (s_ & 1) if left else 8 * g + 2 * (g >> 1) + s_
            return row * 1152 + (0x1000000 if pc == 9 else 16 * pc) - 1024 * (q % 4)
        return f
    w = [wo(q, 0) for q in range(5)] + [wo(q, 1) for q in range(5)]
    def fa(l):
        rb = l >> 2
        x = (((rb & 3) << 13) + ((rb >> 2) << 8)) if ACFG["map"] == "4x8" else (((rb & 1) << 14) + ((rb >> 1) << 7))
        return (x << 2) + ((l & 3) << 7)
    def rbase(l): return L_R + ((l >> 3) & 1) * 19 * 96 + ((l >> 4) & 1) * 48
    ok = lambda l: ((l >> 3) & 1) == (l >> 5)
    ra = lambda l: rbase(l) + (8 * ((l >> 2) & 1) + (l & 3)) * 96 if ok(l) else L_ZERO
    rb_ = lambda l: rbase(l) + (18 if (l & 3) == 0 else 15 + (l & 3)) * 96 if ok(l) and (l & 3) != 3 else L_ZERO
    wa = lambda l: L_WBAR + (l >> 5) * 80 + ((l >> 4) & 1) * 32
    wc = lambda l: L_ZERO if (l >> 4) & 1 else L_WBAR + (l >> 5) * 80 + 64
    ol = lambda l: (l & 15) * 16 + (l >> 5) * 4 + ((l >> 4) & 1) * 8
    def xl(q):
        def f(l):
            pi = 64 * q + l
            return 0x1000000 if pi >= 144 else (pi // 9) * 1008 + pi * 16 - 1024 * q
        return f
    qr = lambda l: 2 * RND + (l >> 2) * 80 + (l & 3) * 8
    qm = lambda l: 2 * RND + (l >> 2) * 80 + 32
    sp = 90
    it = [C.table_base(sp) + [C.table_load(64, [qr, qm, fa, ra], vL16, sp), C.table_load(128, w[0:4], vL16, sp), C.table_load(132, w[4:8], vL16, sp),
          C.table_load(136, w[8:10], vL16, sp), C.table_load(68, [rb_, wa, wc, ol], vL16, sp), C.table_load(72, [lambda l: L_R + 16 * l, xl(0), xl(1), xl(2)], vL16, sp)]]
    return it
vFB = 251
vOM, vOLf = 128, 133
def wo_addr(P):
    L = V(vLANE)
    a, b, c, d = V(vT + 8), V(vT + 9), V(vT + 10), V(vT + 11)
    P("s_lshl_b32 %s, %s, 3\nv_lshrrev_b32 %s, 3, %s\nv_add_u32 %s, %s, %s" % (S(t2), S(sWAVE), a, L, a, S(t2), a))
    P("v_and_b32 %s, 6, %s\nv_and_b32 %s, 7, %s\nv_xor_b32 %s, %s, %s\nv_lshlrev_b32 %s, 4, %s" % (b, a, c, L, b, b, c, b, b))
    wo_rows(P, a, V(vOM), V(vOM + 1), c, d)
    P("s_movk_i32 %s, 1152\nv_mad_u32_u24 %s, %s, %s, %s\nv_mad_u32_u24 %s, %s, %s, %s" % (S(t2), V(vOM), V(vOM), S(t2), b, V(vOM + 1), V(vOM + 1), S(t2), b))

def p1b(C, tokS):
    P = C.P
    L = V(vLANE)
    a, b, c, d = V(vT), V(vT + 1), V(vT + 2), V(vT + 3)
    if ACFG["tab"]:
        vQR, vQM = 64, 65
        P("s_and_b32 %s, %s, 1\ns_lshl_b32 %s, %s, 3\nv_add_u32 %s, %s, %s\nv_add_u32 %s, %s, %s" % (S(t0), S(sHP), S(t0), S(t0), V(vQR), S(t0), V(vQR), V(vQM), S(t0), V(vQM)))
        X = Rec()
    else:
        vQR, vQM = 244, 245
        P("v_lshrrev_b32 %s, 2, %s\nv_mul_u32_u24 %s, 80, %s\ns_and_b32 %s, %s, 1\ns_lshl_b32 %s, %s, 3\ns_add_u32 %s, %s, %d" % (V(vQM), L, V(vQM), V(vQM), S(t0), S(sHP), S(t0), S(t0), S(t0), S(t0), 2 * RND))
        P("v_add_u32 %s, %s, %s\nv_and_b32 %s, 3, %s\nv_lshl_add_u32 %s, %s, 3, %s\nv_add_u32 %s, 32, %s" % (V(vQM), S(t0), V(vQM), V(vQR), L, V(vQR), V(vQR), V(vQM), V(vQM), V(vQM)))
        X = Rec()
        wo_addr(X)
    X("s_and_b32 %s, %s, 7\ns_lshl_b32 %s, %s, 7" % (S(sWB), S(sHP), S(sWB), S(sWB)))
    X("s_lshr_b32 %s, %s, 3\ns_lshl_b32 %s, %s, 2\ns_lshl_b32 %s, %s, 3\ns_add_u32 %s, %s, %s\ns_add_u32 %s, %s, %s" %
      (S(t0), S(sHP), S(t0), S(t0), S(t1), S(sRBK), S(t0), S(t0), S(t1), S(sMT), S(t0), S(sWAVE)))
    pre = X.items
    pub = [[WaitTok(tokS)] + C.publish(vT + 7, 1) + C.stamp("pub1")] if not ACFG["s1c"] else []
    side = []
    for f in range(18):
        row = 36 * f if f < 16 else 288 * (f - 16)
        side.append(["s_add_u32 %s, %s, %d" % (S(t0), S(sWB), row * 1152), "s_add_u32 m0, %s, %d" % (S(sW1K), f * 4096),
                     "buffer_load_dwordx4 %s, %s, %s offen lds" % (V(vOM + (f >= 16)), srd(sWO), S(t0))])
    if ACFG["tab"]:
        X = Rec()
        vRa, vRb, vWa, vWc, vOL, vRS, vXL = 67, 68, 69, 70, 71, 72, 73
        f_hp(X, S(t1), S(sHP), S(t2))
        X("s_lshl_b32 %s, %s, 2\nv_add_u32 %s, %s, v66\nv_add_u32 %s, %s, %s" % (S(t1), S(t1), V(vFA), S(t1), V(vRS), S(sW1K), V(vRS)))
        X("v_bfe_u32 %s, %s, 4, 1\nv_cmp_eq_u32 %s, 1, %s" % (b, L, S(mB, 2), b))
        for i in range(4): X("v_mov_b32 %s, 0" % V(vT + 8 + i))
        X("v_and_b32 %s, 0x1f0, %s\nv_add_u32 %s, %d, %s\nds_write_b128 %s, %s" % (c, V(vL16), c, L_ZERO, c, c, V(vT + 8, 4)))
    else:
        X = Rec()
        e4, e5 = V(vT + 4), V(vT + 5)
        X("v_lshrrev_b32 %s, 2, %s" % (e4, L))
        vf_rb(X, V(vFA), e4, e5)
        f_hp(X, S(t1), S(sHP), S(t2))
        X("v_and_b32 %s, 3, %s\nv_lshl_add_u32 %s, %s, 2, %s\nv_add_u32 %s, %s, %s" % (e4, L, V(vFA), e4, V(vFA), V(vFA), S(t1), V(vFA)))
        for x in flagfix(V(vFA), e4): X(x)
        vRa, vRb, vWa, vWc, vOL, vRS, vXL = 240, 241, 242, 243, 246, 247, 248
        X("v_bfe_u32 %s, %s, 3, 1\nv_lshrrev_b32 %s, 5, %s\nv_cmp_eq_u32 %s, %s, %s" % (a, L, b, L, S(mA, 2), a, b))
        X("v_mul_u32_u24 %s, %d, %s\nv_bfe_u32 %s, %s, 4, 1\nv_mad_u32_u24 %s, %s, 48, %s\nv_add_u32 %s, %d, %s" % (a, 19 * 96, a, b, L, a, b, a, a, L_R, a))
        X("v_bfe_u32 %s, %s, 2, 1\nv_and_b32 %s, 3, %s\nv_lshl_add_u32 %s, %s, 3, %s\nv_mul_u32_u24 %s, 96, %s\nv_add_u32 %s, %s, %s" % (b, L, c, L, b, b, c, b, b, b, b, a))
        X("v_mov_b32 %s, %d\nv_cndmask_b32 %s, %s, %s, %s" % (d, L_ZERO, V(vRa), d, b, S(mA, 2)))
        X("v_add_u32 %s, 15, %s\nv_cmp_ne_u32 vcc, 0, %s\nv_cndmask_b32 %s, 18, %s, vcc\nv_mul_u32_u24 %s, 96, %s\nv_add_u32 %s, %s, %s" % (b, c, c, b, b, b, b, b, b, a))
        X("v_cmp_ne_u32 vcc, 3, %s\ns_and_b64 vcc, vcc, %s\nv_cndmask_b32 %s, %s, %s, vcc" % (c, S(mA, 2), V(vRb), d, b))
        X("v_lshrrev_b32 %s, 5, %s\nv_mul_u32_u24 %s, 80, %s\nv_add_u32 %s, %d, %s\nv_bfe_u32 %s, %s, 4, 1" % (a, L, a, a, a, L_WBAR, a, b, L))
        X("v_cmp_eq_u32 %s, 1, %s\nv_lshl_add_u32 %s, %s, 5, %s" % (S(mB, 2), b, V(vWa), b, a))
        X("v_add_u32 %s, 64, %s\nv_cndmask_b32 %s, %s, %s, %s" % (a, a, V(vWc), a, d, S(mB, 2)))
        X("v_and_b32 %s, 15, %s\nv_lshlrev_b32 %s, 4, %s\nv_lshrrev_b32 %s, 5, %s\nv_lshl_add_u32 %s, %s, 2, %s" % (a, L, a, a, c, L, a, c, a))
        X("v_lshl_add_u32 %s, %s, 3, %s" % (V(vOL), b, a))
        X("v_add_u32 %s, %s, %s\nv_add_u32 %s, %d, %s" % (V(vRS), S(sW1K), V(vL16), V(vRS), L_R, V(vRS)))
        for i in range(4): X("v_mov_b32 %s, 0" % V(vT + 8 + i))
        X("v_and_b32 %s, 0x1f0, %s\nv_add_u32 %s, %d, %s\nds_write_b128 %s, %s" % (c, V(vL16), c, L_ZERO, c, c, V(vT + 8, 4)))
        X("v_min_u32 %s, 17, %s\nv_add_u32 %s, 176, %s\nv_lshlrev_b32 %s, 9, %s\ns_lshr_b32 %s, %s, 8\ns_lshl_b32 %s, %s, 7\nv_add_u32 %s, %s, %s" %
          (V(vFB), L, V(vFB), V(vFB), V(vFB), V(vFB), S(t1), S(sWB), S(t1), S(t1), V(vFB), S(t1), V(vFB)))
        X("s_lshr_b32 %s, %s, 3\ns_sub_u32 %s, %s, %s\ns_add_u32 %s, %s, 896" % (S(t1), S(sWB), S(t1), S(t1), S(sWB), S(t1), S(t1)))
        for q in range(3):
            X("v_add_u32 %s, %d, %s\nv_mul_u32_u24 %s, 7282, %s\nv_lshrrev_b32 %s, 16, %s" % (a, 64 * q, L, b, a, b, b))
            X("v_mov_b32 %s, %s\nv_mul_u32_u24 %s, %d, %s\nv_lshl_add_u32 %s, %s, 4, %s" % (c, b, b, 1152 - 144, b, V(vXL + q), a, b))
            X("v_mul_u32_u24 %s, 9, %s\nv_sub_u32 %s, %s, %s\nv_cmp_eq_u32 vcc, 8, %s\nv_add_u32 %s, %s, %s\nv_cndmask_b32 %s, %s, %s, vcc" % (c, c, a, a, c, a, a, S(t1), V(vXL + q), V(vXL + q), V(vXL + q), a))
            if q: X("v_subrev_u32 %s, %d, %s" % (V(vXL + q), 1024 * q, V(vXL + q)))
        X("v_cmp_gt_u32 vcc, 16, %s\nv_mov_b32 %s, 0x1000000\nv_cndmask_b32 %s, %s, %s, vcc" % (L, a, V(vXL + 2), a, V(vXL + 2)))
    post = X.items
    main, rd, st = [], [], []
    for k in range(18):
        for T in range(3):
            bi = len(st); st.append(len(main))
            wf = vWF + 4 * (bi % 6)
            for cidx in range(3):
                main.append(mfma(acc(T, cidx), wf, xf(k, cidx) if cidx < 2 else vONE, None if k == 0 else acc(T, cidx)))
            lo = st[bi - 4] - 1 if bi >= 4 else -1
            for h in range(2):
                rd.append((lo, st[bi - (bi & 1) * ACFG['mw']] if bi >= 4 else 0, "ds_read_b64_tr_b16 %s, %s offset:%d" % (V(wf + 2 * h, 2), V(vQM if T == 2 else vQR), k * 2560 + h * 1280 + (0, 40, 0)[T])))
    if ACFG["mw"]:
        for bi in range(0, len(st), 2):
            main[st[bi]] = [WaitRegs(range(vWF + 4 * (bi % 6), vWF + 4 * (bi % 6) + 8)), main[st[bi]]]
    n0 = ACFG["pub1"]
    s2 = [(0, n0, x) for x in pre] + [(n0, n0 + 1, x) for x in pub] + spread(side[:ACFG['woq']], n0 + 1, 155)
    e1 = ACFG["s1at"]
    preg = lambda r: (36 + 4 * r if r < 10 else 4 * (r - 10)) if e1 else vAC + 4 * r
    post = [(n0 + 1, e1 - 40 if e1 else INF, x) for x in post]
    if e1:
        post += [(e1 - 40, INF, C.load_flags(vFD, vFA)), (e1 - 39, INF, C.load_flags(vFB + 1, vFB)),
                 (e1, INF, C.check_flags(vFD, vFA, 1, 255) + C.stamp("s1"))]
        it = ["s_lshl_b32 %s, %s, 16" % (S(t1), S(sHP)), "s_add_u32 %s, %s, %d" % (S(t1), S(t1), WS_KVP), "s_add_u32 %s, %s, %s" % (S(t3), S(t1), S(sW1K))]
        for r in range(10):
            it += ["buffer_load_dwordx4 %s, %s, %s, %s offen sc1" % (V(preg(r), 4), V(vL16), srd(sWS), S(t3)), "s_add_u32 %s, %s, 4096" % (S(t3), S(t3))]
        post += paced(it, e1 + 1, 2)[0]
        s2 = [(0, n0, x) for x in pre] + [(n0, n0 + 1, x) for x in pub] + spread(side[:ACFG['woq']], n0 + 1, e1 - 42, e1 - 41)
    multi_interleave(P, main, [rd, s2, post], 2)
    for x in C.stamp("qg"): P.add(x)
    if not e1:
        P.add(C.load_flags(vFD, vFA))
        P.add(C.load_flags(vFB + 1, vFB))
    P("s_mov_b32 %s, %d" % (S(t2), LOG2E))
    for m in range(2):
        ln_fix(P, 0, m, vF + 8 * m); ln_fix(P, 1, m, vF + 8 * m + 2); ln_fix(P, 2, m, vF + 8 * m + 4)
        for T in range(3):
            dd = vPP + 12 * m + 4 * T
            P(mfma(dd, vPH + 8 * T, vF + 8 * m)); P(mfma(dd, vPH + 8 * T + 4, vF + 8 * m + 4, dd))
    if e1:
        for r in range(10, 16):
            P("buffer_load_dwordx4 %s, %s, %s, %s offen sc1" % (V(preg(r), 4), V(vL16), srd(sWS), S(t3)))
            if r < 15: P("s_add_u32 %s, %s, 4096" % (S(t3), S(t3)))
        softmax(P, 0)
    else:
        softmax(P, 0)
        for x in C.check_flags(vFD, vFA, 1, 255): P.add(x)
        for x in C.stamp("s1"): P.add(x)
        P("s_lshl_b32 %s, %s, 16\ns_add_u32 %s, %s, %d\ns_add_u32 %s, %s, %s" % (S(t1), S(sHP), S(t1), S(t1), WS_KVP, S(t0), S(t1), S(sW1K)))
        for r in range(16):
            P("buffer_load_dwordx4 %s, %s, %s, %s offen sc1" % (V(vAC + 4 * r, 4), V(vL16), srd(sWS), S(t0)))
            if r < 15: P("s_add_u32 %s, %s, 4096" % (S(t0), S(t0)))
    P("v_and_b32 %s, 15, %s\nv_lshlrev_b32 %s, 12, %s" % (V(vF + 1), L, V(vF), V(vF + 1)))
    P("buffer_load_dwordx3 %s, %s, %s, %s offen offset:3648 sc1" % (V(vF + 4, 3), V(vF), srd(sWS), S(t1)))
    for x in C.check_flags(vFB + 1, vFB, 1): P.add(x)
    P("s_lshr_b32 %s, %s, 8\ns_mul_i32 %s, %s, 18432\ns_add_u32 %s, %s, %s\ns_add_u32 %s, %s, %d" % (S(t0), S(sWB), S(t0), S(t0), S(t0), S(t0), S(sW1K), S(t0), S(t0), WS_RW))
    lab = P.newlabel(C.name + "_nl")
    P("s_cmp_gt_u32 %s, 1\ns_cbranch_scc1 %s\ns_add_u32 m0, %s, %d\ns_add_u32 %s, %s, 16384" % (S(sWAVE), lab, S(sW1K), 73728 + 16384, S(t1), S(t0)))
    P("buffer_load_dwordx4 %s, %s, %s offen sc1 lds" % (V(vL16), srd(sWS), S(t1))).nocount = True
    P.label(lab)
    rwd = [["s_add_u32 m0, %s, %d" % (S(sW1K), 73728 + 4096 * i), "s_add_u32 %s, %s, %d" % (S(t1), S(t0), 4096 * i),
            "buffer_load_dwordx4 %s, %s, %s offen sc1 lds" % (V(vL16), srd(sWS), S(t1))] for i in range(4)]
    for which in ACFG["pfQ"]:
        emit_items(P, ffn.hbm_prefetch(P, which, vLANE, vT + 18, vT + 19, vT + 20, 255))
    main_P = P
    P = Prog(); P._tok, P._lab = main_P._tok, main_P._lab
    softmax(P, 1)
    for x in C.stamp("phiq"): P.add(x)
    sm = vWF
    P("v_mov_b32 %s, 0x3f80\nv_mov_b32 %s, 1.0" % (V(vT + 8), V(vT + 9)))
    P("v_mov_b32 %s, 0" % V(vT + 7))
    if ACFG["s1c"]:
        P("v_add_u32 %s, %s, %s\nv_cmp_gt_u32 vcc, %d, %s\ns_mov_b64 %s, vcc\ns_mov_b32 %s, 0" % (V(vT + 10), S(sW1K), V(vL16), 228 * 16, V(vT + 10), S(mA, 2), S(sSPIN)))
        lred = P.newlabel(C.name + "_red")
        P.label(lred)
        P("v_mov_b32 %s, 0" % V(vT + 10))
    for i in range(6): P("v_mov_b32 %s, 0" % V(sm + i))
    P("v_cmp_lt_u32 vcc, 8, %s\nv_addc_co_u32 %s, vcc, 0, %s, vcc\nv_lshlrev_b32 %s, 3, %s\nv_add_u32 %s, %d, %s" % (V(vF + 1), V(vF + 2), V(vF + 1), V(vF + 2), V(vF + 2), V(vF + 2), L_WBAR, V(vF + 2)))
    P("v_lshlrev_b32 %s, 2, %s\nv_add_u32 %s, %d, %s" % (V(vF + 3), V(vF + 1), V(vF + 3), L_WBAR + 136, V(vF + 3)))
    for r in range(16):
        for i in range(6): P("v_dot2c_f32_bf16 %s, %s, %s" % (V(sm + i), V(preg(r) + (i >> 1)), V(vT + 8 + (i & 1))))
        if ACFG["s1c"]:
            q = preg(r)
            P("v_add3_u32 %s, %s, %s, %s\nv_add_u32 %s, %s, %s\nv_xor_b32 %s, %s, %s\nv_or_b32 %s, %s, %s" %
              (V(vT + 11), V(q), V(q + 1), S(sNON), V(vT + 11), V(vT + 11), V(q + 2), V(vT + 11), V(vT + 11), V(q + 3), V(vT + 10), V(vT + 10), V(vT + 11)))
    if ACFG["s1c"]:
        lbad = P.newlabel(C.name + "_redo")
        P("v_cmp_ne_u32 vcc, 0, %s\ns_and_b64 vcc, vcc, %s\ns_cbranch_vccnz %s\n%s_b:" % (V(vT + 10), S(mA, 2), lbad, lbad))
        txt = "%s:\n    s_add_u32 %s, %s, 1\n    s_cmp_gt_u32 %s, %d\n    s_cbranch_scc1 %s_b\n" % (lbad, S(sSPIN), S(sSPIN), S(sSPIN), SPIN_MAX, lbad)
        txt += "    s_lshl_b32 %s, %s, 16\n    s_add_u32 %s, %s, %s\n    s_add_u32 %s, %s, %d\n" % (S(t3), S(sHP), S(t3), S(t3), S(sW1K), S(t3), S(t3), WS_KVP)
        for r in range(16):
            txt += "    buffer_load_dwordx4 %s, %s, %s, %s offen sc1\n    s_add_u32 %s, %s, 4096\n" % (V(preg(r), 4), V(vL16), srd(sWS), S(t3), S(t3), S(t3))
        txt += "    s_waitcnt vmcnt(0)\n    s_branch %s\n" % lred
        C.slow.append(txt)
    for i in range(3): P("v_cvt_pk_bf16_f32 %s, %s, %s" % (V(vT + 4 + i), V(sm + 2 * i), V(sm + 2 * i + 1)))
    P("ds_write_b128 %s, %s" % (V(vRS), V(vT + 4, 4)))
    P("ds_write_b64 %s, %s\nds_write_b32 %s, %s" % (V(vF + 2), V(vF + 4, 2), V(vF + 3), V(vF + 6)))
    P("s_waitcnt lgkmcnt(0)\ns_barrier")
    for x in C.stamp("kvred"): P.add(x)
    kf = vAC
    for T in range(3):
        for p in range(3):
            P("ds_read_b128 %s, %s offset:%d" % (V(kf + 12 * T + 4 * p, 4), V(vRb if T == 2 else vRa), (384 if T == 1 else 0) + 16 * p))
    vWb = vAC + 36
    P("ds_read_b128 %s, %s\nds_read_b128 %s, %s offset:16\nds_read_b64 %s, %s" % (V(vWb, 4), V(vWa), V(vWb + 4, 4), V(vWa), V(vWb + 8, 2), V(vWc)))
    P("s_mul_i32 %s, %s, 3072\ns_add_u32 m0, %s, %d\ns_mul_i32 %s, %s, 18432\ns_add_u32 %s, %s, %s" % (S(t0), S(sWAVE), S(t0), L_XR, S(t0), S(sMT), S(t0), S(t0), S(sWB)))
    C.tokX = P.newtok()
    for q in range(3): P("buffer_load_dwordx4 %s, %s, %s offen offset:%d lds" % (V(vXL + q), srd(sX), S(t0), 1024 * q), tok=C.tokX if q == 2 else None)
    P("s_lshl_b32 %s, %s, 3\ns_lshl_b32 %s, %s, 1\ns_add_u32 %s, %s, %s\ns_lshl_b32 %s, %s, 4\ns_add_u32 %s, %s, %s" %
      (S(t0), S(sRBK), S(t1), S(sWAVE), S(t0), S(t0), S(t1), S(t0), S(t0), S(t0), S(t0), S(sHP)))
    P("s_lshl_b32 %s, %s, 8\ns_add_u32 %s, %s, %d\ns_lshl_b32 %s, %s, 10\ns_add_u32 %s, %s, %d" % (S(t1), S(t0), S(t1), S(t1), WS_OL, S(t0), S(t0), S(t0), S(t0), WS_OM))
    for m in range(2):
        for T in (2, 0, 1):
            dd = vPP + 12 * m + 4 * T
            for p in range(3): P(mfma(dd, kf + 12 * T + 4 * p, vPHI + 12 * m + 4 * p, None if p == 0 else dd))
    chain = P.ins
    main_P._tok, main_P._lab = P._tok, P._lab
    P = main_P
    rest = side[ACFG['woq']:] + rwd
    step = max(1, int(len(chain) * ACFG["wofr"]) // max(len(rest), 1))
    k = 0
    for n, x in enumerate(chain):
        if x.is_dma or (x.kind == "salu" and (("s", "m0") in x.dst or ("s", t0) in x.dst or ("s", t1) in x.dst)):
            while k < len(rest): emit_items(P, [rest[k]]); k += 1
        P.add(x)
        if n % step == 0 and k < len(rest) and x.op not in ("s_waitcnt", "s_memrealtime", "s_memtime", "v_cmp_lt_u32", "v_cmp_gt_u32", "v_cmp_ne_u32", "s_and_b64", "s_cbranch_vccnz"):
            emit_items(P, [rest[k]]); k += 1
    assert k == len(rest)
    a, b, c, d = V(vF), V(vF + 1), V(vF + 2), V(vF + 3)
    if ACFG["s2c"]: P("v_cmp_lt_u32 %s, 47, %s" % (S(mD, 2), L))
    for m in range(2):
        o = vPP + 12 * m
        P("v_add_f32 %s, 0x358637bd, %s\nv_rcp_f32 %s, %s" % (a, V(o + 8), a, a))
        P("v_mul_f32 %s, %s, %s\nv_mul_f32 %s, %s, %s" % (V(o + 9), V(o + 9), a, V(o + 10), V(o + 10), a))
        for i in (0, 2, 4, 6): P("v_pk_mul_f32 %s, %s, %s op_sel_hi:[1,0]" % (V(o + i, 2), V(o + i, 2), V(vF, 2)))
        q = vF + 4 + 4 * m
        for i in range(4): P("v_cvt_pk_bf16_f32 %s, %s, %s" % (V(q + i), V(o + 2 * i), V(o + 2 * i + 1)))
        P("buffer_store_dwordx4 %s, %s, %s, %s offen sc1" % (V(q, 4), V(vL16), srd(sWS), S(t0)))
        P("v_pk_mul_f32 %s, %s, %s" % (V(vF + 2, 2), V(o, 2), V(vWb, 2)))
        for i in (2, 4, 6): P("v_pk_fma_f32 %s, %s, %s, %s" % (V(vF + 2, 2), V(o + i, 2), V(vWb + i, 2), V(vF + 2, 2)))
        P("v_fmac_f32 %s, %s, %s\nv_fmac_f32 %s, %s, %s\nv_add_f32 %s, %s, %s" % (c, V(o + 9), V(vWb + 8), d, V(o + 10), V(vWb + 9), b, c, d))
        for x in allred(vF + 1, vF + 2, "v_add_f32"): P(x)
        P("v_cvt_pk_bf16_f32 %s, %s, %s\nv_cndmask_b32 %s, %s, %s, %s" % (c, V(o + 9), V(o + 10), V(vF + 12 + m), c, b, S(mB, 2)))
        if ACFG["s2c"]:
            r = V(vF + 12 + m)
            P("v_cndmask_b32 %s, %s, 0, %s" % (b, r, S(mD, 2)))
            P("v_add3_u32 %s, %s, %s, %s\nv_add3_u32 %s, %s, %s, %s" % (b, b, V(q), V(q + 1), b, b, V(q + 2), V(q + 3)))
            for x in allred(vF + 1, vF + 2, "v_add_u32"): P(x)
            P("v_add_u32 %s, %s, %s\nv_cndmask_b32 %s, %s, %s, %s" % (b, S(sNON), b, r, r, b, S(mD, 2)))
        P("buffer_store_dword %s, %s, %s, %s offen sc1" % (V(vF + 12 + m), V(vOL), srd(sWS), S(t1)))
        if m == 0: P("s_add_u32 %s, %s, 16384\ns_add_u32 %s, %s, 4096" % (S(t0), S(t0), S(t1), S(t1)))
    if ACFG["s2c"]:
        for x in C.publish(vF, 2) + C.stamp("pub2"): P.add(x)
    P("v_and_b32 %s, 15, %s" % (a, L))
    vf_hp(P, V(vFA), a, b)
    f_rb(P, S(t0), S(sRBK), S(t1))
    P("s_and_b32 %s, %s, 7\ns_lshr_b32 %s, %s, 1\ns_lshl_b32 %s, %s, 2\ns_add_u32 %s, %s, %s\nv_add_u32 %s, %s, %s" % (S(t1), S(sMT), S(t1), S(t1), S(t1), S(t1), S(t0), S(t0), S(t1), V(vFA), S(t0), V(vFA)))
    for x in flagfix(V(vFA), a): P(x)
    P("v_mov_b32 v225, %s" % L)
    if not ACFG["lset"]: ffn.ffn_setup(C, 225)

L_XR = 122880
def code_touch(C, L, a):
    P = C.P
    nper = -(-(C.code_bytes - 4096) // (32 * 128))
    lab = P.newlabel(C.name + "_ct")
    P("s_cmp_lg_u32 %s, 3\ns_cbranch_scc1 %s" % (S(sWAVE), lab))
    P("s_getpc_b64 s[100:101]\n%s_pc:\ns_sub_u32 s100, s100, %s_pc-%s_body\ns_subb_u32 s101, s101, 0" % (lab, lab, C.name))
    P("s_mul_i32 %s, %s, %d\nv_min_u32 %s, %d, %s\nv_lshl_add_u32 %s, %s, 7, %s\nv_min_u32 %s, %d, %s" % (S(t1), S(sIDX), nper * 128, a, nper - 1, L, a, a, S(t1), a, C.code_bytes - 4096 - 128, a))
    P("global_load_dword %s, %s, s[100:101]" % (V(255), a)); P.ins[-1].dst = []; P.ins[-1].nocount = True
    P.label(lab)

def p2(C):
    P = C.P
    vLN = 225
    L = V(vLN)
    vO, vAcc, vMU, vXS, vWV = 0, 72, 92, 96, 108
    vQ = 240
    a, b, c, d = V(vQ), V(vQ + 1), V(vQ + 2), V(vQ + 3)
    vWR2, vLA, vMA, vL8, vMX, vHL = 226, 227, 228, 229, 230, 231
    def wreg(i): return AG + 4 * i if i < 64 else vWV + 4 * (i - 64)
    nar = ffn.narrow_items(P, vL16)

    vW4 = 212
    P("v_lshrrev_b32 %s, 2, %s\nv_and_b32 %s, 3, %s\nv_bfe_u32 %s, %s, 1, 2\nv_lshlrev_b32 %s, 7, %s\nv_lshl_add_u32 %s, %s, 3, %s" % (a, L, b, L, c, a, d, a, d, b, d))
    for T in range(4): P("v_xor_b32 %s, %d, %s\nv_lshl_add_u32 %s, %s, 5, %s" % (V(vW4 + T), T, c, V(vW4 + T), V(vW4 + T), d))
    P("v_add_u32 %s, 73728, %s" % (V(vWR2), V(vL16)))
    P("v_and_b32 %s, 15, %s\nv_lshrrev_b32 %s, 4, %s\nv_mul_u32_u24 %s, 144, %s\nv_lshl_add_u32 %s, %s, 3, %s" % (a, L, b, L, c, a, c, b, c))
    P("s_mul_i32 %s, %s, 3072\ns_add_u32 %s, %s, %d\nv_add_u32 %s, %s, %s" % (S(t1), S(sWAVE), S(t1), S(t1), L_XR, c, S(t1), c))
    P("v_lshrrev_b32 %s, 1, %s\nv_lshlrev_b32 %s, 4, %s\nv_sub_u32 %s, %s, %s" % (V(vQ + 4), b, V(vQ + 4), V(vQ + 4), V(vQ + 4), c, V(vQ + 4)))
    xrd = ["ds_read_b64 %s, %s offset:%d" % (V(vXS + 2 * T, 2), c if T < 4 else V(vQ + 4), 32 * T) for T in range(5)]
    P("v_lshlrev_b32 %s, 4, %s\nv_lshl_add_u32 %s, %s, 9, %s\nv_lshlrev_b32 %s, 3, %s" % (d, a, V(vLA), b, d, V(vL8), L))
    P("v_lshlrev_b32 %s, 2, %s" % (a, a))
    P("s_and_b32 %s, %s, 7\ns_lshl_b32 %s, %s, 6\ns_add_u32 %s, %s, %d\nv_add_u32 %s, %s, %s\nds_read_b32 %s, %s" % (S(t1), S(sMT), S(t1), S(t1), S(t1), S(t1), L_MEAN, a, S(t1), a, V(vMX), a))
    aw = LdsAddr([vW4 + T for T in range(4)])
    main = []
    for f in range(18):
        for T in range(4):
            it = aw.rebase(f * 4096, (f + 1) * 4096)
            it += ["ds_read_b64_tr_b16 %s, %s offset:%d" % (R(wreg(5 * f + T) + 2 * h, 2), V(vW4 + T), aw.off(f * 4096 + h * 2048)) for h in range(2)]
            main.append(it)
    for f in range(18): main.append(["ds_read_b128 %s, %s offset:%d" % (R(wreg(5 * f + 4), 4), V(vWR2), f * 1024)])
    main.insert(72, ["s_barrier"])
    pa = ACFG["pa"]
    assert pa <= 6
    k0 = ACFG["prep"]
    emit_items(P, main[:k0])
    if not ACFG["s2c"]:
        P("s_waitcnt vmcnt(0)")
        for x in C.publish(vQ + 3, 2): P.add(x)
        for x in C.stamp("pub2"): P.add(x)
    else:
        P.waittok(C.tokX)
    emit_items(P, xrd)
    if ACFG["ct2"]: code_touch(C, L, a)
    units = ffn.unit_items(P, 0, 30 - ffn.CFG['late'])
    su = []
    if ACFG["lset"]:
        keep = C.P
        C.P = Prog(); ffn.ffn_setup(C, 225, 236); su = [(0, 40, x) for x in C.P.ins]; C.P = keep
    multi_interleave(P, main[k0:], [su + spread(units[:pa], 40 if su else 0, max(90 - k0 - 5, 1))], 2 if su else 1)
    if ACFG['hop'] and ACFG['hop2'] == 0: C.hop(None)
    for x in (C.stamp("prer") if ACFG["rst"] else []): P.add(x)
    P.add(C.load_flags(vFD, vFA))
    P("s_lshl_b32 %s, %s, 14\ns_add_u32 %s, %s, %d\ns_lshl_b32 %s, %s, 12\ns_add_u32 %s, %s, %d" % (S(t2), S(sMT), S(t2), S(t2), WS_OM, S(t1), S(sMT), S(t1), S(t1), WS_OL))
    P("s_waitcnt lgkmcnt(0)\ns_barrier")
    for x in C.check_flags(vFD, vFA, 2, 255): P.add(x)
    for x in C.stamp("s2"): P.add(x)
    vLQ = 244
    ck = ACFG["s2c"]
    if ck:
        lo = P.newlabel(C.name + "_o")
        P("s_mov_b32 %s, 0" % S(sSPIN))
        P.label(lo)
        P("s_lshl_b32 %s, %s, 14\ns_add_u32 %s, %s, %d\ns_lshl_b32 %s, %s, 12\ns_add_u32 %s, %s, %d" % (S(t2), S(sMT), S(t2), S(t2), WS_OM, S(t1), S(sMT), S(t1), S(t1), WS_OL))
    for f in range(16):
        P("buffer_load_dwordx4 %s, %s, %s, %s offen offset:%d sc1" % (V(vO + 4 * f, 4), V(vL16), srd(sWS), S(t2), 1024 * (f % 4)))
        if f == 7:
            for e in range(2):
                n = 4 if ck else 3
                P("buffer_load_dwordx%d %s, %s, %s, %s offen offset:%d sc1" % (n, V(vO + 64 + 4 * e, n), V(vLA), srd(sWS), S(t1), e * 2048))
                P("buffer_load_dwordx%d %s, %s, %s, %s offen offset:%d sc1" % (n, V(vLQ + 4 * e, n), V(vLA), srd(sWS), S(t1), e * 2048 + 256))
        if f % 4 == 3 and f < 15: P("s_add_u32 %s, %s, 4096" % (S(t2), S(t2)))
    main = []
    for f in range(18):
        for T in range(5):
            main.append(mfma(vAcc + 4 * T, wreg(5 * f + T), vO + 4 * f, None if f == 0 else vAcc + 4 * T))
    units = nar + units[pa:]
    pb = ACFG["pb"]
    X = Rec()
    X("s_and_b32 %s, %s, 7" % (S(t3), S(sHP)))
    X("s_mul_i32 %s, %s, 18432\ns_lshl_b32 %s, %s, 11\ns_add_u32 %s, %s, %s\ns_add_u32 %s, %s, %d" % (S(sXB), S(sMT), S(t1), S(t3), S(t1), S(t1), S(sXB), S(t1), S(t1), WS_H))
    X("s_lshl_b32 %s, %s, 11\ns_add_u32 %s, %s, %s\ns_add_u32 %s, %s, %d" % (S(t2), S(t3), S(t2), S(t2), S(sXB), S(t2), S(t2), WS_HC))
    X("s_and_b32 %s, %s, 1\nv_lshrrev_b32 %s, 5, %s" % (S(sWB), S(t3), a, L))
    X("v_cmp_eq_u32 %s, %s, %s\nv_mov_b32 %s, 0x8000000\nv_cndmask_b32 %s, %s, %s, %s" % (S(mA, 2), S(sWB), a, a, V(vHL), a, V(vL8), S(mA, 2)))
    X("v_and_b32 %s, 15, %s\nv_lshlrev_b32 %s, 4, %s\nv_bfe_u32 %s, %s, 4, 1\nv_lshl_add_u32 %s, %s, 3, %s\nv_cndmask_b32 %s, %s, %s, %s" % (b, L, b, b, c, L, b, c, b, V(vMA), a, b, S(mA, 2)))
    Y, Z = [], []
    if ck:
        cs, ct = V(106), V(107)
        Z.append((1, INF, "v_mov_b32 %s, 0" % cs))
        for f in range(16):
            for h in range(2): Z.append((5 * f + 1, INF, "v_add3_u32 %s, %s, %s, %s" % (cs, cs, V(vO + 4 * f + 2 * h), V(vO + 4 * f + 2 * h + 1))))
            if f == 8:
                for r in (vO + 64, vO + 68, vLQ, vLQ + 4):
                    Z += [(41, 46, "v_add3_u32 %s, %s, %s, %s" % (cs, cs, V(r), V(r + 1))), (41, 46, "v_add_u32 %s, %s, %s" % (cs, cs, V(r + 2))),
                          (41, 46, "v_sub_u32 %s, %s, %s" % (cs, cs, V(r + 3)))]
        Z += [(77, INF, x) for x in allred(106, 107, "v_add_u32")]
        Z += [(77, INF, "s_lshl_b32 %s, %s, 4" % (S(sWB), S(sNON))), (77, INF, "v_add_u32 %s, %s, %s" % (cs, S(sWB), cs))]
    for e in range(2):
        Y += ["v_add_f32 %s, %s, %s" % (V(vMU + e), V(vO + 66 + 4 * e), V(vLQ + 4 * e + 2)),
              "v_mov_b32 %s, %s" % (V(vO + 66 + 4 * e), V(vLQ + 4 * e)), "v_mov_b32 %s, %s" % (V(vO + 67 + 4 * e), V(vLQ + 4 * e + 1))]
    Y += ["v_add_f32 %s, %s, %s" % (V(vMU), V(vMU), V(vMU + 1))] + allred(vMU, vMU + 1, "v_add_f32") + ["v_add_f32 %s, %s, %s" % (V(vMU), V(vMU), V(vMX))]
    multi_interleave(P, main, [paced(units[:pb], ACFG["pbat"], ACFG["pbstep"])[0], Z, [(2, INF, x) for x in X.items] + [(46, 78, x) for x in Y]], 2)
    if ck:
        lk = P.newlabel(C.name + "_ook")
        P("s_add_u32 %s, %s, 1\nv_cmp_ne_u32 vcc, 0, v106\ns_cmp_gt_u32 %s, %d\ns_cbranch_scc1 %s\ns_cbranch_vccnz %s\n%s:" % (S(sSPIN), S(sSPIN), S(sSPIN), SPIN_MAX, lk, lo, lk))
    for x in C.stamp("wog"): P.add(x)
    ss = vMU + 2
    P("v_mov_b32 %s, 0\nv_mov_b32 %s, 0" % (V(ss), V(ss + 1)))
    hq = vO
    for T in range(5):
        r = vAcc + 4 * T
        for h in range(2):
            x = V(vXS + 2 * T + h)
            P("v_lshlrev_b32 %s, 16, %s\nv_and_b32 %s, 0xffff0000, %s" % (a, x, b, x))
            P("v_pk_add_f32 %s, %s, %s" % (V(vQ, 2), V(vQ, 2), V(r + 2 * h, 2)))
            P("v_cvt_pk_bf16_f32 %s, %s, %s" % (V(hq + 2 * T + h), a, b))
            P("v_lshlrev_b32 %s, 16, %s\nv_and_b32 %s, 0xffff0000, %s" % (a, V(hq + 2 * T + h), b, V(hq + 2 * T + h)))
            P("v_pk_add_f32 %s, %s, %s op_sel_hi:[1,0] neg_lo:[0,1] neg_hi:[0,1]" % (V(vQ, 2), V(vQ, 2), V(vMU, 2)))
            P("v_cvt_pk_bf16_f32 %s, %s, %s" % (V(hq + 12 + 2 * T + h), a, b))
            if T == 4: P("v_cndmask_b32 %s, 0, %s, %s\nv_cndmask_b32 %s, 0, %s, %s" % (b, b, S(mA, 2), a, a, S(mA, 2)))
            P("v_pk_fma_f32 %s, %s, %s, %s" % (V(ss, 2), V(vQ, 2), V(vQ, 2), V(ss, 2)))
        if T % 2 == 1:
            P("buffer_store_dwordx4 %s, %s, %s, %s offen offset:%d sc1" % (V(hq + 12 + 2 * (T - 1), 4), V(vL16), srd(sWS), S(t2), 1024 * (T >> 1)))
        if T == 4:
            P("s_lshl_b32 %s, %s, 8\ns_add_u32 %s, %s, %s\ns_add_u32 %s, %s, %d" % (S(t2), S(t3), S(t2), S(t2), S(sXB), S(t2), S(t2), WS_HC + 16384))
            P("buffer_store_dwordx2 %s, %s, %s, %s offen sc1" % (V(hq + 20, 2), V(vMA), srd(sWS), S(t2)))
    P("v_add_f32 %s, %s, %s" % (V(ss), V(ss), V(ss + 1)))
    for x in allred(ss, ss + 1, "v_add_f32"): P(x)
    P("s_lshl_b32 %s, %s, 3\ns_add_u32 %s, %s, %s\ns_lshl_b32 %s, %s, 8\ns_add_u32 %s, %s, %d" % (S(t0), S(sMT), S(t0), S(t0), S(t3), S(t0), S(t0), S(t0), S(t0), WS_SSQ))
    P("v_lshlrev_b32 %s, 2, %s\nbuffer_store_dword %s, %s, %s, %s offen sc1" % (a, L, V(ss), a, srd(sWS), S(t0)))
    for T in range(4):
        P("buffer_store_dwordx2 %s, %s, %s, %s offen offset:%d sc1" % (V(hq + 2 * T, 2), V(vL8), srd(sWS), S(t1), 512 * T))
    P("s_lshr_b32 %s, %s, 1\ns_lshl_b32 %s, %s, 9\ns_add_u32 %s, %s, %s\ns_add_u32 %s, %s, %d" % (S(t1), S(t3), S(t1), S(t1), S(t1), S(t1), S(sXB), S(t1), S(t1), WS_H + 16384))
    P("buffer_store_dwordx2 %s, %s, %s, %s offen sc1" % (V(hq + 8, 2), V(vHL), srd(sWS), S(t1)))
    fa = V(ffn.vFA)
    a, b = V(100), V(101)
    P("s_lshl_b32 %s, %s, 3\ns_lshl_b32 %s, %s, 1\ns_add_u32 %s, %s, %s\ns_lshr_b32 %s, %s, 1\ns_add_u32 %s, %s, %s" % (S(t0), S(sMH), S(t1), S(sRB), S(t0), S(t0), S(t1), S(t1), S(sWAVE), S(t0), S(t0), S(t1)))
    f_rb(P, S(t2), S(t0), S(t1))
    P("s_and_b32 %s, %s, 1\ns_lshl_b32 %s, %s, 3\nv_bfe_u32 %s, %s, 2, 3\nv_add_u32 %s, %s, %s" % (S(t0), S(sWAVE), S(t0), S(t0), a, L, a, S(t0), a))
    vf_hp(P, fa, a, b)
    P("v_and_b32 %s, 3, %s\nv_lshl_add_u32 %s, %s, 2, %s\nv_add_u32 %s, %s, %s" % (a, L, fa, a, fa, fa, S(t2), fa))
    for x in flagfix(fa, a): P(x)
    P("v_mov_b32 v102, %s" % L)
    ffn.ffn_addr2(C, 102)
    P("s_waitcnt vmcnt(0)")
    for x in C.publish(100, 3): P.add(x)
    for x in C.stamp("pub3"): P.add(x)
    emit_items(P, units[pb:])
    for which in ACFG["pfS3"]:
        emit_items(P, ffn.hbm_prefetch(P, which, 102, 103, 104, 105, 106))
    if ACFG['hop'] and ACFG['hop2'] == 1: C.hop(None)
```

```python
from common import *

vA16 = 0
vG, vU, vP = 32, 96, 160
vWF = 192
vOX = 208
vTRU = 216
vTRN = 220
vDM, vDL = 221, 222
vWD = 223
vL16, vL8 = 232, 233
vWE = 216
vR2 = 234
vFA, vFD = 238, 239
vT = 240
AG = 256

sA, sCOL, sNB, sNL, sWDB, sWD0, sHST, sHSN, sHLD, sMT2 = 76, 77, 78, 79, 80, 81, 82, 83, 84, 85
t0, t1, t2, t3 = 96, 97, 98, 99
sL2, sD2, sE1, sE2 = 92, 93, 94, 95
sKW = 89

CFG = dict(ustep=16, dstep=7, astep=10, hstep=8, hstep2=12, e4=100, puba=24, s4l=40, s4c=0, wpol='', dpol='', otr=1, ptouch=0, ptm='', fbl=36, fbc=72, fbp=36, w2step=10, e2=200, chain=1, fill=620, fstep=10, s5=2, late=0, lateat=310, abl='', hst='sc1', ost='', wdown=0, rsp1=1, rsp2=1, hlead=30, fine=0, pfB=[(2, 300), (30, 480), (31, 580)], w0=7, w1=8)
LDS_N = 120 * 1024
PAIRS = [(16, 17), (14, 15)] + [(2 * i, 2 * i + 1) for i in range(7)]
def areg(phi, m):
    return vA16 + (phi - 16) * 16 + 4 * m if phi >= 16 else AG + phi * 16 + 4 * m
GSLOT = [4, 3, 0, 2, 1, 0, 2, 1, 0, 2, 1, 0]
def slab_addr(sig):
    return GSLOT[sig // 6] * 24576 + (sig % 6) * 4096
def slab_phi(sig):
    r = sig % 18
    return PAIRS[r // 2][r % 2]
WD_SLAB = [[b * 1024 + 9216 * i for i in range(4)] for b in (120, 84, 48, 12)]
def wd_slab(stage, i): return WD_SLAB[stage % 4][i]
def kappa(p):
    st, i = p // 4, p % 4
    if st == 0: return 32 + i
    kw = (i & 1) + 4 * (i >> 1)
    return 8 * (st - 1) + kw if st <= 4 else 8 * (st - 5) + 2 + kw
def oreg(m, n):
    k = m * 9 + n
    if k < 8: return vA16 + 4 * k
    if k < 16: return vP + 4 * (k - 8)
    return vOX + 4 * (k - 16)

def ffn_setup(C, vlane, vT=vT):
    P = C.P
    L = V(vlane)
    a, b, c, d = V(vT), V(vT + 1), V(vT + 2), V(vT + 3)
    P("s_lshl_b32 %s, %s, 6\ns_lshl_b32 %s, %s, 4\ns_add_u32 %s, %s, %s" % (S(t0), S(sMH), S(t1), S(sRB), S(t0), S(t0), S(t1)))
    P("s_lshl_b32 %s, %s, 2\ns_add_u32 %s, %s, %s" % (S(t1), S(sWAVE), S(t1), S(t1), S(t0)))
    P("s_mul_i32 %s, %s, 18432\ns_add_u32 %s, %s, %d" % (S(sA), S(t1), S(sA), S(sA), WS_HC))
    P("s_mul_i32 %s, %s, 147456\ns_mul_i32 %s, %s, 36864\ns_add_u32 %s, %s, %s\ns_add_u32 %s, %s, %d" %
      (S(t1), S(t1), S(t2), S(sFQ), S(t1), S(t1), S(t2), S(t1), S(t1), WS_HH))
    P("s_lshl_b32 %s, %s, 12\ns_add_u32 %s, %s, %s" % (S(t3), S(sFS), S(sHST), S(t1), S(t3)))
    P("s_lshl_b32 %s, %s, 9\ns_add_u32 %s, %s, %s\ns_add_u32 %s, %s, 32768" % (S(t3), S(sFS), S(sHSN), S(t1), S(t3), S(sHSN), S(sHSN)))
    P("s_lshr_b32 %s, %s, 2\ns_lshl_b32 %s, %s, 3\ns_add_u32 %s, %s, %s\ns_lshl_b32 %s, %s, 1\ns_add_u32 %s, %s, %s" %
      (S(t1), S(sFS), S(t1), S(t1), S(t0), S(t0), S(t1), S(t1), S(sWAVE), S(sMT2), S(t0), S(t1)))
    P("s_mul_i32 %s, %s, 147456\ns_add_u32 %s, %s, %s\ns_add_u32 %s, %s, %d" % (S(sHLD), S(sMT2), S(sHLD), S(sHLD), S(t2), S(sHLD), S(sHLD), WS_HH))
    P("s_mul_i32 %s, %s, 2304\ns_lshl_b32 %s, %s, 8\ns_add_u32 %s, %s, %s" % (S(t0), S(sFQ), S(t1), S(sFS), S(sCOL), S(t0), S(t1)))
    P("s_lshl_b32 %s, %s, 3\ns_add_u32 %s, %s, %s\ns_mul_i32 %s, %s, 36864\ns_add_u32 %s, %s, %s\ns_add_u32 %s, %s, %d" %
      (S(t1), S(sFQ), S(t1), S(t1), S(sFS), S(t1), S(t1), S(t1), S(t1), S(sW1K), S(sNB), S(t1), WS_RN))
    P("s_lshr_b32 %s, %s, 1" % (S(t1), S(sWAVE)))
    P("s_mul_i32 %s, %s, %d\ns_and_b32 %s, %s, 3\ns_mul_i32 %s, %s, 147456\ns_lshl_b32 %s, %s, 8\ns_add_u32 %s, %s, %s" %
      (S(t0), S(sFQ), 1152 * 1152, S(t2), S(sFS), S(sNL), S(t2), S(t2), S(t2), S(t0), S(t0), S(t2)))
    P("s_mul_i32 %s, %s, 36864\ns_add_u32 %s, %s, %s\ns_add_u32 %s, %s, %d" % (S(t2), S(sFQ), S(sNL), S(sNL), S(t2), S(sNL), S(sNL), WS_RD))
    P("s_and_b32 %s, %s, 1\ns_lshl_b32 %s, %s, 2\ns_add_u32 %s, %s, %s\ns_mul_i32 %s, %s, 36864\ns_add_u32 %s, %s, %s" %
      (S(t2), S(sWAVE), S(t1), S(t1), S(sKW), S(t2), S(t1), S(t2), S(sKW), S(sWDB), S(t0), S(t2)))
    P("s_lshl_b32 %s, %s, 10\ns_add_u32 %s, %s, %s" % (S(sKW), S(sKW), S(sKW), S(sKW), S(sNL)))
    P("s_add_u32 %s, %s, 32\ns_mul_i32 %s, %s, 36864\ns_add_u32 %s, %s, %s" % (S(t2), S(sWAVE), S(t2), S(t2), S(sWD0), S(t0), S(t2)))
    P("s_movk_i32 %s, 9216" % S(t3))
    def grow(rho, out, tmp):
        P("v_bfe_u32 %s, %s, 2, 2\nv_lshlrev_b32 %s, 3, %s" % (out, rho, out, out))
        P("v_lshrrev_b32 %s, 4, %s\nv_lshl_add_u32 %s, %s, 2, %s" % (tmp, rho, out, tmp, out))
        P("v_and_b32 %s, 3, %s\nv_add_u32 %s, %s, %s" % (tmp, rho, out, out, tmp))
    P("s_lshl_b32 %s, %s, 3\nv_lshrrev_b32 %s, 3, %s\nv_add_u32 %s, %s, %s" % (S(t2), S(sWAVE), a, L, a, S(t2), a))
    P("v_and_b32 %s, 6, %s\nv_and_b32 %s, 7, %s\nv_xor_b32 %s, %s, %s\nv_lshlrev_b32 %s, 4, %s" % (b, a, c, L, b, b, c, b, b))
    P("v_mad_u32_u24 %s, %s, %s, %s" % (V(vDM), a, S(t3), b))
    grow(a, c, d)
    P("v_mad_u32_u24 %s, %s, %s, %s" % (V(vDL), c, S(t3), b))

def dma_unit(P, sig, tok=None):
    st, phi = sig // 18, slab_phi(sig)
    src = sWG if st % 2 == 0 else sWU
    col = 128 if st >= 2 else 0
    row, vo = 32 * phi, (vDM if phi < 16 else vDL)
    return ["s_add_u32 m0, %s, %d" % (S(sW1K), slab_addr(sig)), "s_add_u32 %s, %s, %d" % (S(t0), S(sCOL), row * 9216 + col),
            P.mk("buffer_load_dwordx4 %s, %s, %s offen %s lds" % (V(vo), srd(src), S(t0), CFG["wpol"]), tok)]

def narrow_items(P, vl16):
    out = []
    for it in [8, 7] + list(range(7)):
        out.append(["s_add_u32 m0, %s, %d" % (S(sW1K), LDS_N + it * 4096), "s_add_u32 %s, %s, %d" % (S(t0), S(sNB), it * 4096),
                    "buffer_load_dwordx4 %s, %s, %s offen sc1 lds" % (V(vl16), srd(sWS), S(t0))])
    return out
def unit_items(P, lo, hi):
    return [dma_unit(P, sig) for sig in range(lo, hi)]

def hbm_prefetch(P, which, vl, ta, tb, tc, dst, mklane=False, s0=None, s1=None):
    L, a, b, c = V(vl), V(ta), V(tb), V(tc)
    if s0 is None: s0, s1 = S(t0), S(t1)
    om = "s_lshl_b32 %s, %s, 6\ns_lshl_b32 %s, %s, 1\ns_add_u32 %s, %s, %s\ns_add_u32 %s, %s, %s" % (s0, S(sWAVE), s1, S(sIDX), s0, s0, s1, s0, s0, S(sMH))
    it = [om]
    if mklane: it.append("v_lshrrev_b32 %s, 4, %s" % (L, V(vL16)))
    def ld(sr):
        x = P.mk("buffer_load_dword %s, %s, %s, %s offen" % (V(dst), a, srd(sr), s1)); x.dst = []
        return x
    if which in (1, 2):
        per, rows = (8, 8)
        nw = 576 // rows
        it.append("v_lshrrev_b32 %s, 3, %s\nv_and_b32 %s, 7, %s\nv_lshl_add_u32 %s, %s, 1, %d" % (a, L, b, L, b, b, which - 1))
        it.append("v_mul_u32_u24 %s, 9216, %s\nv_lshl_add_u32 %s, %s, 7, %s" % (a, a, a, b, a))
        it.append("s_cmp_ge_u32 %s, %d\ns_cselect_b32 %s, %s, %s\ns_cselect_b32 %s, %s, %s\ns_cselect_b32 %s, %d, 0\ns_sub_u32 %s, %s, %s" %
                  (s0, nw, S(sWN), S(sWU), S(sWG), S(sWN + 1), S(sWU + 1), S(sWG + 1), s1, nw, s0, s0, s1))
        it.append("s_mul_i32 %s, %s, %d\ns_mul_i32 %s, %s, 2304\ns_add_u32 %s, %s, %s" % (s0, s0, rows * 9216, s1, S(sFQ), s1, s1, s0))
        it.append(ld(sWN))
    else:
        if which == 4: it.append("s_xor_b32 %s, %s, 1" % (s0, s0))
        if which >= 30:
            k, n = which % 10, (which // 10) - 1
            per = -(-41 // n)
            it.append("v_min_u32 %s, %d, %s\nv_add_u32 %s, %d, %s\nv_min_u32 %s, 40, %s\nv_lshlrev_b32 %s, 7, %s" % (a, per - 1, L, a, k * per, a, a, a, a, a))
        else:
            it.append("v_min_u32 %s, 40, %s\nv_lshlrev_b32 %s, 7, %s" % (a, L, a, a))
        it.append("s_mul_i32 %s, %s, %d\ns_mul_i32 %s, %s, %d\ns_add_u32 %s, %s, %s" % (s0, s0, 41 * 128, s1, S(sFQ), 1152 * 1152, s1, s1, s0))
        it.append(ld(sWD))
    return it

def part_prefill(P, vq, vl16, vl8, t0, t1):
    it = ["s_lshl_b32 %s, s2, 4" % S(t0), "s_add_u32 %s, %s, %s" % (S(t0), S(t0), S(sWAVE)), "s_mul_i32 %s, %s, 2560" % (S(t0), S(t0)),
          "s_add_u32 %s, %s, %d" % (S(t0), S(t0), WS_PART)]
    for i in range(1, 4):
        it += ["s_add_u32 %s, %s, %d" % (S(t1), S(sFQ), i), "s_and_b32 %s, %s, 3" % (S(t1), S(t1)), "s_mul_i32 %s, %s, %d" % (S(t1), S(t1), 4 * 2560),
               "s_add_u32 %s, %s, %s" % (S(t1), S(t1), S(t0)),
               "buffer_store_dwordx4 %s, %s, %s, %s offen sc1" % (V(vq, 4), V(vl16), srd(sWS), S(t1)),
               "buffer_store_dwordx4 %s, %s, %s, %s offen offset:1024 sc1" % (V(vq, 4), V(vl16), srd(sWS), S(t1)),
               "buffer_store_dwordx2 %s, %s, %s, %s offen offset:2048 sc1" % (V(vq, 2), V(vl8), srd(sWS), S(t1))]
    return it

def ffn_addr2(C, vlane):
    P = C.P
    L = V(vlane)
    a, b, c, d = V(vT), V(vT + 1), V(vT + 2), V(vT + 3)
    P("v_lshlrev_b32 %s, 4, %s\nv_lshlrev_b32 %s, 3, %s" % (V(vL16), L, V(vL8), L))
    P("v_lshrrev_b32 %s, 2, %s\nv_and_b32 %s, 3, %s" % (a, L, b, L))
    P("v_add_u32 %s, %d, %s" % (V(vTRN), LDS_N, V(vL16)))
    P("v_bfe_u32 %s, %s, 1, 2" % (c, a))
    P("v_lshlrev_b32 %s, 7, %s\nv_lshl_add_u32 %s, %s, 3, %s" % (d, a, d, b, d))
    for T in range(4):
        P("v_xor_b32 %s, %d, %s\nv_lshl_add_u32 %s, %s, 5, %s" % (V(vTRU + T), T, c, V(vTRU + T), V(vTRU + T), d))
    P("v_bfe_u32 %s, %s, 2, 2\nv_mul_u32_u24 %s, 1152, %s\nv_lshrrev_b32 %s, 4, %s\nv_lshl_add_u32 %s, %s, 6, %s" % (a, L, a, a, c, L, a, c, a))
    P("v_lshl_add_u32 %s, %s, 4, %s\nv_xor_b32 %s, 32, %s" % (c, b, a, d, c))
    for q in range(8):
        P("v_add_u32 %s, %d, %s" % (V(vWD + q), q * 4608 - 1024 * (q % 4), d if q & 1 else c))

def ffn_main(C, vlane_src=None, s3_addr_ready=True):
    P = C.P
    a, b, c, d = V(vT), V(vT + 1), V(vT + 2), V(vT + 3)
    P.add(C.load_flags(vFD, vFA))
    P("s_waitcnt vmcnt(0)")
    for x in C.check_flags(vFD, vFA, 3, vT + 15): P.add(x)
    for x in C.stamp("s3done"): P.add(x)
    def aload(phi, m):
        return ["s_add_u32 %s, %s, %d" % (S(t1), S(sA), m * 18432 + phi * 1024),
                "buffer_load_dwordx4 %s, %s, %s, %s offen sc1" % (R(areg(phi, m), 4), V(vL16), srd(sWS), S(t1)),
                "buffer_load_dwordx4 %s, %s, %s, %s offen offset:1024 sc1" % (R(areg(phi + 1, m), 4), V(vL16), srd(sWS), S(t1))]
    for pr in PAIRS[:2]:
        for m in range(4):
            for x in aload(pr[0], m): P.add(x)
    it = ["v_lshrrev_b32 %s, 4, %s" % (V(vFA), V(vL16)), "v_and_b32 %s, 7, %s" % (V(vFA), V(vFA)), "v_lshlrev_b32 %s, 10, %s" % (V(vFA), V(vFA)),
          "s_lshl_b32 %s, %s, 13" % (S(t1), S(sRB)), "s_lshl_b32 %s, %s, 7" % (S(sL2), S(sXCD)), "s_add_u32 %s, %s, %s" % (S(t1), S(t1), S(sL2)),
          "s_lshr_b32 %s, %s, 2" % (S(sL2), S(sFS)), "s_lshl_b32 %s, %s, 3" % (S(sL2), S(sL2)), "s_add_u32 %s, %s, %s" % (S(t1), S(t1), S(sL2)),
          "s_lshr_b32 %s, %s, 1" % (S(sL2), S(sWAVE)), "s_lshl_b32 %s, %s, 2" % (S(sL2), S(sL2)), "s_add_u32 %s, %s, %s" % (S(t1), S(t1), S(sL2)),
          "v_add_u32 %s, %s, %s" % (V(vFA), S(t1), V(vFA))] + flagfix(V(vFA), V(vFD))
    for x in it: P.add(x)
    P("s_barrier")
    main, blocks = [], []
    for st in range(4):
        tiles = [0, 1, 2, 3] + (["ng", "nu"] if st == 0 else [])
        for pi, pr in enumerate(PAIRS):
            for T in tiles:
                bi = len(blocks)
                wf = vWF + 8 * (bi % 3)
                blocks.append(dict(start=len(main), g=1, st=st, pi=pi, T=T, wf=wf))
                for m in range(4):
                    if T == "ng": acc = vP + 4 * m
                    elif T == "nu": acc = vP + 16 + 4 * m
                    else: acc = (vG if st % 2 == 0 else vU) + 16 * T + 4 * m
                    order = (0, 1) if (m % 2 == 0 or not CFG['chain']) else (1, 0)
                    for q, i in enumerate(order):
                        x = mfma(acc, wf + 4 * i, areg(pr[i], m), None if (pi == 0 and q == 0) else acc)
                        if m == 0 and q == 0:
                            w = list(range(wf, wf + 8))
                            if st == 0 and T == 0 and pi > 0:
                                for mm in range(4): w += [areg(pr[0], mm), areg(pr[1], mm)]
                            x = [WaitRegs(w), x]
                        main.append(x)
    nb1 = len(blocks)
    def hreg(p, m): return AG + 8 * (p % 28) + 4 * m
    for st in range(9):
        for pp in range(2):
            for n in range(9):
                bi = len(blocks)
                wf = AG + 224 + 8 * ((bi - nb1) % 4)
                blocks.append(dict(start=len(main), g=2, st=st, pp=pp, n=n, wf=wf))
                for m in range(2):
                    order = (0, 1) if (m % 2 == 0 or not CFG['chain']) else (1, 0)
                    for q, i in enumerate(order):
                        p = 4 * st + 2 * pp + i
                        x = mfma(oreg(m, n), wf + 4 * i, hreg(p, m), None if (st == 0 and pp == 0 and q == 0) else oreg(m, n))
                        if m == 0 and q == 0:
                            w = list(range(wf, wf + 8))
                            if n == 0:
                                for mm in range(2):
                                    for ii in range(2): w += list(range(hreg(p + ii, mm), hreg(p + ii, mm) + 4))
                            x = [WaitRegs(w), x]
                        main.append(x)
    NM = len(main)
    start = [bl["start"] for bl in blocks] + [NM]
    stage1 = [min(bl["start"] for bl in blocks if bl["g"] == 1 and bl["st"] == s_) for s_ in range(4)] + [start[nb1]]
    stage2 = [min(bl["start"] for bl in blocks if bl["g"] == 2 and bl["st"] == s_) for s_ in range(9)] + [NM]
    def pair_end(st, pi):
        return max(start[i + 1] for i, bl in enumerate(blocks) if bl["g"] == 1 and bl["st"] == st and bl["pi"] == pi) - 1

    rd, dm = [], []
    au = LdsAddr([vTRU + T for T in range(4)], 0)
    aw = LdsAddr([vTRN, vWE, vWE + 1], 0)
    toks = {}
    def wd_dma(stage, nb, step):
        tok = P.newtok(); toks[("d", stage)] = tok
        it = []
        if stage == 0:
            so = S(sWD0)
            it.append("s_add_u32 %s, %s, %s" % (S(t3), S(sNL), S(sW1K))); it.append("s_add_u32 %s, %s, 32768" % (S(t3), S(t3)))
        else:
            k = 8 * (stage - 1) if stage <= 4 else 8 * (stage - 5) + 2
            it.append("s_add_u32 %s, %s, %d" % (S(t2), S(sWDB), k * 36864)); so = S(t2)
            it.append("s_add_u32 %s, %s, %d" % (S(t3), S(sKW), k * 1024))
        base = WD_SLAB[stage % 4][0]
        for q in range(9):
            if q % 4 == 0: it.append("s_add_u32 m0, %s, %d" % (S(sD2), base + 1024 * q))
            if q < 8: it.append("buffer_load_dwordx4 %s, %s, %s offen offset:%d %s lds" % (V(vWD + q), srd(sWD), so, 1024 * (q % 4), CFG["dpol"]))
            else: it.append(P.mk("buffer_load_dwordx4 %s, %s, %s offen sc1 lds" % (V(vL16), srd(sWS), S(t3)), tok))
        dm.extend(paced(it, nb + 1, step)[0])
    P("s_mul_i32 %s, %s, 9216" % (S(sD2), S(sWAVE)))
    if CFG["late"]:
        lo = 30 - CFG["late"]
        its = []
        for s2 in range(lo, 30):
            tok = None
            if s2 % 6 == 5:
                tok = P.newtok(); toks[("u", s2 // 6)] = tok
            its.append(dma_unit(P, s2, tok))
        dm.extend(paced(its, CFG["lateat"], 5, 400)[0])
    prev_nb = -1
    for bi, bl in enumerate(blocks):
        lead = 2 if bl["g"] == 1 else 3
        nb = start[bi - lead] - 1 if bi >= lead else -1
        dl = start[bi - lead + 1] if bi >= lead else 0
        if bl["g"] == 1:
            st, pi, T = bl["st"], bl["pi"], bl["T"]
            sig = st * 18 + 2 * pi
            if T == 0 and sig % 6 == 0 and sig >= 18:
                g = sig // 6
                it = []
                if ("u", g) in toks: it.append(WaitTok(toks[("u", g)]))
                it += ["s_waitcnt lgkmcnt(0)", "s_barrier"]
                rd.append((nb, nb + 1, it))
                if g + 2 < 12:
                    tok = P.newtok(); toks[("u", g + 2)] = tok
                    dm.extend(paced([dma_unit(P, s2, tok if s2 % 6 == 5 else None) for s2 in range(6 * (g + 2), 6 * (g + 3))], nb + 3, CFG["ustep"])[0])
                if g == CFG['w0']: wd_dma(0, nb + 1 + 6 * CFG['ustep'], 5)
                if g == CFG['w1']: wd_dma(1, nb + 1 + 6 * CFG['ustep'], 5)
                if g == 10: wd_dma(2, nb + 1, CFG['w2step'])
                nb += 1
            items = []
            for i in range(2):
                if T in ("ng", "nu"):
                    o = PAIRS[pi][i] * 2048 + (1024 if T == "nu" else 0)
                    items += ["ds_read_b128 %s, %s offset:%d" % (R(bl["wf"] + 4 * i, 4), V(vTRN), o)]
                else:
                    ad = slab_addr(sig + i)
                    gbase = slab_addr(sig - sig % 6)
                    items += au.rebase(gbase, gbase + 24576)
                    items += ["ds_read_b64_tr_b16 %s, %s offset:%d" % (R(bl["wf"] + 4 * i + 2 * h, 2), V(vTRU + T), au.off(ad + 2048 * h)) for h in range(2)]
        else:
            st, pp, n = bl["st"], bl["pp"], bl["n"]
            if bi == nb1:
                nb = start[bi - 2] - 1; dl = start[bi - 1]
            if bi == nb1 + 1:
                nb = start[bi - 3] - 1; dl = start[bi - 1]
            if bi == nb1 + 2:
                dl = start[bi - 1]
            if pp == 0 and n == 0:
                it = [WaitTok(toks[("d", st)]), "s_waitcnt lgkmcnt(0)", "s_barrier"]
                rd.append((nb, nb + 1, it))
                if st == 0:
                    x0, x1 = V(vWE), V(vWE + 1)
                    for x in ["v_and_b32 %s, 0xc0, %s" % (x0, V(vL16)), "v_and_b32 %s, 24, %s" % (x1, V(vL8)), "v_add_u32 %s, %s, %s" % (x0, x0, x1),
                              "v_lshrrev_b32 %s, 8, %s" % (x1, V(vL16)), "v_lshl_add_u32 %s, %s, 10, %s" % (x0, x1, x0), "v_and_b32 %s, 1, %s" % (x1, x1),
                              "v_lshl_add_u32 %s, %s, 5, %s" % (x0, x1, x0), "v_xor_b32 %s, 32, %s" % (x1, x0), "v_mov_b32 %s, %s" % (V(vTRN), V(vL16))]:
                        rd.append((nb + 1, dl, x))
                if st + 3 < 9: wd_dma(st + 3, nb + 1, CFG['dstep'])
                nb += 1
            items = []
            for i in range(2):
                ad = wd_slab(st, 2 * pp + i)
                lo = wd_slab(st, 2 * pp)
                items += aw.rebase(lo, lo + 2 * 9216)
                if n < 8: items += ["ds_read_b64_tr_b16 %s, %s offset:%d" % (R(bl["wf"] + 4 * i + 2 * h, 2), V(vWE + (n & 1)), aw.off(ad + 4096 * h + 256 * (n >> 1))) for h in range(2)]
                else: items += ["ds_read_b128 %s, %s offset:%d" % (R(bl["wf"] + 4 * i, 4), V(vTRN), aw.off(ad + 8192))]
        nb = max(nb, prev_nb); prev_nb = nb
        dl = max(dl, nb + 1)
        k = 0
        for x in items:
            rd.append((min(nb + k * (CFG["rsp1"] if bl["g"] == 1 else CFG["rsp2"]), dl - 1) if nb >= 0 else nb, dl, x))
            if x.startswith("ds_"): k += 1

    ld = []
    apos = 0
    for pi in range(2, 9):
        use = [bl["start"] for bl in blocks if bl["g"] == 1 and bl["st"] == 0 and bl["pi"] == pi][0]
        x, apos = paced([aload(PAIRS[pi][0], m) for m in range(4)], apos, CFG['astep'] / 2, use)
        ld += x
        if pi == 8:
            it = ["v_lshrrev_b32 %s, 2, %s" % (V(vT + 8), V(vL16)), "v_and_b32 %s, 0x3c, %s" % (V(vT + 8), V(vT + 8)),
                  "v_lshrrev_b32 %s, 8, %s" % (V(vT + 9), V(vL16)), "v_lshl_add_u32 %s, %s, 9, %s" % (V(vT + 8), V(vT + 9), V(vT + 8)),
                  "s_sub_u32 %s, %s, %d" % (S(t1), S(sA), WS_HC), "s_mul_hi_u32 %s, %s, %d" % (S(t1), S(t1), 477218589),
                  "s_add_u32 %s, %s, %d" % (S(t1), S(t1), WS_SSQ)]
            for m in range(4):
                if m == 2: it.append("s_add_u32 %s, %s, 4096" % (S(t1), S(t1)))
                for h in range(2):
                    it.append("buffer_load_dword %s, %s, %s, %s offen offset:%d sc1" % (V(vT + 2 * m + h), V(vT + 8), srd(sWS), S(t1), 2048 * (m % 2) + 256 * h))
            x, apos = paced(it, apos, 3)
            ld += x
    for which, at in CFG['pfB']:
        assert at <= 400 or at >= 436
        rg = (vT + 13, vT + 10, vT + 11, vT + 12) if at <= 400 else (vT + 7, vT + 4, vT + 3, vT + 2)
        ld.append((at, 420 if at <= 400 else INF, hbm_prefetch(P, which, rg[0], rg[1], rg[2], rg[3], vFD, True, S(sL2), S(t1))))
    s4 = stage1[3]
    def hload(p):
        k = kappa(p); it = []
        if p < 4:
            for m in range(2):
                it.append("s_add_u32 %s, %s, %d" % (S(t1), S(sHLD), m * 147456 + k * 1024))
                for h in range(2):
                    it.append("buffer_load_dwordx2 %s, %s, %s, %s offen offset:%d sc1" % (R(hreg(p, m) + 2 * h, 2), V(vL8), srd(sWS), S(t1), 512 * h))
            return [it[:3], it[3:]]
        assert p % 2 == 0 and kappa(p + 1) == k + 1
        out = []
        for m in range(2):
            out.append(["s_add_u32 %s, %s, %d" % (S(t1), S(sHLD), m * 147456 + k * 1024),
                        "buffer_load_dwordx4 %s, %s, %s, %s offen sc1" % (R(hreg(p, m), 4), V(vL16), srd(sWS), S(t1)),
                        "buffer_load_dwordx4 %s, %s, %s, %s offen offset:1024 sc1" % (R(hreg(p + 1, m), 4), V(vL16), srd(sWS), S(t1))])
        return out
    def use2(p): return stage2[p // 4] + 36 * ((p % 4) // 2)
    ld.append((s4 + CFG['s4l'], INF, C.load_flags(vFD, vFA)))
    ld.append((pair_end(3, 2) + CFG['s4c'], INF, C.check_flags(vFD, vFA, 4) + ([] if CFG["fine"] else C.stamp("s4a"))))
    hn = pair_end(3, 2) + CFG['s4c'] + 1
    for p in list(range(4)) + list(range(4, 20, 2)):
        dead = pair_end(3, 2 + (p + 1) // 4)
        x, hn = paced(hload(p), max(hn, dead), CFG['hstep'] / 2, use2(p) - CFG['hlead'])
        ld += x
    FB_LOAD, FB_CHECK = stage2[3] + CFG['fbl'], stage2[3] + CFG['fbc']
    ld.append((FB_LOAD, INF, C.load_flags(vFD, vFA)))
    ld.append((FB_CHECK, INF, C.check_flags(vFD, vFA, 5) + ([] if CFG["fine"] else C.stamp("s4b"))))
    for p in range(20, 36, 2):
        x, hn = paced(hload(p), max(hn, FB_CHECK + 1), CFG['hstep2'] / 2, use2(p) - CFG['hlead'])
        ld += x

    ep = []
    nb = pair_end(0, 7)
    for m in range(4):
        r = vR2 + m
        it = ["v_add_f32 %s, %s, %s" % (V(r), V(vT + 2 * m), V(vT + 2 * m + 1))] + allred(r, vT + 9, "v_add_f32")
        it += ["v_mov_b32 %s, 0x3727c5ac" % V(vT + 9), "v_fmac_f32 %s, 0x3ae38e39, %s" % (V(vT + 9), V(r)), "v_rcp_f32 %s, %s" % (V(r), V(vT + 9))]
        for x in it: ep.append((nb, stage1[1], x))
    stq = [vT + 8, vT + 12]
    nb = stage1[1] + 3
    for m in range(4):
        g, u, q = vP + 4 * m, vP + 16 + 4 * m, stq[m % 2]
        for j in range(4):
            ep.append((nb, INF, "v_max_f32 %s, 0, %s" % (V(g + j), V(g + j))))
            ep.append((nb, INF, "v_mul_f32 %s, %s, %s" % (V(u + j), V(vR2 + m), V(u + j))))
            ep.append((nb, INF, "v_mul_f32 %s, %s, %s" % (V(g + j), V(g + j), V(u + j))))
        for h in range(2): ep.append((nb, INF, "v_cvt_pk_bf16_f32 %s, %s, %s" % (V(q + h), V(g + 2 * h), V(g + 2 * h + 1))))
        ep.append((nb, INF, "s_add_u32 %s, %s, %d" % (S(sE1), S(sHSN), m * 147456)))
        ep.append((nb, INF, "buffer_store_dwordx2 %s, %s, %s, %s offen %s" % (V(q, 2), V(vL8), srd(sWS), S(sE1), CFG["hst"])))
    for T in range(4):
        for m in range(4):
            g, pk = vG + 16 * T + 4 * m, vP + 2 * (4 * T + m)
            for j in range(4): ep.append((nb, stage1[2], "v_mul_f32 %s, %s, %s" % (V(g + j), V(vR2 + m), V(g + j))))
            for h in range(2): ep.append((nb, stage1[2], "v_cvt_pk_bf16_f32 %s, %s, %s" % (V(pk + h), V(g + 2 * h), V(g + 2 * h + 1))))
            for h in range(2): ep.append((nb, stage1[2], "v_pk_max_i16 %s, %s, 0" % (V(pk + h), V(pk + h))))
    nb = stage1[2] + 3
    tokA = P.newtok()
    k = 0
    for m in range(4):
        for i in range(2):
            q = stq[k % 2]; k += 1
            for tt in range(2):
                T = 2 * i + tt
                u, pk = vU + 16 * T + 4 * m, vP + 2 * (4 * T + m)
                for h in range(2):
                    ep.append((nb, stage1[3], "v_lshlrev_b32 %s, 16, %s" % (V(vT + 5), V(pk + h))))
                    ep.append((nb, stage1[3], "v_and_b32 %s, 0xffff0000, %s" % (V(vT + 6), V(pk + h))))
                    ep.append((nb, stage1[3], "v_mul_f32 %s, %s, %s" % (V(vT + 5), V(vT + 5), V(u + 2 * h))))
                    ep.append((nb, stage1[3], "v_mul_f32 %s, %s, %s" % (V(vT + 6), V(vT + 6), V(u + 2 * h + 1))))
                    ep.append((nb, stage1[3], "v_cvt_pk_bf16_f32 %s, %s, %s" % (V(q + 2 * tt + h), V(vT + 5), V(vT + 6))))
            it = []
            if i == 0: it.append("s_add_u32 %s, %s, %d" % (S(sE2), S(sHST), m * 147456))
            it.append(P.mk("buffer_store_dwordx4 %s, %s, %s, %s offen offset:%d %s" % (V(q, 4), V(vL16), srd(sWS), S(sE2), 1024 * i, CFG["hst"]), tokA if (m, i) == (3, 1) else None))
            for x in it: ep.append((nb, stage1[3], x))
    ep.append((stage1[3] - CFG['puba'], stage1[3] + 8, [WaitTok(tokA)] + C.publish(vT + 5, 4)))
    nb = stage1[3] + 9
    for T in range(4):
        for m in range(4):
            g = vG + 16 * T + 4 * m
            for j in range(4):
                ep.append((nb, stage1[4], "v_mul_f32 %s, %s, %s" % (V(g + j), V(vR2 + m), V(g + j))))
                ep.append((nb, stage1[4], "v_max_f32 %s, 0, %s" % (V(g + j), V(g + j))))
    nb = stage1[4] + 3
    tokB = P.newtok()
    k = 0
    for m in range(4):
        for i in range(2):
            q = stq[k % 2]; k += 1
            for tt in range(2):
                T = 2 * i + tt
                u, g = vU + 16 * T + 4 * m, vG + 16 * T + 4 * m
                for j in range(4): ep.append((nb, INF, "v_mul_f32 %s, %s, %s" % (V(u + j), V(u + j), V(g + j))))
                for h in range(2): ep.append((nb, INF, "v_cvt_pk_bf16_f32 %s, %s, %s" % (V(q + 2 * tt + h), V(u + 2 * h), V(u + 2 * h + 1))))
            it = []
            if i == 0: it.append("s_add_u32 %s, %s, %d" % (S(sE2), S(sHST), m * 147456 + 2048))
            it.append(P.mk("buffer_store_dwordx4 %s, %s, %s, %s offen offset:%d %s" % (V(q, 4), V(vL16), srd(sWS), S(sE2), 1024 * i, CFG["hst"]), tokB if (m, i) == (3, 1) else None))
            for x in it: ep.append((nb, INF, x))
    ep.append((stage2[2] + CFG['fbp'], FB_LOAD, [WaitTok(tokB)] + C.publish(vT + 5, 5)))
    it = ["s_lshr_b32 %s, %s, 1" % (S(sE1), S(sFQ)), "s_add_u32 %s, %s, %s" % (S(sMT2), S(sMT2), S(sE1)),
          "s_mul_i32 %s, %s, 18432" % (S(sE1), S(sMT2)), "s_add_u32 %s, %s, %d" % (S(sE1), S(sE1), WS_H),
          "s_and_b32 %s, %s, 3" % (S(sE2), S(sFS)), "s_lshl_b32 %s, %s, 9" % (S(sE2), S(sE2)), "s_add_u32 %s, %s, %s" % (S(sA), S(sE1), S(sE2)),
          "s_add_u32 %s, %s, 16384" % (S(sA), S(sA)), "s_lshl_b32 %s, %s, 3" % (S(sE2), S(sE2)), "s_add_u32 %s, %s, %s" % (S(sE1), S(sE1), S(sE2)),
          "s_and_b32 %s, %s, 1" % (S(sE2), S(sFQ)), "s_mul_i32 %s, %s, 2048" % (S(sE2), S(sE2)), "s_add_u32 %s, %s, %s" % (S(sE1), S(sE1), S(sE2))]
    it += ["buffer_load_dwordx2 %s, %s, %s, %s offen offset:%d sc1" % (V(vG + 2 * n, 2), V(vL8), srd(sWS), S(sE1), 512 * n) for n in range(4)]
    it += ["buffer_load_dwordx2 %s, %s, %s, %s offen sc1" % (V(vG + 10, 2), V(vL8), srd(sWS), S(sA))]
    ep += paced(it, stage2[6] + 30, 5)[0]
    it = ["v_lshrrev_b32 %s, 4, %s" % (V(vFA), V(vL16)), "v_and_b32 %s, 3, %s" % (V(vFA), V(vFA)), "v_lshlrev_b32 %s, 8, %s" % (V(vFA), V(vFA)),
          "s_lshl_b32 %s, %s, 10" % (S(sE1), S(sIDX)), "s_lshl_b32 %s, %s, 7" % (S(sE2), S(sMH)), "s_add_u32 %s, %s, %s" % (S(sE1), S(sE1), S(sE2)),
          "s_lshl_b32 %s, %s, 2" % (S(sE2), S(sWAVE)), "s_add_u32 %s, %s, %s" % (S(sE1), S(sE1), S(sE2)), "v_add_u32 %s, %s, %s" % (V(vFA), S(sE1), V(vFA))] + flagfix(V(vFA), V(vFD))
    for x in it: ep.append((stage2[7] + 10, INF, x))
    if CFG["ptouch"]:
        x0, x1 = V(vT + 2), V(vT + 3)
        it = ["v_lshrrev_b32 %s, 4, %s" % (x0, V(vL16)), "v_mul_u32_u24 %s, 2979, %s" % (x1, x0), "v_lshrrev_b32 %s, 16, %s" % (x1, x1),
              "v_mul_u32_u24 %s, 22, %s" % (V(vT + 4), x1), "v_sub_u32 %s, %s, %s" % (x0, x0, V(vT + 4)),
              "v_add_u32 %s, %s, %s" % (x1, S(sFQ), x1), "v_add_u32 %s, 1, %s" % (x1, x1), "v_and_b32 %s, 3, %s" % (x1, x1),
              "v_mul_u32_u24 %s, 12288, %s" % (x1, x1), "v_lshl_add_u32 %s, %s, 7, %s" % (x0, x0, x1),
              "s_lshl_b32 %s, s2, 4" % S(sE1), "s_add_u32 %s, %s, %s" % (S(sE1), S(sE1), S(sWAVE)), "s_mul_i32 %s, %s, 3072" % (S(sE1), S(sE1)),
              "s_add_u32 %s, %s, %d" % (S(sE1), S(sE1), WS_PART)]
        x = P.mk("buffer_load_dword %s, %s, %s, %s offen %s" % (V(vT + 4), x0, srd(sWS), S(sE1), CFG["ptm"])); x.dst = []
        at = CFG["ptouch"]
        k = [i for i, e in enumerate(ep) if e[0] <= at][-1] + 1
        ep[k:k] = [(at, INF, y) for y in it + [x]]
    for x in final_setup(): ep.append((stage2[8] + 4, INF, x))
    def respread(lo, hi):
        idx = [k for k, e in enumerate(ep) if e[0] == lo]
        for c_, k in enumerate(idx): ep[k] = (lo + (hi - lo) * c_ // len(idx), ep[k][1], ep[k][2])
    respread(pair_end(0, 7), stage1[1] - 2)
    respread(stage1[1] + 3, stage1[2] - 8)
    respread(stage1[2] + 3, stage1[2] + CFG['e2'])
    respread(stage1[3] + 9, stage1[4] - 8)
    respread(stage1[4] + 3, stage1[4] + CFG["e4"])
    if C.timing:
        for s_ in range(1, 5): ep.append((stage1[s_], INF, C.stamp("g1s%d" % s_)))
        if CFG["fine"] == 1:
            for s_ in range(1, 9): ep.append((stage2[s_], INF, C.stamp("b%d" % s_)))
        ep.sort(key=lambda x: x[0])

    def per(i):
        k = 1 if (i + 1 < NM and isinstance(main[i + 1], list)) else 2
        if stage1[4] <= i < stage1[4] + CFG["e4"]: k += 1
        return k
    def txt(x): return x.text if isinstance(x, Ins) else x if isinstance(x, str) else ""
    if "h" in CFG["abl"]: ld = [e for e in ld if not (e[0] >= s4 + 60 and txt(e[2]).startswith("buffer_load_dwordx"))]
    if "a" in CFG["abl"]: ld = [e for e in ld if not (e[0] < s4 and txt(e[2]).startswith("buffer_load_dwordx4"))]
    if "w" in CFG["abl"]: dm = [e for e in dm if not ("s[28:31]" in txt(e[2]) and not (isinstance(e[2], Ins) and e[2].tok))]
    if "u" in CFG["abl"]: dm = [e for e in dm if not (("s[20:23]" in txt(e[2]) or "s[24:27]" in txt(e[2])) and not (isinstance(e[2], Ins) and e[2].tok))]
    if "e" in CFG["abl"]: ep = [e for e in ep if not txt(e[2]).startswith("v_")]
    if "s" in CFG["abl"]: ep = [e for e in ep if not (txt(e[2]).startswith("buffer_store") and not (isinstance(e[2], Ins) and e[2].tok))]
    if "b" in CFG["abl"]: rd = [(e[0], e[1], [y for y in e[2] if y != "s_barrier"] if isinstance(e[2], list) else e[2]) for e in rd]
    if "r" in CFG["abl"]: rd = [e for e in rd if not txt(e[2]).startswith("ds_read")]
    multi_interleave(P, main, [rd, ld, dm, ep], per)
    for x in C.stamp("g2done"): P.add(x)
    ffn_final(C)

def final_setup():
    it = ("s_lshl_b32 %s, %s, 3\ns_add_u32 %s, %s, %s\ns_lshl_b32 %s, %s, 4\ns_add_u32 %s, %s, %s" %
          (S(t0), S(sIDX), S(t0), S(t0), S(sMH), S(t0), S(t0), S(t0), S(t0), S(sWAVE))).split("\n")
    it += ("s_mul_i32 %s, %s, 3072\ns_add_u32 %s, %s, %d" % (S(t0), S(t0), S(t0), S(t0), WS_PART)).split("\n")
    it += ("v_lshrrev_b32 %s, 4, %s\nv_and_b32 %s, 15, %s\nv_mul_u32_u24 %s, 1152, %s" % (V(vT), V(vL16), V(vT + 1), V(vT), V(vT + 1), V(vT + 1))).split("\n")
    it += ("v_mul_u32_u24 %s, 12, %s\nv_lshlrev_b32 %s, 2, %s" % (V(vT + 6), V(vT), V(vT + 7), V(vT))).split("\n")
    it += ("v_lshrrev_b32 %s, 4, %s\nv_lshl_add_u32 %s, %s, 3, %s" % (V(vT), V(vT), V(vT), V(vT), V(vT + 1))).split("\n")
    it += ("s_mul_i32 %s, %s, 18432\ns_and_b32 %s, %s, 3\ns_lshl_b32 %s, %s, 5\ns_add_u32 %s, %s, %s" % (S(t2), S(sMT2), S(t3), S(sFS), S(t3), S(t3), S(sA), S(t2), S(t3))).split("\n")
    it += ("s_lshl_b32 %s, %s, 3\ns_add_u32 %s, %s, %s" % (S(t3), S(t3), S(t2), S(t2), S(t3))).split("\n")
    w, r, o, x = V(vWD), V(vWD + 1), V(vWD + 2), V(vWD + 3)
    it += ["s_mul_i32 %s, %s, 2304" % (S(t3), S(sWAVE)), "v_lshrrev_b32 %s, 4, %s" % (x, V(vL16)), "v_and_b32 %s, 15, %s" % (w, x), "v_mul_u32_u24 %s, 144, %s" % (w, w),
           "v_lshrrev_b32 %s, 4, %s" % (r, x), "v_lshl_add_u32 %s, %s, 3, %s" % (w, r, w), "v_add_u32 %s, %s, %s" % (w, S(t3), w),
           "v_lshrrev_b32 %s, 3, %s" % (x, x), "v_and_b32 %s, 0x70, %s" % (o, V(vL16)), "v_mul_u32_u24 %s, 144, %s" % (r, x), "v_add3_u32 %s, %s, %s, %s" % (r, r, o, S(t3)),
           "v_mul_u32_u24 %s, 1152, %s" % (x, x), "v_add_u32 %s, %s, %s" % (o, o, x),
           "s_and_b32 %s, %s, 1" % (S(t3), S(sFQ)), "s_lshl_b32 %s, %s, 7" % (S(t3), S(t3)), "s_add_u32 %s, %s, %s" % (S(t2), S(t2), S(t3)), "s_add_u32 %s, %s, 9216" % (S(t3), S(t2))]
    return it

def ffn_final(C):
    P = C.P
    labs = [P.newlabel(C.name + "_fin") for _ in range(4)]
    done = P.newlabel(C.name + "_findone")
    C.touch_labels |= set(labs[1:])
    ck = CFG["s5"]
    P.add(WaitRegs(list(range(vG, vG + 8)) + [vG + 10, vG + 11]))
    for fq in range(1, 4):
        P("s_cmp_eq_u32 %s, %d\ns_cbranch_scc1 %s" % (S(sFQ), fq, labs[fq]))
    def part(f): return [(f >> 1, n) for n in ((4, 5, 6, 7) if f & 1 else (0, 1, 2, 3, 8))]
    names = ("f0", "f1", "f2", "f3", "") if ck else ("f0", "f1", "f2", "f3", "f4")
    fst = [C.stamp(n) if (CFG["fine"] == 2 and n) else [] for n in names]
    def xfer(op, st, n, so):
        P("buffer_%s_dwordx4 %s, %s, %s, %s offen sc1" % (op, V(st, 4), V(vL16), srd(sWS), so))
        P("buffer_%s_dwordx4 %s, %s, %s, %s offen offset:1024 sc1" % (op, V(st + 4, 4), V(vL16), srd(sWS), so))
        if ck:
            if n == 5: P("buffer_%s_dwordx3 %s, %s, %s, %s offen offset:2048 sc1" % (op, V(st + 8, 3), V(vT + 6), srd(sWS), so))
            else: P("buffer_%s_dword %s, %s, %s, %s offen offset:2048 sc1" % (op, V(st + 8), V(vT + 7), srd(sWS), so))
        elif n == 5: P("buffer_%s_dwordx2 %s, %s, %s, %s offen offset:2048 sc1" % (op, V(st + 8, 2), V(vL8), srd(sWS), so))
    def csum(dst, st, n):
        P("v_add3_u32 %s, %s, %s, %s" % (V(dst), V(st), V(st + 1), S(sNON)))
        for k in range(2, 2 * n, 2): P("v_add3_u32 %s, %s, %s, %s" % (V(dst), V(st + k), V(st + k + 1), V(dst)))
    for fq in range(4):
        P.label(labs[fq])
        if fq: P("s_nop 4")
        for x in fst[0]: P.add(x)
        st = vU
        for d in range(4):
            if d == fq: continue
            tl = part(d)
            for i, (m, n) in enumerate(tl):
                for h in range(2):
                    P("v_cvt_pk_bf16_f32 %s, %s, %s" % (V(st + 2 * i + h), V(oreg(m, n) + 2 * h), V(oreg(m, n) + 2 * h + 1)))
            P("s_add_u32 %s, %s, %d" % (S(t1), S(t0), (d * 2 * 16 + fq * 4) * 3072))
            if ck: csum(st + 2 * len(tl), st, len(tl))
            xfer("store", st, len(tl), S(t1))
            st += 12
        tl = part(fq)
        if ck == 2:
            for x in C.publish(vT + 5, 6): P.add(x)
        for i, (m, n) in enumerate(tl):
            o = oreg(m, n)
            for h in range(2):
                hr = V(vG + (10 if n == 8 else 2 * i) + h)
                P("v_lshlrev_b32 %s, 16, %s\nv_and_b32 %s, 0xffff0000, %s" % (V(vT + 2), hr, V(vT + 3), hr))
                P("v_pk_add_f32 %s, %s, %s" % (V(o + 2 * h, 2), V(o + 2 * h, 2), V(vT + 2, 2)))
        for x in fst[1]: P.add(x)
        stl = [vU + 40, vU + 52, vG + 12]
        srcs = [d for d in range(4) if d != fq]
        if ck == 2:
            P.add(C.load_flags(vFD, vFA))
            for x in C.check_flags(vFD, vFA, 6, vT + 15): P.add(x)
            for x in fst[2]: P.add(x)
        if ck:
            loop, ok = P.newlabel(C.name + "_s5"), P.newlabel(C.name + "_s5ok")
            P("s_mov_b32 %s, 0" % S(sSPIN))
            P.label(loop)
        else:
            P("s_waitcnt vmcnt(0)")
            for x in fst[2]: P.add(x)
            for x in C.publish(vT + 5, 6): P.add(x)
            P.add(C.load_flags(vFD, vFA))
            P("s_waitcnt vmcnt(0)")
            for x in C.check_flags(vFD, vFA, 6, vT + 15): P.add(x)
            for x in fst[3]: P.add(x)
        for k, d in enumerate(srcs):
            P("s_add_u32 %s, %s, %d" % (S(t1), S(t0), (fq * 2 * 16 + d * 4) * 3072))
            xfer("load", stl[k], len(tl), S(t1))
        if ck:
            P("s_add_u32 %s, %s, 1" % (S(sSPIN), S(sSPIN)))
            for k in range(3):
                csum(vT + 8 + k, stl[k], len(tl))
                P("v_xor_b32 %s, %s, %s" % (V(vT + 8 + k), V(vT + 8 + k), V(stl[k] + 2 * len(tl))))
            P("v_or3_b32 %s, %s, %s, %s" % (V(vT + 8), V(vT + 8), V(vT + 9), V(vT + 10)))
            P("v_cmp_ne_u32 vcc, 0, %s\ns_cmp_gt_u32 %s, %d\ns_cbranch_scc1 %s\ns_cbranch_vccnz %s" % (V(vT + 8), S(sSPIN), SPIN_MAX, ok, loop))
            P.label(ok)
            for x in fst[3]: P.add(x)
        elif CFG["fine"] == 2:
            P("s_waitcnt vmcnt(0)")
            for x in fst[4]: P.add(x)
        for k in range(3):
            st = stl[k]
            for i, (m, n) in enumerate(tl):
                o = oreg(m, n)
                for h in range(2):
                    P("v_lshlrev_b32 %s, 16, %s\nv_and_b32 %s, 0xffff0000, %s" % (V(vT + 2), V(st + 2 * i + h), V(vT + 3), V(st + 2 * i + h)))
                    P("v_pk_add_f32 %s, %s, %s" % (V(o + 2 * h, 2), V(o + 2 * h, 2), V(vT + 2, 2)))
                if k == 2:
                    for h in range(2): P("v_cvt_pk_bf16_f32 %s, %s, %s" % (V(o + h), V(o + 2 * h), V(o + 2 * h + 1)))
                    if n == 8: P("buffer_store_dwordx2 %s, %s, %s, %s offen offset:1024 %s" % (V(o, 2), V(vT), srd(sOUT), S(sA), CFG["ost"]))
                    elif CFG["otr"]:
                        P("ds_write_b64 %s, %s offset:%d" % (V(vWD), V(o, 2), 32 * i))
                        if i == 3:
                            for h in range(2): P("ds_read_b128 %s, %s offset:%d" % (V(vU + 4 * h, 4), V(vWD + 1), 1152 * h))
                    else: P("buffer_store_dwordx2 %s, %s, %s, %s offen offset:%d %s" % (V(o, 2), V(vT), srd(sOUT), S(t2), 32 * i, CFG["ost"]))
        if CFG["otr"]:
            for h in range(2): P("buffer_store_dwordx4 %s, %s, %s, %s offen %s" % (V(vU + 4 * h, 4), V(vWD + 2), srd(sOUT), S(t3 if h else t2), CFG["ost"]))
        if C.timing: P("s_waitcnt vmcnt(0)")
        if fq < 3:
            P("s_branch %s" % done)
            P.reset()
    P.label(done)
    for x in C.stamp("end"): P.add(x)
```

```python
from common import *

vA16 = 0
vG, vU, vP = 32, 96, 160
vWF = 192
vOX = 208
vTRU = 216
vTRN = 220
vDM, vDL = 221, 222
vWD = 223
vL16, vL8 = 232, 233
vWE = 216
vR2 = 234
vFA, vFD = 238, 239
vT = 240
AG = 256

sA, sCOL, sNB, sNL, sWDB, sWD0, sHST, sHSN, sHLD, sMT2 = 76, 77, 78, 79, 80, 81, 82, 83, 84, 85
t0, t1, t2, t3 = 96, 97, 98, 99
sL2, sD2, sE1, sE2 = 92, 93, 94, 95
sKW = 89

CFG = dict(ustep=16, dstep=7, astep=10, hstep=8, hstep2=12, e4=100, wpol='', dpol='', otr=1, ptouch=0, ptm='', fbl=36, fbc=72, fbp=36, w2step=10, e2=200, chain=1, fill=620, fstep=10, s5=2, late=0, lateat=310, abl='', hst='sc1', ost='', wdown=0, rsp1=1, rsp2=1, hlead=30, fine=0, pfB=[(2, 300), (30, 480), (31, 580)], w0=7, w1=8)
LDS_N = 120 * 1024
PAIRS = [(16, 17), (14, 15)] + [(2 * i, 2 * i + 1) for i in range(7)]
def areg(phi, m):
    return vA16 + (phi - 16) * 16 + 4 * m if phi >= 16 else AG + phi * 16 + 4 * m
GSLOT = [4, 3, 0, 2, 1, 0, 2, 1, 0, 2, 1, 0]
def slab_addr(sig):
    return GSLOT[sig // 6] * 24576 + (sig % 6) * 4096
def slab_phi(sig):
    r = sig % 18
    return PAIRS[r // 2][r % 2]
WD_SLAB = [[b * 1024 + 9216 * i for i in range(4)] for b in (120, 84, 48, 12)]
def wd_slab(stage, i): return WD_SLAB[stage % 4][i]
def kappa(p):
    st, i = p // 4, p % 4
    if st == 0: return 32 + i
    kw = (i & 1) + 4 * (i >> 1)
    return 8 * (st - 1) + kw if st <= 4 else 8 * (st - 5) + 2 + kw
def oreg(m, n):
    k = m * 9 + n
    if k < 8: return vA16 + 4 * k
    if k < 16: return vP + 4 * (k - 8)
    return vOX + 4 * (k - 16)

def ffn_setup(C, vlane):
    P = C.P
    L = V(vlane)
    a, b, c, d = V(vT), V(vT + 1), V(vT + 2), V(vT + 3)
    P("s_lshl_b32 %s, %s, 6\ns_lshl_b32 %s, %s, 4\ns_add_u32 %s, %s, %s" % (S(t0), S(sMH), S(t1), S(sRB), S(t0), S(t0), S(t1)))
    P("s_lshl_b32 %s, %s, 2\ns_add_u32 %s, %s, %s" % (S(t1), S(sWAVE), S(t1), S(t1), S(t0)))
    P("s_mul_i32 %s, %s, 18432\ns_add_u32 %s, %s, %d" % (S(sA), S(t1), S(sA), S(sA), WS_HC))
    P("s_mul_i32 %s, %s, 147456\ns_mul_i32 %s, %s, 36864\ns_add_u32 %s, %s, %s\ns_add_u32 %s, %s, %d" %
      (S(t1), S(t1), S(t2), S(sFQ), S(t1), S(t1), S(t2), S(t1), S(t1), WS_HH))
    P("s_lshl_b32 %s, %s, 12\ns_add_u32 %s, %s, %s" % (S(t3), S(sFS), S(sHST), S(t1), S(t3)))
    P("s_lshl_b32 %s, %s, 9\ns_add_u32 %s, %s, %s\ns_add_u32 %s, %s, 32768" % (S(t3), S(sFS), S(sHSN), S(t1), S(t3), S(sHSN), S(sHSN)))
    P("s_lshr_b32 %s, %s, 2\ns_lshl_b32 %s, %s, 3\ns_add_u32 %s, %s, %s\ns_lshl_b32 %s, %s, 1\ns_add_u32 %s, %s, %s" %
      (S(t1), S(sFS), S(t1), S(t1), S(t0), S(t0), S(t1), S(t1), S(sWAVE), S(sMT2), S(t0), S(t1)))
    P("s_mul_i32 %s, %s, 147456\ns_add_u32 %s, %s, %s\ns_add_u32 %s, %s, %d" % (S(sHLD), S(sMT2), S(sHLD), S(sHLD), S(t2), S(sHLD), S(sHLD), WS_HH))
    P("s_mul_i32 %s, %s, 2304\ns_lshl_b32 %s, %s, 8\ns_add_u32 %s, %s, %s" % (S(t0), S(sFQ), S(t1), S(sFS), S(sCOL), S(t0), S(t1)))
    P("s_lshl_b32 %s, %s, 3\ns_add_u32 %s, %s, %s\ns_mul_i32 %s, %s, 36864\ns_add_u32 %s, %s, %s\ns_add_u32 %s, %s, %d" %
      (S(t1), S(sFQ), S(t1), S(t1), S(sFS), S(t1), S(t1), S(t1), S(t1), S(sW1K), S(sNB), S(t1), WS_RN))
    P("s_lshr_b32 %s, %s, 1" % (S(t1), S(sWAVE)))
    P("s_mul_i32 %s, %s, %d\ns_and_b32 %s, %s, 3\ns_mul_i32 %s, %s, 147456\ns_lshl_b32 %s, %s, 8\ns_add_u32 %s, %s, %s" %
      (S(t0), S(sFQ), 1152 * 1152, S(t2), S(sFS), S(sNL), S(t2), S(t2), S(t2), S(t0), S(t0), S(t2)))
    P("s_mul_i32 %s, %s, 36864\ns_add_u32 %s, %s, %s\ns_add_u32 %s, %s, %d" % (S(t2), S(sFQ), S(sNL), S(sNL), S(t2), S(sNL), S(sNL), WS_RD))
    P("s_and_b32 %s, %s, 1\ns_lshl_b32 %s, %s, 2\ns_add_u32 %s, %s, %s\ns_mul_i32 %s, %s, 36864\ns_add_u32 %s, %s, %s" %
      (S(t2), S(sWAVE), S(t1), S(t1), S(sKW), S(t2), S(t1), S(t2), S(sKW), S(sWDB), S(t0), S(t2)))
    P("s_lshl_b32 %s, %s, 10\ns_add_u32 %s, %s, %s" % (S(sKW), S(sKW), S(sKW), S(sKW), S(sNL)))
    P("s_add_u32 %s, %s, 32\ns_mul_i32 %s, %s, 36864\ns_add_u32 %s, %s, %s" % (S(t2), S(sWAVE), S(t2), S(t2), S(sWD0), S(t0), S(t2)))
    P("s_movk_i32 %s, 9216" % S(t3))
    def grow(rho, out, tmp):
        P("v_bfe_u32 %s, %s, 2, 2\nv_lshlrev_b32 %s, 3, %s" % (out, rho, out, out))
        P("v_lshrrev_b32 %s, 4, %s\nv_lshl_add_u32 %s, %s, 2, %s" % (tmp, rho, out, tmp, out))
        P("v_and_b32 %s, 3, %s\nv_add_u32 %s, %s, %s" % (tmp, rho, out, out, tmp))
    P("s_lshl_b32 %s, %s, 3\nv_lshrrev_b32 %s, 3, %s\nv_add_u32 %s, %s, %s" % (S(t2), S(sWAVE), a, L, a, S(t2), a))
    P("v_and_b32 %s, 6, %s\nv_and_b32 %s, 7, %s\nv_xor_b32 %s, %s, %s\nv_lshlrev_b32 %s, 4, %s" % (b, a, c, L, b, b, c, b, b))
    P("v_mad_u32_u24 %s, %s, %s, %s" % (V(vDM), a, S(t3), b))
    grow(a, c, d)
    P("v_mad_u32_u24 %s, %s, %s, %s" % (V(vDL), c, S(t3), b))

def dma_unit(P, sig, tok=None):
    st, phi = sig // 18, slab_phi(sig)
    src = sWG if st % 2 == 0 else sWU
    col = 128 if st >= 2 else 0
    row, vo = 32 * phi, (vDM if phi < 16 else vDL)
    return ["s_add_u32 m0, %s, %d" % (S(sW1K), slab_addr(sig)), "s_add_u32 %s, %s, %d" % (S(t0), S(sCOL), row * 9216 + col),
            P.mk("buffer_load_dwordx4 %s, %s, %s offen %s lds" % (V(vo), srd(src), S(t0), CFG["wpol"]), tok)]

def narrow_items(P, vl16):
    out = []
    for it in [8, 7] + list(range(7)):
        out.append(["s_add_u32 m0, %s, %d" % (S(sW1K), LDS_N + it * 4096), "s_add_u32 %s, %s, %d" % (S(t0), S(sNB), it * 4096),
                    "buffer_load_dwordx4 %s, %s, %s offen sc1 lds" % (V(vl16), srd(sWS), S(t0))])
    return out
def unit_items(P, lo, hi):
    return [dma_unit(P, sig) for sig in range(lo, hi)]

def hbm_prefetch(P, which, vl, ta, tb, tc, dst, mklane=False, s0=None, s1=None):
    L, a, b, c = V(vl), V(ta), V(tb), V(tc)
    if s0 is None: s0, s1 = S(t0), S(t1)
    om = "s_lshl_b32 %s, %s, 6\ns_lshl_b32 %s, %s, 1\ns_add_u32 %s, %s, %s\ns_add_u32 %s, %s, %s" % (s0, S(sWAVE), s1, S(sIDX), s0, s0, s1, s0, s0, S(sMH))
    it = [om]
    if mklane: it.append("v_lshrrev_b32 %s, 4, %s" % (L, V(vL16)))
    def ld(sr):
        x = P.mk("buffer_load_dword %s, %s, %s, %s offen" % (V(dst), a, srd(sr), s1)); x.dst = []
        return x
    if which in (1, 2):
        per, rows = (8, 8)
        nw = 576 // rows
        it.append("v_lshrrev_b32 %s, 3, %s\nv_and_b32 %s, 7, %s\nv_lshl_add_u32 %s, %s, 1, %d" % (a, L, b, L, b, b, which - 1))
        it.append("v_mul_u32_u24 %s, 9216, %s\nv_lshl_add_u32 %s, %s, 7, %s" % (a, a, a, b, a))
        it.append("s_cmp_ge_u32 %s, %d\ns_cselect_b32 %s, %s, %s\ns_cselect_b32 %s, %s, %s\ns_cselect_b32 %s, %d, 0\ns_sub_u32 %s, %s, %s" %
                  (s0, nw, S(sWN), S(sWU), S(sWG), S(sWN + 1), S(sWU + 1), S(sWG + 1), s1, nw, s0, s0, s1))
        it.append("s_mul_i32 %s, %s, %d\ns_mul_i32 %s, %s, 2304\ns_add_u32 %s, %s, %s" % (s0, s0, rows * 9216, s1, S(sFQ), s1, s1, s0))
        it.append(ld(sWN))
    else:
        if which == 4: it.append("s_xor_b32 %s, %s, 1" % (s0, s0))
        if which >= 30:
            k, n = which % 10, (which // 10) - 1
            per = -(-41 // n)
            it.append("v_min_u32 %s, %d, %s\nv_add_u32 %s, %d, %s\nv_min_u32 %s, 40, %s\nv_lshlrev_b32 %s, 7, %s" % (a, per - 1, L, a, k * per, a, a, a, a, a))
        else:
            it.append("v_min_u32 %s, 40, %s\nv_lshlrev_b32 %s, 7, %s" % (a, L, a, a))
        it.append("s_mul_i32 %s, %s, %d\ns_mul_i32 %s, %s, %d\ns_add_u32 %s, %s, %s" % (s0, s0, 41 * 128, s1, S(sFQ), 1152 * 1152, s1, s1, s0))
        it.append(ld(sWD))
    return it

def part_prefill(P, vq, vl16, vl8, t0, t1):
    it = ["s_lshl_b32 %s, s2, 4" % S(t0), "s_add_u32 %s, %s, %s" % (S(t0), S(t0), S(sWAVE)), "s_mul_i32 %s, %s, 2560" % (S(t0), S(t0)),
          "s_add_u32 %s, %s, %d" % (S(t0), S(t0), WS_PART)]
    for i in range(1, 4):
        it += ["s_add_u32 %s, %s, %d" % (S(t1), S(sFQ), i), "s_and_b32 %s, %s, 3" % (S(t1), S(t1)), "s_mul_i32 %s, %s, %d" % (S(t1), S(t1), 4 * 2560),
               "s_add_u32 %s, %s, %s" % (S(t1), S(t1), S(t0)),
               "buffer_store_dwordx4 %s, %s, %s, %s offen sc1" % (V(vq, 4), V(vl16), srd(sWS), S(t1)),
               "buffer_store_dwordx4 %s, %s, %s, %s offen offset:1024 sc1" % (V(vq, 4), V(vl16), srd(sWS), S(t1)),
               "buffer_store_dwordx2 %s, %s, %s, %s offen offset:2048 sc1" % (V(vq, 2), V(vl8), srd(sWS), S(t1))]
    return it

def ffn_addr2(C, vlane):
    P = C.P
    L = V(vlane)
    a, b, c, d = V(vT), V(vT + 1), V(vT + 2), V(vT + 3)
    P("v_lshlrev_b32 %s, 4, %s\nv_lshlrev_b32 %s, 3, %s" % (V(vL16), L, V(vL8), L))
    P("v_lshrrev_b32 %s, 2, %s\nv_and_b32 %s, 3, %s" % (a, L, b, L))
    P("v_add_u32 %s, %d, %s" % (V(vTRN), LDS_N, V(vL16)))
    P("v_bfe_u32 %s, %s, 1, 2" % (c, a))
    P("v_lshlrev_b32 %s, 7, %s\nv_lshl_add_u32 %s, %s, 3, %s" % (d, a, d, b, d))
    for T in range(4):
        P("v_xor_b32 %s, %d, %s\nv_lshl_add_u32 %s, %s, 5, %s" % (V(vTRU + T), T, c, V(vTRU + T), V(vTRU + T), d))
    P("v_bfe_u32 %s, %s, 2, 2\nv_mul_u32_u24 %s, 1152, %s\nv_lshrrev_b32 %s, 4, %s\nv_lshl_add_u32 %s, %s, 6, %s" % (a, L, a, a, c, L, a, c, a))
    P("v_lshl_add_u32 %s, %s, 4, %s\nv_xor_b32 %s, 32, %s" % (c, b, a, d, c))
    for q in range(8):
        P("v_add_u32 %s, %d, %s" % (V(vWD + q), q * 4608 - 1024 * (q % 4), d if q & 1 else c))

def ffn_main(C, vlane_src=None, s3_addr_ready=True):
    P = C.P
    a, b, c, d = V(vT), V(vT + 1), V(vT + 2), V(vT + 3)
    P.add(C.load_flags(vFD, vFA))
    P("s_waitcnt vmcnt(0)")
    for x in C.check_flags(vFD, vFA, 3, vT + 15): P.add(x)
    for x in C.stamp("s3done"): P.add(x)
    def aload(phi, m):
        return ["s_add_u32 %s, %s, %d" % (S(t1), S(sA), m * 18432 + phi * 1024),
                "buffer_load_dwordx4 %s, %s, %s, %s offen sc1" % (R(areg(phi, m), 4), V(vL16), srd(sWS), S(t1)),
                "buffer_load_dwordx4 %s, %s, %s, %s offen offset:1024 sc1" % (R(areg(phi + 1, m), 4), V(vL16), srd(sWS), S(t1))]
    for pr in PAIRS[:2]:
        for m in range(4):
            for x in aload(pr[0], m): P.add(x)
    it = ["v_lshrrev_b32 %s, 4, %s" % (V(vFA), V(vL16)), "v_and_b32 %s, 7, %s" % (V(vFA), V(vFA)), "v_lshlrev_b32 %s, 10, %s" % (V(vFA), V(vFA)),
          "s_lshl_b32 %s, %s, 13" % (S(t1), S(sRB)), "s_lshl_b32 %s, %s, 7" % (S(sL2), S(sXCD)), "s_add_u32 %s, %s, %s" % (S(t1), S(t1), S(sL2)),
          "s_lshr_b32 %s, %s, 2" % (S(sL2), S(sFS)), "s_lshl_b32 %s, %s, 3" % (S(sL2), S(sL2)), "s_add_u32 %s, %s, %s" % (S(t1), S(t1), S(sL2)),
          "s_lshr_b32 %s, %s, 1" % (S(sL2), S(sWAVE)), "s_lshl_b32 %s, %s, 2" % (S(sL2), S(sL2)), "s_add_u32 %s, %s, %s" % (S(t1), S(t1), S(sL2)),
          "v_add_u32 %s, %s, %s" % (V(vFA), S(t1), V(vFA))] + flagfix(V(vFA), V(vFD))
    for x in it: P.add(x)
    P("s_barrier")
    main, blocks = [], []
    for st in range(4):
        tiles = [0, 1, 2, 3] + (["ng", "nu"] if st == 0 else [])
        for pi, pr in enumerate(PAIRS):
            for T in tiles:
                bi = len(blocks)
                wf = vWF + 8 * (bi % 3)
                blocks.append(dict(start=len(main), g=1, st=st, pi=pi, T=T, wf=wf))
                for m in range(4):
                    if T == "ng": acc = vP + 4 * m
                    elif T == "nu": acc = vP + 16 + 4 * m
                    else: acc = (vG if st % 2 == 0 else vU) + 16 * T + 4 * m
                    order = (0, 1) if (m % 2 == 0 or not CFG['chain']) else (1, 0)
                    for q, i in enumerate(order):
                        x = mfma(acc, wf + 4 * i, areg(pr[i], m), None if (pi == 0 and q == 0) else acc)
                        if m == 0 and q == 0:
                            w = list(range(wf, wf + 8))
                            if st == 0 and T == 0 and pi > 0:
                                for mm in range(4): w += [areg(pr[0], mm), areg(pr[1], mm)]
                            x = [WaitRegs(w), x]
                        main.append(x)
    nb1 = len(blocks)
    def hreg(p, m): return AG + 8 * (p % 28) + 4 * m
    for st in range(9):
        for pp in range(2):
            for n in range(9):
                bi = len(blocks)
                wf = AG + 224 + 8 * ((bi - nb1) % 4)
                blocks.append(dict(start=len(main), g=2, st=st, pp=pp, n=n, wf=wf))
                for m in range(2):
                    order = (0, 1) if (m % 2 == 0 or not CFG['chain']) else (1, 0)
                    for q, i in enumerate(order):
                        p = 4 * st + 2 * pp + i
                        x = mfma(oreg(m, n), wf + 4 * i, hreg(p, m), None if (st == 0 and pp == 0 and q == 0) else oreg(m, n))
                        if m == 0 and q == 0:
                            w = list(range(wf, wf + 8))
                            if n == 0:
                                for mm in range(2):
                                    for ii in range(2): w += list(range(hreg(p + ii, mm), hreg(p + ii, mm) + 4))
                            x = [WaitRegs(w), x]
                        main.append(x)
    NM = len(main)
    start = [bl["start"] for bl in blocks] + [NM]
    stage1 = [min(bl["start"] for bl in blocks if bl["g"] == 1 and bl["st"] == s_) for s_ in range(4)] + [start[nb1]]
    stage2 = [min(bl["start"] for bl in blocks if bl["g"] == 2 and bl["st"] == s_) for s_ in range(9)] + [NM]
    def pair_end(st, pi):
        return max(start[i + 1] for i, bl in enumerate(blocks) if bl["g"] == 1 and bl["st"] == st and bl["pi"] == pi) - 1

    rd, dm = [], []
    au = LdsAddr([vTRU + T for T in range(4)], 0)
    aw = LdsAddr([vTRN, vWE, vWE + 1], 0)
    toks = {}
    def wd_dma(stage, nb, step):
        tok = P.newtok(); toks[("d", stage)] = tok
        it = []
        if stage == 0:
            so = S(sWD0)
            it.append("s_add_u32 %s, %s, %s" % (S(t3), S(sNL), S(sW1K))); it.append("s_add_u32 %s, %s, 32768" % (S(t3), S(t3)))
        else:
            k = 8 * (stage - 1) if stage <= 4 else 8 * (stage - 5) + 2
            it.append("s_add_u32 %s, %s, %d" % (S(t2), S(sWDB), k * 36864)); so = S(t2)
            it.append("s_add_u32 %s, %s, %d" % (S(t3), S(sKW), k * 1024))
        base = WD_SLAB[stage % 4][0]
        for q in range(9):
            if q % 4 == 0: it.append("s_add_u32 m0, %s, %d" % (S(sD2), base + 1024 * q))
            if q < 8: it.append("buffer_load_dwordx4 %s, %s, %s offen offset:%d %s lds" % (V(vWD + q), srd(sWD), so, 1024 * (q % 4), CFG["dpol"]))
            else: it.append(P.mk("buffer_load_dwordx4 %s, %s, %s offen sc1 lds" % (V(vL16), srd(sWS), S(t3)), tok))
        dm.extend(paced(it, nb + 1, step)[0])
    P("s_mul_i32 %s, %s, 9216" % (S(sD2), S(sWAVE)))
    if CFG["late"]:
        lo = 30 - CFG["late"]
        its = []
        for s2 in range(lo, 30):
            tok = None
            if s2 % 6 == 5:
                tok = P.newtok(); toks[("u", s2 // 6)] = tok
            its.append(dma_unit(P, s2, tok))
        dm.extend(paced(its, CFG["lateat"], 5, 400)[0])
    prev_nb = -1
    for bi, bl in enumerate(blocks):
        lead = 2 if bl["g"] == 1 else 3
        nb = start[bi - lead] - 1 if bi >= lead else -1
        dl = start[bi - lead + 1] if bi >= lead else 0
        if bl["g"] == 1:
            st, pi, T = bl["st"], bl["pi"], bl["T"]
            sig = st * 18 + 2 * pi
            if T == 0 and sig % 6 == 0 and sig >= 18:
                g = sig // 6
                it = []
                if ("u", g) in toks: it.append(WaitTok(toks[("u", g)]))
                it += ["s_waitcnt lgkmcnt(0)", "s_barrier"]
                rd.append((nb, nb + 1, it))
                if g + 2 < 12:
                    tok = P.newtok(); toks[("u", g + 2)] = tok
                    dm.extend(paced([dma_unit(P, s2, tok if s2 % 6 == 5 else None) for s2 in range(6 * (g + 2), 6 * (g + 3))], nb + 3, CFG["ustep"])[0])
                if g == CFG['w0']: wd_dma(0, nb + 1 + 6 * CFG['ustep'], 5)
                if g == CFG['w1']: wd_dma(1, nb + 1 + 6 * CFG['ustep'], 5)
                if g == 10: wd_dma(2, nb + 1, CFG['w2step'])
                nb += 1
            items = []
            for i in range(2):
                if T in ("ng", "nu"):
                    o = PAIRS[pi][i] * 2048 + (1024 if T == "nu" else 0)
                    items += ["ds_read_b128 %s, %s offset:%d" % (R(bl["wf"] + 4 * i, 4), V(vTRN), o)]
                else:
                    ad = slab_addr(sig + i)
                    gbase = slab_addr(sig - sig % 6)
                    items += au.rebase(gbase, gbase + 24576)
                    items += ["ds_read_b64_tr_b16 %s, %s offset:%d" % (R(bl["wf"] + 4 * i + 2 * h, 2), V(vTRU + T), au.off(ad + 2048 * h)) for h in range(2)]
        else:
            st, pp, n = bl["st"], bl["pp"], bl["n"]
            if bi == nb1:
                nb = start[bi - 2] - 1; dl = start[bi - 1]
            if bi == nb1 + 1:
                nb = start[bi - 3] - 1; dl = start[bi - 1]
            if bi == nb1 + 2:
                dl = start[bi - 1]
            if pp == 0 and n == 0:
                it = [WaitTok(toks[("d", st)]), "s_waitcnt lgkmcnt(0)", "s_barrier"]
                rd.append((nb, nb + 1, it))
                if st == 0:
                    x0, x1 = V(vWE), V(vWE + 1)
                    for x in ["v_and_b32 %s, 0xc0, %s" % (x0, V(vL16)), "v_and_b32 %s, 24, %s" % (x1, V(vL8)), "v_add_u32 %s, %s, %s" % (x0, x0, x1),
                              "v_lshrrev_b32 %s, 8, %s" % (x1, V(vL16)), "v_lshl_add_u32 %s, %s, 10, %s" % (x0, x1, x0), "v_and_b32 %s, 1, %s" % (x1, x1),
                              "v_lshl_add_u32 %s, %s, 5, %s" % (x0, x1, x0), "v_xor_b32 %s, 32, %s" % (x1, x0), "v_mov_b32 %s, %s" % (V(vTRN), V(vL16))]:
                        rd.append((nb + 1, dl, x))
                if st + 3 < 9: wd_dma(st + 3, nb + 1, CFG['dstep'])
                nb += 1
            items = []
            for i in range(2):
                ad = wd_slab(st, 2 * pp + i)
                lo = wd_slab(st, 2 * pp)
                items += aw.rebase(lo, lo + 2 * 9216)
                if n < 8: items += ["ds_read_b64_tr_b16 %s, %s offset:%d" % (R(bl["wf"] + 4 * i + 2 * h, 2), V(vWE + (n & 1)), aw.off(ad + 4096 * h + 256 * (n >> 1))) for h in range(2)]
                else: items += ["ds_read_b128 %s, %s offset:%d" % (R(bl["wf"] + 4 * i, 4), V(vTRN), aw.off(ad + 8192))]
        nb = max(nb, prev_nb); prev_nb = nb
        dl = max(dl, nb + 1)
        k = 0
        for x in items:
            rd.append((min(nb + k * (CFG["rsp1"] if bl["g"] == 1 else CFG["rsp2"]), dl - 1) if nb >= 0 else nb, dl, x))
            if x.startswith("ds_"): k += 1

    ld = []
    apos = 0
    for pi in range(2, 9):
        use = [bl["start"] for bl in blocks if bl["g"] == 1 and bl["st"] == 0 and bl["pi"] == pi][0]
        x, apos = paced([aload(PAIRS[pi][0], m) for m in range(4)], apos, CFG['astep'] / 2, use)
        ld += x
        if pi == 8:
            it = ["v_lshrrev_b32 %s, 2, %s" % (V(vT + 8), V(vL16)), "v_and_b32 %s, 0x3c, %s" % (V(vT + 8), V(vT + 8)),
                  "v_lshrrev_b32 %s, 8, %s" % (V(vT + 9), V(vL16)), "v_lshl_add_u32 %s, %s, 9, %s" % (V(vT + 8), V(vT + 9), V(vT + 8)),
                  "s_sub_u32 %s, %s, %d" % (S(t1), S(sA), WS_HC), "s_mul_hi_u32 %s, %s, %d" % (S(t1), S(t1), 477218589),
                  "s_add_u32 %s, %s, %d" % (S(t1), S(t1), WS_SSQ)]
            for m in range(4):
                if m == 2: it.append("s_add_u32 %s, %s, 4096" % (S(t1), S(t1)))
                for h in range(2):
                    it.append("buffer_load_dword %s, %s, %s, %s offen offset:%d sc1" % (V(vT + 2 * m + h), V(vT + 8), srd(sWS), S(t1), 2048 * (m % 2) + 256 * h))
            x, apos = paced(it, apos, 3)
            ld += x
    for which, at in CFG['pfB']:
        assert at <= 400 or at >= 436
        rg = (vT + 13, vT + 10, vT + 11, vT + 12) if at <= 400 else (vT + 7, vT + 4, vT + 3, vT + 2)
        ld.append((at, 420 if at <= 400 else INF, hbm_prefetch(P, which, rg[0], rg[1], rg[2], rg[3], vFD, True, S(sL2), S(t1))))
    s4 = stage1[3]
    def hload(p):
        k = kappa(p); it = []
        if p < 4:
            for m in range(2):
                it.append("s_add_u32 %s, %s, %d" % (S(t1), S(sHLD), m * 147456 + k * 1024))
                for h in range(2):
                    it.append("buffer_load_dwordx2 %s, %s, %s, %s offen offset:%d sc1" % (R(hreg(p, m) + 2 * h, 2), V(vL8), srd(sWS), S(t1), 512 * h))
            return [it[:3], it[3:]]
        assert p % 2 == 0 and kappa(p + 1) == k + 1
        out = []
        for m in range(2):
            out.append(["s_add_u32 %s, %s, %d" % (S(t1), S(sHLD), m * 147456 + k * 1024),
                        "buffer_load_dwordx4 %s, %s, %s, %s offen sc1" % (R(hreg(p, m), 4), V(vL16), srd(sWS), S(t1)),
                        "buffer_load_dwordx4 %s, %s, %s, %s offen offset:1024 sc1" % (R(hreg(p + 1, m), 4), V(vL16), srd(sWS), S(t1))])
        return out
    def use2(p): return stage2[p // 4] + 36 * ((p % 4) // 2)
    ld.append((s4 + 40, INF, C.load_flags(vFD, vFA)))
    ld.append((pair_end(3, 2), INF, C.check_flags(vFD, vFA, 4) + ([] if CFG["fine"] else C.stamp("s4a"))))
    hn = 0
    for p in list(range(4)) + list(range(4, 20, 2)):
        dead = pair_end(3, 2 + (p + 1) // 4)
        x, hn = paced(hload(p), max(hn, dead), CFG['hstep'] / 2, use2(p) - CFG['hlead'])
        ld += x
    FB_LOAD, FB_CHECK = stage2[3] + CFG['fbl'], stage2[3] + CFG['fbc']
    ld.append((FB_LOAD, INF, C.load_flags(vFD, vFA)))
    ld.append((FB_CHECK, INF, C.check_flags(vFD, vFA, 5) + ([] if CFG["fine"] else C.stamp("s4b"))))
    for p in range(20, 36, 2):
        x, hn = paced(hload(p), max(hn, FB_CHECK + 1), CFG['hstep2'] / 2, use2(p) - CFG['hlead'])
        ld += x

    ep = []
    nb = pair_end(0, 7)
    for m in range(4):
        r = vR2 + m
        it = ["v_add_f32 %s, %s, %s" % (V(r), V(vT + 2 * m), V(vT + 2 * m + 1))] + allred(r, vT + 9, "v_add_f32")
        it += ["v_mov_b32 %s, 0x3727c5ac" % V(vT + 9), "v_fmac_f32 %s, 0x3ae38e39, %s" % (V(vT + 9), V(r)), "v_rcp_f32 %s, %s" % (V(r), V(vT + 9))]
        for x in it: ep.append((nb, stage1[1], x))
    stq = [vT + 8, vT + 12]
    nb = stage1[1] + 3
    for m in range(4):
        g, u, q = vP + 4 * m, vP + 16 + 4 * m, stq[m % 2]
        for j in range(4):
            ep.append((nb, INF, "v_max_f32 %s, 0, %s" % (V(g + j), V(g + j))))
            ep.append((nb, INF, "v_mul_f32 %s, %s, %s" % (V(u + j), V(vR2 + m), V(u + j))))
            ep.append((nb, INF, "v_mul_f32 %s, %s, %s" % (V(g + j), V(g + j), V(u + j))))
        for h in range(2): ep.append((nb, INF, "v_cvt_pk_bf16_f32 %s, %s, %s" % (V(q + h), V(g + 2 * h), V(g + 2 * h + 1))))
        ep.append((nb, INF, "s_add_u32 %s, %s, %d" % (S(sE1), S(sHSN), m * 147456)))
        ep.append((nb, INF, "buffer_store_dwordx2 %s, %s, %s, %s offen %s" % (V(q, 2), V(vL8), srd(sWS), S(sE1), CFG["hst"])))
    for T in range(4):
        for m in range(4):
            g, pk = vG + 16 * T + 4 * m, vP + 2 * (4 * T + m)
            for j in range(4): ep.append((nb, stage1[2], "v_mul_f32 %s, %s, %s" % (V(g + j), V(vR2 + m), V(g + j))))
            for h in range(2): ep.append((nb, stage1[2], "v_cvt_pk_bf16_f32 %s, %s, %s" % (V(pk + h), V(g + 2 * h), V(g + 2 * h + 1))))
            for h in range(2): ep.append((nb, stage1[2], "v_pk_max_i16 %s, %s, 0" % (V(pk + h), V(pk + h))))
    nb = stage1[2] + 3
    tokA = P.newtok()
    k = 0
    for m in range(4):
        for i in range(2):
            q = stq[k % 2]; k += 1
            for tt in range(2):
                T = 2 * i + tt
                u, pk = vU + 16 * T + 4 * m, vP + 2 * (4 * T + m)
                for h in range(2):
                    ep.append((nb, stage1[3], "v_lshlrev_b32 %s, 16, %s" % (V(vT + 5), V(pk + h))))
                    ep.append((nb, stage1[3], "v_and_b32 %s, 0xffff0000, %s" % (V(vT + 6), V(pk + h))))
                    ep.append((nb, stage1[3], "v_mul_f32 %s, %s, %s" % (V(vT + 5), V(vT + 5), V(u + 2 * h))))
                    ep.append((nb, stage1[3], "v_mul_f32 %s, %s, %s" % (V(vT + 6), V(vT + 6), V(u + 2 * h + 1))))
                    ep.append((nb, stage1[3], "v_cvt_pk_bf16_f32 %s, %s, %s" % (V(q + 2 * tt + h), V(vT + 5), V(vT + 6))))
            it = []
            if i == 0: it.append("s_add_u32 %s, %s, %d" % (S(sE2), S(sHST), m * 147456))
            it.append(P.mk("buffer_store_dwordx4 %s, %s, %s, %s offen offset:%d %s" % (V(q, 4), V(vL16), srd(sWS), S(sE2), 1024 * i, CFG["hst"]), tokA if (m, i) == (3, 1) else None))
            for x in it: ep.append((nb, stage1[3], x))
    ep.append((stage1[3] - 24, stage1[3] + 8, [WaitTok(tokA)] + C.publish(vT + 5, 4)))
    nb = stage1[3] + 9
    for T in range(4):
        for m in range(4):
            g = vG + 16 * T + 4 * m
            for j in range(4):
                ep.append((nb, stage1[4], "v_mul_f32 %s, %s, %s" % (V(g + j), V(vR2 + m), V(g + j))))
                ep.append((nb, stage1[4], "v_max_f32 %s, 0, %s" % (V(g + j), V(g + j))))
    nb = stage1[4] + 3
    tokB = P.newtok()
    k = 0
    for m in range(4):
        for i in range(2):
            q = stq[k % 2]; k += 1
            for tt in range(2):
                T = 2 * i + tt
                u, g = vU + 16 * T + 4 * m, vG + 16 * T + 4 * m
                for j in range(4): ep.append((nb, INF, "v_mul_f32 %s, %s, %s" % (V(u + j), V(u + j), V(g + j))))
                for h in range(2): ep.append((nb, INF, "v_cvt_pk_bf16_f32 %s, %s, %s" % (V(q + 2 * tt + h), V(u + 2 * h), V(u + 2 * h + 1))))
            it = []
            if i == 0: it.append("s_add_u32 %s, %s, %d" % (S(sE2), S(sHST), m * 147456 + 2048))
            it.append(P.mk("buffer_store_dwordx4 %s, %s, %s, %s offen offset:%d %s" % (V(q, 4), V(vL16), srd(sWS), S(sE2), 1024 * i, CFG["hst"]), tokB if (m, i) == (3, 1) else None))
            for x in it: ep.append((nb, INF, x))
    ep.append((stage2[2] + CFG['fbp'], FB_LOAD, [WaitTok(tokB)] + C.publish(vT + 5, 5)))
    it = ["s_lshr_b32 %s, %s, 1" % (S(sE1), S(sFQ)), "s_add_u32 %s, %s, %s" % (S(sMT2), S(sMT2), S(sE1)),
          "s_mul_i32 %s, %s, 18432" % (S(sE1), S(sMT2)), "s_add_u32 %s, %s, %d" % (S(sE1), S(sE1), WS_H),
          "s_and_b32 %s, %s, 3" % (S(sE2), S(sFS)), "s_lshl_b32 %s, %s, 9" % (S(sE2), S(sE2)), "s_add_u32 %s, %s, %s" % (S(sA), S(sE1), S(sE2)),
          "s_add_u32 %s, %s, 16384" % (S(sA), S(sA)), "s_lshl_b32 %s, %s, 3" % (S(sE2), S(sE2)), "s_add_u32 %s, %s, %s" % (S(sE1), S(sE1), S(sE2)),
          "s_and_b32 %s, %s, 1" % (S(sE2), S(sFQ)), "s_mul_i32 %s, %s, 2048" % (S(sE2), S(sE2)), "s_add_u32 %s, %s, %s" % (S(sE1), S(sE1), S(sE2))]
    it += ["buffer_load_dwordx2 %s, %s, %s, %s offen offset:%d sc1" % (V(vG + 2 * n, 2), V(vL8), srd(sWS), S(sE1), 512 * n) for n in range(4)]
    it += ["buffer_load_dwordx2 %s, %s, %s, %s offen sc1" % (V(vG + 10, 2), V(vL8), srd(sWS), S(sA))]
    ep += paced(it, stage2[6] + 30, 5)[0]
    it = ["v_lshrrev_b32 %s, 4, %s" % (V(vFA), V(vL16)), "v_and_b32 %s, 3, %s" % (V(vFA), V(vFA)), "v_lshlrev_b32 %s, 8, %s" % (V(vFA), V(vFA)),
          "s_lshl_b32 %s, %s, 10" % (S(sE1), S(sIDX)), "s_lshl_b32 %s, %s, 7" % (S(sE2), S(sMH)), "s_add_u32 %s, %s, %s" % (S(sE1), S(sE1), S(sE2)),
          "s_lshl_b32 %s, %s, 2" % (S(sE2), S(sWAVE)), "s_add_u32 %s, %s, %s" % (S(sE1), S(sE1), S(sE2)), "v_add_u32 %s, %s, %s" % (V(vFA), S(sE1), V(vFA))] + flagfix(V(vFA), V(vFD))
    for x in it: ep.append((stage2[7] + 10, INF, x))
    if CFG["ptouch"]:
        x0, x1 = V(vT + 2), V(vT + 3)
        it = ["v_lshrrev_b32 %s, 4, %s" % (x0, V(vL16)), "v_mul_u32_u24 %s, 2979, %s" % (x1, x0), "v_lshrrev_b32 %s, 16, %s" % (x1, x1),
              "v_mul_u32_u24 %s, 22, %s" % (V(vT + 4), x1), "v_sub_u32 %s, %s, %s" % (x0, x0, V(vT + 4)),
              "v_add_u32 %s, %s, %s" % (x1, S(sFQ), x1), "v_add_u32 %s, 1, %s" % (x1, x1), "v_and_b32 %s, 3, %s" % (x1, x1),
              "v_mul_u32_u24 %s, 12288, %s" % (x1, x1), "v_lshl_add_u32 %s, %s, 7, %s" % (x0, x0, x1),
              "s_lshl_b32 %s, s2, 4" % S(sE1), "s_add_u32 %s, %s, %s" % (S(sE1), S(sE1), S(sWAVE)), "s_mul_i32 %s, %s, 3072" % (S(sE1), S(sE1)),
              "s_add_u32 %s, %s, %d" % (S(sE1), S(sE1), WS_PART)]
        x = P.mk("buffer_load_dword %s, %s, %s, %s offen %s" % (V(vT + 4), x0, srd(sWS), S(sE1), CFG["ptm"])); x.dst = []
        at = CFG["ptouch"]
        k = [i for i, e in enumerate(ep) if e[0] <= at][-1] + 1
        ep[k:k] = [(at, INF, y) for y in it + [x]]
    for x in final_setup(): ep.append((stage2[8] + 4, INF, x))
    def respread(lo, hi):
        idx = [k for k, e in enumerate(ep) if e[0] == lo]
        for c_, k in enumerate(idx): ep[k] = (lo + (hi - lo) * c_ // len(idx), ep[k][1], ep[k][2])
    respread(pair_end(0, 7), stage1[1] - 2)
    respread(stage1[1] + 3, stage1[2] - 8)
    respread(stage1[2] + 3, stage1[2] + CFG['e2'])
    respread(stage1[3] + 9, stage1[4] - 8)
    respread(stage1[4] + 3, stage1[4] + CFG["e4"])
    if C.timing:
        for s_ in range(1, 5): ep.append((stage1[s_], INF, C.stamp("g1s%d" % s_)))
        if CFG["fine"] == 1:
            for s_ in range(1, 9): ep.append((stage2[s_], INF, C.stamp("b%d" % s_)))
        ep.sort(key=lambda x: x[0])

    def per(i):
        k = 1 if (i + 1 < NM and isinstance(main[i + 1], list)) else 2
        if stage1[4] <= i < stage1[4] + CFG["e4"]: k += 1
        return k
    def txt(x): return x.text if isinstance(x, Ins) else x if isinstance(x, str) else ""
    if "h" in CFG["abl"]: ld = [e for e in ld if not (e[0] >= s4 + 60 and txt(e[2]).startswith("buffer_load_dwordx"))]
    if "a" in CFG["abl"]: ld = [e for e in ld if not (e[0] < s4 and txt(e[2]).startswith("buffer_load_dwordx4"))]
    if "w" in CFG["abl"]: dm = [e for e in dm if not ("s[28:31]" in txt(e[2]) and not (isinstance(e[2], Ins) and e[2].tok))]
    if "u" in CFG["abl"]: dm = [e for e in dm if not (("s[20:23]" in txt(e[2]) or "s[24:27]" in txt(e[2])) and not (isinstance(e[2], Ins) and e[2].tok))]
    if "e" in CFG["abl"]: ep = [e for e in ep if not txt(e[2]).startswith("v_")]
    if "s" in CFG["abl"]: ep = [e for e in ep if not (txt(e[2]).startswith("buffer_store") and not (isinstance(e[2], Ins) and e[2].tok))]
    if "b" in CFG["abl"]: rd = [(e[0], e[1], [y for y in e[2] if y != "s_barrier"] if isinstance(e[2], list) else e[2]) for e in rd]
    if "r" in CFG["abl"]: rd = [e for e in rd if not txt(e[2]).startswith("ds_read")]
    multi_interleave(P, main, [rd, ld, dm, ep], per)
    for x in C.stamp("g2done"): P.add(x)
    ffn_final(C)

def final_setup():
    it = ("s_lshl_b32 %s, %s, 3\ns_add_u32 %s, %s, %s\ns_lshl_b32 %s, %s, 4\ns_add_u32 %s, %s, %s" %
          (S(t0), S(sIDX), S(t0), S(t0), S(sMH), S(t0), S(t0), S(t0), S(t0), S(sWAVE))).split("\n")
    it += ("s_mul_i32 %s, %s, 3072\ns_add_u32 %s, %s, %d" % (S(t0), S(t0), S(t0), S(t0), WS_PART)).split("\n")
    it += ("v_lshrrev_b32 %s, 4, %s\nv_and_b32 %s, 15, %s\nv_mul_u32_u24 %s, 1152, %s" % (V(vT), V(vL16), V(vT + 1), V(vT), V(vT + 1), V(vT + 1))).split("\n")
    it += ("v_mul_u32_u24 %s, 12, %s\nv_lshlrev_b32 %s, 2, %s" % (V(vT + 6), V(vT), V(vT + 7), V(vT))).split("\n")
    it += ("v_lshrrev_b32 %s, 4, %s\nv_lshl_add_u32 %s, %s, 3, %s" % (V(vT), V(vT), V(vT), V(vT), V(vT + 1))).split("\n")
    it += ("s_mul_i32 %s, %s, 18432\ns_and_b32 %s, %s, 3\ns_lshl_b32 %s, %s, 5\ns_add_u32 %s, %s, %s" % (S(t2), S(sMT2), S(t3), S(sFS), S(t3), S(t3), S(sA), S(t2), S(t3))).split("\n")
    it += ("s_lshl_b32 %s, %s, 3\ns_add_u32 %s, %s, %s" % (S(t3), S(t3), S(t2), S(t2), S(t3))).split("\n")
    w, r, o, x = V(vWD), V(vWD + 1), V(vWD + 2), V(vWD + 3)
    it += ["s_mul_i32 %s, %s, 2304" % (S(t3), S(sWAVE)), "v_lshrrev_b32 %s, 4, %s" % (x, V(vL16)), "v_and_b32 %s, 15, %s" % (w, x), "v_mul_u32_u24 %s, 144, %s" % (w, w),
           "v_lshrrev_b32 %s, 4, %s" % (r, x), "v_lshl_add_u32 %s, %s, 3, %s" % (w, r, w), "v_add_u32 %s, %s, %s" % (w, S(t3), w),
           "v_lshrrev_b32 %s, 3, %s" % (x, x), "v_and_b32 %s, 0x70, %s" % (o, V(vL16)), "v_mul_u32_u24 %s, 144, %s" % (r, x), "v_add3_u32 %s, %s, %s, %s" % (r, r, o, S(t3)),
           "v_mul_u32_u24 %s, 1152, %s" % (x, x), "v_add_u32 %s, %s, %s" % (o, o, x),
           "s_and_b32 %s, %s, 1" % (S(t3), S(sFQ)), "s_lshl_b32 %s, %s, 7" % (S(t3), S(t3)), "s_add_u32 %s, %s, %s" % (S(t2), S(t2), S(t3)), "s_add_u32 %s, %s, 9216" % (S(t3), S(t2))]
    return it

def ffn_final(C):
    P = C.P
    labs = [P.newlabel(C.name + "_fin") for _ in range(4)]
    done = P.newlabel(C.name + "_findone")
    C.touch_labels |= set(labs[1:])
    ck = CFG["s5"]
    P.add(WaitRegs(list(range(vG, vG + 8)) + [vG + 10, vG + 11]))
    for fq in range(1, 4):
        P("s_cmp_eq_u32 %s, %d\ns_cbranch_scc1 %s" % (S(sFQ), fq, labs[fq]))
    def part(f): return [(f >> 1, n) for n in ((4, 5, 6, 7) if f & 1 else (0, 1, 2, 3, 8))]
    names = ("f0", "f1", "f2", "f3", "") if ck else ("f0", "f1", "f2", "f3", "f4")
    fst = [C.stamp(n) if (CFG["fine"] == 2 and n) else [] for n in names]
    def xfer(op, st, n, so):
        P("buffer_%s_dwordx4 %s, %s, %s, %s offen sc1" % (op, V(st, 4), V(vL16), srd(sWS), so))
        P("buffer_%s_dwordx4 %s, %s, %s, %s offen offset:1024 sc1" % (op, V(st + 4, 4), V(vL16), srd(sWS), so))
        if ck:
            if n == 5: P("buffer_%s_dwordx3 %s, %s, %s, %s offen offset:2048 sc1" % (op, V(st + 8, 3), V(vT + 6), srd(sWS), so))
            else: P("buffer_%s_dword %s, %s, %s, %s offen offset:2048 sc1" % (op, V(st + 8), V(vT + 7), srd(sWS), so))
        elif n == 5: P("buffer_%s_dwordx2 %s, %s, %s, %s offen offset:2048 sc1" % (op, V(st + 8, 2), V(vL8), srd(sWS), so))
    def csum(dst, st, n):
        P("v_add3_u32 %s, %s, %s, %s" % (V(dst), V(st), V(st + 1), S(sNON)))
        for k in range(2, 2 * n, 2): P("v_add3_u32 %s, %s, %s, %s" % (V(dst), V(st + k), V(st + k + 1), V(dst)))
    for fq in range(4):
        P.label(labs[fq])
        if fq: P("s_nop 4")
        for x in fst[0]: P.add(x)
        st = vU
        for d in range(4):
            if d == fq: continue
            tl = part(d)
            for i, (m, n) in enumerate(tl):
                for h in range(2):
                    P("v_cvt_pk_bf16_f32 %s, %s, %s" % (V(st + 2 * i + h), V(oreg(m, n) + 2 * h), V(oreg(m, n) + 2 * h + 1)))
            P("s_add_u32 %s, %s, %d" % (S(t1), S(t0), (d * 2 * 16 + fq * 4) * 3072))
            if ck: csum(st + 2 * len(tl), st, len(tl))
            xfer("store", st, len(tl), S(t1))
            st += 12
        tl = part(fq)
        if ck == 2:
            for x in C.publish(vT + 5, 6): P.add(x)
        for i, (m, n) in enumerate(tl):
            o = oreg(m, n)
            for h in range(2):
                hr = V(vG + (10 if n == 8 else 2 * i) + h)
                P("v_lshlrev_b32 %s, 16, %s\nv_and_b32 %s, 0xffff0000, %s" % (V(vT + 2), hr, V(vT + 3), hr))
                P("v_pk_add_f32 %s, %s, %s" % (V(o + 2 * h, 2), V(o + 2 * h, 2), V(vT + 2, 2)))
        for x in fst[1]: P.add(x)
        stl = [vU + 40, vU + 52, vG + 12]
        srcs = [d for d in range(4) if d != fq]
        if ck == 2:
            P.add(C.load_flags(vFD, vFA))
            for x in C.check_flags(vFD, vFA, 6, vT + 15): P.add(x)
            for x in fst[2]: P.add(x)
        if ck:
            loop, ok = P.newlabel(C.name + "_s5"), P.newlabel(C.name + "_s5ok")
            P("s_mov_b32 %s, 0" % S(sSPIN))
            P.label(loop)
        else:
            P("s_waitcnt vmcnt(0)")
            for x in fst[2]: P.add(x)
            for x in C.publish(vT + 5, 6): P.add(x)
            P.add(C.load_flags(vFD, vFA))
            P("s_waitcnt vmcnt(0)")
            for x in C.check_flags(vFD, vFA, 6, vT + 15): P.add(x)
            for x in fst[3]: P.add(x)
        for k, d in enumerate(srcs):
            P("s_add_u32 %s, %s, %d" % (S(t1), S(t0), (fq * 2 * 16 + d * 4) * 3072))
            xfer("load", stl[k], len(tl), S(t1))
        if ck:
            P("s_add_u32 %s, %s, 1" % (S(sSPIN), S(sSPIN)))
            for k in range(3):
                csum(vT + 8 + k, stl[k], len(tl))
                P("v_xor_b32 %s, %s, %s" % (V(vT + 8 + k), V(vT + 8 + k), V(stl[k] + 2 * len(tl))))
            P("v_or3_b32 %s, %s, %s, %s" % (V(vT + 8), V(vT + 8), V(vT + 9), V(vT + 10)))
            P("v_cmp_ne_u32 vcc, 0, %s\ns_cmp_gt_u32 %s, %d\ns_cbranch_scc1 %s\ns_cbranch_vccnz %s" % (V(vT + 8), S(sSPIN), SPIN_MAX, ok, loop))
            P.label(ok)
            for x in fst[3]: P.add(x)
        elif CFG["fine"] == 2:
            P("s_waitcnt vmcnt(0)")
            for x in fst[4]: P.add(x)
        for k in range(3):
            st = stl[k]
            for i, (m, n) in enumerate(tl):
                o = oreg(m, n)
                for h in range(2):
                    P("v_lshlrev_b32 %s, 16, %s\nv_and_b32 %s, 0xffff0000, %s" % (V(vT + 2), V(st + 2 * i + h), V(vT + 3), V(st + 2 * i + h)))
                    P("v_pk_add_f32 %s, %s, %s" % (V(o + 2 * h, 2), V(o + 2 * h, 2), V(vT + 2, 2)))
                if k == 2:
                    for h in range(2): P("v_cvt_pk_bf16_f32 %s, %s, %s" % (V(o + h), V(o + 2 * h), V(o + 2 * h + 1)))
                    if n == 8: P("buffer_store_dwordx2 %s, %s, %s, %s offen offset:1024 %s" % (V(o, 2), V(vT), srd(sOUT), S(sA), CFG["ost"]))
                    elif CFG["otr"]:
                        P("ds_write_b64 %s, %s offset:%d" % (V(vWD), V(o, 2), 32 * i))
                        if i == 3:
                            for h in range(2): P("ds_read_b128 %s, %s offset:%d" % (V(vU + 4 * h, 4), V(vWD + 1), 1152 * h))
                    else: P("buffer_store_dwordx2 %s, %s, %s, %s offen offset:%d %s" % (V(o, 2), V(vT), srd(sOUT), S(t2), 32 * i, CFG["ost"]))
        if CFG["otr"]:
            for h in range(2): P("buffer_store_dwordx4 %s, %s, %s, %s offen %s" % (V(vU + 4 * h, 4), V(vWD + 2), srd(sOUT), S(t3 if h else t2), CFG["ost"]))
        if C.timing: P("s_waitcnt vmcnt(0)")
        if fq < 3:
            P("s_branch %s" % done)
            P.reset()
    P.label(done)
    for x in C.stamp("end"): P.add(x)
```

```python
from gen import *

WS_FLAGS = 0x0
WS_KVP = 0x20000
WS_OM = 0x120000
WS_OL = 0x320000
WS_HC = 0x3A0000
WS_SSQ = 0x5E0000
WS_H = 0x620000
WS_PART = 0x2800000
WS_HH = 0x1260000
WS_RN = 0x2500000
WS_RD = 0x2640000
WS_RW = 0x26D0000
WS_NONCE = 0x26F0000
WS_TIM = 0x2460000
WS_DBG = 0x2700000
WS_SIZE = 0x4000000

sX, sWQKV, sWPHI, sWO, sWG, sWU, sWD, sOUT, sWS, sDBG, sWN = 4, 8, 12, 16, 20, 24, 28, 32, 36, 40, 44
sWAVE, sW1K, sXCD, sIDX, sFLAG = 48, 49, 50, 51, 52
sSPIN = 53
sNON = 3
sFQ, sMH, sRB, sFS = 54, 55, 56, 57
sT = 80
def srd(b): return S(b, 4)

SPIN_MAX = 50000
GCFG = dict(fl=1, poll=1, only=[], xr=0, inl=1)
def flagfix(reg, tmp):
    if not GCFG['fl']: return []
    return ['v_and_b32 %s, 12, %s' % (tmp, reg), 'v_and_b32 %s, 0xffffff80, %s' % (reg, reg), 'v_lshlrev_b32 %s, 2, %s' % (reg, reg), 'v_lshl_add_u32 %s, %s, 5, %s' % (reg, tmp, reg)]


class Ctx:
    def __init__(self, name, timing=False):
        self.name = name
        self.P = Prog()
        self.slow = []
        self.timing = timing
        self.nstamp = 0
        self.sbase = 0
        self.hops = []
        self.touch_labels = set()
        self.tables = []
        self.stamp_names = []
    def check_flags(self, vdata, vaddr, phase, v2=None):
        lab = self.P.newlabel(self.name + "_spin")
        if GCFG["inl"] and v2 is not None:
            return (["v_cmp_gt_u32 vcc, %d, %s" % (phase, V(vdata)), "s_mov_b32 %s, 0" % S(sSPIN), "s_cbranch_vccz %s_b" % lab, lab + ":"] +
                    [Raw(x) for x in ("buffer_load_dword %s, %s, %s, 0 offen sc1" % (V(vdata), V(vaddr), srd(sWS)), "s_add_u32 %s, %s, 1" % (S(sSPIN), S(sSPIN)),
                                      "s_waitcnt vmcnt(0)", "v_cmp_gt_u32 vcc, %d, %s" % (phase, V(vdata)), "s_cmp_gt_u32 %s, %d" % (S(sSPIN), SPIN_MAX),
                                      "s_cbranch_scc1 %s_b" % lab, "s_cbranch_vccnz %s" % lab)] + [lab + "_b:"])
        if GCFG["poll"] > 1 and v2 is not None:
            ld = lambda r: "    buffer_load_dword %s, %s, %s, 0 offen sc1\n" % (V(r), V(vaddr), srd(sWS))
            ck = lambda r: "    s_waitcnt vmcnt(1)\n    v_cmp_gt_u32 vcc, %d, %s\n    s_cbranch_vccz %s_d\n" % (phase, V(r), lab)
            self.slow.append("%s:\n    s_mov_b32 %s, 0\n" % (lab, S(sSPIN)) + ld(vdata) + "    s_nop 15\n" * GCFG["poll"] + "%s_l:\n" % lab + ld(v2) + ck(vdata) + ld(vdata) + ck(v2) +
                             "    s_add_u32 %s, %s, 1\n    s_cmp_lt_u32 %s, %d\n    s_cbranch_scc1 %s_l\n%s_d:\n    s_waitcnt vmcnt(0)\n    s_branch %s_b\n" % (S(sSPIN), S(sSPIN), S(sSPIN), SPIN_MAX, lab, lab, lab))
            return ["v_cmp_gt_u32 vcc, %d, %s" % (phase, V(vdata)), "s_cbranch_vccnz %s" % lab, lab + "_b:"]
        self.slow.append("""%s:
    s_mov_b32 %s, 0
%s_l:
    buffer_load_dword %s, %s, %s, 0 offen sc1
    s_add_u32 %s, %s, 1
    s_waitcnt vmcnt(0)
    v_cmp_gt_u32 vcc, %d, %s
    s_cmp_gt_u32 %s, %d
    s_cbranch_scc1 %s_b
    s_cbranch_vccnz %s_l
    s_branch %s_b
""" % (lab, S(sSPIN), lab, V(vdata), V(vaddr), srd(sWS), S(sSPIN), S(sSPIN), phase, V(vdata), S(sSPIN), SPIN_MAX, lab, lab, lab))
        return ["v_cmp_gt_u32 vcc, %d, %s" % (phase, V(vdata)), "s_cbranch_vccnz %s" % lab, lab + "_b:"]
    def load_flags(self, vdata, vaddr):
        return "buffer_load_dword %s, %s, %s, 0 offen sc1" % (V(vdata), V(vaddr), srd(sWS))
    def publish(self, vtmp, phase):
        return ["v_mov_b32 %s, %d" % (V(vtmp), phase), "s_mov_b64 exec, 1",
                "buffer_store_dword %s, off, %s, %s sc1" % (V(vtmp), srd(sWS), S(sFLAG)), "s_mov_b64 exec, -1"]
    def stamp(self, name):
        if not self.timing: return []
        if GCFG["only"] and name not in GCFG["only"]: return []
        if not GCFG["only"] and name.startswith("x_"): return []
        k = self.nstamp; self.nstamp += 1
        self.stamp_names.append(name)
        return [("s_memtime" if self.timing == 2 else "s_memrealtime") + " s[100:101]", "s_waitcnt lgkmcnt(0)", "s_mov_b32 s%d, s100" % (60 + k - self.sbase)]
    def flush_stamps(self, v0, v1):
        if not self.timing: return
        P = self.P
        assert self.nstamp - self.sbase <= 16
        P("v_mov_b32 %s, 0" % V(v0))
        for k in range(self.sbase, self.nstamp):
            P("v_writelane_b32 %s, s%d, %d" % (V(v0), 60 + k - self.sbase, k - self.sbase))
        P("v_mbcnt_lo_u32_b32 %s, -1, 0\nv_mbcnt_hi_u32_b32 %s, -1, %s\nv_lshlrev_b32 %s, 2, %s" % (V(v1), V(v1), V(v1), V(v1), V(v1)))
        P("s_lshl_b32 s100, s2, 2\ns_add_u32 s100, s100, %s\ns_lshl_b32 s100, s100, 8\ns_add_u32 s100, s100, %d" % (S(sWAVE), WS_TIM + 4 * self.sbase))
        P("s_mov_b64 exec, 0xffff\nbuffer_store_dword %s, %s, %s, s100 offen\ns_mov_b64 exec, -1" % (V(v0), V(v1), srd(sWS)))
        self.sbase = self.nstamp
    def finish(self):
        P = self.P
        self.flush_stamps(0, 1)
        P.label(self.name + "_end")
        P("s_endpgm")
        text = P.finalize()
        if self.hops: text = self._place_stubs()
        tab = ""
        if self.tables:
            tab = ".p2align 7\n.type %s_tab,@object\n%s_tab:\n" % (self.name, self.name)
            for row in self.tables: tab += "".join("    .long 0x%x, 0x%x, 0x%x, 0x%x\n" % tuple(row[4 * i:4 * i + 4]) for i in range(64))
            tab += ".size %s_tab, %d\n" % (self.name, 1024 * len(self.tables))
        return kernel_header(self.name) + text + "".join(self.slow) + tab
    def table_load(self, dst, fns, vl16, sp):
        k = len(self.tables)
        self.tables.append([fns[j](l) & 0xffffffff if j < len(fns) else 0 for l in range(64) for j in range(4)])
        assert k < 8
        n = len(fns)
        return "global_load_dword%s %s, %s, %s offset:%d" % ("x%d" % n if n > 1 else "", V(dst, n), V(vl16), S(sp, 2), 1024 * k - 4096)
    def table_base(self, sp):
        lab = self.P.newlabel(self.name + "_tb")
        return ["s_getpc_b64 %s" % S(sp, 2), lab + ":", "s_add_u32 %s, %s, %s_tab-%s+4096" % (S(sp), S(sp), self.name, lab), "s_addc_u32 %s, %s, 0" % (S(sp + 1), S(sp + 1))]
    def align_body(self):
        self.P("s_branch %s_body" % self.name)
        self.P(".p2align 12")
        self.P.label(self.name + "_body")
    def hop(self, upto):
        k = len(self.hops); self.hops.append(upto)
        self.P("s_mov_b64 exec, 0\ns_branch %s_hop%d_0\n%s_hopback%d:\ns_mov_b64 exec, -1" % (self.name, k, self.name, k))
    def _place_stubs(self):
        import subprocess
        L = self.P.final
        lines = [i.text if i.kind in ("label", "dir") else "    " + i.text for i in L]
        fix = "".join("%s_hop%d_0:\n" % (self.name, k) for k in range(len(self.hops)))
        open("_st.s", "w").write('.amdgcn_target "amdgcn-amd-amdhsa--gfx950"\n.text\n' + "\n".join(lines) + "\n" + fix + "".join(self.slow) + "%s_tab:\n" % self.name)
        r = subprocess.run(["clang", "-x", "assembler", "-target", "amdgcn-amd-amdhsa", "-mcpu=gfx950", "-c", "_st.s", "-o", "_st.o"], capture_output=True, text=True)
        if r.returncode: print(r.stderr[:3000]); raise SystemExit(1)
        d = subprocess.run(["llvm-objdump", "-d", "--mcpu=gfx950", "_st.o"], capture_output=True, text=True).stdout
        d = d[d.index("<%s_body>:" % self.name):]
        sizes = [4 * len(l.split("//")[1].split(":")[1].split("<")[0].split()) for l in d.splitlines() if "//" in l]
        b0 = [k for k, i in enumerate(L) if i.text == self.name + "_body:"][0]
        out = lines[:b0 + 1]
        addr, page, si = 0, 1, 0
        chain, cnt, chains = None, {}, {}
        for k in range(b0 + 1, len(L)):
            i = L[k]
            if i.kind == "label" and i.text[:-1] in self.touch_labels and chain is not None:
                out.append(lines[k])
                n = cnt.get(chain, 0); cnt[chain] = n + 1
                out.append("%s_hop%d_%d:" % (self.name, chain, n)); out.append("    s_cbranch_execz %s_hop%d_%d" % (self.name, chain, n + 1)); addr += 4
                continue
            if i.kind == "label":
                for h, upto in enumerate(self.hops):
                    if i.text == "%s_hopback%d:" % (self.name, h): chain = h
                    if upto is not None and i.text == upto + ":" and chain == h: chain = None
                out.append(lines[k]); continue
            if i.kind == "dir":
                out.append(lines[k]); continue
            if addr >= page * 4096:
                page += 1
                if chain is not None:
                    n = cnt.get(chain, 0); cnt[chain] = n + 1
                    out.append("%s_hop%d_%d:" % (self.name, chain, n)); out.append("    s_cbranch_execz %s_hop%d_%d" % (self.name, chain, n + 1)); addr += 4
            out.append(lines[k]); addr += sizes[si]; si += 1
        text = "\n".join(out) + "\n"
        for h in range(len(self.hops)):
            n = cnt.get(h, 0)
            text = text.replace("%s_hop%d_%d\n" % (self.name, h, n), "%s_hopback%d\n" % (self.name, h))
        return text

def prologue(C):
    P = C.P
    P("s_cmp_ge_u32 s2, 256\ns_cbranch_scc1 %s_end" % C.name)
    if GCFG["xr"]: P("s_xor_b32 s2, s2, %d" % GCFG["xr"])
    for x in C.stamp("x_first"): P.add(x)
    P("s_load_dwordx2 s[4:5], s[0:1], 0\ns_load_dwordx2 s[8:9], s[0:1], 8\ns_load_dwordx2 s[12:13], s[0:1], 16\ns_load_dwordx2 s[16:17], s[0:1], 24")
    P("s_load_dwordx2 s[20:21], s[0:1], 40\ns_load_dwordx2 s[24:25], s[0:1], 48\ns_load_dwordx2 s[28:29], s[0:1], 56")
    P("s_load_dwordx2 s[32:33], s[0:1], 64\ns_load_dwordx2 s[40:41], s[0:1], 72\ns_load_dwordx2 s[36:37], s[0:1], 80")
    for b, n in ((sX, 2359296), (sWQKV, 1990656), (sWPHI, 20736), (sWO, 663552), (sWG, 5308416), (sWU, 5308416), (sWD, 5308416),
                 (sOUT, 2359296), (sWS, WS_SIZE), (sDBG, 256), (sWN, 5308416)):
        P("s_mov_b32 s%d, %d\ns_mov_b32 s%d, 0x20000" % (b + 2, n, b + 3))
    P("v_lshrrev_b32 v1, 6, v0\nv_and_b32 v0, 63, v0\nv_readfirstlane_b32 %s, v1" % S(sWAVE))
    P("s_and_b32 %s, s2, 7\ns_lshr_b32 %s, s2, 3" % (S(sXCD), S(sIDX)))
    P("s_lshl_b32 %s, %s, 10" % (S(sW1K), S(sWAVE)))
    P("s_lshl_b32 %s, s2, %d\ns_lshl_b32 s80, %s, %d\ns_add_u32 %s, %s, s80" % (S(sFLAG), 9 if GCFG['fl'] else 7, S(sWAVE), 7 if GCFG['fl'] else 2, S(sFLAG), S(sFLAG)))
    P("s_lshr_b32 %s, %s, 1\ns_and_b32 %s, %s, 1\ns_lshr_b32 %s, %s, 3\ns_and_b32 %s, %s, 7" %
      (S(sFQ), S(sXCD), S(sMH), S(sXCD), S(sRB), S(sIDX), S(sFS), S(sIDX)))

def allred(reg, tmp, op):
    return ["v_mov_b32 %s, %s" % (V(tmp), V(reg)), "v_permlane16_swap_b32 %s, %s" % (V(reg), V(tmp)), "%s %s, %s, %s" % (op, V(reg), V(reg), V(tmp)),
            "v_mov_b32 %s, %s" % (V(tmp), V(reg)), "v_permlane32_swap_b32 %s, %s" % (V(reg), V(tmp)), "%s %s, %s, %s" % (op, V(reg), V(reg), V(tmp))]

def mfma(d, a, b, c=None):
    return "v_mfma_f32_16x16x32_bf16 %s, %s, %s, %s" % (R(d, 4), R(a, 4), R(b, 4), "0" if c is None else R(c, 4))

class LdsAddr:
    def __init__(self, regs, base=0):
        self.regs, self.base = regs, base
    def rebase(self, lo, hi):
        if lo >= self.base and hi - self.base <= 65536: return []
        d = lo - self.base
        self.base = lo
        if d > 0: return ["v_add_u32 %s, %d, %s" % (V(r), d, V(r)) for r in self.regs]
        return ["v_subrev_u32 %s, %d, %s" % (V(r), -d, V(r)) for r in self.regs]
    def off(self, addr):
        o = addr - self.base
        assert 0 <= o < 65536, (addr, self.base)
        return o
```

```python
from common import *

vA16 = 0
vG, vU, vP = 32, 96, 160
vWF = 192
vOX = 208
vTRU = 216
vTRN = 220
vDM, vDL = 221, 222
vWD = 223
vL16, vL8 = 232, 233
vWE = 216
vR2 = 234
vFA, vFD = 238, 239
vT = 240
AG = 256

sA, sCOL, sNB, sNL, sWDB, sWD0, sHST, sHSN, sHLD, sMT2 = 76, 77, 78, 79, 80, 81, 82, 83, 84, 85
t0, t1, t2, t3 = 96, 97, 98, 99
sL2, sD2, sE1, sE2 = 92, 93, 94, 95
sKW = 89

CFG = dict(ustep=16, dstep=7, astep=10, hstep=8, hstep2=12, e4=100, ct3=[800], puba=24, s4l=40, s4c=0, wpol='', dpol='', otr=1, ptouch=0, ptm='', fbl=36, fbc=72, fbp=36, w2step=10, e2=200, chain=1, fill=620, fstep=10, s5=2, late=0, lateat=310, abl='', hst='sc1', ost='', wdown=0, rsp1=1, rsp2=1, hlead=30, fine=0, pfB=[(2, 300), (30, 480), (31, 580)], w0=7, w1=8)
LDS_N = 120 * 1024
PAIRS = [(16, 17), (14, 15)] + [(2 * i, 2 * i + 1) for i in range(7)]
def areg(phi, m):
    return vA16 + (phi - 16) * 16 + 4 * m if phi >= 16 else AG + phi * 16 + 4 * m
GSLOT = [4, 3, 0, 2, 1, 0, 2, 1, 0, 2, 1, 0]
def slab_addr(sig):
    return GSLOT[sig // 6] * 24576 + (sig % 6) * 4096
def slab_phi(sig):
    r = sig % 18
    return PAIRS[r // 2][r % 2]
WD_SLAB = [[b * 1024 + 9216 * i for i in range(4)] for b in (120, 84, 48, 12)]
def wd_slab(stage, i): return WD_SLAB[stage % 4][i]
def kappa(p):
    st, i = p // 4, p % 4
    if st == 0: return 32 + i
    kw = (i & 1) + 4 * (i >> 1)
    return 8 * (st - 1) + kw if st <= 4 else 8 * (st - 5) + 2 + kw
def oreg(m, n):
    k = m * 9 + n
    if k < 8: return vA16 + 4 * k
    if k < 16: return vP + 4 * (k - 8)
    return vOX + 4 * (k - 16)

def ffn_setup(C, vlane, vT=vT):
    P = C.P
    L = V(vlane)
    a, b, c, d = V(vT), V(vT + 1), V(vT + 2), V(vT + 3)
    P("s_lshl_b32 %s, %s, 6\ns_lshl_b32 %s, %s, 4\ns_add_u32 %s, %s, %s" % (S(t0), S(sMH), S(t1), S(sRB), S(t0), S(t0), S(t1)))
    P("s_lshl_b32 %s, %s, 2\ns_add_u32 %s, %s, %s" % (S(t1), S(sWAVE), S(t1), S(t1), S(t0)))
    P("s_mul_i32 %s, %s, 18432\ns_add_u32 %s, %s, %d" % (S(sA), S(t1), S(sA), S(sA), WS_HC))
    P("s_mul_i32 %s, %s, 147456\ns_mul_i32 %s, %s, 36864\ns_add_u32 %s, %s, %s\ns_add_u32 %s, %s, %d" %
      (S(t1), S(t1), S(t2), S(sFQ), S(t1), S(t1), S(t2), S(t1), S(t1), WS_HH))
    P("s_lshl_b32 %s, %s, 12\ns_add_u32 %s, %s, %s" % (S(t3), S(sFS), S(sHST), S(t1), S(t3)))
    P("s_lshl_b32 %s, %s, 9\ns_add_u32 %s, %s, %s\ns_add_u32 %s, %s, 32768" % (S(t3), S(sFS), S(sHSN), S(t1), S(t3), S(sHSN), S(sHSN)))
    P("s_lshr_b32 %s, %s, 2\ns_lshl_b32 %s, %s, 3\ns_add_u32 %s, %s, %s\ns_lshl_b32 %s, %s, 1\ns_add_u32 %s, %s, %s" %
      (S(t1), S(sFS), S(t1), S(t1), S(t0), S(t0), S(t1), S(t1), S(sWAVE), S(sMT2), S(t0), S(t1)))
    P("s_mul_i32 %s, %s, 147456\ns_add_u32 %s, %s, %s\ns_add_u32 %s, %s, %d" % (S(sHLD), S(sMT2), S(sHLD), S(sHLD), S(t2), S(sHLD), S(sHLD), WS_HH))
    P("s_mul_i32 %s, %s, 2304\ns_lshl_b32 %s, %s, 8\ns_add_u32 %s, %s, %s" % (S(t0), S(sFQ), S(t1), S(sFS), S(sCOL), S(t0), S(t1)))
    P("s_lshl_b32 %s, %s, 3\ns_add_u32 %s, %s, %s\ns_mul_i32 %s, %s, 36864\ns_add_u32 %s, %s, %s\ns_add_u32 %s, %s, %d" %
      (S(t1), S(sFQ), S(t1), S(t1), S(sFS), S(t1), S(t1), S(t1), S(t1), S(sW1K), S(sNB), S(t1), WS_RN))
    P("s_lshr_b32 %s, %s, 1" % (S(t1), S(sWAVE)))
    P("s_mul_i32 %s, %s, %d\ns_and_b32 %s, %s, 3\ns_mul_i32 %s, %s, 147456\ns_lshl_b32 %s, %s, 8\ns_add_u32 %s, %s, %s" %
      (S(t0), S(sFQ), 1152 * 1152, S(t2), S(sFS), S(sNL), S(t2), S(t2), S(t2), S(t0), S(t0), S(t2)))
    P("s_mul_i32 %s, %s, 36864\ns_add_u32 %s, %s, %s\ns_add_u32 %s, %s, %d" % (S(t2), S(sFQ), S(sNL), S(sNL), S(t2), S(sNL), S(sNL), WS_RD))
    P("s_and_b32 %s, %s, 1\ns_lshl_b32 %s, %s, 2\ns_add_u32 %s, %s, %s\ns_mul_i32 %s, %s, 36864\ns_add_u32 %s, %s, %s" %
      (S(t2), S(sWAVE), S(t1), S(t1), S(sKW), S(t2), S(t1), S(t2), S(sKW), S(sWDB), S(t0), S(t2)))
    P("s_lshl_b32 %s, %s, 10\ns_add_u32 %s, %s, %s" % (S(sKW), S(sKW), S(sKW), S(sKW), S(sNL)))
    P("s_add_u32 %s, %s, 32\ns_mul_i32 %s, %s, 36864\ns_add_u32 %s, %s, %s" % (S(t2), S(sWAVE), S(t2), S(t2), S(sWD0), S(t0), S(t2)))
    P("s_movk_i32 %s, 9216" % S(t3))
    def grow(rho, out, tmp):
        P("v_bfe_u32 %s, %s, 2, 2\nv_lshlrev_b32 %s, 3, %s" % (out, rho, out, out))
        P("v_lshrrev_b32 %s, 4, %s\nv_lshl_add_u32 %s, %s, 2, %s" % (tmp, rho, out, tmp, out))
        P("v_and_b32 %s, 3, %s\nv_add_u32 %s, %s, %s" % (tmp, rho, out, out, tmp))
    P("s_lshl_b32 %s, %s, 3\nv_lshrrev_b32 %s, 3, %s\nv_add_u32 %s, %s, %s" % (S(t2), S(sWAVE), a, L, a, S(t2), a))
    P("v_and_b32 %s, 6, %s\nv_and_b32 %s, 7, %s\nv_xor_b32 %s, %s, %s\nv_lshlrev_b32 %s, 4, %s" % (b, a, c, L, b, b, c, b, b))
    P("v_mad_u32_u24 %s, %s, %s, %s" % (V(vDM), a, S(t3), b))
    grow(a, c, d)
    P("v_mad_u32_u24 %s, %s, %s, %s" % (V(vDL), c, S(t3), b))

def dma_unit(P, sig, tok=None):
    st, phi = sig // 18, slab_phi(sig)
    src = sWG if st % 2 == 0 else sWU
    col = 128 if st >= 2 else 0
    row, vo = 32 * phi, (vDM if phi < 16 else vDL)
    return ["s_add_u32 m0, %s, %d" % (S(sW1K), slab_addr(sig)), "s_add_u32 %s, %s, %d" % (S(t0), S(sCOL), row * 9216 + col),
            P.mk("buffer_load_dwordx4 %s, %s, %s offen %s lds" % (V(vo), srd(src), S(t0), CFG["wpol"]), tok)]

def narrow_items(P, vl16):
    out = []
    for it in [8, 7] + list(range(7)):
        out.append(["s_add_u32 m0, %s, %d" % (S(sW1K), LDS_N + it * 4096), "s_add_u32 %s, %s, %d" % (S(t0), S(sNB), it * 4096),
                    "buffer_load_dwordx4 %s, %s, %s offen sc1 lds" % (V(vl16), srd(sWS), S(t0))])
    return out
def unit_items(P, lo, hi):
    return [dma_unit(P, sig) for sig in range(lo, hi)]

def hbm_prefetch(P, which, vl, ta, tb, tc, dst, mklane=False, s0=None, s1=None):
    L, a, b, c = V(vl), V(ta), V(tb), V(tc)
    if s0 is None: s0, s1 = S(t0), S(t1)
    om = "s_lshl_b32 %s, %s, 6\ns_lshl_b32 %s, %s, 1\ns_add_u32 %s, %s, %s\ns_add_u32 %s, %s, %s" % (s0, S(sWAVE), s1, S(sIDX), s0, s0, s1, s0, s0, S(sMH))
    it = [om]
    if mklane: it.append("v_lshrrev_b32 %s, 4, %s" % (L, V(vL16)))
    def ld(sr):
        x = P.mk("buffer_load_dword %s, %s, %s, %s offen" % (V(dst), a, srd(sr), s1)); x.dst = []
        return x
    if which in (1, 2):
        per, rows = (8, 8)
        nw = 576 // rows
        it.append("v_lshrrev_b32 %s, 3, %s\nv_and_b32 %s, 7, %s\nv_lshl_add_u32 %s, %s, 1, %d" % (a, L, b, L, b, b, which - 1))
        it.append("v_mul_u32_u24 %s, 9216, %s\nv_lshl_add_u32 %s, %s, 7, %s" % (a, a, a, b, a))
        it.append("s_cmp_ge_u32 %s, %d\ns_cselect_b32 %s, %s, %s\ns_cselect_b32 %s, %s, %s\ns_cselect_b32 %s, %d, 0\ns_sub_u32 %s, %s, %s" %
                  (s0, nw, S(sWN), S(sWU), S(sWG), S(sWN + 1), S(sWU + 1), S(sWG + 1), s1, nw, s0, s0, s1))
        it.append("s_mul_i32 %s, %s, %d\ns_mul_i32 %s, %s, 2304\ns_add_u32 %s, %s, %s" % (s0, s0, rows * 9216, s1, S(sFQ), s1, s1, s0))
        it.append(ld(sWN))
    else:
        if which == 4: it.append("s_xor_b32 %s, %s, 1" % (s0, s0))
        if which >= 30:
            k, n = which % 10, (which // 10) - 1
            per = -(-41 // n)
            it.append("v_min_u32 %s, %d, %s\nv_add_u32 %s, %d, %s\nv_min_u32 %s, 40, %s\nv_lshlrev_b32 %s, 7, %s" % (a, per - 1, L, a, k * per, a, a, a, a, a))
        else:
            it.append("v_min_u32 %s, 40, %s\nv_lshlrev_b32 %s, 7, %s" % (a, L, a, a))
        it.append("s_mul_i32 %s, %s, %d\ns_mul_i32 %s, %s, %d\ns_add_u32 %s, %s, %s" % (s0, s0, 41 * 128, s1, S(sFQ), 1152 * 1152, s1, s1, s0))
        it.append(ld(sWD))
    return it

def part_prefill(P, vq, vl16, vl8, t0, t1):
    it = ["s_lshl_b32 %s, s2, 4" % S(t0), "s_add_u32 %s, %s, %s" % (S(t0), S(t0), S(sWAVE)), "s_mul_i32 %s, %s, 2560" % (S(t0), S(t0)),
          "s_add_u32 %s, %s, %d" % (S(t0), S(t0), WS_PART)]
    for i in range(1, 4):
        it += ["s_add_u32 %s, %s, %d" % (S(t1), S(sFQ), i), "s_and_b32 %s, %s, 3" % (S(t1), S(t1)), "s_mul_i32 %s, %s, %d" % (S(t1), S(t1), 4 * 2560),
               "s_add_u32 %s, %s, %s" % (S(t1), S(t1), S(t0)),
               "buffer_store_dwordx4 %s, %s, %s, %s offen sc1" % (V(vq, 4), V(vl16), srd(sWS), S(t1)),
               "buffer_store_dwordx4 %s, %s, %s, %s offen offset:1024 sc1" % (V(vq, 4), V(vl16), srd(sWS), S(t1)),
               "buffer_store_dwordx2 %s, %s, %s, %s offen offset:2048 sc1" % (V(vq, 2), V(vl8), srd(sWS), S(t1))]
    return it

def ffn_addr2(C, vlane):
    P = C.P
    L = V(vlane)
    a, b, c, d = V(vT), V(vT + 1), V(vT + 2), V(vT + 3)
    P("v_lshlrev_b32 %s, 4, %s\nv_lshlrev_b32 %s, 3, %s" % (V(vL16), L, V(vL8), L))
    P("v_lshrrev_b32 %s, 2, %s\nv_and_b32 %s, 3, %s" % (a, L, b, L))
    P("v_add_u32 %s, %d, %s" % (V(vTRN), LDS_N, V(vL16)))
    P("v_bfe_u32 %s, %s, 1, 2" % (c, a))
    P("v_lshlrev_b32 %s, 7, %s\nv_lshl_add_u32 %s, %s, 3, %s" % (d, a, d, b, d))
    for T in range(4):
        P("v_xor_b32 %s, %d, %s\nv_lshl_add_u32 %s, %s, 5, %s" % (V(vTRU + T), T, c, V(vTRU + T), V(vTRU + T), d))
    P("v_bfe_u32 %s, %s, 2, 2\nv_mul_u32_u24 %s, 1152, %s\nv_lshrrev_b32 %s, 4, %s\nv_lshl_add_u32 %s, %s, 6, %s" % (a, L, a, a, c, L, a, c, a))
    P("v_lshl_add_u32 %s, %s, 4, %s\nv_xor_b32 %s, 32, %s" % (c, b, a, d, c))
    for q in range(8):
        P("v_add_u32 %s, %d, %s" % (V(vWD + q), q * 4608 - 1024 * (q % 4), d if q & 1 else c))

def ffn_main(C, vlane_src=None, s3_addr_ready=True):
    P = C.P
    a, b, c, d = V(vT), V(vT + 1), V(vT + 2), V(vT + 3)
    P.add(C.load_flags(vFD, vFA))
    P("s_waitcnt vmcnt(0)")
    for x in C.check_flags(vFD, vFA, 3, vT + 15): P.add(x)
    for x in C.stamp("s3done"): P.add(x)
    def aload(phi, m):
        return ["s_add_u32 %s, %s, %d" % (S(t1), S(sA), m * 18432 + phi * 1024),
                "buffer_load_dwordx4 %s, %s, %s, %s offen sc1" % (R(areg(phi, m), 4), V(vL16), srd(sWS), S(t1)),
                "buffer_load_dwordx4 %s, %s, %s, %s offen offset:1024 sc1" % (R(areg(phi + 1, m), 4), V(vL16), srd(sWS), S(t1))]
    for pr in PAIRS[:2]:
        for m in range(4):
            for x in aload(pr[0], m): P.add(x)
    it = ["v_lshrrev_b32 %s, 4, %s" % (V(vFA), V(vL16)), "v_and_b32 %s, 7, %s" % (V(vFA), V(vFA)), "v_lshlrev_b32 %s, 10, %s" % (V(vFA), V(vFA)),
          "s_lshl_b32 %s, %s, 13" % (S(t1), S(sRB)), "s_lshl_b32 %s, %s, 7" % (S(sL2), S(sXCD)), "s_add_u32 %s, %s, %s" % (S(t1), S(t1), S(sL2)),
          "s_lshr_b32 %s, %s, 2" % (S(sL2), S(sFS)), "s_lshl_b32 %s, %s, 3" % (S(sL2), S(sL2)), "s_add_u32 %s, %s, %s" % (S(t1), S(t1), S(sL2)),
          "s_lshr_b32 %s, %s, 1" % (S(sL2), S(sWAVE)), "s_lshl_b32 %s, %s, 2" % (S(sL2), S(sL2)), "s_add_u32 %s, %s, %s" % (S(t1), S(t1), S(sL2)),
          "v_add_u32 %s, %s, %s" % (V(vFA), S(t1), V(vFA))] + flagfix(V(vFA), V(vFD))
    for x in it: P.add(x)
    P("s_barrier")
    main, blocks = [], []
    for st in range(4):
        tiles = [0, 1, 2, 3] + (["ng", "nu"] if st == 0 else [])
        for pi, pr in enumerate(PAIRS):
            for T in tiles:
                bi = len(blocks)
                wf = vWF + 8 * (bi % 3)
                blocks.append(dict(start=len(main), g=1, st=st, pi=pi, T=T, wf=wf))
                for m in range(4):
                    if T == "ng": acc = vP + 4 * m
                    elif T == "nu": acc = vP + 16 + 4 * m
                    else: acc = (vG if st % 2 == 0 else vU) + 16 * T + 4 * m
                    order = (0, 1) if (m % 2 == 0 or not CFG['chain']) else (1, 0)
                    for q, i in enumerate(order):
                        x = mfma(acc, wf + 4 * i, areg(pr[i], m), None if (pi == 0 and q == 0) else acc)
                        if m == 0 and q == 0:
                            w = list(range(wf, wf + 8))
                            if st == 0 and T == 0 and pi > 0:
                                for mm in range(4): w += [areg(pr[0], mm), areg(pr[1], mm)]
                            x = [WaitRegs(w), x]
                        main.append(x)
    nb1 = len(blocks)
    def hreg(p, m): return AG + 8 * (p % 28) + 4 * m
    for st in range(9):
        for pp in range(2):
            for n in range(9):
                bi = len(blocks)
                wf = AG + 224 + 8 * ((bi - nb1) % 4)
                blocks.append(dict(start=len(main), g=2, st=st, pp=pp, n=n, wf=wf))
                for m in range(2):
                    order = (0, 1) if (m % 2 == 0 or not CFG['chain']) else (1, 0)
                    for q, i in enumerate(order):
                        p = 4 * st + 2 * pp + i
                        x = mfma(oreg(m, n), wf + 4 * i, hreg(p, m), None if (st == 0 and pp == 0 and q == 0) else oreg(m, n))
                        if m == 0 and q == 0:
                            w = list(range(wf, wf + 8))
                            if n == 0:
                                for mm in range(2):
                                    for ii in range(2): w += list(range(hreg(p + ii, mm), hreg(p + ii, mm) + 4))
                            x = [WaitRegs(w), x]
                        main.append(x)
    NM = len(main)
    start = [bl["start"] for bl in blocks] + [NM]
    stage1 = [min(bl["start"] for bl in blocks if bl["g"] == 1 and bl["st"] == s_) for s_ in range(4)] + [start[nb1]]
    stage2 = [min(bl["start"] for bl in blocks if bl["g"] == 2 and bl["st"] == s_) for s_ in range(9)] + [NM]
    def pair_end(st, pi):
        return max(start[i + 1] for i, bl in enumerate(blocks) if bl["g"] == 1 and bl["st"] == st and bl["pi"] == pi) - 1

    rd, dm = [], []
    au = LdsAddr([vTRU + T for T in range(4)], 0)
    aw = LdsAddr([vTRN, vWE, vWE + 1], 0)
    toks = {}
    def wd_dma(stage, nb, step):
        tok = P.newtok(); toks[("d", stage)] = tok
        it = []
        if stage == 0:
            so = S(sWD0)
            it.append("s_add_u32 %s, %s, %s" % (S(t3), S(sNL), S(sW1K))); it.append("s_add_u32 %s, %s, 32768" % (S(t3), S(t3)))
        else:
            k = 8 * (stage - 1) if stage <= 4 else 8 * (stage - 5) + 2
            it.append("s_add_u32 %s, %s, %d" % (S(t2), S(sWDB), k * 36864)); so = S(t2)
            it.append("s_add_u32 %s, %s, %d" % (S(t3), S(sKW), k * 1024))
        base = WD_SLAB[stage % 4][0]
        for q in range(9):
            if q % 4 == 0: it.append("s_add_u32 m0, %s, %d" % (S(sD2), base + 1024 * q))
            if q < 8: it.append("buffer_load_dwordx4 %s, %s, %s offen offset:%d %s lds" % (V(vWD + q), srd(sWD), so, 1024 * (q % 4), CFG["dpol"]))
            else: it.append(P.mk("buffer_load_dwordx4 %s, %s, %s offen sc1 lds" % (V(vL16), srd(sWS), S(t3)), tok))
        dm.extend(paced(it, nb + 1, step)[0])
    P("s_mul_i32 %s, %s, 9216" % (S(sD2), S(sWAVE)))
    if CFG["late"]:
        lo = 30 - CFG["late"]
        its = []
        for s2 in range(lo, 30):
            tok = None
            if s2 % 6 == 5:
                tok = P.newtok(); toks[("u", s2 // 6)] = tok
            its.append(dma_unit(P, s2, tok))
        dm.extend(paced(its, CFG["lateat"], 5, 400)[0])
    prev_nb = -1
    for bi, bl in enumerate(blocks):
        lead = 2 if bl["g"] == 1 else 3
        nb = start[bi - lead] - 1 if bi >= lead else -1
        dl = start[bi - lead + 1] if bi >= lead else 0
        if bl["g"] == 1:
            st, pi, T = bl["st"], bl["pi"], bl["T"]
            sig = st * 18 + 2 * pi
            if T == 0 and sig % 6 == 0 and sig >= 18:
                g = sig // 6
                it = []
                if ("u", g) in toks: it.append(WaitTok(toks[("u", g)]))
                it += ["s_waitcnt lgkmcnt(0)", "s_barrier"]
                rd.append((nb, nb + 1, it))
                if g + 2 < 12:
                    tok = P.newtok(); toks[("u", g + 2)] = tok
                    dm.extend(paced([dma_unit(P, s2, tok if s2 % 6 == 5 else None) for s2 in range(6 * (g + 2), 6 * (g + 3))], nb + 3, CFG["ustep"])[0])
                if g == CFG['w0']: wd_dma(0, nb + 1 + 6 * CFG['ustep'], 5)
                if g == CFG['w1']: wd_dma(1, nb + 1 + 6 * CFG['ustep'], 5)
                if g == 10: wd_dma(2, nb + 1, CFG['w2step'])
                nb += 1
            items = []
            for i in range(2):
                if T in ("ng", "nu"):
                    o = PAIRS[pi][i] * 2048 + (1024 if T == "nu" else 0)
                    items += ["ds_read_b128 %s, %s offset:%d" % (R(bl["wf"] + 4 * i, 4), V(vTRN), o)]
                else:
                    ad = slab_addr(sig + i)
                    gbase = slab_addr(sig - sig % 6)
                    items += au.rebase(gbase, gbase + 24576)
                    items += ["ds_read_b64_tr_b16 %s, %s offset:%d" % (R(bl["wf"] + 4 * i + 2 * h, 2), V(vTRU + T), au.off(ad + 2048 * h)) for h in range(2)]
        else:
            st, pp, n = bl["st"], bl["pp"], bl["n"]
            if bi == nb1:
                nb = start[bi - 2] - 1; dl = start[bi - 1]
            if bi == nb1 + 1:
                nb = start[bi - 3] - 1; dl = start[bi - 1]
            if bi == nb1 + 2:
                dl = start[bi - 1]
            if pp == 0 and n == 0:
                it = [WaitTok(toks[("d", st)]), "s_waitcnt lgkmcnt(0)", "s_barrier"]
                rd.append((nb, nb + 1, it))
                if st == 0:
                    x0, x1 = V(vWE), V(vWE + 1)
                    for x in ["v_and_b32 %s, 0xc0, %s" % (x0, V(vL16)), "v_and_b32 %s, 24, %s" % (x1, V(vL8)), "v_add_u32 %s, %s, %s" % (x0, x0, x1),
                              "v_lshrrev_b32 %s, 8, %s" % (x1, V(vL16)), "v_lshl_add_u32 %s, %s, 10, %s" % (x0, x1, x0), "v_and_b32 %s, 1, %s" % (x1, x1),
                              "v_lshl_add_u32 %s, %s, 5, %s" % (x0, x1, x0), "v_xor_b32 %s, 32, %s" % (x1, x0), "v_mov_b32 %s, %s" % (V(vTRN), V(vL16))]:
                        rd.append((nb + 1, dl, x))
                if st + 3 < 9: wd_dma(st + 3, nb + 1, CFG['dstep'])
                nb += 1
            items = []
            for i in range(2):
                ad = wd_slab(st, 2 * pp + i)
                lo = wd_slab(st, 2 * pp)
                items += aw.rebase(lo, lo + 2 * 9216)
                if n < 8: items += ["ds_read_b64_tr_b16 %s, %s offset:%d" % (R(bl["wf"] + 4 * i + 2 * h, 2), V(vWE + (n & 1)), aw.off(ad + 4096 * h + 256 * (n >> 1))) for h in range(2)]
                else: items += ["ds_read_b128 %s, %s offset:%d" % (R(bl["wf"] + 4 * i, 4), V(vTRN), aw.off(ad + 8192))]
        nb = max(nb, prev_nb); prev_nb = nb
        dl = max(dl, nb + 1)
        k = 0
        for x in items:
            rd.append((min(nb + k * (CFG["rsp1"] if bl["g"] == 1 else CFG["rsp2"]), dl - 1) if nb >= 0 else nb, dl, x))
            if x.startswith("ds_"): k += 1

    ld = []
    apos = 0
    for pi in range(2, 9):
        use = [bl["start"] for bl in blocks if bl["g"] == 1 and bl["st"] == 0 and bl["pi"] == pi][0]
        x, apos = paced([aload(PAIRS[pi][0], m) for m in range(4)], apos, CFG['astep'] / 2, use)
        ld += x
        if pi == 8:
            it = ["v_lshrrev_b32 %s, 2, %s" % (V(vT + 8), V(vL16)), "v_and_b32 %s, 0x3c, %s" % (V(vT + 8), V(vT + 8)),
                  "v_lshrrev_b32 %s, 8, %s" % (V(vT + 9), V(vL16)), "v_lshl_add_u32 %s, %s, 9, %s" % (V(vT + 8), V(vT + 9), V(vT + 8)),
                  "s_sub_u32 %s, %s, %d" % (S(t1), S(sA), WS_HC), "s_mul_hi_u32 %s, %s, %d" % (S(t1), S(t1), 477218589),
                  "s_add_u32 %s, %s, %d" % (S(t1), S(t1), WS_SSQ)]
            for m in range(4):
                if m == 2: it.append("s_add_u32 %s, %s, 4096" % (S(t1), S(t1)))
                for h in range(2):
                    it.append("buffer_load_dword %s, %s, %s, %s offen offset:%d sc1" % (V(vT + 2 * m + h), V(vT + 8), srd(sWS), S(t1), 2048 * (m % 2) + 256 * h))
            x, apos = paced(it, apos, 3)
            ld += x
    for which, at in CFG['pfB']:
        assert at <= 400 or at >= 436
        rg = (vT + 13, vT + 10, vT + 11, vT + 12) if at <= 400 else (vT + 7, vT + 4, vT + 3, vT + 2)
        ld.append((at, 420 if at <= 400 else INF, hbm_prefetch(P, which, rg[0], rg[1], rg[2], rg[3], vFD, True, S(sL2), S(t1))))
    for at in CFG["ct3"]:
        nper = -(-(C.code_bytes - 4096) // (32 * 128))
        lab = P.newlabel(C.name + "_c3")
        x0 = V(vT + 2)
        x = P.mk("global_load_dword %s, %s, s[100:101]" % (V(vFD), x0)); x.dst = []; x.nocount = True
        assert at >= 436
        ld.append((at, INF, ["s_cmp_lg_u32 %s, 3" % S(sWAVE), "s_cbranch_scc1 %s" % lab, "s_getpc_b64 s[100:101]", lab + "_pc:",
                             "s_sub_u32 s100, s100, %s_pc-%s_body" % (lab, C.name), "s_subb_u32 s101, s101, 0", "s_mul_i32 %s, %s, %d" % (S(t1), S(sIDX), nper * 128),
                             "v_lshrrev_b32 %s, 4, %s" % (x0, V(vL16)), "v_min_u32 %s, %d, %s" % (x0, nper - 1, x0), "v_lshl_add_u32 %s, %s, 7, %s" % (x0, x0, S(t1)),
                             "v_min_u32 %s, %d, %s" % (x0, C.code_bytes - 4096 - 128, x0), x, lab + ":"]))
    s4 = stage1[3]
    def hload(p):
        k = kappa(p); it = []
        if p < 4:
            for m in range(2):
                it.append("s_add_u32 %s, %s, %d" % (S(t1), S(sHLD), m * 147456 + k * 1024))
                for h in range(2):
                    it.append("buffer_load_dwordx2 %s, %s, %s, %s offen offset:%d sc1" % (R(hreg(p, m) + 2 * h, 2), V(vL8), srd(sWS), S(t1), 512 * h))
            return [it[:3], it[3:]]
        assert p % 2 == 0 and kappa(p + 1) == k + 1
        out = []
        for m in range(2):
            out.append(["s_add_u32 %s, %s, %d" % (S(t1), S(sHLD), m * 147456 + k * 1024),
                        "buffer_load_dwordx4 %s, %s, %s, %s offen sc1" % (R(hreg(p, m), 4), V(vL16), srd(sWS), S(t1)),
                        "buffer_load_dwordx4 %s, %s, %s, %s offen offset:1024 sc1" % (R(hreg(p + 1, m), 4), V(vL16), srd(sWS), S(t1))])
        return out
    def use2(p): return stage2[p // 4] + 36 * ((p % 4) // 2)
    ld.append((s4 + CFG['s4l'], INF, C.load_flags(vFD, vFA)))
    ld.append((pair_end(3, 2) + CFG['s4c'], INF, C.check_flags(vFD, vFA, 4) + ([] if CFG["fine"] else C.stamp("s4a"))))
    hn = pair_end(3, 2) + CFG['s4c'] + 1
    for p in list(range(4)) + list(range(4, 20, 2)):
        dead = pair_end(3, 2 + (p + 1) // 4)
        x, hn = paced(hload(p), max(hn, dead), CFG['hstep'] / 2, use2(p) - CFG['hlead'])
        ld += x
    FB_LOAD, FB_CHECK = stage2[3] + CFG['fbl'], stage2[3] + CFG['fbc']
    ld.append((FB_LOAD, INF, C.load_flags(vFD, vFA)))
    ld.append((FB_CHECK, INF, C.check_flags(vFD, vFA, 5) + ([] if CFG["fine"] else C.stamp("s4b"))))
    for p in range(20, 36, 2):
        x, hn = paced(hload(p), max(hn, FB_CHECK + 1), CFG['hstep2'] / 2, use2(p) - CFG['hlead'])
        ld += x

    ep = []
    nb = pair_end(0, 7)
    for m in range(4):
        r = vR2 + m
        it = ["v_add_f32 %s, %s, %s" % (V(r), V(vT + 2 * m), V(vT + 2 * m + 1))] + allred(r, vT + 9, "v_add_f32")
        it += ["v_mov_b32 %s, 0x3727c5ac" % V(vT + 9), "v_fmac_f32 %s, 0x3ae38e39, %s" % (V(vT + 9), V(r)), "v_rcp_f32 %s, %s" % (V(r), V(vT + 9))]
        for x in it: ep.append((nb, stage1[1], x))
    stq = [vT + 8, vT + 12]
    nb = stage1[1] + 3
    for m in range(4):
        g, u, q = vP + 4 * m, vP + 16 + 4 * m, stq[m % 2]
        for j in range(4):
            ep.append((nb, INF, "v_max_f32 %s, 0, %s" % (V(g + j), V(g + j))))
            ep.append((nb, INF, "v_mul_f32 %s, %s, %s" % (V(u + j), V(vR2 + m), V(u + j))))
            ep.append((nb, INF, "v_mul_f32 %s, %s, %s" % (V(g + j), V(g + j), V(u + j))))
        for h in range(2): ep.append((nb, INF, "v_cvt_pk_bf16_f32 %s, %s, %s" % (V(q + h), V(g + 2 * h), V(g + 2 * h + 1))))
        ep.append((nb, INF, "s_add_u32 %s, %s, %d" % (S(sE1), S(sHSN), m * 147456)))
        ep.append((nb, INF, "buffer_store_dwordx2 %s, %s, %s, %s offen %s" % (V(q, 2), V(vL8), srd(sWS), S(sE1), CFG["hst"])))
    for T in range(4):
        for m in range(4):
            g, pk = vG + 16 * T + 4 * m, vP + 2 * (4 * T + m)
            for j in range(4): ep.append((nb, stage1[2], "v_mul_f32 %s, %s, %s" % (V(g + j), V(vR2 + m), V(g + j))))
            for h in range(2): ep.append((nb, stage1[2], "v_cvt_pk_bf16_f32 %s, %s, %s" % (V(pk + h), V(g + 2 * h), V(g + 2 * h + 1))))
            for h in range(2): ep.append((nb, stage1[2], "v_pk_max_i16 %s, %s, 0" % (V(pk + h), V(pk + h))))
    nb = stage1[2] + 3
    tokA = P.newtok()
    k = 0
    for m in range(4):
        for i in range(2):
            q = stq[k % 2]; k += 1
            for tt in range(2):
                T = 2 * i + tt
                u, pk = vU + 16 * T + 4 * m, vP + 2 * (4 * T + m)
                for h in range(2):
                    ep.append((nb, stage1[3], "v_lshlrev_b32 %s, 16, %s" % (V(vT + 5), V(pk + h))))
                    ep.append((nb, stage1[3], "v_and_b32 %s, 0xffff0000, %s" % (V(vT + 6), V(pk + h))))
                    ep.append((nb, stage1[3], "v_mul_f32 %s, %s, %s" % (V(vT + 5), V(vT + 5), V(u + 2 * h))))
                    ep.append((nb, stage1[3], "v_mul_f32 %s, %s, %s" % (V(vT + 6), V(vT + 6), V(u + 2 * h + 1))))
                    ep.append((nb, stage1[3], "v_cvt_pk_bf16_f32 %s, %s, %s" % (V(q + 2 * tt + h), V(vT + 5), V(vT + 6))))
            it = []
            if i == 0: it.append("s_add_u32 %s, %s, %d" % (S(sE2), S(sHST), m * 147456))
            it.append(P.mk("buffer_store_dwordx4 %s, %s, %s, %s offen offset:%d %s" % (V(q, 4), V(vL16), srd(sWS), S(sE2), 1024 * i, CFG["hst"]), tokA if (m, i) == (3, 1) else None))
            for x in it: ep.append((nb, stage1[3], x))
    ep.append((stage1[3] - CFG['puba'], stage1[3] + 8, [WaitTok(tokA)] + C.publish(vT + 5, 4)))
    nb = stage1[3] + 9
    for T in range(4):
        for m in range(4):
            g = vG + 16 * T + 4 * m
            for j in range(4):
                ep.append((nb, stage1[4], "v_mul_f32 %s, %s, %s" % (V(g + j), V(vR2 + m), V(g + j))))
                ep.append((nb, stage1[4], "v_max_f32 %s, 0, %s" % (V(g + j), V(g + j))))
    nb = stage1[4] + 3
    tokB = P.newtok()
    k = 0
    for m in range(4):
        for i in range(2):
            q = stq[k % 2]; k += 1
            for tt in range(2):
                T = 2 * i + tt
                u, g = vU + 16 * T + 4 * m, vG + 16 * T + 4 * m
                for j in range(4): ep.append((nb, INF, "v_mul_f32 %s, %s, %s" % (V(u + j), V(u + j), V(g + j))))
                for h in range(2): ep.append((nb, INF, "v_cvt_pk_bf16_f32 %s, %s, %s" % (V(q + 2 * tt + h), V(u + 2 * h), V(u + 2 * h + 1))))
            it = []
            if i == 0: it.append("s_add_u32 %s, %s, %d" % (S(sE2), S(sHST), m * 147456 + 2048))
            it.append(P.mk("buffer_store_dwordx4 %s, %s, %s, %s offen offset:%d %s" % (V(q, 4), V(vL16), srd(sWS), S(sE2), 1024 * i, CFG["hst"]), tokB if (m, i) == (3, 1) else None))
            for x in it: ep.append((nb, INF, x))
    ep.append((stage2[2] + CFG['fbp'], FB_LOAD, [WaitTok(tokB)] + C.publish(vT + 5, 5)))
    it = ["s_lshr_b32 %s, %s, 1" % (S(sE1), S(sFQ)), "s_add_u32 %s, %s, %s" % (S(sMT2), S(sMT2), S(sE1)),
          "s_mul_i32 %s, %s, 18432" % (S(sE1), S(sMT2)), "s_add_u32 %s, %s, %d" % (S(sE1), S(sE1), WS_H),
          "s_and_b32 %s, %s, 3" % (S(sE2), S(sFS)), "s_lshl_b32 %s, %s, 9" % (S(sE2), S(sE2)), "s_add_u32 %s, %s, %s" % (S(sA), S(sE1), S(sE2)),
          "s_add_u32 %s, %s, 16384" % (S(sA), S(sA)), "s_lshl_b32 %s, %s, 3" % (S(sE2), S(sE2)), "s_add_u32 %s, %s, %s" % (S(sE1), S(sE1), S(sE2)),
          "s_and_b32 %s, %s, 1" % (S(sE2), S(sFQ)), "s_mul_i32 %s, %s, 2048" % (S(sE2), S(sE2)), "s_add_u32 %s, %s, %s" % (S(sE1), S(sE1), S(sE2))]
    it += ["buffer_load_dwordx2 %s, %s, %s, %s offen offset:%d sc1" % (V(vG + 2 * n, 2), V(vL8), srd(sWS), S(sE1), 512 * n) for n in range(4)]
    it += ["buffer_load_dwordx2 %s, %s, %s, %s offen sc1" % (V(vG + 10, 2), V(vL8), srd(sWS), S(sA))]
    ep += paced(it, stage2[6] + 30, 5)[0]
    it = ["v_lshrrev_b32 %s, 4, %s" % (V(vFA), V(vL16)), "v_and_b32 %s, 3, %s" % (V(vFA), V(vFA)), "v_lshlrev_b32 %s, 8, %s" % (V(vFA), V(vFA)),
          "s_lshl_b32 %s, %s, 10" % (S(sE1), S(sIDX)), "s_lshl_b32 %s, %s, 7" % (S(sE2), S(sMH)), "s_add_u32 %s, %s, %s" % (S(sE1), S(sE1), S(sE2)),
          "s_lshl_b32 %s, %s, 2" % (S(sE2), S(sWAVE)), "s_add_u32 %s, %s, %s" % (S(sE1), S(sE1), S(sE2)), "v_add_u32 %s, %s, %s" % (V(vFA), S(sE1), V(vFA))] + flagfix(V(vFA), V(vFD))
    for x in it: ep.append((stage2[7] + 10, INF, x))
    if CFG["ptouch"]:
        x0, x1 = V(vT + 2), V(vT + 3)
        it = ["v_lshrrev_b32 %s, 4, %s" % (x0, V(vL16)), "v_mul_u32_u24 %s, 2979, %s" % (x1, x0), "v_lshrrev_b32 %s, 16, %s" % (x1, x1),
              "v_mul_u32_u24 %s, 22, %s" % (V(vT + 4), x1), "v_sub_u32 %s, %s, %s" % (x0, x0, V(vT + 4)),
              "v_add_u32 %s, %s, %s" % (x1, S(sFQ), x1), "v_add_u32 %s, 1, %s" % (x1, x1), "v_and_b32 %s, 3, %s" % (x1, x1),
              "v_mul_u32_u24 %s, 12288, %s" % (x1, x1), "v_lshl_add_u32 %s, %s, 7, %s" % (x0, x0, x1),
              "s_lshl_b32 %s, s2, 4" % S(sE1), "s_add_u32 %s, %s, %s" % (S(sE1), S(sE1), S(sWAVE)), "s_mul_i32 %s, %s, 3072" % (S(sE1), S(sE1)),
              "s_add_u32 %s, %s, %d" % (S(sE1), S(sE1), WS_PART)]
        x = P.mk("buffer_load_dword %s, %s, %s, %s offen %s" % (V(vT + 4), x0, srd(sWS), S(sE1), CFG["ptm"])); x.dst = []
        at = CFG["ptouch"]
        k = [i for i, e in enumerate(ep) if e[0] <= at][-1] + 1
        ep[k:k] = [(at, INF, y) for y in it + [x]]
    for x in final_setup(): ep.append((stage2[8] + 4, INF, x))
    def respread(lo, hi):
        idx = [k for k, e in enumerate(ep) if e[0] == lo]
        for c_, k in enumerate(idx): ep[k] = (lo + (hi - lo) * c_ // len(idx), ep[k][1], ep[k][2])
    respread(pair_end(0, 7), stage1[1] - 2)
    respread(stage1[1] + 3, stage1[2] - 8)
    respread(stage1[2] + 3, stage1[2] + CFG['e2'])
    respread(stage1[3] + 9, stage1[4] - 8)
    respread(stage1[4] + 3, stage1[4] + CFG["e4"])
    if C.timing:
        for s_ in range(1, 5): ep.append((stage1[s_], INF, C.stamp("g1s%d" % s_)))
        if CFG["fine"] == 1:
            for s_ in range(1, 9): ep.append((stage2[s_], INF, C.stamp("b%d" % s_)))
        ep.sort(key=lambda x: x[0])

    def per(i):
        k = 1 if (i + 1 < NM and isinstance(main[i + 1], list)) else 2
        if stage1[4] <= i < stage1[4] + CFG["e4"]: k += 1
        return k
    def txt(x): return x.text if isinstance(x, Ins) else x if isinstance(x, str) else ""
    if "h" in CFG["abl"]: ld = [e for e in ld if not (e[0] >= s4 + 60 and txt(e[2]).startswith("buffer_load_dwordx"))]
    if "a" in CFG["abl"]: ld = [e for e in ld if not (e[0] < s4 and txt(e[2]).startswith("buffer_load_dwordx4"))]
    if "w" in CFG["abl"]: dm = [e for e in dm if not ("s[28:31]" in txt(e[2]) and not (isinstance(e[2], Ins) and e[2].tok))]
    if "u" in CFG["abl"]: dm = [e for e in dm if not (("s[20:23]" in txt(e[2]) or "s[24:27]" in txt(e[2])) and not (isinstance(e[2], Ins) and e[2].tok))]
    if "e" in CFG["abl"]: ep = [e for e in ep if not txt(e[2]).startswith("v_")]
    if "s" in CFG["abl"]: ep = [e for e in ep if not (txt(e[2]).startswith("buffer_store") and not (isinstance(e[2], Ins) and e[2].tok))]
    if "b" in CFG["abl"]: rd = [(e[0], e[1], [y for y in e[2] if y != "s_barrier"] if isinstance(e[2], list) else e[2]) for e in rd]
    if "r" in CFG["abl"]: rd = [e for e in rd if not txt(e[2]).startswith("ds_read")]
    multi_interleave(P, main, [rd, ld, dm, ep], per)
    for x in C.stamp("g2done"): P.add(x)
    ffn_final(C)

def final_setup():
    it = ("s_lshl_b32 %s, %s, 3\ns_add_u32 %s, %s, %s\ns_lshl_b32 %s, %s, 4\ns_add_u32 %s, %s, %s" %
          (S(t0), S(sIDX), S(t0), S(t0), S(sMH), S(t0), S(t0), S(t0), S(t0), S(sWAVE))).split("\n")
    it += ("s_mul_i32 %s, %s, 3072\ns_add_u32 %s, %s, %d" % (S(t0), S(t0), S(t0), S(t0), WS_PART)).split("\n")
    it += ("v_lshrrev_b32 %s, 4, %s\nv_and_b32 %s, 15, %s\nv_mul_u32_u24 %s, 1152, %s" % (V(vT), V(vL16), V(vT + 1), V(vT), V(vT + 1), V(vT + 1))).split("\n")
    it += ("v_mul_u32_u24 %s, 12, %s\nv_lshlrev_b32 %s, 2, %s" % (V(vT + 6), V(vT), V(vT + 7), V(vT))).split("\n")
    it += ("v_lshrrev_b32 %s, 4, %s\nv_lshl_add_u32 %s, %s, 3, %s" % (V(vT), V(vT), V(vT), V(vT), V(vT + 1))).split("\n")
    it += ("s_mul_i32 %s, %s, 18432\ns_and_b32 %s, %s, 3\ns_lshl_b32 %s, %s, 5\ns_add_u32 %s, %s, %s" % (S(t2), S(sMT2), S(t3), S(sFS), S(t3), S(t3), S(sA), S(t2), S(t3))).split("\n")
    it += ("s_lshl_b32 %s, %s, 3\ns_add_u32 %s, %s, %s" % (S(t3), S(t3), S(t2), S(t2), S(t3))).split("\n")
    w, r, o, x = V(vWD), V(vWD + 1), V(vWD + 2), V(vWD + 3)
    it += ["s_mul_i32 %s, %s, 2304" % (S(t3), S(sWAVE)), "v_lshrrev_b32 %s, 4, %s" % (x, V(vL16)), "v_and_b32 %s, 15, %s" % (w, x), "v_mul_u32_u24 %s, 144, %s" % (w, w),
           "v_lshrrev_b32 %s, 4, %s" % (r, x), "v_lshl_add_u32 %s, %s, 3, %s" % (w, r, w), "v_add_u32 %s, %s, %s" % (w, S(t3), w),
           "v_lshrrev_b32 %s, 3, %s" % (x, x), "v_and_b32 %s, 0x70, %s" % (o, V(vL16)), "v_mul_u32_u24 %s, 144, %s" % (r, x), "v_add3_u32 %s, %s, %s, %s" % (r, r, o, S(t3)),
           "v_mul_u32_u24 %s, 1152, %s" % (x, x), "v_add_u32 %s, %s, %s" % (o, o, x),
           "s_and_b32 %s, %s, 1" % (S(t3), S(sFQ)), "s_lshl_b32 %s, %s, 7" % (S(t3), S(t3)), "s_add_u32 %s, %s, %s" % (S(t2), S(t2), S(t3)), "s_add_u32 %s, %s, 9216" % (S(t3), S(t2))]
    return it

def ffn_final(C):
    P = C.P
    labs = [P.newlabel(C.name + "_fin") for _ in range(4)]
    done = P.newlabel(C.name + "_findone")
    C.touch_labels |= set(labs[1:])
    ck = CFG["s5"]
    P.add(WaitRegs(list(range(vG, vG + 8)) + [vG + 10, vG + 11]))
    for fq in range(1, 4):
        P("s_cmp_eq_u32 %s, %d\ns_cbranch_scc1 %s" % (S(sFQ), fq, labs[fq]))
    def part(f): return [(f >> 1, n) for n in ((4, 5, 6, 7) if f & 1 else (0, 1, 2, 3, 8))]
    names = ("f0", "f1", "f2", "f3", "") if ck else ("f0", "f1", "f2", "f3", "f4")
    fst = [C.stamp(n) if (CFG["fine"] == 2 and n) else [] for n in names]
    def xfer(op, st, n, so):
        P("buffer_%s_dwordx4 %s, %s, %s, %s offen sc1" % (op, V(st, 4), V(vL16), srd(sWS), so))
        P("buffer_%s_dwordx4 %s, %s, %s, %s offen offset:1024 sc1" % (op, V(st + 4, 4), V(vL16), srd(sWS), so))
        if ck:
            if n == 5: P("buffer_%s_dwordx3 %s, %s, %s, %s offen offset:2048 sc1" % (op, V(st + 8, 3), V(vT + 6), srd(sWS), so))
            else: P("buffer_%s_dword %s, %s, %s, %s offen offset:2048 sc1" % (op, V(st + 8), V(vT + 7), srd(sWS), so))
        elif n == 5: P("buffer_%s_dwordx2 %s, %s, %s, %s offen offset:2048 sc1" % (op, V(st + 8, 2), V(vL8), srd(sWS), so))
    def csum(dst, st, n):
        P("v_add3_u32 %s, %s, %s, %s" % (V(dst), V(st), V(st + 1), S(sNON)))
        for k in range(2, 2 * n, 2): P("v_add3_u32 %s, %s, %s, %s" % (V(dst), V(st + k), V(st + k + 1), V(dst)))
    for fq in range(4):
        P.label(labs[fq])
        if fq: P("s_nop 4")
        for x in fst[0]: P.add(x)
        st = vU
        for d in range(4):
            if d == fq: continue
            tl = part(d)
            for i, (m, n) in enumerate(tl):
                for h in range(2):
                    P("v_cvt_pk_bf16_f32 %s, %s, %s" % (V(st + 2 * i + h), V(oreg(m, n) + 2 * h), V(oreg(m, n) + 2 * h + 1)))
            P("s_add_u32 %s, %s, %d" % (S(t1), S(t0), (d * 2 * 16 + fq * 4) * 3072))
            if ck: csum(st + 2 * len(tl), st, len(tl))
            xfer("store", st, len(tl), S(t1))
            st += 12
        tl = part(fq)
        if ck == 2:
            for x in C.publish(vT + 5, 6): P.add(x)
        for i, (m, n) in enumerate(tl):
            o = oreg(m, n)
            for h in range(2):
                hr = V(vG + (10 if n == 8 else 2 * i) + h)
                P("v_lshlrev_b32 %s, 16, %s\nv_and_b32 %s, 0xffff0000, %s" % (V(vT + 2), hr, V(vT + 3), hr))
                P("v_pk_add_f32 %s, %s, %s" % (V(o + 2 * h, 2), V(o + 2 * h, 2), V(vT + 2, 2)))
        for x in fst[1]: P.add(x)
        stl = [vU + 40, vU + 52, vG + 12]
        srcs = [d for d in range(4) if d != fq]
        if ck == 2:
            P.add(C.load_flags(vFD, vFA))
            for x in C.check_flags(vFD, vFA, 6, vT + 15): P.add(x)
            for x in fst[2]: P.add(x)
        if ck:
            loop, ok = P.newlabel(C.name + "_s5"), P.newlabel(C.name + "_s5ok")
            P("s_mov_b32 %s, 0" % S(sSPIN))
            P.label(loop)
        else:
            P("s_waitcnt vmcnt(0)")
            for x in fst[2]: P.add(x)
            for x in C.publish(vT + 5, 6): P.add(x)
            P.add(C.load_flags(vFD, vFA))
            P("s_waitcnt vmcnt(0)")
            for x in C.check_flags(vFD, vFA, 6, vT + 15): P.add(x)
            for x in fst[3]: P.add(x)
        for k, d in enumerate(srcs):
            P("s_add_u32 %s, %s, %d" % (S(t1), S(t0), (fq * 2 * 16 + d * 4) * 3072))
            xfer("load", stl[k], len(tl), S(t1))
        if ck:
            P("s_add_u32 %s, %s, 1" % (S(sSPIN), S(sSPIN)))
            for k in range(3):
                csum(vT + 8 + k, stl[k], len(tl))
                P("v_xor_b32 %s, %s, %s" % (V(vT + 8 + k), V(vT + 8 + k), V(stl[k] + 2 * len(tl))))
            P("v_or3_b32 %s, %s, %s, %s" % (V(vT + 8), V(vT + 8), V(vT + 9), V(vT + 10)))
            P("v_cmp_ne_u32 vcc, 0, %s\ns_cmp_gt_u32 %s, %d\ns_cbranch_scc1 %s\ns_cbranch_vccnz %s" % (V(vT + 8), S(sSPIN), SPIN_MAX, ok, loop))
            P.label(ok)
            for x in fst[3]: P.add(x)
        elif CFG["fine"] == 2:
            P("s_waitcnt vmcnt(0)")
            for x in fst[4]: P.add(x)
        for k in range(3):
            st = stl[k]
            for i, (m, n) in enumerate(tl):
                o = oreg(m, n)
                for h in range(2):
                    P("v_lshlrev_b32 %s, 16, %s\nv_and_b32 %s, 0xffff0000, %s" % (V(vT + 2), V(st + 2 * i + h), V(vT + 3), V(st + 2 * i + h)))
                    P("v_pk_add_f32 %s, %s, %s" % (V(o + 2 * h, 2), V(o + 2 * h, 2), V(vT + 2, 2)))
                if k == 2:
                    for h in range(2): P("v_cvt_pk_bf16_f32 %s, %s, %s" % (V(o + h), V(o + 2 * h), V(o + 2 * h + 1)))
                    if n == 8: P("buffer_store_dwordx2 %s, %s, %s, %s offen offset:1024 %s" % (V(o, 2), V(vT), srd(sOUT), S(sA), CFG["ost"]))
                    elif CFG["otr"]:
                        P("ds_write_b64 %s, %s offset:%d" % (V(vWD), V(o, 2), 32 * i))
                        if i == 3:
                            for h in range(2): P("ds_read_b128 %s, %s offset:%d" % (V(vU + 4 * h, 4), V(vWD + 1), 1152 * h))
                    else: P("buffer_store_dwordx2 %s, %s, %s, %s offen offset:%d %s" % (V(o, 2), V(vT), srd(sOUT), S(t2), 32 * i, CFG["ost"]))
        if CFG["otr"]:
            for h in range(2): P("buffer_store_dwordx4 %s, %s, %s, %s offen %s" % (V(vU + 4 * h, 4), V(vWD + 2), srd(sOUT), S(t3 if h else t2), CFG["ost"]))
        if C.timing: P("s_waitcnt vmcnt(0)")
        if fq < 3:
            P("s_branch %s" % done)
            P.reset()
    P.label(done)
    for x in C.stamp("end"): P.add(x)
```

```python
import re

def vr(base, n=1, kind="v"):
    if n == 1:
        return "%s%d" % (kind, base)
    return "%s[%d:%d]" % (kind, base, base + n - 1)
def V(base, n=1): return vr(base, n, "v")
def Ac(base, n=1): return vr(base, n, "a")
def S(base, n=1): return vr(base, n, "s")
def R(r, n=1):
    if r >= 256:
        return vr(r - 256, n, "a")
    assert r + n <= 256, (r, n)
    return vr(r, n, "v")

_REG = re.compile(r"^(-|\|)?(?:abs\()?([vas])(?:(\d+)|\[(\d+):(\d+)\])\)?\|?$")
def regs_of(tok):
    tok = tok.strip()
    if tok in ("vcc",): return [("s", "vcc")]
    if tok in ("exec",): return [("s", "exec")]
    if tok == "m0": return [("s", "m0")]
    m = _REG.match(tok)
    if not m: return []
    k = m.group(2)
    if m.group(3) is not None: lo = hi = int(m.group(3))
    else: lo, hi = int(m.group(4)), int(m.group(5))
    if k == "a": return [("v", 256 + i) for i in range(lo, hi + 1)]
    return [(k, i) for i in range(lo, hi + 1)]

HZ = dict(trans=1, pk=0, perm=0, pkm=1)
TRANS = ("v_exp_f32", "v_log_f32", "v_rcp_f32", "v_rsq_f32", "v_sqrt_f32", "v_sin_f32", "v_cos_f32")

class Ins:
    __slots__ = ("text", "op", "kind", "dst", "src", "srcC", "srcAB", "tok", "wide_store", "dpp", "opsel", "is_dma", "nocount")
    def __init__(self, text):
        self.text = text
        self.tok = None
        self.nocount = False
        body = text.split(";")[0].strip()
        sp = body.split(None, 1)
        self.op = op = sp[0] if sp else ""
        rest = sp[1] if len(sp) > 1 else ""
        ops = [o.strip() for o in rest.split(",")] if rest else []
        mods = ""
        if ops:
            last = ops[-1].split()
            if len(last) > 1:
                ops[-1] = last[0]; mods = " ".join(last[1:])
        if "quad_perm" in rest or "op_sel" in rest or "neg_lo" in rest or "neg_hi" in rest:
            i = min(x for x in (rest.find("quad_perm"), rest.find("op_sel"), rest.find("neg_lo"), rest.find("neg_hi")) if x >= 0)
            ops = [o.strip() for o in rest[:i].strip().split(",")]
            last = ops[-1].split(); ops[-1] = last[0]
            mods = " ".join(last[1:]) + " " + rest[i:]
        self.dst, self.src, self.srcC, self.srcAB = [], [], [], []
        self.wide_store = False
        self.is_dma = False
        self.dpp = ("quad_perm" in mods or "row_" in mods or op.endswith("_dpp"))
        self.opsel = ("op_sel" in mods and not op.startswith("v_pk_") and not op.startswith("v_dot")) or "sdwa" in op
        rr = [regs_of(o) for o in ops]
        flat = lambda L: [x for y in L for x in y]
        if op.startswith("v_mfma"):
            self.kind = "mfma"
            self.dst = rr[0]; self.srcAB = rr[1] + rr[2]; self.srcC = rr[3]; self.src = self.srcAB + self.srcC
        elif op.startswith("ds_read") or op.startswith("ds_bpermute") or op.startswith("ds_swizzle"):
            self.kind = "lds"; self.dst = rr[0]; self.src = flat(rr[1:])
            if "d16" in op: self.src += rr[0]
        elif op.startswith("ds_write"):
            self.kind = "lds"; self.src = flat(rr)
        elif op.startswith("buffer_load") or op.startswith("global_load"):
            self.kind = "vmem"
            if re.search(r"\blds\b", mods):
                self.is_dma = True; self.src = flat(rr) + [("s", "m0")]
            else:
                self.dst = rr[0]; self.src = flat(rr[1:])
                if "d16" in op: self.src += rr[0]
        elif op.startswith("buffer_store") or op.startswith("global_store") or op.startswith("buffer_atomic") or op.startswith("global_atomic"):
            self.kind = "vmem"; self.src = flat(rr)
            self.wide_store = op.endswith("x3") or op.endswith("x4")
        elif op.startswith("s_load") or op.startswith("s_memtime") or op.startswith("s_memrealtime"):
            self.kind = "smem"; self.dst = rr[0]; self.src = flat(rr[1:])
        elif op.startswith("v_"):
            self.kind = "valu"
            if op.startswith("v_cmp"):
                self.dst = rr[0]; self.src = flat(rr[1:])
            elif op.startswith("v_permlane") and "swap" in op:
                self.dst = rr[0] + rr[1]; self.src = rr[0] + rr[1]
            elif op in ("v_add_co_u32", "v_sub_co_u32", "v_addc_co_u32", "v_subb_co_u32"):
                self.dst = rr[0] + rr[1]; self.src = flat(rr[2:])
            elif op == "v_nop":
                pass
            else:
                self.dst = rr[0]; self.src = flat(rr[1:])
                if op.startswith("v_fmac") or op.startswith("v_dot2c") or op.startswith("v_writelane") or self.dpp or self.opsel:
                    self.src += rr[0]
        elif op in ("s_waitcnt", "s_nop", "s_barrier", "s_sleep", "s_setprio", "s_endpgm"):
            self.kind = "ctl"
        elif op.startswith("s_cbranch") or op == "s_branch":
            self.kind = "br"
        elif op.endswith(":"):
            self.kind = "label"
        elif op.startswith("."):
            self.kind = "dir"
        elif op.startswith("s_"):
            self.kind = "salu"
            if op.startswith("s_cmp"):
                self.src = flat(rr)
            else:
                self.dst = rr[0]; self.src = flat(rr[1:])
                if "saveexec" in op: self.dst = self.dst + [("s", "exec")]
        elif op == "":
            self.kind = "dir"
        else:
            raise ValueError("unknown op: " + text)

class WaitTok(Ins):
    def __init__(self, tok):
        self.text = ""; self.op = "waittok"; self.kind = "waittok"; self.tok = tok
        self.dst = self.src = self.srcC = self.srcAB = []
        self.wide_store = self.dpp = self.opsel = self.is_dma = False

class Raw(Ins):
    def __init__(self, text):
        Ins.__init__(self, text)
        self.kind = "raw" if self.kind != "label" else "label"
        self.dst = self.src = self.srcC = self.srcAB = []

class WaitRegs(Ins):
    def __init__(self, regs):
        self.text = ""; self.op = "waitregs"; self.kind = "waitregs"; self.tok = None
        self.src = [("v", r) for r in regs]
        self.dst = self.srcC = self.srcAB = []
        self.wide_store = self.dpp = self.opsel = self.is_dma = False

def spread(items, lo, hi, dl=None):
    n = len(items)
    return [(lo + (hi - lo) * k // max(n, 1), 10 ** 9 if dl is None else dl, it) for k, it in enumerate(items)]

def is_vmem(x):
    t = x.text if isinstance(x, Ins) else x
    return t.startswith("buffer_") or t.startswith("global_")
def paced(items, start, step, dl=10 ** 9, dls=None):
    out, pos = [], start
    for k, it in enumerate(items):
        d = dls[k] if dls else dl
        for x in (it if isinstance(it, (list, tuple)) else [it]):
            if is_vmem(x):
                out.append((min(int(pos), d - 1), d, x)); pos += step
            else:
                out.append((min(max(int(pos) - 1, start), d - 1), d, x))
    return out, pos

class Prog:
    def __init__(self):
        self.ins = []
        self._lab = 0
        self._tok = 0
    def __call__(self, text, tok=None):
        last = None
        for l in text.split("\n"):
            l = l.strip()
            if not l or l.startswith(";"): continue
            last = Ins(l); self.ins.append(last)
        if tok is not None: last.tok = tok
        return last
    def add(self, item):
        if isinstance(item, Ins): self.ins.append(item)
        elif callable(item): item()
        else: self(item)
    def newtok(self):
        self._tok += 1; return self._tok
    def mk(self, text, tok=None):
        i = Ins(text.strip()); i.tok = tok; return i
    def waittok(self, tok):
        self.ins.append(WaitTok(tok))
    def reset(self):
        w = WaitTok(None); w.kind = "reset"; self.ins.append(w)
    def label(self, name): self(name + ":")
    def newlabel(self, p="L"):
        self._lab += 1; return "%s_%d" % (p, self._lab)

    def _waits(self):
        out = []
        vm = []
        lg = []
        done_toks = set()
        smem_pending = set()
        def emit_wait(nv=None, nl=None):
            parts = []
            if nv is not None:
                assert nv <= 63
                parts.append("vmcnt(%d)" % nv)
            if nl is not None:
                parts.append("lgkmcnt(%d)" % min(nl, 14))
            out.append(Ins("s_waitcnt " + " ".join(parts)))
        for ins in self.ins:
            if ins.kind == "raw":
                out.append(ins); continue
            if ins.kind == "reset":
                vm = []; lg = []; smem_pending = set()
                continue
            if ins.kind == "waittok":
                if ins.tok in done_toks: continue
                idx = [i for i, (d, t) in enumerate(vm) if t == ins.tok]
                assert idx, "token %s never issued" % ins.tok
                n = len(vm) - 1 - idx[-1]
                if n <= 63:
                    emit_wait(nv=n)
                for d, t in vm[:idx[-1] + 1]:
                    if t is not None: done_toks.add(t)
                vm = vm[idx[-1] + 1:]
                continue
            if ins.op == "s_waitcnt":
                m = re.search(r"vmcnt\((\d+)\)", ins.text)
                if m:
                    n = int(m.group(1))
                    if len(vm) > n:
                        cut = len(vm) - n
                        for d, t in vm[:cut]:
                            if t is not None: done_toks.add(t)
                        vm = vm[cut:]
                m = re.search(r"lgkmcnt\((\d+)\)", ins.text)
                if m:
                    n = int(m.group(1))
                    if n == 0: lg = []; smem_pending = set()
                    elif not smem_pending and len(lg) > n: lg = lg[len(lg) - n:]
                out.append(ins); continue
            touched = set(ins.src) | set(ins.dst)
            nv = nl = None
            if touched:
                hit = [i for i, (d, t) in enumerate(vm) if d & touched]
                if hit:
                    nv = len(vm) - 1 - hit[-1]
                    if nv > 63: nv = None
                    for d, t in vm[:hit[-1] + 1]:
                        if t is not None: done_toks.add(t)
                    vm = vm[hit[-1] + 1:]
                if smem_pending & touched:
                    nl = 0; lg = []; smem_pending = set()
                else:
                    hit = [i for i, d in enumerate(lg) if d & touched]
                    if hit:
                        if smem_pending:
                            nl = 0; lg = []; smem_pending = set()
                        else:
                            nl = len(lg) - 1 - hit[-1]
                            if nl > 14: nl = 14; lg = lg[len(lg) - 14:]
                            else: lg = lg[hit[-1] + 1:]
            if ins.kind == "vmem" and len(vm) >= 52:
                cut = len(vm) - 51
                for d, t in vm[:cut]:
                    if t is not None: done_toks.add(t)
                vm = vm[cut:]
                nv = 51 if nv is None else min(nv, 51)
            if nv is not None or nl is not None: emit_wait(nv, nl)
            if ins.kind == "waitregs": continue
            out.append(ins)
            if ins.kind == "vmem":
                if ins.nocount: assert not ins.dst
                else: vm.append((set(ins.dst), ins.tok))
            elif ins.kind == "lds": lg.append(set(ins.dst))
            elif ins.kind == "smem": smem_pending |= set(ins.dst); lg.append(set())
        return out

    def _hazards(self, ins_list):
        out = []
        hist = []
        pos = 0
        def need(cur):
            req = 0
            csrc, cdst = set(cur.src), set(cur.dst)
            for p, ppos in reversed(hist):
                dist = pos - ppos - 1
                if dist >= 20: break
                w = 0
                pd = set(p.dst)
                if p.kind == "valu":
                    vd = {x for x in pd if x[0] == "v"}
                    sd = {x for x in pd if x[0] == "s"}
                    if cur.kind == "mfma" and vd & csrc: w = max(w, 2)
                    if cur.kind == "mfma" and p.op.startswith('v_pk_') and p.op.endswith('_f32'): w = max(w, HZ['pkm'])
                    if cur.kind == "valu":
                        if cur.op.startswith("v_permlane") and vd & csrc: w = max(w, 2)
                        if cur.dpp and vd & csrc: w = max(w, 2)
                        if (cur.op.startswith("v_readfirstlane") or cur.op.startswith("v_readlane")) and vd & csrc: w = max(w, 1)
                        if p.op in TRANS and cur.op not in TRANS and vd & csrc: w = max(w, HZ['trans'])
                        if p.op.startswith('v_pk_') and vd & csrc: w = max(w, HZ['pk'])
                        if p.op.startswith('v_permlane') and vd & csrc: w = max(w, HZ['perm'])
                        if p.opsel and vd & (csrc | cdst): w = max(w, 1)
                        if p.op.startswith("v_dot") and vd & (csrc | cdst) and not (cur.op == p.op and not (vd & set(cur.src[:2]))): w = max(w, 3)
                        if sd & csrc:
                            w = max(w, 4 if cur.op.startswith("v_readlane") or cur.op.startswith("v_writelane") else 2)
                        if cur.op.startswith("v_cndmask") and ("s", "vcc") in sd: w = max(w, 2)
                    if p.op.startswith("v_dot") and cur.kind in ("mfma", "vmem", "lds") and vd & csrc: w = max(w, 3)
                    if cur.kind == "vmem" and sd & csrc: w = max(w, 5)
                    if cur.kind == "salu" and sd & csrc: w = max(w, 1)
                    if cur.kind == "br" and "vcc" in cur.op and ("s", "vcc") in sd: w = max(w, 1)
                elif p.kind == "mfma":
                    big = "32x32" in p.op
                    if cur.kind == "mfma":
                        if pd & set(cur.srcAB): w = max(w, 12 if big else 8)
                        cc = set(cur.srcC)
                        if pd & cc and not (pd == cc and cur.op == p.op): w = max(w, 10 if big else 6)
                        elif pd & cdst and not (pd == cc): w = max(w, 10 if big else 6)
                    elif cur.kind in ("valu", "vmem", "lds"):
                        if pd & (csrc | cdst): w = max(w, 12 if big else 8)
                        if cur.kind == "valu" and set(p.srcC) & cdst: w = max(w, 7 if big else 3)
                elif p.kind == "salu":
                    if ("s", "m0") in pd and cur.is_dma: w = max(w, 1)
                elif p.kind == "vmem":
                    if p.wide_store and cdst & set(p.src): w = max(w, 2)
                if w - dist > req: req = w - dist
            return req
        for ins in ins_list:
            if ins.kind in ("dir",):
                out.append(ins); continue
            if ins.kind == "label":
                out.append(ins); continue
            r = need(ins)
            while r > 0:
                k = min(r, 16)
                n = Ins("s_nop %d" % (k - 1)); out.append(n); pos += k; r -= k
            out.append(ins)
            hist.append((ins, pos))
            if ins.op == "s_nop": pos += int(ins.text.split()[1]) + 1
            else: pos += 1
            if len(hist) > 40: hist = hist[-24:]
        return out

    def finalize(self):
        L = self._hazards(self._waits())
        lines = []
        for i in L:
            if i.kind == "label" or i.kind == "dir": lines.append(i.text)
            else: lines.append("    " + i.text)
        self.final = L
        return "\n".join(lines) + "\n"

INF = 10 ** 9
def multi_interleave(P, main, streams, per=2):
    ptr = [0] * len(streams)
    dl = []
    for st in streams:
        d = [x[1] for x in st]
        for k in range(len(d) - 2, -1, -1): d[k] = min(d[k], d[k + 1])
        dl.append(d)
    def emit(si):
        it = streams[si][ptr[si]][2]; ptr[si] += 1
        if isinstance(it, (list, tuple)):
            for x in it: P.add(x)
            return len(it)
        P.add(it); return 1
    for i, m in enumerate(main):
        for si, st in enumerate(streams):
            while ptr[si] < len(st) and dl[si][ptr[si]] <= i:
                assert st[ptr[si]][0] < i or st[ptr[si]][0] < 0, ("deadline before not_before", si, ptr[si], i, st[ptr[si]])
                emit(si)
        if isinstance(m, (list, tuple)):
            for x in m: P.add(x)
        else: P.add(m)
        k = 0
        lim = per(i) if callable(per) else per
        progress = True
        while k < lim and progress:
            progress = False
            for si, st in enumerate(streams):
                if ptr[si] < len(st) and st[ptr[si]][0] <= i:
                    k += emit(si); progress = True
                    break
    for si, st in enumerate(streams):
        while ptr[si] < len(st): emit(si)

def kernel_header(name):
    return (".text\n.globl %s\n.p2align 8\n.type %s,@function\n%s:\n" % (name, name, name))

def kernel_desc(name, nvgpr=512, accum=256, nsgpr=102):
    return (""".section .rodata,"a"
.p2align 6
.amdhsa_kernel %s
  .amdhsa_next_free_vgpr %d
  .amdhsa_next_free_sgpr %d
  .amdhsa_accum_offset %d
  .amdhsa_group_segment_fixed_size 0
  .amdhsa_kernarg_size 88
  .amdhsa_user_sgpr_count 2
  .amdhsa_user_sgpr_kernarg_segment_ptr 1
  .amdhsa_system_sgpr_workgroup_id_x 1
  .amdhsa_float_denorm_mode_32 3
.end_amdhsa_kernel
""" % (name, nvgpr, nsgpr, accum))
```

```python
import sys
from build_all import *
path = sys.argv[1] if len(sys.argv) > 1 else "sequential_preLN__linear_kernel_hedgehog__glu_gated_reglu__prompt.s"
setcfg(sys.argv[2:])
emit(path, 0)
s = open(path).read()
hdr = "".join(l for l in open("sequential_preLN__linear_kernel_hedgehog__glu_gated_reglu__prompt.s.ref").readlines()[:12])
doc = """;
"""
lines = s.split("\n", 1)
open(path, "w").write(hdr + doc + s.replace("  lds", " lds").replace(" \n", "\n"))
print("written", path, len(s))
```

```python
from common import *
import ffn
from ffn import AG

ACFG = dict(map="4x8", pace=1.0, pfR={}, pa=6, pb=15, pub1=32, touch=0, sp=0, lset=0, s2c=0, kvt=0, xpol='', kpol='', s1c=0, s1at=0, xfirst=0, tab=0, mw=1, wqe=0, wqfr=1.0, pf3=[1], r0e=13, r1w=0, wfirst=0, r1e=0, aux=1, woq=18, wofr=0.4, early=1, rpt=0, pbat=40, pbstep=3, prep=0, fillat=4, pf0=[], pfQ=[], pfS2=[], pfS3=[], ct2=1, hop2=1, l4=1, tlb=0, hop=1, r1pre=13, cs=1, rst=[])
sRBK, sHP = 58, 59
sZ = 53
sW8K, sW5K, sKV = 76, 77, 78
mD, mE, mF, mG = 80, 82, 84, 94
sXB, sWB, sMT = 86, 87, 88
mA, mB, mC = 90, 92, 94
t0, t1, t2, t3 = 96, 97, 98, 99
RND = 53248
L_PHI, L_WBAR, L_MEAN = 159744, 161792, 162048
L_R, L_ZERO = 92160, 96256
vAC = 0
vSUM, vSSQ = 60, 68
vONE = 76
vWF = 80
vPH = 104
vXD, vXR, vWK, vWR, vWM = 128, 130, 132, 137, 138
vLANE, vA, vB = 139, 140, 142
vF = 144
vPP = 160
vPHI = 184
vT = 208
vFA, vFD = 232, 233
vL16 = 234
vWQ = 235
vX2 = 240
LOG2E = 0x3fb8aa3b
def acc(T, c): return vAC + 12 * T + 4 * c
def xf(k, m): return AG + 8 * k + 4 * m

def f_rb(P, dst, rb, tmp):
    if ACFG["map"] == "4x8":
        P("s_and_b32 %s, %s, 3\ns_lshl_b32 %s, %s, 13\ns_lshr_b32 %s, %s, 2\ns_lshl_b32 %s, %s, 8\ns_add_u32 %s, %s, %s" % (dst, rb, dst, dst, tmp, rb, tmp, tmp, dst, dst, tmp))
    else:
        P("s_and_b32 %s, %s, 1\ns_lshl_b32 %s, %s, 14\ns_lshr_b32 %s, %s, 1\ns_lshl_b32 %s, %s, 7\ns_add_u32 %s, %s, %s" % (dst, rb, dst, dst, tmp, rb, tmp, tmp, dst, dst, tmp))
def f_hp(P, dst, hp, tmp):
    if ACFG["map"] == "4x8":
        P("s_and_b32 %s, %s, 7\ns_lshl_b32 %s, %s, 10\ns_lshr_b32 %s, %s, 3\ns_lshl_b32 %s, %s, 7\ns_add_u32 %s, %s, %s" % (dst, hp, dst, dst, tmp, hp, tmp, tmp, dst, dst, tmp))
    else:
        P("s_lshl_b32 %s, %s, 10" % (dst, hp))
def vf_rb(P, dst, rb, tmp):
    if ACFG["map"] == "4x8":
        P("v_and_b32 %s, 3, %s\nv_lshlrev_b32 %s, 13, %s\nv_lshrrev_b32 %s, 2, %s\nv_lshl_add_u32 %s, %s, 8, %s" % (dst, rb, dst, dst, tmp, rb, dst, tmp, dst))
    else:
        P("v_and_b32 %s, 1, %s\nv_lshlrev_b32 %s, 14, %s\nv_lshrrev_b32 %s, 1, %s\nv_lshl_add_u32 %s, %s, 7, %s" % (dst, rb, dst, dst, tmp, rb, dst, tmp, dst))
def vf_hp(P, dst, hp, tmp):
    if ACFG["map"] == "4x8":
        P("v_and_b32 %s, 7, %s\nv_lshlrev_b32 %s, 10, %s\nv_lshrrev_b32 %s, 3, %s\nv_lshl_add_u32 %s, %s, 7, %s" % (dst, hp, dst, dst, tmp, hp, dst, tmp, dst))
    else:
        P("v_lshlrev_b32 %s, 10, %s" % (dst, hp))

def perm32(P, out, rho, tmp):
    P("v_bfe_u32 %s, %s, 2, 2\nv_lshlrev_b32 %s, 3, %s" % (out, rho, out, out))
    P("v_bfe_u32 %s, %s, 4, 1\nv_lshl_add_u32 %s, %s, 2, %s" % (tmp, rho, out, tmp, out))
    P("v_and_b32 %s, 3, %s\nv_add_u32 %s, %s, %s" % (tmp, rho, out, out, tmp))

def round_x(P, rho):
    base = (rho % 3) * RND
    out = []
    for cb in range(2 if rho < 4 else 1):
        for rg in range(4):
            it = []
            if rg == 0: it.append("s_add_u32 m0, %s, %d" % (S(sW8K), base + cb * 4096))
            if rg % 2 == 0:
                it.append("s_add_u32 %s, %s, %d" % (S(t0), S(sXB), (2 * rho + cb) * 128 + (rg >> 1) * (18432 - 2048)))
            it.append("buffer_load_dwordx4 %s, %s, %s offen offset:%d %s lds" % (V(vXD + (rg & 1)), srd(sX), S(t0), 1024 * rg, ACFG["xpol"]))
            out.append(it)
    return out
def round_w(P, rho, tok):
    base = (rho % 3) * RND
    out = []
    for q in range(5):
        it = []
        if q == 0: it.append("s_add_u32 %s, %s, %d" % (S(t0), S(sWB), rho * 4 * 110592 + 1152))
        if q % 4 == 0: it.append("s_add_u32 m0, %s, %d" % (S(sW5K), base + 32768 + 1024 * q))
        it.append(P.mk("buffer_load_dwordx4 %s, %s, %s offen offset:%d %s lds" % (V(vWK + q), srd(sWQKV), S(t0), 1024 * (q % 4), ACFG["kpol"]), tok if q == 4 else None))
        out.append(it)
    return out
def emit_items(P, items):
    for it in items:
        if isinstance(it, (list, tuple)):
            for x in it: P.add(x)
        else: P.add(it)
class Rec:
    def __init__(self): self.items = []
    def __call__(self, text):
        self.items += [l for l in text.split("\n") if l.strip()]

def softmax(P, m):
    p0 = vPP + 12 * m
    p = [p0 + i for i in range(9)]
    mx, mn, a, b = vT, vT + 1, vT + 2, vT + 3
    ep, en = vT + 4, vT + 14
    P("v_max3_f32 %s, %s, %s, %s\nv_min3_f32 %s, %s, %s, %s" % (V(mx), V(p[0]), V(p[1]), V(p[2]), V(mn), V(p[0]), V(p[1]), V(p[2])))
    for i in (3, 5, 7):
        P("v_max3_f32 %s, %s, %s, %s\nv_min3_f32 %s, %s, %s, %s" % (V(mx), V(mx), V(p[i]), V(p[i + 1]), V(mn), V(mn), V(p[i]), V(p[i + 1])))
    P("v_mov_b32 %s, %s\nv_mov_b32 %s, %s" % (V(a), V(mx), V(b), V(mn)))
    P("v_permlane16_swap_b32 %s, %s\nv_permlane16_swap_b32 %s, %s" % (V(mx), V(a), V(mn), V(b)))
    P("v_max_f32 %s, %s, %s\nv_min_f32 %s, %s, %s" % (V(mx), V(mx), V(a), V(mn), V(mn), V(b)))
    P("v_pk_mul_f32 %s, %s, %s op_sel_hi:[1,0]" % (V(mx, 2), V(mx, 2), S(t2, 2)))
    for i in range(0, 8, 2):
        P("v_pk_fma_f32 %s, %s, %s, %s op_sel_hi:[1,0,0] neg_lo:[0,0,1] neg_hi:[0,0,1]" % (V(ep + i, 2), V(p0 + i, 2), S(t2, 2), V(mx, 2)))
        P("v_pk_fma_f32 %s, %s, %s, %s op_sel:[0,0,1] op_sel_hi:[1,0,1] neg_lo:[1,0,0] neg_hi:[1,0,0]" % (V(en + i, 2), V(p0 + i, 2), S(t2, 2), V(mx, 2)))
    P("v_fma_f32 %s, %s, %s, -%s\nv_fma_f32 %s, -%s, %s, %s" % (V(ep + 8), V(p[8]), S(t2), V(mx), V(en + 8), V(p[8]), S(t2), V(mn)))
    for i in range(9): P("v_exp_f32 %s, %s\nv_exp_f32 %s, %s" % (V(ep + i), V(ep + i), V(en + i), V(en + i)))
    for e, q in ((ep, mx), (en, a)):
        P("v_pk_add_f32 %s, %s, %s" % (V(q, 2), V(e, 2), V(e + 2, 2)))
    for k in (4, 6):
        for e, q in ((ep, mx), (en, a)):
            P("v_pk_add_f32 %s, %s, %s" % (V(q, 2), V(q, 2), V(e + k, 2)))
    P("v_add_f32 %s, %s, %s\nv_add_f32 %s, %s, %s" % (V(mx), V(mx), V(mn), V(mn), V(a), V(b)))
    P("v_add_f32 %s, %s, %s\nv_add_f32 %s, %s, %s" % (V(mx), V(mx), V(ep + 8), V(mn), V(mn), V(en + 8)))
    P("v_mov_b32 %s, %s\nv_mov_b32 %s, %s" % (V(a), V(mx), V(b), V(mn)))
    P("v_permlane16_swap_b32 %s, %s\nv_permlane16_swap_b32 %s, %s" % (V(mx), V(a), V(mn), V(b)))
    P("v_pk_add_f32 %s, %s, %s" % (V(mx, 2), V(mx, 2), V(a, 2)))
    P("v_rcp_f32 %s, %s\nv_rcp_f32 %s, %s" % (V(mx), V(mx), V(mn), V(mn)))
    P("v_mul_f32 %s, %s, %s\nv_mul_f32 %s, %s, %s" % (V(ep + 8), V(ep + 8), V(mx), V(en + 8), V(en + 8), V(mn)))
    for i in range(0, 8, 2):
        P("v_pk_mul_f32 %s, %s, %s op_sel_hi:[1,0]" % (V(ep + i, 2), V(ep + i, 2), V(mx, 2)))
        P("v_pk_mul_f32 %s, %s, %s op_sel:[0,1] op_sel_hi:[1,1]" % (V(en + i, 2), V(en + i, 2), V(mx, 2)))
    e = [ep + i for i in range(9)] + [en + i for i in range(9)]
    for i in range(9):
        P("v_cvt_pk_bf16_f32 %s, %s, %s" % (V(vPHI + 12 * m + 4 * (i // 3) + i % 3), V(e[2 * i]), V(e[2 * i + 1])))

def ln_fix(P, T, m, dst):
    s2 = "op_sel_hi:[1,0]" if m == 0 else "op_sel:[0,1] op_sel_hi:[1,1]"
    s3 = "op_sel_hi:[1,0,1]" if m == 0 else "op_sel:[0,1,0] op_sel_hi:[1,1,1]"
    for h in range(2):
        P("v_pk_mul_f32 %s, %s, %s %s" % (V(vT + 2 * h, 2), V(acc(T, 2) + 2 * h, 2), V(vB, 2), s2))
    for h in range(2):
        r = acc(T, m) + 2 * h
        P("v_pk_fma_f32 %s, %s, %s, %s %s" % (V(r, 2), V(r, 2), V(vA, 2), V(vT + 2 * h, 2), s3))
    for h in range(2):
        P("v_cvt_pk_bf16_f32 %s, %s, %s" % (V(dst + h), V(acc(T, m) + 2 * h), V(acc(T, m) + 2 * h + 1)))

def feature_map(P):
    for m in range(2):
        for T in range(3):
            d = vPP + 12 * m + 4 * T
            P(mfma(d, vPH + 8 * T, vF + 8 * m)); P(mfma(d, vPH + 8 * T + 4, vF + 8 * m + 4, d))
    for m in range(2): softmax(P, m)

vRW, vRV, vPR, vVR, vKO, vMN = 240, 241, 242, 243, 253, 254
vWC, vCS, vCA = 251, 252, 250
vWX = 248
L_CS = 162560
def wo_rows(P, rho, main, left, t_, u_):
    P("v_lshrrev_b32 %s, 4, %s\nv_and_b32 %s, 3, %s\nv_lshl_add_u32 %s, %s, 2, %s" % (t_, rho, u_, rho, t_, t_, u_))
    P("v_bfe_u32 %s, %s, 2, 2\nv_lshl_add_u32 %s, %s, 3, %s\nv_lshrrev_b32 %s, 1, %s\nv_lshl_add_u32 %s, %s, 1, %s" % (u_, rho, main, u_, t_, left, u_, main, left, main))
    P("v_lshrrev_b32 %s, 1, %s\nv_lshl_add_u32 %s, %s, 2, %s\nv_mul_u32_u24 %s, 18, %s\nv_and_b32 %s, 1, %s\nv_add3_u32 %s, %s, %s, 16" % (left, t_, left, u_, left, left, left, t_, t_, left, left, t_))
L_RP = 53248 + 4096
vRP, vRT = 246, 249
sRS, sRO = 79, 3
def repack_items(P):
    L = V(vLANE)
    a, b, c, d = V(vT + 18), V(vT + 19), V(vT + 20), V(vT + 21)
    u0, u1, u2, u3 = S(89), S(t1), S(t2), S(t3)
    out, go = [], []
    X = Rec()
    X("s_lshl_b32 %s, %s, 3\nv_lshrrev_b32 %s, 3, %s\nv_add_u32 %s, %s, %s" % (u0, S(sWAVE), a, L, a, u0, a))
    X("v_and_b32 %s, 6, %s\nv_and_b32 %s, 7, %s\nv_xor_b32 %s, %s, %s\nv_lshlrev_b32 %s, 4, %s" % (b, a, c, L, b, b, c, b, b))
    perm32(X, c, a, d)
    X("v_lshrrev_b32 %s, 2, %s\nv_bfe_u32 %s, %s, 1, 2\nv_xor_b32 %s, %s, %s\nv_lshlrev_b32 %s, 5, %s" % (d, L, V(vRT), d, V(vRT), S(sWAVE), V(vRT), V(vRT), V(vRT)))
    X("v_lshl_add_u32 %s, %s, 7, %s\nv_and_b32 %s, 3, %s\nv_lshl_add_u32 %s, %s, 3, %s" % (V(vRT), d, V(vRT), d, L, V(vRT), d, V(vRT)))
    X("v_add_u32 %s, %d, %s" % (V(vRT), L_RP, V(vRT)))
    out += X.items
    tok = P.newtok()
    for job in range(2):
        dst = S(sRS if job == 0 else sRO)
        ln, ld_ = P.newlabel("rp_n"), P.newlabel("rp_d")
        sr = sWN if job == 0 else sWPHI
        vr_ = V(vRP + job)
        it = ["s_add_u32 %s, s2, %d" % (u0, 256 * job), "s_mov_b32 %s, 5308416" % S(sr + 2)]
        if job == 1:
            lw = P.newlabel("rp_w")
            e, f = V(vT + 22), V(vT + 23)
            it += ["s_cmp_lt_u32 %s, 432" % u0, "s_cbranch_scc1 %s" % lw,
                   "s_sub_u32 %s, %s, 432" % (u0, u0), "s_mul_i32 %s, %s, 18" % (u2, S(sWAVE)), "s_add_u32 %s, %s, %s" % (u2, u2, u0), "s_lshl_b32 %s, %s, 10" % (u2, u2),
                   "s_add_u32 %s, %s, %d" % (u2, u2, WS_RW), "s_cmp_lt_u32 %s, 18" % u0, "s_cselect_b32 %s, %s, 0x7000000" % (dst, u2),
                   "s_mov_b32 %s, %s" % (S(sr), S(sWO)), "s_mov_b32 %s, %s" % (S(sr + 1), S(sWO + 1)), "s_mov_b32 %s, 663552" % S(sr + 2)]
            X = Rec(); wo_rows(X, a, vr_, e, f, d); it += X.items
            it += ["s_mul_i32 %s, %s, 36" % (u1, u0), "s_sub_u32 %s, %s, 16" % (u2, u0), "s_mul_i32 %s, %s, 288" % (u2, u2),
                   "s_cmp_lt_u32 %s, 16" % u0, "s_cselect_b32 %s, %s, %s" % (u1, u1, u2), "s_cselect_b64 vcc, -1, 0",
                   "s_mul_i32 %s, %s, 1152" % (u1, u1), "s_add_u32 %s, %s, 1024" % (u1, u1),
                   "v_cndmask_b32 %s, %s, %s, vcc" % (vr_, e, vr_), "v_mul_u32_u24 %s, 1152, %s" % (vr_, vr_), "v_add_u32 %s, %s, %s" % (vr_, vr_, b),
                   "s_branch %s" % ld_, lw + ":"]
        if job == 1: it += ["s_cmp_lt_u32 %s, 288" % u0, "s_cbranch_scc1 %s" % ln,
                            "s_sub_u32 %s, %s, 288" % (u0, u0), "s_mul_i32 %s, %s, 36864" % (u1, u0), "s_add_u32 %s, %s, 1024" % (u1, u1),
                            "s_mul_i32 %s, %s, 147456" % (u2, S(sWAVE)), "s_lshl_b32 %s, %s, 10" % (u3, u0), "s_add_u32 %s, %s, %s" % (u2, u2, u3),
                            "s_add_u32 %s, %s, %d" % (u2, u2, WS_RD), "s_cmp_lt_u32 %s, 144" % u0, "s_cselect_b32 %s, %s, 0x7000000" % (dst, u2),
                            "s_mov_b32 %s, %s" % (S(sr), S(sWD)), "s_mov_b32 %s, %s" % (S(sr + 1), S(sWD + 1)),
                            "v_mul_u32_u24 %s, 1152, %s" % (vr_, a), "v_add_u32 %s, %s, %s" % (vr_, vr_, b), "s_branch %s" % ld_, ln + ":"]
        it += ["s_mul_i32 %s, %s, 3641" % (u1, u0), "s_lshr_b32 %s, %s, 16" % (u1, u1),
               "s_mul_i32 %s, %s, 18" % (u2, u1), "s_sub_u32 %s, %s, %s" % (u0, u0, u2),
               "s_and_b32 %s, %s, 1" % (u2, u1), "s_cmp_eq_u32 %s, 0" % u2,
               "s_cselect_b32 %s, %s, %s" % (S(sr), S(sWG), S(sWU)), "s_cselect_b32 %s, %s, %s" % (S(sr + 1), S(sWG + 1), S(sWU + 1)),
               "s_lshl_b32 %s, %s, 1" % (u3, u0), "s_add_u32 %s, %s, %s" % (u2, u2, u3),
               "s_lshr_b32 %s, %s, 1" % (u1, u1),
               "s_lshl_b32 %s, %s, 2" % (u3, u1), "s_add_u32 %s, %s, %s" % (u3, u3, S(sWAVE)), "s_mul_i32 %s, %s, 36" % (u3, u3),
               "s_add_u32 %s, %s, %s" % (u2, u2, u3), "s_lshl_b32 %s, %s, 10" % (u2, u2), "s_add_u32 %s, %s, %d" % (dst, u2, WS_RN),
               "s_lshr_b32 %s, %s, 1" % (u2, u1), "s_mul_i32 %s, %s, 2304" % (u2, u2), "s_and_b32 %s, %s, 1" % (u1, u1), "s_lshl_b32 %s, %s, 7" % (u1, u1),
               "s_add_u32 %s, %s, %s" % (u1, u1, u2), "s_add_u32 %s, %s, 2048" % (u1, u1),
               "s_cmp_lt_u32 %s, 16" % u0, "s_cselect_b64 vcc, -1, 0",
               "s_mul_i32 %s, %s, %d" % (u2, u0, 32 * 9216), "s_add_u32 %s, %s, %s" % (u1, u1, u2),
               "v_cndmask_b32 %s, %s, %s, vcc" % (vr_, c, a), "v_mul_u32_u24 %s, 9216, %s" % (vr_, vr_), "v_add_u32 %s, %s, %s" % (vr_, vr_, b)]
        if job == 1: it.append(ld_ + ":")
        it.append("v_add_u32 %s, %s, %s" % (vr_, u1, vr_))
        out.append(it)
        go.append(["s_add_u32 m0, %s, %d" % (S(sW1K), L_RP + 8192 * job), P.mk("buffer_load_dwordx4 %s, %s, 0 offen lds" % (vr_, srd(sr)), tok if job == 1 else None)])
    return out, go, tok
def repack_out(P, r0):
    for job in range(2):
        for h in range(2): P("ds_read_b64_tr_b16 %s, %s offset:%d" % (V(r0 + 4 * job + 2 * h, 2), V(vRT), 8192 * job + 2048 * h))
    return ["buffer_store_dwordx4 %s, %s, %s, %s offen sc1" % (V(r0 + 4 * job, 4), V(vL16), srd(sWS), S(sRS if job == 0 else sRO)) for job in range(2)]

def p1(C, code_bytes):
    C.code_bytes = code_bytes
    P = C.P
    L = V(vLANE)
    a, b, c, d = V(vT), V(vT + 1), V(vT + 2), V(vT + 3)
    P("v_mov_b32 %s, v0\nv_lshlrev_b32 %s, 4, v0" % (L, V(vL16)))
    if ACFG["map"] == "4x8":
        P("s_lshr_b32 %s, %s, 1\ns_lshl_b32 %s, %s, 2\ns_lshr_b32 %s, %s, 3\ns_add_u32 %s, %s, %s" % (S(t0), S(sXCD), S(t0), S(t0), S(t1), S(sIDX), S(sRBK), S(t0), S(t1)))
        P("s_and_b32 %s, %s, 1\ns_lshl_b32 %s, %s, 3\ns_and_b32 %s, %s, 7\ns_add_u32 %s, %s, %s" % (S(t0), S(sXCD), S(t0), S(t0), S(t1), S(sIDX), S(sHP), S(t0), S(t1)))
    else:
        P("s_lshl_b32 %s, %s, 1\ns_lshr_b32 %s, %s, 4\ns_add_u32 %s, %s, %s\ns_and_b32 %s, %s, 15" % (S(t0), S(sXCD), S(t1), S(sIDX), S(sRBK), S(t0), S(t1), S(sHP), S(sIDX)))
    P("s_lshl_b32 %s, %s, 13\ns_mul_i32 %s, %s, 5120" % (S(sW8K), S(sWAVE), S(sW5K), S(sWAVE)))
    P("s_lshl_b32 %s, %s, 2\ns_add_u32 %s, %s, %s\ns_mul_i32 %s, %s, 36864" % (S(t0), S(sRBK), S(t0), S(t0), S(sWAVE), S(sXB), S(t0)))
    P("s_movk_i32 %s, 1152" % S(t2))
    P("v_lshrrev_b32 %s, 3, %s\nv_and_b32 %s, 7, %s\nv_lshrrev_b32 %s, 4, %s\nv_xor_b32 %s, %s, %s" % (a, L, b, L, c, L, b, b, c))
    P("v_lshlrev_b32 %s, 4, %s\nv_mad_u32_u24 %s, %s, %s, %s" % (c, b, V(vXD), a, S(t2), c))
    P("v_xor_b32 %s, 64, %s\nv_add_u32 %s, %d, %s" % (V(vXD + 1), V(vXD), V(vXD + 1), 9216 - 1024, V(vXD + 1)))
    def w_offsets():
        P("s_mul_i32 %s, %s, 72\ns_and_b32 %s, %s, -16\ns_mul_i32 %s, %s, 110592\ns_add_u32 %s, %s, %s" % (S(t3), S(sHP), S(t3), S(t3), S(t1), S(sWAVE), S(sWB), S(t3), S(t1)))
        P("s_movk_i32 %s, 3456" % S(t2))
        for q in range(5):
            r = V(vWK + q)
            P("v_add_u32 %s, %d, %s\nv_mul_u32_u24 %s, 6554, %s\nv_lshrrev_b32 %s, 16, %s" % (a, 64 * q, L, b, a, b, b))
            P("v_mul_u32_u24 %s, 10, %s\nv_sub_u32 %s, %s, %s" % (c, b, a, a, c))
            perm32(P, c, b, d)
            P("v_mul_lo_u32 %s, %s, %s\nv_lshl_add_u32 %s, %s, 4, %s" % (r, c, S(t2), r, a, r))
            P("v_cmp_lt_u32 vcc, 4, %s\nv_add_u32 %s, %d, %s\nv_cndmask_b32 %s, %s, %s, vcc" % (a, b, 1152 - 80, r, r, r, b))
            if q % 4: P("v_subrev_u32 %s, %d, %s" % (r, 1024 * (q % 4), r))
    if not ACFG['xfirst']: w_offsets()
    P("s_waitcnt lgkmcnt(0)")
    for x in C.stamp("start"): P.add(x)
    l0, l1, l2, l3, l4, l5 = [P.newlabel(C.name + "_w") for _ in range(6)]
    P("s_cmp_gt_u32 %s, 1\ns_cbranch_scc1 %s" % (S(sWAVE), l0))
    P("s_mul_i32 %s, %s, 1296\ns_add_u32 %s, %s, %s\ns_add_u32 m0, %s, %d" % (S(t0), S(sHP), S(t0), S(t0), S(sW1K), S(sW1K), L_PHI))
    P("buffer_load_dwordx4 %s, %s, %s offen lds" % (V(vL16), srd(sWPHI), S(t0))).nocount = True
    P.label(l0)
    P("s_xor_b32 %s, %s, %s\ns_and_b32 %s, %s, 1\ns_lshr_b32 %s, %s, 2\ns_or_b32 %s, %s, %s\ns_or_b32 %s, %s, %s" %
      (S(t0), S(sIDX), S(sXCD), S(t0), S(t0), S(t1), S(sIDX), S(t0), S(t0), S(t1), S(t0), S(t0), S(sWAVE)))
    P("s_lshl_b32 %s, %s, 1\ns_lshr_b32 %s, %s, 1\ns_add_u32 %s, %s, %s\ns_add_u32 %s, %s, 1" % (S(t1), S(sXCD), S(t3), S(sIDX), S(t1), S(t1), S(t3), S(t3), S(t1)))
    P("s_cmp_eq_u32 %s, 0\ns_cselect_b32 %s, %s, 0\ns_cbranch_scc0 %s" % (S(t0), S(sZ), S(t3), l4))
    P("v_mov_b32 v4, 0\nv_lshlrev_b32 v1, 7, v0\ns_lshl_b32 %s, %s, 13" % (S(t1), S(t1)))
    P("buffer_store_dword v4, v1, %s, %s offen sc1" % (srd(sWS), S(t1))).nocount = True
    P("s_mov_b32 %s, %d\nbuffer_load_dword %s, off, %s, %s sc1" % (S(t1), WS_NONCE, V(vFD), srd(sWS), S(t1)))
    P.ins[-1].dst = []; P.ins[-1].nocount = True
    P.label(l4)
    toks = [P.newtok() for _ in range(6)]
    def touch():
        def ld(text):
            P(text); P.ins[-1].dst = []; P.ins[-1].nocount = True
        aux = ACFG["aux"]
        lab = P.newlabel(C.name + "_l4")
        P("s_lshr_b32 %s, %s, 3\ns_xor_b32 %s, %s, %s\ns_and_b32 %s, %s, 1\ns_cbranch_scc1 %s" % (S(t1), S(sHP), S(t1), S(t1), S(sHP), S(t1), S(t1), l3 if aux else lab))
        P("s_lshr_b32 %s, %s, 1\ns_lshl_b32 %s, %s, 2\ns_add_u32 %s, %s, %s\ns_mul_i32 %s, %s, %d" % (S(t1), S(sIDX), S(t1), S(t1), S(t1), S(t1), S(sWAVE), S(t1), S(t1), 9 * 3456))
        P("v_min_u32 %s, 26, %s\nv_mul_u32_u24 %s, 1152, %s" % (a, L, a, a))
        ld("buffer_load_dword %s, %s, %s, %s offen offset:512" % (V(255), a, srd(sWQKV), S(t1)))
        P.label(lab)
        nper = -(-(code_bytes - (4096 if ACFG['hop'] else 0)) // (32 * 128))
        assert nper <= 31
        reps = (0, 1) if aux else (0,)
        P("s_cmp_eq_u32 %s, 3\ns_cbranch_scc1 %s\ns_cmp_eq_u32 %s, 2\ns_cbranch_scc1 %s\ns_cmp_eq_u32 %s, 1\ns_cbranch_scc1 %s" % (S(sWAVE), l1, S(sWAVE), l2, S(sWAVE), l5))
        if ACFG["kvt"]:
            P("v_min_u32 %s, 53, %s\nv_mul_u32_u24 %s, 3641, %s\nv_lshrrev_b32 %s, 16, %s\nv_mul_u32_u24 %s, 1152, %s\nv_lshl_add_u32 %s, %s, 7, %s" % (a, L, b, a, b, b, b, b, a, a, b))
        else:
            P("v_min_u32 %s, 60, %s\nv_lshlrev_b32 %s, 7, %s" % (a, L, a, a))
        for r in reps:
            P("s_xor_b32 %s, s2, %d\ns_mul_i32 %s, %s, %d" % (S(t1), 8 * r, S(t1), S(t1), 3 * 3456 if ACFG["kvt"] else 61 * 128))
            ld("buffer_load_dword %s, %s, %s, %s offen offset:%d" % (V(255), a, srd(sWQKV), S(t1), 1152 if ACFG["kvt"] else 0))
        P("s_branch %s" % l3)
        P.label(l5)
        P("v_lshrrev_b32 %s, 3, %s\nv_mul_u32_u24 %s, 1152, %s\nv_and_b32 %s, 7, %s\nv_min_u32 %s, 6, %s\nv_lshl_add_u32 %s, %s, 7, %s" % (a, L, a, a, b, L, b, b, a, b, a))
        for r in reps:
            P("s_lshl_b32 %s, %s, 4\ns_add_u32 %s, %s, %s\ns_xor_b32 %s, %s, %d\ns_mul_i32 %s, %s, 9216" % (S(t1), S(sRBK), S(t1), S(t1), S(sHP), S(t1), S(t1), r, S(t1), S(t1)))
            ld("buffer_load_dword %s, %s, %s, %s offen offset:256" % (V(255), a, srd(sX), S(t1)))
        P("s_branch %s" % l3)
        P.label(l1)
        P("s_getpc_b64 s[100:101]\n%s_pc:\ns_add_u32 s100, s100, %s_body-%s_pc\ns_addc_u32 s101, s101, 0" % (C.name, C.name, C.name))
        k = 2 if aux else 1
        P("s_lshr_b32 %s, %s, %d\ns_mul_i32 %s, %s, %d\nv_min_u32 %s, %d, %s\nv_lshl_add_u32 %s, %s, 7, %s\nv_min_u32 %s, %d, %s" %
          (S(t1), S(sIDX), k - 1, S(t1), S(t1), k * nper * 128, a, k * nper - 1, L, a, a, S(t1), a, code_bytes - 4096 - 128, a))
        ld("global_load_dword %s, %s, s[100:101]" % (V(255), a))
        P("s_branch %s" % l3)
        P.label(l2)
        P("v_min_u32 %s, 20, %s\nv_lshlrev_b32 %s, 7, %s" % (a, L, a, a))
        for r in (reps if not ACFG["kvt"] else ()):
            P("s_xor_b32 %s, s2, %d\ns_mul_i32 %s, %s, %d" % (S(t1), 8 * r, S(t1), S(t1), 21 * 128))
            ld("buffer_load_dword %s, %s, %s, %s offen" % (V(255), a, srd(sWO), S(t1)))
        P.label(l3)
    if ACFG["touch"] == 0: touch()
    for x in C.stamp("x_touch"): P.add(x)
    r0 = round_x(P, 0) + round_w(P, 0, toks[0])
    if ACFG["wfirst"]: r0 = round_w(P, 0, None) + round_x(P, 0); r0[-1][-1] = P.mk(r0[-1][-1], toks[0])
    if ACFG['xfirst']:
        k = ACFG['xfirst']
        emit_items(P, r0[:k]); w_offsets(); emit_items(P, r0[k:]); r0 = []
    emit_items(P, r0[:ACFG["r0e"]]); r0 = r0[ACFG["r0e"]:]
    if ACFG["touch"] == 1: touch()
    r1 = round_x(P, 1) + round_w(P, 1, toks[1])
    emit_items(P, r1[:ACFG['r1e']]); r1 = r1[ACFG['r1e']:]
    for x in C.stamp("x_r0iss"): P.add(x)
    if ACFG["hop"]: C.align_body()
    for x in C.stamp("x_body"): P.add(x)
    main_P = P
    P = Prog(); P._tok, P._lab = main_P._tok, main_P._lab
    P("v_and_b32 %s, 15, %s\nv_lshrrev_b32 %s, 4, %s\nv_lshrrev_b32 %s, 1, %s\nv_xor_b32 %s, %s, %s" % (a, L, b, L, c, a, b, b, c))
    P("v_lshlrev_b32 %s, 7, %s\nv_lshl_add_u32 %s, %s, 4, %s\nv_add_u32 %s, %s, %s" % (a, a, a, b, a, V(vXR), S(sW8K), a))
    P("v_xor_b32 %s, 64, %s" % (V(vXR + 1), V(vXR)))
    P("v_lshrrev_b32 %s, 2, %s\nv_mul_u32_u24 %s, 160, %s\ns_and_b32 %s, %s, 1\ns_lshl_b32 %s, %s, 3\nv_add_u32 %s, %s, %s" % (a, L, a, a, S(t1), S(sHP), S(t1), S(t1), a, S(t1), a))
    P("v_and_b32 %s, 3, %s\nv_lshl_add_u32 %s, %s, 3, %s" % (b, L, V(vWR), b, a))
    P("v_cmp_eq_u32 vcc, 1, %s\nv_add_u32 %s, 32, %s\nv_add_u32 %s, 112, %s\nv_cndmask_b32 %s, %s, %s, vcc" % (b, c, a, d, a, V(vWM), c, d))
    for i in range(4): P("v_mov_b32 %s, 0x3f803f80" % V(vONE + i))
    P("s_mul_i32 %s, %s, 40\nv_add_u32 %s, %s, %s" % (S(t1), S(sWAVE), V(vWC), S(t1), V(vWR)))
    X = Rec()
    X("s_movk_i32 %s, 3456" % S(t2))
    for q in range(5):
        r = V(vWQ + q)
        X("v_add_u32 %s, %d, %s\nv_mul_u32_u24 %s, 13108, %s\nv_lshrrev_b32 %s, 16, %s" % (a, 64 * q, L, b, a, b, b))
        X("v_mul_u32_u24 %s, 5, %s\nv_sub_u32 %s, %s, %s" % (c, b, a, a, c))
        perm32(X, c, b, d)
        X("v_and_b32 %s, 32, %s\nv_add_u32 %s, %s, %s" % (d, b, c, c, d))
        X("v_mul_lo_u32 %s, %s, %s\nv_lshl_add_u32 %s, %s, 4, %s" % (r, c, S(t2), r, a, r))
        if q % 4: X("v_subrev_u32 %s, %d, %s" % (r, 1024 * (q % 4), r))
    r = V(vWX)
    X("s_lshl_b32 %s, %s, 6\nv_add_u32 %s, %s, %s\nv_mul_u32_u24 %s, 13108, %s\nv_lshrrev_b32 %s, 16, %s" % (S(t1), S(sWAVE), a, S(t1), L, b, a, b, b))
    X("v_mul_u32_u24 %s, 5, %s\nv_sub_u32 %s, %s, %s" % (c, b, a, a, c))
    perm32(X, c, b, d)
    X("v_and_b32 %s, 32, %s\nv_add_u32 %s, %s, %s" % (d, b, c, c, d))
    X("v_mul_lo_u32 %s, %s, %s\nv_lshl_add_u32 %s, %s, 4, %s" % (r, c, S(t2), r, a, r))
    wq_items = X.items
    X = Rec()
    u1, u2, u3 = S(t1), S(t2), S(t3)
    X("v_and_b32 %s, 15, %s\nv_lshrrev_b32 %s, 2, %s\nv_lshrrev_b32 %s, 4, %s\nv_cmp_eq_u32 %s, %s, %s" % (a, L, b, a, c, L, S(mD, 2), b, c))
    X("v_and_b32 %s, 1, %s\nv_cmp_eq_u32 %s, 1, %s\nv_and_b32 %s, 2, %s\nv_cmp_eq_u32 %s, 2, %s" % (b, a, S(mE, 2), b, b, a, S(mF, 2), b))
    X("s_lshl_b32 %s, %s, 7\ns_add_u32 %s, %s, %d\nv_lshl_add_u32 %s, %s, 2, %s" % (u1, S(sWAVE), u1, u1, L_MEAN, V(vMN), a, u1))
    X("s_lshl_b32 %s, %s, 5\nv_add_u32 %s, %s, %s\nv_mul_u32_u24 %s, 288, %s" % (u1, S(sWAVE), b, u1, a, b, b))
    X("v_mad_u32_u24 %s, %s, 48, %s\nv_lshl_add_u32 %s, %s, 3, %s" % (V(vRW), c, b, V(vRV), c, b))
    X("v_lshrrev_b32 %s, 2, %s\nv_mul_u32_u24 %s, 288, %s\nv_and_b32 %s, 3, %s\nv_lshl_add_u32 %s, %s, 3, %s" % (d, L, d, d, b, L, d, b, d))
    X("s_lshr_b32 %s, %s, 1\ns_mul_i32 %s, %s, 96\nv_add_u32 %s, %s, %s" % (u3, S(sWAVE), u1, u3, V(vPR), u1, d))
    X.items.append(["s_lshl_b32 %s, %s, 5" % (u1, u3), "s_and_b32 %s, %s, 1" % (u2, S(sWAVE)), "s_cmp_eq_u32 %s, 1" % u2, "s_cselect_b32 %s, 64, %s" % (u1, u1)])
    X("v_add_u32 %s, %s, %s" % (V(vVR), u1, d))
    X("s_lshl_b32 %s, %s, 1\nv_add_u32 %s, %s, %s" % (u1, u3, b, u1, a))
    X("s_mul_i32 %s, %s, 18\ns_sub_u32 %s, 12, %s\nv_add_u32 %s, %s, %s" % (u1, u3, u1, u1, c, u1, a))
    X("s_lshl_b32 %s, %s, 1\ns_add_u32 %s, %s, 4\nv_subrev_u32 %s, %s, %s\nv_cmp_gt_u32 vcc, 2, %s" % (u1, u3, u1, u1, d, u1, a, d))
    X("v_mov_b32 %s, 0x100000\nv_cndmask_b32 %s, %s, %s, vcc" % (d, c, d, c))
    X("v_cmp_ne_u32 vcc, 8, %s\nv_cndmask_b32 %s, 18, %s, vcc" % (a, c, c))
    X.items.append(["s_cmp_eq_u32 %s, 1" % u2, "s_cselect_b64 vcc, -1, 0"])
    X("v_cndmask_b32 %s, %s, %s, vcc" % (b, b, c))
    X("s_mul_i32 %s, %s, 19\nv_add_u32 %s, %s, %s\nv_mul_u32_u24 %s, 96, %s" % (u1, u3, b, u1, b, b, b))
    X("v_lshrrev_b32 %s, 4, %s\nv_lshl_add_u32 %s, %s, 3, %s" % (c, L, V(vKO), c, b))
    X("s_lshl_b32 %s, %s, 4\ns_add_u32 %s, %s, %s\ns_lshl_b32 %s, %s, 12\ns_add_u32 %s, %s, %d" % (u1, S(sHP), u1, u1, S(sRBK), u1, u1, S(sKV), u1, WS_KVP))
    for m in range(2):
        X("v_mov_b32 %s, 0\nv_mov_b32 %s, 0" % (V(vF + 8 * m + 6), V(vF + 8 * m + 7)))
        for f in range(3): X("v_mov_b32 %s, 0" % V(vPHI + 12 * m + 4 * f + 3))
    X("v_lshrrev_b32 %s, 4, %s\nv_lshlrev_b32 %s, 4, %s\nv_add_u32 %s, %d, %s" % (c, L, c, c, V(vCA), L_CS, c))
    X("s_lshl_b32 %s, %s, 6\nv_add_u32 %s, %s, %s" % (u1, S(sWAVE), V(vCS), u1, V(vCA)))
    addr_items = X.items
    X = Rec()
    wr = vT + 8
    X("v_cmp_gt_u32 vcc, 8, %s\nv_mov_b32 %s, 0x1000000\nv_cndmask_b32 %s, %s, %s, vcc" % (L, V(vT + 4), V(vT + 4), V(vT + 4), V(vL16)))
    X.items.append(["s_lshl_b32 %s, %s, 1" % (u1, S(sRBK)), "s_add_u32 %s, %s, %s" % (u1, u1, S(sWAVE)), "s_add_u32 %s, %s, 32" % (u2, S(sRBK)),
                    "s_cmp_lt_u32 %s, 2" % S(sWAVE), "s_cselect_b32 %s, %s, %s" % (u1, u1, u2), "s_mul_i32 %s, %s, 36" % (u2, S(sHP)),
                    "s_add_u32 %s, %s, %s" % (u1, u1, u2), "s_mul_i32 %s, %s, 1152" % (u1, u1)])
    X("buffer_load_dwordx4 %s, %s, %s, %s offen" % (V(wr, 4), V(vL16), srd(sWO), u1))
    X("buffer_load_dwordx4 %s, %s, %s, %s offen offset:1024" % (V(wr + 4, 4), V(vT + 4), srd(sWO), u1))
    X("v_lshrrev_b32 %s, 4, %s\nv_cmp_eq_u32 %s, 2, %s" % (V(vT + 5), L, S(mG, 2), V(vT + 5)))
    wb_load = X.items
    X = Rec()
    sm = V(vT + 16)
    X("v_mov_b32 %s, 0" % sm)
    for i in range(8): X("v_dot2c_f32_bf16 %s, %s, %s" % (sm, V(wr + i), V(vONE)))
    for mode in ("quad_perm:[1,0,3,2]", "quad_perm:[2,3,0,1]", "row_half_mirror", "row_mirror"):
        X("v_add_f32_dpp %s, %s, %s %s row_mask:0xf bank_mask:0xf" % (sm, sm, sm, mode))
    for x in allred(vT + 16, vT + 17, "v_add_f32"): X(x)
    X("v_mul_f32 %s, 0x3ae38e39, %s" % (sm, sm))
    X.items.append(["s_lshl_b32 %s, %s, 2" % (u1, S(sWAVE)), "s_add_u32 %s, %s, %s" % (u1, u1, S(sKV)), "s_mov_b64 exec, 1",
                    "buffer_store_dword %s, off, %s, %s offset:3648 sc1" % (sm, srd(sWS), u1), "s_mov_b64 exec, -1"])
    wb_sum = X.items
    rp_addr, rp_go, tokR = repack_items(P)
    if ACFG["early"]:
        emit_items(P, wq_items + addr_items + rp_addr)
        wq_items, addr_items, rp_addr = [], [], []
    chain = P.ins
    main_P._tok, main_P._lab = P._tok, P._lab
    P = main_P
    weave = r0 + r1[:ACFG["r1w"]]; r1 = r1[ACFG["r1w"]:]
    step = max(1, len(chain) // (len(weave) + 1))
    k, since, inbr = 0, 0, set()
    for n, x in enumerate(chain):
        P.add(x); since += 1
        if x.kind == "br": inbr.add(x.text.split()[-1])
        if x.kind == "label": inbr.discard(x.text[:-1])
        if k < len(weave) and since >= step and not inbr and x.kind == "valu" and not x.op.startswith("v_cmp"):
            emit_items(P, [weave[k]]); k += 1; since = 0
    emit_items(P, weave[k:])
    for x in C.stamp("x_addr"): P.add(x)
    emit_items(P, r1[:ACFG['r1pre']])
    for x in C.stamp("x_r1iss"): P.add(x)
    for which in ACFG["pf0"]:
        emit_items(P, ffn.hbm_prefetch(P, which, vLANE, vT + 18, vT + 19, vT + 20, 255))
    if ACFG['hop'] == 1: C.hop(None)
    for x in C.stamp("x_hop"): P.add(x)
    ax = LdsAddr([vXR, vXR + 1]); aw = LdsAddr([vWR, vWM, vWC])
    P.waittok(toks[0])
    P("s_barrier")
    for x in C.stamp("r0"): P.add(x)
    lab = P.newlabel(C.name + "_nr")
    P("s_cmp_eq_u32 %s, 0\ns_cbranch_scc1 %s" % (S(sZ), lab))
    P("v_add_u32 %s, 1, %s\nv_max_u32 %s, 1, %s\ns_lshl_b32 %s, %s, 2\ns_sub_u32 %s, %s, 4\ns_mov_b64 exec, 1" % (a, V(vFD), a, a, S(t0), S(sZ), S(t0), S(t0)))
    P("buffer_store_dword %s, off, %s, %s sc1" % (a, srd(sDBG), S(t0))).nocount = True
    P("s_mov_b32 %s, 0x7000000\ns_cmp_eq_u32 %s, 1\ns_cselect_b32 %s, %d, %s" % (S(t0), S(sZ), S(t0), WS_NONCE, S(t0)))
    P("buffer_store_dword %s, off, %s, %s sc1" % (a, srd(sWS), S(t0))).nocount = True
    P("s_mov_b64 exec, -1")
    P.label(lab)
    if ACFG['hop'] == 2: C.hop(None)
    wq = []
    lq = P.newlabel(C.name + "_nq")
    it = ["s_cmp_lg_u32 %s, 0" % S(sWAVE), "s_cbranch_scc1 %s" % lq, "s_add_u32 %s, %s, %d" % (S(t0), S(sWB), 16 * 110592), "s_mov_b32 m0, %d" % (2 * RND + 8 * 5120 + 4096)]
    x = P.mk("buffer_load_dwordx4 %s, %s, %s offen lds" % (V(vWQ + 4), srd(sWQKV), S(t0))); x.nocount = True
    wq.append(it + [x, lq + ":"])
    wq.append(["s_mul_i32 %s, %s, 221184" % (S(t0), S(sWAVE)), "s_sub_u32 %s, %s, %s" % (S(t0), S(sWB), S(t0)), "s_add_u32 %s, %s, %d" % (S(t0), S(t0), 16 * 110592),
               "s_add_u32 m0, %s, %d" % (S(sW1K), 2 * RND + 8 * 5120), "buffer_load_dwordx4 %s, %s, %s offen lds" % (V(vWX), srd(sWQKV), S(t0))])
    for pr in range(2):
        for q in range(5):
            it = []
            if q == 0: it.append("s_add_u32 %s, %s, %d" % (S(t0), S(sWB), pr * 8 * 110592))
            if q % 4 == 0: it.append("s_add_u32 m0, %s, %d" % (S(sW5K), 2 * RND + pr * 4 * 5120 + 1024 * q))
            it.append(P.mk("buffer_load_dwordx4 %s, %s, %s offen offset:%d lds" % (V(vWQ + q), srd(sWQKV), S(t0), 1024 * (q % 4)), toks[5] if (pr, q) == (1, 4) else None))
            wq.append(it)
    NT = 6
    main, st = [], []
    for k in range(18):
        for T in range(NT):
            bi = len(st); st.append(len(main))
            wf = vWF + 4 * (bi % 6)
            if T == 5:
                main.append(mfma(acc(0, 2), wf, vONE, None if k == 0 else acc(0, 2)))
                continue
            for cidx in range(3 if T == 2 else 2):
                main.append(mfma(acc(T, cidx), wf, xf(k, cidx) if cidx < 2 else vONE, None if k == 0 else acc(T, cidx)))
            if T in (1, 3):
                m = T >> 1
                if not ACFG["sp"]: main.append(mfma(vSUM + 4 * m, vONE, xf(k, m), None if k == 0 else vSUM + 4 * m))
                main.append(mfma(vSSQ + 4 * m, xf(k, m), xf(k, m), None if k == 0 else vSSQ + 4 * m))
    for bi in range(0, len(st), 2):
        w = list(range(vWF + 4 * (bi % 6), vWF + 4 * (bi % 6) + 8))
        if bi % NT == 0: w += list(range(xf(bi // NT, 0), xf(bi // NT, 0) + 8))
        main[st[bi]] = [WaitRegs(w), main[st[bi]]]
    rd, bar = [], [-1]
    for k in range(18):
        rho, kk = k // 4, k % 4
        base = (rho % 3) * RND
        for T in range(NT):
            bi = k * NT + T
            lo = st[bi - 4] - 1 if bi >= 4 else -1
            dl = st[bi - (bi & 1)] if bi >= 4 else 0
            if T == 0 and kk == 0 and rho > 0:
                rd.append((lo, lo + 1, [WaitTok(toks[rho]), "s_waitcnt lgkmcnt(0)", "s_barrier"] + (C.stamp("r%d" % rho) if rho in ACFG["rst"] else [])))
                bar.append(lo + 1); lo += 1
            it = []
            if T == 0:
                it += ax.rebase(base, base + 32768)
                for m in range(2):
                    it.append("ds_read_b128 %s, %s offset:%d" % (R(xf(k, m), 4), V(vXR + (kk & 1)), ax.off(base + (kk >> 1) * 4096 + m * 2048)))
                it += aw.rebase(base + 32768, base + RND)
            wf = vWF + 4 * (bi % 6)
            reg, col = (vWM, 0) if T == 2 else (vWC, 0) if T == 5 else (vWR, (0, 40, 0, 80, 120)[T])
            for h in range(2):
                it.append("ds_read_b64_tr_b16 %s, %s offset:%d" % (V(wf + 2 * h, 2), V(reg), aw.off(base + 32768 + kk * 5120 + h * 2560 + col)))
            nxt = ((bi // (4 * NT)) + 1) * 4 * NT
            if nxt < len(st) and bi >= nxt - 4: dl = min(dl, st[nxt - 4])
            for x in it: rd.append((min(lo, dl - 1), dl, x))
    bar.append(len(main))
    patch = []
    if ACFG["sp"]:
        for k in range(18):
            bi = k * NT + 2
            wf = vWF + 4 * (bi % 6)
            for j in range(4):
                patch.append((st[bi - 2] + (j >> 1), st[bi] - 1, "v_mov_b32_dpp %s, %s quad_perm:[0,1,2,3] row_mask:0xf bank_mask:0x4" % (V(wf + j), V(vONE))))
    side, extra = [], []
    for rho in range(5):
        its = []
        if rho == 0: its += r1[ACFG['r1pre']:]
        if rho == ACFG["kvt"] - 1:
            ta, tb = V(vT + 18), V(vT + 19)
            x1 = P.mk("buffer_load_dword %s, %s, %s, %s offen" % (V(255), ta, srd(sWQKV), S(89))); x1.dst = []; x1.nocount = True
            x2 = P.mk("buffer_load_dword %s, %s, %s, %s offen" % (V(255), ta, srd(sWO), S(89))); x2.dst = []; x2.nocount = True
            la, lb = P.newlabel(C.name + "_t"), P.newlabel(C.name + "_t")
            its.append(["v_min_u32 %s, 20, %s" % (ta, L), "s_cmp_eq_u32 %s, 1" % S(sWAVE), "s_cbranch_scc1 %s" % la, "s_cmp_lg_u32 %s, 0" % S(sWAVE), "s_cbranch_scc1 %s" % lb,
                        "s_mul_i32 %s, s2, 21" % S(89), "v_add_u32 %s, %s, %s" % (ta, S(89), ta), "v_mul_u32_u24 %s, 7282, %s" % (tb, ta), "v_lshrrev_b32 %s, 16, %s" % (tb, tb),
                        "v_mul_u32_u24 %s, 2304, %s" % (tb, tb), "v_lshl_add_u32 %s, %s, 7, %s" % (ta, ta, tb), "s_mov_b32 %s, 0" % S(89), x1, "s_branch %s" % lb,
                        la + ":", "v_lshlrev_b32 %s, 7, %s" % (ta, ta), "s_mul_i32 %s, s2, %d" % (S(89), 21 * 128), x2, lb + ":"])
        if rho == 2: its += rp_go
        if rho <= 2: its += round_x(P, rho + 2) + round_w(P, rho + 2, toks[rho + 2])
        if rho == 3:
            its.append(["s_mul_i32 %s, %s, 110592" % (S(t0), S(sWAVE)), "s_add_u32 %s, %s, %s" % (S(sWB), S(sWB), S(t0))])
            for which in ACFG["pf3"]: its.append(ffn.hbm_prefetch(P, which, vLANE, vT + 18, vT + 19, vT + 20, 255, False, S(t0), S(89)))
        if rho == 4:
            its.append(["v_and_b32 %s, 15, %s" % (V(vFA), L), "v_lshlrev_b32 %s, 2, %s" % (V(vFA), V(vFA)),
                        "buffer_load_dword %s, %s, %s, 0 offen sc1" % (V(vFD), V(vFA), srd(sDBG))])
        lo, hi = max(bar[rho], 0), bar[rho + 1]
        side += spread(its, lo, lo + int((hi - lo - 2) * (ACFG["pace"] if rho < 3 else 0.2)), hi - 1 if rho < 4 else None)
        ex = {0: lambda: wphi_items(P), 1: lambda: addr_items + wb_load + rp_addr, 2: lambda: wq_items, 3: lambda: wb_sum}.get(rho, lambda: [])()
        if rho == 4:
            X = Rec(); rst = repack_out(X, vT + 8); ex = X.items + rst
        extra += [(lo + 4, INF, x) for x in ex]
    multi_interleave(P, main, [rd, patch, side, extra], 2)
    for x in C.stamp("kvg"): P.add(x)
    main_P = P
    P = Prog(); P._tok, P._lab = main_P._tok, main_P._lab
    if ACFG['cs']:
        P("ds_write_b128 %s, %s" % (V(vCS), V(acc(0, 2), 4)))
    for m in range(2):
        q = vSSQ + 4 * m
        ra, rb = vT + 2 * m, vT + 2 * m + 1
        P("v_cndmask_b32 %s, %s, %s, %s\nv_cndmask_b32 %s, %s, %s, %s" % (V(ra), V(q), V(q + 1), S(mE, 2), V(rb), V(q + 2), V(q + 3), S(mE, 2)))
        P("v_cndmask_b32 %s, %s, %s, %s\nv_cndmask_b32 %s, 0, %s, %s" % (V(ra), V(ra), V(rb), S(mF, 2), V(ra), V(ra), S(mD, 2)))
    r0, r1 = allred(vT, vT + 1, "v_add_f32"), allred(vT + 2, vT + 3, "v_add_f32")
    if ACFG["sp"]:
        for m in range(2): P("v_cndmask_b32 %s, 0, %s, %s" % (V(vSUM + 4 * m), V(acc(2, m)), S(mG, 2)))
        for x, y, z, w in zip(r0, r1, allred(vSUM, vSUM + 1, "v_add_f32"), allred(vSUM + 4, vSUM + 5, "v_add_f32")): P(x); P(y); P(z); P(w)
    else:
        for x, y in zip(r0, r1): P(x); P(y)
    for m in range(2):
        ra, rb = V(vT + 2 * m), V(vT + 2 * m + 1)
        P("v_mul_f32 %s, 0x3ae38e39, %s\nv_mul_f32 %s, 0x3ae38e39, %s" % (rb, V(vSUM + 4 * m), ra, ra))
        P("ds_write_b32 %s, %s offset:%d" % (V(vMN), rb, 64 * m))
        P("v_fma_f32 %s, -%s, %s, %s\nv_max_f32 %s, 0, %s\nv_add_f32 %s, 0x3727c5ac, %s\nv_rsq_f32 %s, %s" % (ra, rb, rb, ra, ra, ra, ra, ra, V(vA + m), ra))
    for m in range(2): P("v_mul_f32 %s, -%s, %s" % (V(vB + m), V(vT + 2 * m + 1), V(vA + m)))
    if ACFG['cs']:
        P("s_waitcnt lgkmcnt(0)\ns_barrier")
        for w, T in enumerate((0, 1, 3, 4)): P("ds_read_b128 %s, %s offset:%d" % (V(acc(T, 2), 4), V(vCA), 64 * w))
    if ACFG["tab"] == 1: emit_items(P, lane_tables(C))
    P("s_mov_b32 %s, %d" % (S(t2), LOG2E))
    for m in range(2):
        ln_fix(P, 0, m, vF + 8 * m); ln_fix(P, 1, m, vF + 8 * m + 2); ln_fix(P, 2, m, vF + 8 * m + 4)
        for T in range(3):
            dd = vPP + 12 * m + 4 * T
            P(mfma(dd, vPH + 8 * T, vF + 8 * m)); P(mfma(dd, vPH + 8 * T + 4, vF + 8 * m + 4, dd))
    for m in range(2):
        ln_fix(P, 3, m, vT + 4); ln_fix(P, 4, m, vT + 6)
        P("v_cndmask_b32 %s, %s, %s, %s\nv_cndmask_b32 %s, %s, %s, %s" % (V(vT + 8), V(vF + 8 * m + 4), V(vONE), S(mG, 2), V(vT + 9), V(vF + 8 * m + 5), V(vONE), S(mG, 2)))
        for i in range(3): P("ds_write_b64 %s, %s offset:%d" % (V(vRV), V(vT + 4 + 2 * i, 2), m * 4608 + 192 + 32 * i))
    for m in range(2):
        softmax(P, m)
        for f in range(3): P("ds_write_b128 %s, %s offset:%d" % (V(vRW), V(vPHI + 12 * m + 4 * f, 4), m * 4608 + 16 * f))
    P("s_waitcnt lgkmcnt(0)\ns_barrier")
    for x in C.stamp("phik"): P.add(x)
    for ks in range(4):
        fr = vAC + 16 * ks
        for h in range(2): P("ds_read_b64_tr_b16 %s, %s offset:%d" % (V(fr + 12 + 2 * h, 2), V(vVR), ks * 9216 + h * 4608 + 192))
        for tau in range(3):
            for h in range(2): P("ds_read_b64_tr_b16 %s, %s offset:%d" % (V(fr + 4 * tau + 2 * h, 2), V(vPR), ks * 9216 + h * 4608 + 32 * tau))
        if ks >= 1:
            fr = vAC + 16 * (ks - 1)
            for tau in range(3): P(mfma(vPP + 4 * tau, fr + 4 * tau, fr + 12, None if ks == 1 else vPP + 4 * tau))
    fr = vAC + 48
    for tau in range(3): P(mfma(vPP + 4 * tau, fr + 4 * tau, fr + 12, vPP + 4 * tau))
    chain = P.ins
    main_P._tok, main_P._lab = P._tok, P._lab
    P = main_P
    if ACFG["tab"] == 2:
        t = lane_tables(C)[0]
        t = [t[:5]] + [[x] for x in t[5:]]
        wq = wq[:6] + [y for pr in zip(wq[6:], t) for y in pr]
    step = max(1, int(len(chain) * ACFG["wqfr"]) // max(len(wq), 1))
    k, since = 0, step
    for n, x in enumerate(chain):
        P.add(x); since += 1
        if k < len(wq) and since >= step and x.kind in ("valu", "lds"):
            emit_items(P, [wq[k]]); k += 1; since = 0
    emit_items(P, wq[k:])
    lab = P.newlabel(C.name + "_rdy")
    C.slow.append("""%s:
    s_mov_b32 %s, 0
%s_l:
    buffer_load_dword %s, %s, %s, 0 offen sc1
    s_add_u32 %s, %s, 1
    s_waitcnt vmcnt(0)
    v_cmp_eq_u32 vcc, 0, %s
    s_cmp_gt_u32 %s, %d
    s_cbranch_scc1 %s_b
    s_cbranch_vccnz %s_l
    s_branch %s_b
""" % (lab, S(sSPIN), lab, V(vFD), V(vFA), srd(sDBG), S(sSPIN), S(sSPIN), V(vFD), S(sSPIN), SPIN_MAX, lab, lab, lab))
    P("v_cmp_eq_u32 vcc, 0, %s\ns_cbranch_vccnz %s\n%s_b:" % (V(vFD), lab, lab))
    P("v_readfirstlane_b32 %s, %s" % (S(sNON), V(vFD)))
    if ACFG["s1c"]: P("v_bfe_u32 %s, %s, 4, 1\nv_cmp_eq_u32 %s, 1, %s" % (V(vT + 8), L, S(mD, 2), V(vT + 8)))
    tokS = P.newtok()
    for tau in range(3):
        for h in range(2): P("v_cvt_pk_bf16_f32 %s, %s, %s" % (V(vT + 2 * tau + h), V(vPP + 4 * tau + 2 * h), V(vPP + 4 * tau + 2 * h + 1)))
    if ACFG["s1c"]:
        for tau in range(3): P("v_add_u32 %s, %s, %s\nv_mov_b32 %s, 0" % (V(vT + 8 + tau), V(vT + 2 * tau), V(vT + 2 * tau + 1), V(vT + 12 + tau)))
        for tau in range(3): P("v_permlane16_swap_b32 %s, %s" % (V(vT + 12 + tau), V(vT + 8 + tau)))
        for tau in range(3):
            P("v_add3_u32 %s, %s, %s, %s" % (V(vT + 12 + tau), V(vT + 12 + tau), V(vT + 2 * tau), S(sNON)))
            P("v_cndmask_b32 %s, %s, %s, %s" % (V(vT + 2 * tau + 1), V(vT + 2 * tau + 1), V(vT + 12 + tau), S(mD, 2)))
    for tau in range(3):
        P("buffer_store_dwordx2 %s, %s, %s, %s offen offset:%d sc1" % (V(vT + 2 * tau, 2), V(vKO), srd(sWS), S(sKV), 32 * tau), tok=tokS if tau == 2 else None)
    P.waittok(toks[5])
    if ACFG["s1c"]:
        for x in C.publish(vT + 7, 1) + C.stamp("pub1"): P.add(x)
    P("s_barrier")
    return tokS

def wphi_items(P):
    L = V(vLANE)
    a, b, c, d = V(vT), V(vT + 1), V(vT + 2), V(vT + 3)
    tmp = vT + 4
    it = []
    it += ["v_bfe_u32 %s, %s, 3, 1" % (a, L), "v_cmp_eq_u32 %s, 1, %s" % (S(mA, 2), a),
           "v_bfe_u32 %s, %s, 2, 1" % (b, L), "v_mul_u32_u24 %s, 18, %s" % (b, b), "v_and_b32 %s, 3, %s" % (c, L),
           "v_cmp_eq_u32 %s, 0, %s" % (S(mB, 2), c), "v_lshl_add_u32 %s, %s, 1, %s" % (b, c, b),
           "v_add_u32 %s, %d, %s" % (b, L_PHI, b), "v_lshrrev_b32 %s, 4, %s" % (c, L), "v_cmp_eq_u32 %s, 0, %s" % (S(mC, 2), c),
           "v_mul_u32_u24 %s, 144, %s" % (c, c), "v_mul_u32_u24 %s, 720, %s" % (d, a), "v_add3_u32 %s, %s, %s, %s" % (c, c, d, b),
           "v_mul_u32_u24 %s, 72, %s" % (d, a), "v_add_u32 %s, %s, %s" % (d, d, b)]
    raw = vPP
    for T in range(3):
        for s in range(4):
            it.append("ds_read_u16 %s, %s offset:%d" % (V(raw + 6 * T + s), c, 36 * s + 8 * T))
        for s in range(2):
            it.append("ds_read_u16 %s, %s offset:%d" % (V(raw + 6 * T + 4 + s), d, 576 + 36 * s + 8 * T))
    for i in range(9): it.append("v_lshl_or_b32 %s, %s, 16, %s" % (V(tmp + i), V(raw + 2 * i + 1), V(raw + 2 * i)))
    for i in range(3): it.append("v_cndmask_b32 %s, 0, %s, %s" % (V(tmp + 6 + i), V(tmp + 6 + i), S(mB, 2)))
    for T in range(3):
        f0, f1 = vPH + 8 * T, vPH + 8 * T + 4
        for i in range(2):
            it.append("v_cndmask_b32 %s, %s, 0, %s" % (V(f0 + i), V(tmp + 3 * T + i), S(mA, 2)))
            it.append("v_cndmask_b32 %s, 0, %s, %s" % (V(f0 + 2 + i), V(tmp + 3 * T + i), S(mA, 2)))
        it.append("v_cndmask_b32 %s, 0, %s, %s" % (V(tmp + 3 * T + 2), V(tmp + 3 * T + 2), S(mC, 2)))
        it.append("v_cndmask_b32 %s, %s, 0, %s" % (V(f1), V(tmp + 3 * T + 2), S(mA, 2)))
        it.append("v_cndmask_b32 %s, 0, %s, %s" % (V(f1 + 1), V(tmp + 3 * T + 2), S(mA, 2)))
        it.append("v_mov_b32 %s, 0" % V(f1 + 2)); it.append("v_mov_b32 %s, 0" % V(f1 + 3))
    return it

def lane_tables(C):
    def wo(q, left):
        def f(l):
            pi = 64 * q + l; rho, pc = pi // 10, pi % 10
            s_, g = 4 * (rho >> 4) + (rho & 3), (rho >> 2) & 3
            row = 18 * (4 * g + (s_ >> 1)) + 16 + (s_ & 1) if left else 8 * g + 2 * (g >> 1) + s_
            return row * 1152 + (0x1000000 if pc == 9 else 16 * pc) - 1024 * (q % 4)
        return f
    w = [wo(q, 0) for q in range(5)] + [wo(q, 1) for q in range(5)]
    def fa(l):
        rb = l >> 2
        x = (((rb & 3) << 13) + ((rb >> 2) << 8)) if ACFG["map"] == "4x8" else (((rb & 1) << 14) + ((rb >> 1) << 7))
        return (x << 2) + ((l & 3) << 7)
    def rbase(l): return L_R + ((l >> 3) & 1) * 19 * 96 + ((l >> 4) & 1) * 48
    ok = lambda l: ((l >> 3) & 1) == (l >> 5)
    ra = lambda l: rbase(l) + (8 * ((l >> 2) & 1) + (l & 3)) * 96 if ok(l) else L_ZERO
    rb_ = lambda l: rbase(l) + (18 if (l & 3) == 0 else 15 + (l & 3)) * 96 if ok(l) and (l & 3) != 3 else L_ZERO
    wa = lambda l: L_WBAR + (l >> 5) * 80 + ((l >> 4) & 1) * 32
    wc = lambda l: L_ZERO if (l >> 4) & 1 else L_WBAR + (l >> 5) * 80 + 64
    ol = lambda l: (l & 15) * 16 + (l >> 5) * 4 + ((l >> 4) & 1) * 8
    def xl(q):
        def f(l):
            pi = 64 * q + l
            return 0x1000000 if pi >= 144 else (pi // 9) * 1008 + pi * 16 - 1024 * q
        return f
    qr = lambda l: 2 * RND + (l >> 2) * 80 + (l & 3) * 8
    qm = lambda l: 2 * RND + (l >> 2) * 80 + 32
    sp = 90
    it = [C.table_base(sp) + [C.table_load(64, [qr, qm, fa, ra], vL16, sp), C.table_load(128, w[0:4], vL16, sp), C.table_load(132, w[4:8], vL16, sp),
          C.table_load(136, w[8:10], vL16, sp), C.table_load(68, [rb_, wa, wc, ol], vL16, sp), C.table_load(72, [lambda l: L_R + 16 * l, xl(0), xl(1), xl(2)], vL16, sp)]]
    return it
vFB = 251
vOM, vOLf = 128, 133
def wo_addr(P):
    L = V(vLANE)
    a, b, c, d = V(vT + 8), V(vT + 9), V(vT + 10), V(vT + 11)
    P("s_lshl_b32 %s, %s, 3\nv_lshrrev_b32 %s, 3, %s\nv_add_u32 %s, %s, %s" % (S(t2), S(sWAVE), a, L, a, S(t2), a))
    P("v_and_b32 %s, 6, %s\nv_and_b32 %s, 7, %s\nv_xor_b32 %s, %s, %s\nv_lshlrev_b32 %s, 4, %s" % (b, a, c, L, b, b, c, b, b))
    wo_rows(P, a, V(vOM), V(vOM + 1), c, d)
    P("s_movk_i32 %s, 1152\nv_mad_u32_u24 %s, %s, %s, %s\nv_mad_u32_u24 %s, %s, %s, %s" % (S(t2), V(vOM), V(vOM), S(t2), b, V(vOM + 1), V(vOM + 1), S(t2), b))

def p1b(C, tokS):
    P = C.P
    L = V(vLANE)
    a, b, c, d = V(vT), V(vT + 1), V(vT + 2), V(vT + 3)
    if ACFG["tab"]:
        vQR, vQM = 64, 65
        P("s_and_b32 %s, %s, 1\ns_lshl_b32 %s, %s, 3\nv_add_u32 %s, %s, %s\nv_add_u32 %s, %s, %s" % (S(t0), S(sHP), S(t0), S(t0), V(vQR), S(t0), V(vQR), V(vQM), S(t0), V(vQM)))
        X = Rec()
    else:
        vQR, vQM = 244, 245
        P("v_lshrrev_b32 %s, 2, %s\nv_mul_u32_u24 %s, 80, %s\ns_and_b32 %s, %s, 1\ns_lshl_b32 %s, %s, 3\ns_add_u32 %s, %s, %d" % (V(vQM), L, V(vQM), V(vQM), S(t0), S(sHP), S(t0), S(t0), S(t0), S(t0), 2 * RND))
        P("v_add_u32 %s, %s, %s\nv_and_b32 %s, 3, %s\nv_lshl_add_u32 %s, %s, 3, %s\nv_add_u32 %s, 32, %s" % (V(vQM), S(t0), V(vQM), V(vQR), L, V(vQR), V(vQR), V(vQM), V(vQM), V(vQM)))
        X = Rec()
        wo_addr(X)
    X("s_and_b32 %s, %s, 7\ns_lshl_b32 %s, %s, 7" % (S(sWB), S(sHP), S(sWB), S(sWB)))
    X("s_lshr_b32 %s, %s, 3\ns_lshl_b32 %s, %s, 2\ns_lshl_b32 %s, %s, 3\ns_add_u32 %s, %s, %s\ns_add_u32 %s, %s, %s" %
      (S(t0), S(sHP), S(t0), S(t0), S(t1), S(sRBK), S(t0), S(t0), S(t1), S(sMT), S(t0), S(sWAVE)))
    pre = X.items
    pub = [[WaitTok(tokS)] + C.publish(vT + 7, 1) + C.stamp("pub1")] if not ACFG["s1c"] else []
    side = []
    for f in range(18):
        row = 36 * f if f < 16 else 288 * (f - 16)
        side.append(["s_add_u32 %s, %s, %d" % (S(t0), S(sWB), row * 1152), "s_add_u32 m0, %s, %d" % (S(sW1K), f * 4096),
                     "buffer_load_dwordx4 %s, %s, %s offen lds" % (V(vOM + (f >= 16)), srd(sWO), S(t0))])
    if ACFG["tab"]:
        X = Rec()
        vRa, vRb, vWa, vWc, vOL, vRS, vXL = 67, 68, 69, 70, 71, 72, 73
        f_hp(X, S(t1), S(sHP), S(t2))
        X("s_lshl_b32 %s, %s, 2\nv_add_u32 %s, %s, v66\nv_add_u32 %s, %s, %s" % (S(t1), S(t1), V(vFA), S(t1), V(vRS), S(sW1K), V(vRS)))
        X("v_bfe_u32 %s, %s, 4, 1\nv_cmp_eq_u32 %s, 1, %s" % (b, L, S(mB, 2), b))
        for i in range(4): X("v_mov_b32 %s, 0" % V(vT + 8 + i))
        X("v_and_b32 %s, 0x1f0, %s\nv_add_u32 %s, %d, %s\nds_write_b128 %s, %s" % (c, V(vL16), c, L_ZERO, c, c, V(vT + 8, 4)))
    else:
        X = Rec()
        e4, e5 = V(vT + 4), V(vT + 5)
        X("v_lshrrev_b32 %s, 2, %s" % (e4, L))
        vf_rb(X, V(vFA), e4, e5)
        f_hp(X, S(t1), S(sHP), S(t2))
        X("v_and_b32 %s, 3, %s\nv_lshl_add_u32 %s, %s, 2, %s\nv_add_u32 %s, %s, %s" % (e4, L, V(vFA), e4, V(vFA), V(vFA), S(t1), V(vFA)))
        for x in flagfix(V(vFA), e4): X(x)
        vRa, vRb, vWa, vWc, vOL, vRS, vXL = 240, 241, 242, 243, 246, 247, 248
        X("v_bfe_u32 %s, %s, 3, 1\nv_lshrrev_b32 %s, 5, %s\nv_cmp_eq_u32 %s, %s, %s" % (a, L, b, L, S(mA, 2), a, b))
        X("v_mul_u32_u24 %s, %d, %s\nv_bfe_u32 %s, %s, 4, 1\nv_mad_u32_u24 %s, %s, 48, %s\nv_add_u32 %s, %d, %s" % (a, 19 * 96, a, b, L, a, b, a, a, L_R, a))
        X("v_bfe_u32 %s, %s, 2, 1\nv_and_b32 %s, 3, %s\nv_lshl_add_u32 %s, %s, 3, %s\nv_mul_u32_u24 %s, 96, %s\nv_add_u32 %s, %s, %s" % (b, L, c, L, b, b, c, b, b, b, b, a))
        X("v_mov_b32 %s, %d\nv_cndmask_b32 %s, %s, %s, %s" % (d, L_ZERO, V(vRa), d, b, S(mA, 2)))
        X("v_add_u32 %s, 15, %s\nv_cmp_ne_u32 vcc, 0, %s\nv_cndmask_b32 %s, 18, %s, vcc\nv_mul_u32_u24 %s, 96, %s\nv_add_u32 %s, %s, %s" % (b, c, c, b, b, b, b, b, b, a))
        X("v_cmp_ne_u32 vcc, 3, %s\ns_and_b64 vcc, vcc, %s\nv_cndmask_b32 %s, %s, %s, vcc" % (c, S(mA, 2), V(vRb), d, b))
        X("v_lshrrev_b32 %s, 5, %s\nv_mul_u32_u24 %s, 80, %s\nv_add_u32 %s, %d, %s\nv_bfe_u32 %s, %s, 4, 1" % (a, L, a, a, a, L_WBAR, a, b, L))
        X("v_cmp_eq_u32 %s, 1, %s\nv_lshl_add_u32 %s, %s, 5, %s" % (S(mB, 2), b, V(vWa), b, a))
        X("v_add_u32 %s, 64, %s\nv_cndmask_b32 %s, %s, %s, %s" % (a, a, V(vWc), a, d, S(mB, 2)))
        X("v_and_b32 %s, 15, %s\nv_lshlrev_b32 %s, 4, %s\nv_lshrrev_b32 %s, 5, %s\nv_lshl_add_u32 %s, %s, 2, %s" % (a, L, a, a, c, L, a, c, a))
        X("v_lshl_add_u32 %s, %s, 3, %s" % (V(vOL), b, a))
        X("v_add_u32 %s, %s, %s\nv_add_u32 %s, %d, %s" % (V(vRS), S(sW1K), V(vL16), V(vRS), L_R, V(vRS)))
        for i in range(4): X("v_mov_b32 %s, 0" % V(vT + 8 + i))
        X("v_and_b32 %s, 0x1f0, %s\nv_add_u32 %s, %d, %s\nds_write_b128 %s, %s" % (c, V(vL16), c, L_ZERO, c, c, V(vT + 8, 4)))
        X("v_min_u32 %s, 17, %s\nv_add_u32 %s, 176, %s\nv_lshlrev_b32 %s, 9, %s\ns_lshr_b32 %s, %s, 8\ns_lshl_b32 %s, %s, 7\nv_add_u32 %s, %s, %s" %
          (V(vFB), L, V(vFB), V(vFB), V(vFB), V(vFB), S(t1), S(sWB), S(t1), S(t1), V(vFB), S(t1), V(vFB)))
        X("s_lshr_b32 %s, %s, 3\ns_sub_u32 %s, %s, %s\ns_add_u32 %s, %s, 896" % (S(t1), S(sWB), S(t1), S(t1), S(sWB), S(t1), S(t1)))
        for q in range(3):
            X("v_add_u32 %s, %d, %s\nv_mul_u32_u24 %s, 7282, %s\nv_lshrrev_b32 %s, 16, %s" % (a, 64 * q, L, b, a, b, b))
            X("v_mov_b32 %s, %s\nv_mul_u32_u24 %s, %d, %s\nv_lshl_add_u32 %s, %s, 4, %s" % (c, b, b, 1152 - 144, b, V(vXL + q), a, b))
            X("v_mul_u32_u24 %s, 9, %s\nv_sub_u32 %s, %s, %s\nv_cmp_eq_u32 vcc, 8, %s\nv_add_u32 %s, %s, %s\nv_cndmask_b32 %s, %s, %s, vcc" % (c, c, a, a, c, a, a, S(t1), V(vXL + q), V(vXL + q), V(vXL + q), a))
            if q: X("v_subrev_u32 %s, %d, %s" % (V(vXL + q), 1024 * q, V(vXL + q)))
        X("v_cmp_gt_u32 vcc, 16, %s\nv_mov_b32 %s, 0x1000000\nv_cndmask_b32 %s, %s, %s, vcc" % (L, a, V(vXL + 2), a, V(vXL + 2)))
    post = X.items
    main, rd, st = [], [], []
    for k in range(18):
        for T in range(3):
            bi = len(st); st.append(len(main))
            wf = vWF + 4 * (bi % 6)
            for cidx in range(3):
                main.append(mfma(acc(T, cidx), wf, xf(k, cidx) if cidx < 2 else vONE, None if k == 0 else acc(T, cidx)))
            lo = st[bi - 4] - 1 if bi >= 4 else -1
            for h in range(2):
                rd.append((lo, st[bi - (bi & 1) * ACFG['mw']] if bi >= 4 else 0, "ds_read_b64_tr_b16 %s, %s offset:%d" % (V(wf + 2 * h, 2), V(vQM if T == 2 else vQR), k * 2560 + h * 1280 + (0, 40, 0)[T])))
    if ACFG["mw"]:
        for bi in range(0, len(st), 2):
            main[st[bi]] = [WaitRegs(range(vWF + 4 * (bi % 6), vWF + 4 * (bi % 6) + 8)), main[st[bi]]]
    n0 = ACFG["pub1"]
    s2 = [(0, n0, x) for x in pre] + [(n0, n0 + 1, x) for x in pub] + spread(side[:ACFG['woq']], n0 + 1, 155)
    e1 = ACFG["s1at"]
    preg = lambda r: (36 + 4 * r if r < 10 else 4 * (r - 10)) if e1 else vAC + 4 * r
    post = [(n0 + 1, e1 - 40 if e1 else INF, x) for x in post]
    if e1:
        post += [(e1 - 40, INF, C.load_flags(vFD, vFA)), (e1 - 39, INF, C.load_flags(vFB + 1, vFB)),
                 (e1, INF, C.check_flags(vFD, vFA, 1, 255) + C.stamp("s1"))]
        it = ["s_lshl_b32 %s, %s, 16" % (S(t1), S(sHP)), "s_add_u32 %s, %s, %d" % (S(t1), S(t1), WS_KVP), "s_add_u32 %s, %s, %s" % (S(t3), S(t1), S(sW1K))]
        for r in range(10):
            it += ["buffer_load_dwordx4 %s, %s, %s, %s offen sc1" % (V(preg(r), 4), V(vL16), srd(sWS), S(t3)), "s_add_u32 %s, %s, 4096" % (S(t3), S(t3))]
        post += paced(it, e1 + 1, 2)[0]
        s2 = [(0, n0, x) for x in pre] + [(n0, n0 + 1, x) for x in pub] + spread(side[:ACFG['woq']], n0 + 1, e1 - 42, e1 - 41)
    multi_interleave(P, main, [rd, s2, post], 2)
    for x in C.stamp("qg"): P.add(x)
    if not e1:
        P.add(C.load_flags(vFD, vFA))
        P.add(C.load_flags(vFB + 1, vFB))
    P("s_mov_b32 %s, %d" % (S(t2), LOG2E))
    for m in range(2):
        ln_fix(P, 0, m, vF + 8 * m); ln_fix(P, 1, m, vF + 8 * m + 2); ln_fix(P, 2, m, vF + 8 * m + 4)
        for T in range(3):
            dd = vPP + 12 * m + 4 * T
            P(mfma(dd, vPH + 8 * T, vF + 8 * m)); P(mfma(dd, vPH + 8 * T + 4, vF + 8 * m + 4, dd))
    if e1:
        for r in range(10, 16):
            P("buffer_load_dwordx4 %s, %s, %s, %s offen sc1" % (V(preg(r), 4), V(vL16), srd(sWS), S(t3)))
            if r < 15: P("s_add_u32 %s, %s, 4096" % (S(t3), S(t3)))
        softmax(P, 0)
    else:
        softmax(P, 0)
        for x in C.check_flags(vFD, vFA, 1, 255): P.add(x)
        for x in C.stamp("s1"): P.add(x)
        P("s_lshl_b32 %s, %s, 16\ns_add_u32 %s, %s, %d\ns_add_u32 %s, %s, %s" % (S(t1), S(sHP), S(t1), S(t1), WS_KVP, S(t0), S(t1), S(sW1K)))
        for r in range(16):
            P("buffer_load_dwordx4 %s, %s, %s, %s offen sc1" % (V(vAC + 4 * r, 4), V(vL16), srd(sWS), S(t0)))
            if r < 15: P("s_add_u32 %s, %s, 4096" % (S(t0), S(t0)))
    P("v_and_b32 %s, 15, %s\nv_lshlrev_b32 %s, 12, %s" % (V(vF + 1), L, V(vF), V(vF + 1)))
    P("buffer_load_dwordx3 %s, %s, %s, %s offen offset:3648 sc1" % (V(vF + 4, 3), V(vF), srd(sWS), S(t1)))
    for x in C.check_flags(vFB + 1, vFB, 1): P.add(x)
    P("s_lshr_b32 %s, %s, 8\ns_mul_i32 %s, %s, 18432\ns_add_u32 %s, %s, %s\ns_add_u32 %s, %s, %d" % (S(t0), S(sWB), S(t0), S(t0), S(t0), S(t0), S(sW1K), S(t0), S(t0), WS_RW))
    lab = P.newlabel(C.name + "_nl")
    P("s_cmp_gt_u32 %s, 1\ns_cbranch_scc1 %s\ns_add_u32 m0, %s, %d\ns_add_u32 %s, %s, 16384" % (S(sWAVE), lab, S(sW1K), 73728 + 16384, S(t1), S(t0)))
    P("buffer_load_dwordx4 %s, %s, %s offen sc1 lds" % (V(vL16), srd(sWS), S(t1))).nocount = True
    P.label(lab)
    rwd = [["s_add_u32 m0, %s, %d" % (S(sW1K), 73728 + 4096 * i), "s_add_u32 %s, %s, %d" % (S(t1), S(t0), 4096 * i),
            "buffer_load_dwordx4 %s, %s, %s offen sc1 lds" % (V(vL16), srd(sWS), S(t1))] for i in range(4)]
    for which in ACFG["pfQ"]:
        emit_items(P, ffn.hbm_prefetch(P, which, vLANE, vT + 18, vT + 19, vT + 20, 255))
    main_P = P
    P = Prog(); P._tok, P._lab = main_P._tok, main_P._lab
    softmax(P, 1)
    for x in C.stamp("phiq"): P.add(x)
    sm = vWF
    P("v_mov_b32 %s, 0x3f80\nv_mov_b32 %s, 1.0" % (V(vT + 8), V(vT + 9)))
    P("v_mov_b32 %s, 0" % V(vT + 7))
    if ACFG["s1c"]:
        P("v_add_u32 %s, %s, %s\nv_cmp_gt_u32 vcc, %d, %s\ns_mov_b64 %s, vcc\ns_mov_b32 %s, 0" % (V(vT + 10), S(sW1K), V(vL16), 228 * 16, V(vT + 10), S(mA, 2), S(sSPIN)))
        lred = P.newlabel(C.name + "_red")
        P.label(lred)
        P("v_mov_b32 %s, 0" % V(vT + 10))
    for i in range(6): P("v_mov_b32 %s, 0" % V(sm + i))
    P("v_cmp_lt_u32 vcc, 8, %s\nv_addc_co_u32 %s, vcc, 0, %s, vcc\nv_lshlrev_b32 %s, 3, %s\nv_add_u32 %s, %d, %s" % (V(vF + 1), V(vF + 2), V(vF + 1), V(vF + 2), V(vF + 2), V(vF + 2), L_WBAR, V(vF + 2)))
    P("v_lshlrev_b32 %s, 2, %s\nv_add_u32 %s, %d, %s" % (V(vF + 3), V(vF + 1), V(vF + 3), L_WBAR + 136, V(vF + 3)))
    for r in range(16):
        for i in range(6): P("v_dot2c_f32_bf16 %s, %s, %s" % (V(sm + i), V(preg(r) + (i >> 1)), V(vT + 8 + (i & 1))))
        if ACFG["s1c"]:
            q = preg(r)
            P("v_add3_u32 %s, %s, %s, %s\nv_add_u32 %s, %s, %s\nv_xor_b32 %s, %s, %s\nv_or_b32 %s, %s, %s" %
              (V(vT + 11), V(q), V(q + 1), S(sNON), V(vT + 11), V(vT + 11), V(q + 2), V(vT + 11), V(vT + 11), V(q + 3), V(vT + 10), V(vT + 10), V(vT + 11)))
    if ACFG["s1c"]:
        lbad = P.newlabel(C.name + "_redo")
        P("v_cmp_ne_u32 vcc, 0, %s\ns_and_b64 vcc, vcc, %s\ns_cbranch_vccnz %s\n%s_b:" % (V(vT + 10), S(mA, 2), lbad, lbad))
        txt = "%s:\n    s_add_u32 %s, %s, 1\n    s_cmp_gt_u32 %s, %d\n    s_cbranch_scc1 %s_b\n" % (lbad, S(sSPIN), S(sSPIN), S(sSPIN), SPIN_MAX, lbad)
        txt += "    s_lshl_b32 %s, %s, 16\n    s_add_u32 %s, %s, %s\n    s_add_u32 %s, %s, %d\n" % (S(t3), S(sHP), S(t3), S(t3), S(sW1K), S(t3), S(t3), WS_KVP)
        for r in range(16):
            txt += "    buffer_load_dwordx4 %s, %s, %s, %s offen sc1\n    s_add_u32 %s, %s, 4096\n" % (V(preg(r), 4), V(vL16), srd(sWS), S(t3), S(t3), S(t3))
        txt += "    s_waitcnt vmcnt(0)\n    s_branch %s\n" % lred
        C.slow.append(txt)
    for i in range(3): P("v_cvt_pk_bf16_f32 %s, %s, %s" % (V(vT + 4 + i), V(sm + 2 * i), V(sm + 2 * i + 1)))
    P("ds_write_b128 %s, %s" % (V(vRS), V(vT + 4, 4)))
    P("ds_write_b64 %s, %s\nds_write_b32 %s, %s" % (V(vF + 2), V(vF + 4, 2), V(vF + 3), V(vF + 6)))
    P("s_waitcnt lgkmcnt(0)\ns_barrier")
    for x in C.stamp("kvred"): P.add(x)
    kf = vAC
    for T in range(3):
        for p in range(3):
            P("ds_read_b128 %s, %s offset:%d" % (V(kf + 12 * T + 4 * p, 4), V(vRb if T == 2 else vRa), (384 if T == 1 else 0) + 16 * p))
    vWb = vAC + 36
    P("ds_read_b128 %s, %s\nds_read_b128 %s, %s offset:16\nds_read_b64 %s, %s" % (V(vWb, 4), V(vWa), V(vWb + 4, 4), V(vWa), V(vWb + 8, 2), V(vWc)))
    P("s_mul_i32 %s, %s, 3072\ns_add_u32 m0, %s, %d\ns_mul_i32 %s, %s, 18432\ns_add_u32 %s, %s, %s" % (S(t0), S(sWAVE), S(t0), L_XR, S(t0), S(sMT), S(t0), S(t0), S(sWB)))
    C.tokX = P.newtok()
    for q in range(3): P("buffer_load_dwordx4 %s, %s, %s offen offset:%d lds" % (V(vXL + q), srd(sX), S(t0), 1024 * q), tok=C.tokX if q == 2 else None)
    P("s_lshl_b32 %s, %s, 3\ns_lshl_b32 %s, %s, 1\ns_add_u32 %s, %s, %s\ns_lshl_b32 %s, %s, 4\ns_add_u32 %s, %s, %s" %
      (S(t0), S(sRBK), S(t1), S(sWAVE), S(t0), S(t0), S(t1), S(t0), S(t0), S(t0), S(t0), S(sHP)))
    P("s_lshl_b32 %s, %s, 8\ns_add_u32 %s, %s, %d\ns_lshl_b32 %s, %s, 10\ns_add_u32 %s, %s, %d" % (S(t1), S(t0), S(t1), S(t1), WS_OL, S(t0), S(t0), S(t0), S(t0), WS_OM))
    for m in range(2):
        for T in (2, 0, 1):
            dd = vPP + 12 * m + 4 * T
            for p in range(3): P(mfma(dd, kf + 12 * T + 4 * p, vPHI + 12 * m + 4 * p, None if p == 0 else dd))
    chain = P.ins
    main_P._tok, main_P._lab = P._tok, P._lab
    P = main_P
    rest = side[ACFG['woq']:] + rwd
    step = max(1, int(len(chain) * ACFG["wofr"]) // max(len(rest), 1))
    k = 0
    for n, x in enumerate(chain):
        if x.is_dma or (x.kind == "salu" and (("s", "m0") in x.dst or ("s", t0) in x.dst or ("s", t1) in x.dst)):
            while k < len(rest): emit_items(P, [rest[k]]); k += 1
        P.add(x)
        if n % step == 0 and k < len(rest) and x.op not in ("s_waitcnt", "s_memrealtime", "s_memtime", "v_cmp_lt_u32", "v_cmp_gt_u32", "v_cmp_ne_u32", "s_and_b64", "s_cbranch_vccnz"):
            emit_items(P, [rest[k]]); k += 1
    assert k == len(rest)
    a, b, c, d = V(vF), V(vF + 1), V(vF + 2), V(vF + 3)
    if ACFG["s2c"]: P("v_cmp_lt_u32 %s, 47, %s" % (S(mD, 2), L))
    for m in range(2):
        o = vPP + 12 * m
        P("v_add_f32 %s, 0x358637bd, %s\nv_rcp_f32 %s, %s" % (a, V(o + 8), a, a))
        P("v_mul_f32 %s, %s, %s\nv_mul_f32 %s, %s, %s" % (V(o + 9), V(o + 9), a, V(o + 10), V(o + 10), a))
        for i in (0, 2, 4, 6): P("v_pk_mul_f32 %s, %s, %s op_sel_hi:[1,0]" % (V(o + i, 2), V(o + i, 2), V(vF, 2)))
        q = vF + 4 + 4 * m
        for i in range(4): P("v_cvt_pk_bf16_f32 %s, %s, %s" % (V(q + i), V(o + 2 * i), V(o + 2 * i + 1)))
        P("buffer_store_dwordx4 %s, %s, %s, %s offen sc1" % (V(q, 4), V(vL16), srd(sWS), S(t0)))
        P("v_pk_mul_f32 %s, %s, %s" % (V(vF + 2, 2), V(o, 2), V(vWb, 2)))
        for i in (2, 4, 6): P("v_pk_fma_f32 %s, %s, %s, %s" % (V(vF + 2, 2), V(o + i, 2), V(vWb + i, 2), V(vF + 2, 2)))
        P("v_fmac_f32 %s, %s, %s\nv_fmac_f32 %s, %s, %s\nv_add_f32 %s, %s, %s" % (c, V(o + 9), V(vWb + 8), d, V(o + 10), V(vWb + 9), b, c, d))
        for x in allred(vF + 1, vF + 2, "v_add_f32"): P(x)
        P("v_cvt_pk_bf16_f32 %s, %s, %s\nv_cndmask_b32 %s, %s, %s, %s" % (c, V(o + 9), V(o + 10), V(vF + 12 + m), c, b, S(mB, 2)))
        if ACFG["s2c"]:
            r = V(vF + 12 + m)
            P("v_cndmask_b32 %s, %s, 0, %s" % (b, r, S(mD, 2)))
            P("v_add3_u32 %s, %s, %s, %s\nv_add3_u32 %s, %s, %s, %s" % (b, b, V(q), V(q + 1), b, b, V(q + 2), V(q + 3)))
            for x in allred(vF + 1, vF + 2, "v_add_u32"): P(x)
            P("v_add_u32 %s, %s, %s\nv_cndmask_b32 %s, %s, %s, %s" % (b, S(sNON), b, r, r, b, S(mD, 2)))
        P("buffer_store_dword %s, %s, %s, %s offen sc1" % (V(vF + 12 + m), V(vOL), srd(sWS), S(t1)))
        if m == 0: P("s_add_u32 %s, %s, 16384\ns_add_u32 %s, %s, 4096" % (S(t0), S(t0), S(t1), S(t1)))
    if ACFG["s2c"]:
        for x in C.publish(vF, 2) + C.stamp("pub2"): P.add(x)
    P("v_and_b32 %s, 15, %s" % (a, L))
    vf_hp(P, V(vFA), a, b)
    f_rb(P, S(t0), S(sRBK), S(t1))
    P("s_and_b32 %s, %s, 7\ns_lshr_b32 %s, %s, 1\ns_lshl_b32 %s, %s, 2\ns_add_u32 %s, %s, %s\nv_add_u32 %s, %s, %s" % (S(t1), S(sMT), S(t1), S(t1), S(t1), S(t1), S(t0), S(t0), S(t1), V(vFA), S(t0), V(vFA)))
    for x in flagfix(V(vFA), a): P(x)
    P("v_mov_b32 v225, %s" % L)
    if not ACFG["lset"]: ffn.ffn_setup(C, 225)

L_XR = 122880
def code_touch(C, L, a):
    P = C.P
    nper = -(-(C.code_bytes - 4096) // (32 * 128))
    lab = P.newlabel(C.name + "_ct")
    P("s_cmp_lg_u32 %s, 3\ns_cbranch_scc1 %s" % (S(sWAVE), lab))
    P("s_getpc_b64 s[100:101]\n%s_pc:\ns_sub_u32 s100, s100, %s_pc-%s_body\ns_subb_u32 s101, s101, 0" % (lab, lab, C.name))
    P("s_mul_i32 %s, %s, %d\nv_min_u32 %s, %d, %s\nv_lshl_add_u32 %s, %s, 7, %s\nv_min_u32 %s, %d, %s" % (S(t1), S(sIDX), nper * 128, a, nper - 1, L, a, a, S(t1), a, C.code_bytes - 4096 - 128, a))
    P("global_load_dword %s, %s, s[100:101]" % (V(255), a)); P.ins[-1].dst = []; P.ins[-1].nocount = True
    P.label(lab)

def p2(C):
    P = C.P
    vLN = 225
    L = V(vLN)
    vO, vAcc, vMU, vXS, vWV = 0, 72, 92, 96, 108
    vQ = 240
    a, b, c, d = V(vQ), V(vQ + 1), V(vQ + 2), V(vQ + 3)
    vWR2, vLA, vMA, vL8, vMX, vHL = 226, 227, 228, 229, 230, 231
    def wreg(i): return AG + 4 * i if i < 64 else vWV + 4 * (i - 64)
    nar = ffn.narrow_items(P, vL16)

    vW4 = 212
    P("v_lshrrev_b32 %s, 2, %s\nv_and_b32 %s, 3, %s\nv_bfe_u32 %s, %s, 1, 2\nv_lshlrev_b32 %s, 7, %s\nv_lshl_add_u32 %s, %s, 3, %s" % (a, L, b, L, c, a, d, a, d, b, d))
    for T in range(4): P("v_xor_b32 %s, %d, %s\nv_lshl_add_u32 %s, %s, 5, %s" % (V(vW4 + T), T, c, V(vW4 + T), V(vW4 + T), d))
    P("v_add_u32 %s, 73728, %s" % (V(vWR2), V(vL16)))
    P("v_and_b32 %s, 15, %s\nv_lshrrev_b32 %s, 4, %s\nv_mul_u32_u24 %s, 144, %s\nv_lshl_add_u32 %s, %s, 3, %s" % (a, L, b, L, c, a, c, b, c))
    P("s_mul_i32 %s, %s, 3072\ns_add_u32 %s, %s, %d\nv_add_u32 %s, %s, %s" % (S(t1), S(sWAVE), S(t1), S(t1), L_XR, c, S(t1), c))
    P("v_lshrrev_b32 %s, 1, %s\nv_lshlrev_b32 %s, 4, %s\nv_sub_u32 %s, %s, %s" % (V(vQ + 4), b, V(vQ + 4), V(vQ + 4), V(vQ + 4), c, V(vQ + 4)))
    xrd = ["ds_read_b64 %s, %s offset:%d" % (V(vXS + 2 * T, 2), c if T < 4 else V(vQ + 4), 32 * T) for T in range(5)]
    P("v_lshlrev_b32 %s, 4, %s\nv_lshl_add_u32 %s, %s, 9, %s\nv_lshlrev_b32 %s, 3, %s" % (d, a, V(vLA), b, d, V(vL8), L))
    P("v_lshlrev_b32 %s, 2, %s" % (a, a))
    P("s_and_b32 %s, %s, 7\ns_lshl_b32 %s, %s, 6\ns_add_u32 %s, %s, %d\nv_add_u32 %s, %s, %s\nds_read_b32 %s, %s" % (S(t1), S(sMT), S(t1), S(t1), S(t1), S(t1), L_MEAN, a, S(t1), a, V(vMX), a))
    aw = LdsAddr([vW4 + T for T in range(4)])
    main = []
    for f in range(18):
        for T in range(4):
            it = aw.rebase(f * 4096, (f + 1) * 4096)
            it += ["ds_read_b64_tr_b16 %s, %s offset:%d" % (R(wreg(5 * f + T) + 2 * h, 2), V(vW4 + T), aw.off(f * 4096 + h * 2048)) for h in range(2)]
            main.append(it)
    for f in range(18): main.append(["ds_read_b128 %s, %s offset:%d" % (R(wreg(5 * f + 4), 4), V(vWR2), f * 1024)])
    main.insert(72, ["s_barrier"])
    pa = ACFG["pa"]
    assert pa <= 6
    k0 = ACFG["prep"]
    emit_items(P, main[:k0])
    if not ACFG["s2c"]:
        P("s_waitcnt vmcnt(0)")
        for x in C.publish(vQ + 3, 2): P.add(x)
        for x in C.stamp("pub2"): P.add(x)
    else:
        P.waittok(C.tokX)
    emit_items(P, xrd)
    if ACFG["ct2"]: code_touch(C, L, a)
    units = ffn.unit_items(P, 0, 30 - ffn.CFG['late'])
    su = []
    if ACFG["lset"]:
        keep = C.P
        C.P = Prog(); ffn.ffn_setup(C, 225, 236); su = [(0, 40, x) for x in C.P.ins]; C.P = keep
    multi_interleave(P, main[k0:], [su + spread(units[:pa], 40 if su else 0, max(90 - k0 - 5, 1))], 2 if su else 1)
    if ACFG['hop'] and ACFG['hop2'] == 0: C.hop(None)
    for x in (C.stamp("prer") if ACFG["rst"] else []): P.add(x)
    P.add(C.load_flags(vFD, vFA))
    P("s_lshl_b32 %s, %s, 14\ns_add_u32 %s, %s, %d\ns_lshl_b32 %s, %s, 12\ns_add_u32 %s, %s, %d" % (S(t2), S(sMT), S(t2), S(t2), WS_OM, S(t1), S(sMT), S(t1), S(t1), WS_OL))
    P("s_waitcnt lgkmcnt(0)\ns_barrier")
    for x in C.check_flags(vFD, vFA, 2, 255): P.add(x)
    for x in C.stamp("s2"): P.add(x)
    vLQ = 244
    ck = ACFG["s2c"]
    if ck:
        lo = P.newlabel(C.name + "_o")
        P("s_mov_b32 %s, 0" % S(sSPIN))
        P.label(lo)
        P("s_lshl_b32 %s, %s, 14\ns_add_u32 %s, %s, %d\ns_lshl_b32 %s, %s, 12\ns_add_u32 %s, %s, %d" % (S(t2), S(sMT), S(t2), S(t2), WS_OM, S(t1), S(sMT), S(t1), S(t1), WS_OL))
    for f in range(16):
        P("buffer_load_dwordx4 %s, %s, %s, %s offen offset:%d sc1" % (V(vO + 4 * f, 4), V(vL16), srd(sWS), S(t2), 1024 * (f % 4)))
        if f == 7:
            for e in range(2):
                n = 4 if ck else 3
                P("buffer_load_dwordx%d %s, %s, %s, %s offen offset:%d sc1" % (n, V(vO + 64 + 4 * e, n), V(vLA), srd(sWS), S(t1), e * 2048))
                P("buffer_load_dwordx%d %s, %s, %s, %s offen offset:%d sc1" % (n, V(vLQ + 4 * e, n), V(vLA), srd(sWS), S(t1), e * 2048 + 256))
        if f % 4 == 3 and f < 15: P("s_add_u32 %s, %s, 4096" % (S(t2), S(t2)))
    main = []
    for f in range(18):
        for T in range(5):
            main.append(mfma(vAcc + 4 * T, wreg(5 * f + T), vO + 4 * f, None if f == 0 else vAcc + 4 * T))
    units = nar + units[pa:]
    pb = ACFG["pb"]
    X = Rec()
    X("s_and_b32 %s, %s, 7" % (S(t3), S(sHP)))
    X("s_mul_i32 %s, %s, 18432\ns_lshl_b32 %s, %s, 11\ns_add_u32 %s, %s, %s\ns_add_u32 %s, %s, %d" % (S(sXB), S(sMT), S(t1), S(t3), S(t1), S(t1), S(sXB), S(t1), S(t1), WS_H))
    X("s_lshl_b32 %s, %s, 11\ns_add_u32 %s, %s, %s\ns_add_u32 %s, %s, %d" % (S(t2), S(t3), S(t2), S(t2), S(sXB), S(t2), S(t2), WS_HC))
    X("s_and_b32 %s, %s, 1\nv_lshrrev_b32 %s, 5, %s" % (S(sWB), S(t3), a, L))
    X("v_cmp_eq_u32 %s, %s, %s\nv_mov_b32 %s, 0x8000000\nv_cndmask_b32 %s, %s, %s, %s" % (S(mA, 2), S(sWB), a, a, V(vHL), a, V(vL8), S(mA, 2)))
    X("v_and_b32 %s, 15, %s\nv_lshlrev_b32 %s, 4, %s\nv_bfe_u32 %s, %s, 4, 1\nv_lshl_add_u32 %s, %s, 3, %s\nv_cndmask_b32 %s, %s, %s, %s" % (b, L, b, b, c, L, b, c, b, V(vMA), a, b, S(mA, 2)))
    Y, Z = [], []
    if ck:
        cs, ct = V(106), V(107)
        Z.append((1, INF, "v_mov_b32 %s, 0" % cs))
        for f in range(16):
            for h in range(2): Z.append((5 * f + 1, INF, "v_add3_u32 %s, %s, %s, %s" % (cs, cs, V(vO + 4 * f + 2 * h), V(vO + 4 * f + 2 * h + 1))))
            if f == 8:
                for r in (vO + 64, vO + 68, vLQ, vLQ + 4):
                    Z += [(41, 46, "v_add3_u32 %s, %s, %s, %s" % (cs, cs, V(r), V(r + 1))), (41, 46, "v_add_u32 %s, %s, %s" % (cs, cs, V(r + 2))),
                          (41, 46, "v_sub_u32 %s, %s, %s" % (cs, cs, V(r + 3)))]
        Z += [(77, INF, x) for x in allred(106, 107, "v_add_u32")]
        Z += [(77, INF, "s_lshl_b32 %s, %s, 4" % (S(sWB), S(sNON))), (77, INF, "v_add_u32 %s, %s, %s" % (cs, S(sWB), cs))]
    for e in range(2):
        Y += ["v_add_f32 %s, %s, %s" % (V(vMU + e), V(vO + 66 + 4 * e), V(vLQ + 4 * e + 2)),
              "v_mov_b32 %s, %s" % (V(vO + 66 + 4 * e), V(vLQ + 4 * e)), "v_mov_b32 %s, %s" % (V(vO + 67 + 4 * e), V(vLQ + 4 * e + 1))]
    Y += ["v_add_f32 %s, %s, %s" % (V(vMU), V(vMU), V(vMU + 1))] + allred(vMU, vMU + 1, "v_add_f32") + ["v_add_f32 %s, %s, %s" % (V(vMU), V(vMU), V(vMX))]
    multi_interleave(P, main, [paced(units[:pb], ACFG["pbat"], ACFG["pbstep"])[0], Z, [(2, INF, x) for x in X.items] + [(46, 78, x) for x in Y]], 2)
    if ck:
        lk = P.newlabel(C.name + "_ook")
        P("s_add_u32 %s, %s, 1\nv_cmp_ne_u32 vcc, 0, v106\ns_cmp_gt_u32 %s, %d\ns_cbranch_scc1 %s\ns_cbranch_vccnz %s\n%s:" % (S(sSPIN), S(sSPIN), S(sSPIN), SPIN_MAX, lk, lo, lk))
    for x in C.stamp("wog"): P.add(x)
    ss = vMU + 2
    P("v_mov_b32 %s, 0\nv_mov_b32 %s, 0" % (V(ss), V(ss + 1)))
    hq = vO
    for T in range(5):
        r = vAcc + 4 * T
        for h in range(2):
            x = V(vXS + 2 * T + h)
            P("v_lshlrev_b32 %s, 16, %s\nv_and_b32 %s, 0xffff0000, %s" % (a, x, b, x))
            P("v_pk_add_f32 %s, %s, %s" % (V(vQ, 2), V(vQ, 2), V(r + 2 * h, 2)))
            P("v_cvt_pk_bf16_f32 %s, %s, %s" % (V(hq + 2 * T + h), a, b))
            P("v_lshlrev_b32 %s, 16, %s\nv_and_b32 %s, 0xffff0000, %s" % (a, V(hq + 2 * T + h), b, V(hq + 2 * T + h)))
            P("v_pk_add_f32 %s, %s, %s op_sel_hi:[1,0] neg_lo:[0,1] neg_hi:[0,1]" % (V(vQ, 2), V(vQ, 2), V(vMU, 2)))
            P("v_cvt_pk_bf16_f32 %s, %s, %s" % (V(hq + 12 + 2 * T + h), a, b))
            if T == 4: P("v_cndmask_b32 %s, 0, %s, %s\nv_cndmask_b32 %s, 0, %s, %s" % (b, b, S(mA, 2), a, a, S(mA, 2)))
            P("v_pk_fma_f32 %s, %s, %s, %s" % (V(ss, 2), V(vQ, 2), V(vQ, 2), V(ss, 2)))
        if T % 2 == 1:
            P("buffer_store_dwordx4 %s, %s, %s, %s offen offset:%d sc1" % (V(hq + 12 + 2 * (T - 1), 4), V(vL16), srd(sWS), S(t2), 1024 * (T >> 1)))
        if T == 4:
            P("s_lshl_b32 %s, %s, 8\ns_add_u32 %s, %s, %s\ns_add_u32 %s, %s, %d" % (S(t2), S(t3), S(t2), S(t2), S(sXB), S(t2), S(t2), WS_HC + 16384))
            P("buffer_store_dwordx2 %s, %s, %s, %s offen sc1" % (V(hq + 20, 2), V(vMA), srd(sWS), S(t2)))
    P("v_add_f32 %s, %s, %s" % (V(ss), V(ss), V(ss + 1)))
    for x in allred(ss, ss + 1, "v_add_f32"): P(x)
    P("s_lshl_b32 %s, %s, 3\ns_add_u32 %s, %s, %s\ns_lshl_b32 %s, %s, 8\ns_add_u32 %s, %s, %d" % (S(t0), S(sMT), S(t0), S(t0), S(t3), S(t0), S(t0), S(t0), S(t0), WS_SSQ))
    P("v_lshlrev_b32 %s, 2, %s\nbuffer_store_dword %s, %s, %s, %s offen sc1" % (a, L, V(ss), a, srd(sWS), S(t0)))
    for T in range(4):
        P("buffer_store_dwordx2 %s, %s, %s, %s offen offset:%d sc1" % (V(hq + 2 * T, 2), V(vL8), srd(sWS), S(t1), 512 * T))
    P("s_lshr_b32 %s, %s, 1\ns_lshl_b32 %s, %s, 9\ns_add_u32 %s, %s, %s\ns_add_u32 %s, %s, %d" % (S(t1), S(t3), S(t1), S(t1), S(t1), S(t1), S(sXB), S(t1), S(t1), WS_H + 16384))
    P("buffer_store_dwordx2 %s, %s, %s, %s offen sc1" % (V(hq + 8, 2), V(vHL), srd(sWS), S(t1)))
    fa = V(ffn.vFA)
    a, b = V(100), V(101)
    P("s_lshl_b32 %s, %s, 3\ns_lshl_b32 %s, %s, 1\ns_add_u32 %s, %s, %s\ns_lshr_b32 %s, %s, 1\ns_add_u32 %s, %s, %s" % (S(t0), S(sMH), S(t1), S(sRB), S(t0), S(t0), S(t1), S(t1), S(sWAVE), S(t0), S(t0), S(t1)))
    f_rb(P, S(t2), S(t0), S(t1))
    P("s_and_b32 %s, %s, 1\ns_lshl_b32 %s, %s, 3\nv_bfe_u32 %s, %s, 2, 3\nv_add_u32 %s, %s, %s" % (S(t0), S(sWAVE), S(t0), S(t0), a, L, a, S(t0), a))
    vf_hp(P, fa, a, b)
    P("v_and_b32 %s, 3, %s\nv_lshl_add_u32 %s, %s, 2, %s\nv_add_u32 %s, %s, %s" % (a, L, fa, a, fa, fa, S(t2), fa))
    for x in flagfix(fa, a): P(x)
    P("v_mov_b32 v102, %s" % L)
    ffn.ffn_addr2(C, 102)
    P("s_waitcnt vmcnt(0)")
    for x in C.publish(100, 3): P.add(x)
    for x in C.stamp("pub3"): P.add(x)
    emit_items(P, units[pb:])
    for which in ACFG["pfS3"]:
        emit_items(P, ffn.hbm_prefetch(P, which, 102, 103, 104, 105, 106))
    if ACFG['hop'] and ACFG['hop2'] == 1: C.hop(None)
```

```python
from gen import *

WS_FLAGS = 0x0
WS_KVP = 0x20000
WS_OM = 0x120000
WS_OL = 0x320000
WS_HC = 0x3A0000
WS_SSQ = 0x5E0000
WS_H = 0x620000
WS_PART = 0x2800000
WS_HH = 0x1260000
WS_RN = 0x2500000
WS_RD = 0x2640000
WS_RW = 0x26D0000
WS_NONCE = 0x26F0000
WS_TIM = 0x2460000
WS_DBG = 0x2700000
WS_SIZE = 0x4000000

sX, sWQKV, sWPHI, sWO, sWG, sWU, sWD, sOUT, sWS, sDBG, sWN = 4, 8, 12, 16, 20, 24, 28, 32, 36, 40, 44
sWAVE, sW1K, sXCD, sIDX, sFLAG = 48, 49, 50, 51, 52
sSPIN = 53
sNON = 3
sFQ, sMH, sRB, sFS = 54, 55, 56, 57
sT = 80
def srd(b): return S(b, 4)

SPIN_MAX = 50000
GCFG = dict(fl=1, poll=1, only=[], xr=0, inl=1, hw=1)
def flagfix(reg, tmp):
    if not GCFG['fl']: return []
    return ['v_and_b32 %s, 12, %s' % (tmp, reg), 'v_and_b32 %s, 0xffffff80, %s' % (reg, reg), 'v_lshlrev_b32 %s, 2, %s' % (reg, reg), 'v_lshl_add_u32 %s, %s, 5, %s' % (reg, tmp, reg)]


class Ctx:
    def __init__(self, name, timing=False):
        self.name = name
        self.P = Prog()
        self.slow = []
        self.timing = timing
        self.nstamp = 0
        self.sbase = 0
        self.hops = []
        self.touch_labels = set()
        self.tables = []
        self.stamp_names = []
    def check_flags(self, vdata, vaddr, phase, v2=None):
        lab = self.P.newlabel(self.name + "_spin")
        if GCFG["inl"] and v2 is not None:
            return (["v_cmp_gt_u32 vcc, %d, %s" % (phase, V(vdata)), "s_mov_b32 %s, 0" % S(sSPIN), "s_cbranch_vccz %s_b" % lab, lab + ":"] +
                    [Raw(x) for x in ("buffer_load_dword %s, %s, %s, 0 offen sc1" % (V(vdata), V(vaddr), srd(sWS)), "s_add_u32 %s, %s, 1" % (S(sSPIN), S(sSPIN)),
                                      "s_waitcnt vmcnt(0)", "v_cmp_gt_u32 vcc, %d, %s" % (phase, V(vdata)), "s_cmp_gt_u32 %s, %d" % (S(sSPIN), SPIN_MAX),
                                      "s_cbranch_scc1 %s_b" % lab, "s_cbranch_vccnz %s" % lab)] + [lab + "_b:"])
        if GCFG["poll"] > 1 and v2 is not None:
            ld = lambda r: "    buffer_load_dword %s, %s, %s, 0 offen sc1\n" % (V(r), V(vaddr), srd(sWS))
            ck = lambda r: "    s_waitcnt vmcnt(1)\n    v_cmp_gt_u32 vcc, %d, %s\n    s_cbranch_vccz %s_d\n" % (phase, V(r), lab)
            self.slow.append("%s:\n    s_mov_b32 %s, 0\n" % (lab, S(sSPIN)) + ld(vdata) + "    s_nop 15\n" * GCFG["poll"] + "%s_l:\n" % lab + ld(v2) + ck(vdata) + ld(vdata) + ck(v2) +
                             "    s_add_u32 %s, %s, 1\n    s_cmp_lt_u32 %s, %d\n    s_cbranch_scc1 %s_l\n%s_d:\n    s_waitcnt vmcnt(0)\n    s_branch %s_b\n" % (S(sSPIN), S(sSPIN), S(sSPIN), SPIN_MAX, lab, lab, lab))
            return ["v_cmp_gt_u32 vcc, %d, %s" % (phase, V(vdata)), "s_cbranch_vccnz %s" % lab, lab + "_b:"]
        self.slow.append("""%s:
    s_mov_b32 %s, 0
%s_l:
    buffer_load_dword %s, %s, %s, 0 offen sc1
    s_add_u32 %s, %s, 1
    s_waitcnt vmcnt(0)
    v_cmp_gt_u32 vcc, %d, %s
    s_cmp_gt_u32 %s, %d
    s_cbranch_scc1 %s_b
    s_cbranch_vccnz %s_l
    s_branch %s_b
""" % (lab, S(sSPIN), lab, V(vdata), V(vaddr), srd(sWS), S(sSPIN), S(sSPIN), phase, V(vdata), S(sSPIN), SPIN_MAX, lab, lab, lab))
        return ["v_cmp_gt_u32 vcc, %d, %s" % (phase, V(vdata)), "s_cbranch_vccnz %s" % lab, lab + "_b:"]
    def load_flags(self, vdata, vaddr):
        return "buffer_load_dword %s, %s, %s, 0 offen sc1" % (V(vdata), V(vaddr), srd(sWS))
    def publish(self, vtmp, phase):
        return ["v_mov_b32 %s, %d" % (V(vtmp), phase), "s_mov_b64 exec, 1",
                "buffer_store_dword %s, off, %s, %s sc1" % (V(vtmp), srd(sWS), S(sFLAG)), "s_mov_b64 exec, -1"]
    def stamp(self, name):
        if not self.timing: return []
        if GCFG["only"] and name not in GCFG["only"]: return []
        if not GCFG["only"] and name.startswith("x_"): return []
        k = self.nstamp; self.nstamp += 1
        self.stamp_names.append(name)
        return [("s_memtime" if self.timing == 2 else "s_memrealtime") + " s[100:101]", "s_waitcnt lgkmcnt(0)", "s_mov_b32 s%d, s100" % (60 + k - self.sbase)]
    def flush_stamps(self, v0, v1):
        if not self.timing: return
        P = self.P
        assert self.nstamp - self.sbase <= 16
        P("v_mov_b32 %s, 0" % V(v0))
        for k in range(self.sbase, self.nstamp):
            P("v_writelane_b32 %s, s%d, %d" % (V(v0), 60 + k - self.sbase, k - self.sbase))
        P("v_mbcnt_lo_u32_b32 %s, -1, 0\nv_mbcnt_hi_u32_b32 %s, -1, %s\nv_lshlrev_b32 %s, 2, %s" % (V(v1), V(v1), V(v1), V(v1), V(v1)))
        P("s_lshl_b32 s100, s2, 2\ns_add_u32 s100, s100, %s\ns_lshl_b32 s100, s100, 8\ns_add_u32 s100, s100, %d" % (S(sWAVE), WS_TIM + 4 * self.sbase))
        P("s_mov_b64 exec, 0xffff\nbuffer_store_dword %s, %s, %s, s100 offen\ns_mov_b64 exec, -1" % (V(v0), V(v1), srd(sWS)))
        self.sbase = self.nstamp
    def finish(self):
        P = self.P
        self.flush_stamps(0, 1)
        P.label(self.name + "_end")
        P("s_endpgm")
        text = P.finalize()
        if self.hops: text = self._place_stubs()
        tab = ""
        if self.tables:
            tab = ".p2align 7\n.type %s_tab,@object\n%s_tab:\n" % (self.name, self.name)
            for row in self.tables: tab += "".join("    .long 0x%x, 0x%x, 0x%x, 0x%x\n" % tuple(row[4 * i:4 * i + 4]) for i in range(64))
            tab += ".size %s_tab, %d\n" % (self.name, 1024 * len(self.tables))
        return kernel_header(self.name) + text + "".join(self.slow) + tab
    def table_load(self, dst, fns, vl16, sp):
        k = len(self.tables)
        self.tables.append([fns[j](l) & 0xffffffff if j < len(fns) else 0 for l in range(64) for j in range(4)])
        assert k < 8
        n = len(fns)
        return "global_load_dword%s %s, %s, %s offset:%d" % ("x%d" % n if n > 1 else "", V(dst, n), V(vl16), S(sp, 2), 1024 * k - 4096)
    def table_base(self, sp):
        lab = self.P.newlabel(self.name + "_tb")
        return ["s_getpc_b64 %s" % S(sp, 2), lab + ":", "s_add_u32 %s, %s, %s_tab-%s+4096" % (S(sp), S(sp), self.name, lab), "s_addc_u32 %s, %s, 0" % (S(sp + 1), S(sp + 1))]
    def align_body(self):
        self.P("s_branch %s_body" % self.name)
        self.P(".p2align 12")
        self.P.label(self.name + "_body")
    def hop(self, upto):
        k = len(self.hops); self.hops.append(upto)
        W = GCFG["hw"]
        t = "s_mov_b64 exec, 0\n"
        for w in range(1, W): t += "s_cmp_eq_u32 %s, %d\ns_cbranch_scc1 %s_hop%d_%d\n" % (S(sWAVE), w, self.name, k, w)
        self.P(t + "s_branch %s_hop%d_0\n%s_hopback%d:\ns_mov_b64 exec, -1" % (self.name, k, self.name, k))
    def _place_stubs(self):
        import subprocess
        L = self.P.final
        lines = [i.text if i.kind in ("label", "dir") else "    " + i.text for i in L]
        fix = "".join("%s_hop%d_%d:\n" % (self.name, k, w) for k in range(len(self.hops)) for w in range(GCFG["hw"]))
        open("_st.s", "w").write('.amdgcn_target "amdgcn-amd-amdhsa--gfx950"\n.text\n' + "\n".join(lines) + "\n" + fix + "".join(self.slow) + "%s_tab:\n" % self.name)
        r = subprocess.run(["clang", "-x", "assembler", "-target", "amdgcn-amd-amdhsa", "-mcpu=gfx950", "-c", "_st.s", "-o", "_st.o"], capture_output=True, text=True)
        if r.returncode: print(r.stderr[:3000]); raise SystemExit(1)
        d = subprocess.run(["llvm-objdump", "-d", "--mcpu=gfx950", "_st.o"], capture_output=True, text=True).stdout
        d = d[d.index("<%s_body>:" % self.name):]
        sizes = [4 * len(l.split("//")[1].split(":")[1].split("<")[0].split()) for l in d.splitlines() if "//" in l]
        b0 = [k for k, i in enumerate(L) if i.text == self.name + "_body:"][0]
        out = lines[:b0 + 1]
        addr, page, si = 0, 1, 0
        chain, cnt, chains = None, {}, {}
        for k in range(b0 + 1, len(L)):
            i = L[k]
            if i.kind == "label" and i.text[:-1] in self.touch_labels and chain is not None:
                out.append(lines[k])
                n = cnt.get(chain, 0); cnt[chain] = n + 1
                out.append("%s_hop%d_%d:" % (self.name, chain, n)); out.append("    s_cbranch_execz %s_hop%d_%d" % (self.name, chain, n + GCFG["hw"])); addr += 4
                continue
            if i.kind == "label":
                for h, upto in enumerate(self.hops):
                    if i.text == "%s_hopback%d:" % (self.name, h): chain = h
                    if upto is not None and i.text == upto + ":" and chain == h: chain = None
                out.append(lines[k]); continue
            if i.kind == "dir":
                out.append(lines[k]); continue
            if addr >= page * 4096:
                page += 1
                if chain is not None:
                    n = cnt.get(chain, 0); cnt[chain] = n + 1
                    out.append("%s_hop%d_%d:" % (self.name, chain, n)); out.append("    s_cbranch_execz %s_hop%d_%d" % (self.name, chain, n + GCFG["hw"])); addr += 4
            out.append(lines[k]); addr += sizes[si]; si += 1
        text = "\n".join(out) + "\n"
        for h in range(len(self.hops)):
            n = cnt.get(h, 0)
            for e in range(GCFG["hw"]): text = text.replace("%s_hop%d_%d\n" % (self.name, h, n + e), "%s_hopback%d\n" % (self.name, h))
        return text

def prologue(C):
    P = C.P
    P("s_cmp_ge_u32 s2, 256\ns_cbranch_scc1 %s_end" % C.name)
    if GCFG["xr"]: P("s_xor_b32 s2, s2, %d" % GCFG["xr"])
    for x in C.stamp("x_first"): P.add(x)
    P("s_load_dwordx2 s[4:5], s[0:1], 0\ns_load_dwordx2 s[8:9], s[0:1], 8\ns_load_dwordx2 s[12:13], s[0:1], 16\ns_load_dwordx2 s[16:17], s[0:1], 24")
    P("s_load_dwordx2 s[20:21], s[0:1], 40\ns_load_dwordx2 s[24:25], s[0:1], 48\ns_load_dwordx2 s[28:29], s[0:1], 56")
    P("s_load_dwordx2 s[32:33], s[0:1], 64\ns_load_dwordx2 s[40:41], s[0:1], 72\ns_load_dwordx2 s[36:37], s[0:1], 80")
    for b, n in ((sX, 2359296), (sWQKV, 1990656), (sWPHI, 20736), (sWO, 663552), (sWG, 5308416), (sWU, 5308416), (sWD, 5308416),
                 (sOUT, 2359296), (sWS, WS_SIZE), (sDBG, 256), (sWN, 5308416)):
        P("s_mov_b32 s%d, %d\ns_mov_b32 s%d, 0x20000" % (b + 2, n, b + 3))
    P("v_lshrrev_b32 v1, 6, v0\nv_and_b32 v0, 63, v0\nv_readfirstlane_b32 %s, v1" % S(sWAVE))
    P("s_and_b32 %s, s2, 7\ns_lshr_b32 %s, s2, 3" % (S(sXCD), S(sIDX)))
    P("s_lshl_b32 %s, %s, 10" % (S(sW1K), S(sWAVE)))
    P("s_lshl_b32 %s, s2, %d\ns_lshl_b32 s80, %s, %d\ns_add_u32 %s, %s, s80" % (S(sFLAG), 9 if GCFG['fl'] else 7, S(sWAVE), 7 if GCFG['fl'] else 2, S(sFLAG), S(sFLAG)))
    P("s_lshr_b32 %s, %s, 1\ns_and_b32 %s, %s, 1\ns_lshr_b32 %s, %s, 3\ns_and_b32 %s, %s, 7" %
      (S(sFQ), S(sXCD), S(sMH), S(sXCD), S(sRB), S(sIDX), S(sFS), S(sIDX)))

def allred(reg, tmp, op):
    return ["v_mov_b32 %s, %s" % (V(tmp), V(reg)), "v_permlane16_swap_b32 %s, %s" % (V(reg), V(tmp)), "%s %s, %s, %s" % (op, V(reg), V(reg), V(tmp)),
            "v_mov_b32 %s, %s" % (V(tmp), V(reg)), "v_permlane32_swap_b32 %s, %s" % (V(reg), V(tmp)), "%s %s, %s, %s" % (op, V(reg), V(reg), V(tmp))]

def mfma(d, a, b, c=None):
    return "v_mfma_f32_16x16x32_bf16 %s, %s, %s, %s" % (R(d, 4), R(a, 4), R(b, 4), "0" if c is None else R(c, 4))

class LdsAddr:
    def __init__(self, regs, base=0):
        self.regs, self.base = regs, base
    def rebase(self, lo, hi):
        if lo >= self.base and hi - self.base <= 65536: return []
        d = lo - self.base
        self.base = lo
        if d > 0: return ["v_add_u32 %s, %d, %s" % (V(r), d, V(r)) for r in self.regs]
        return ["v_subrev_u32 %s, %d, %s" % (V(r), -d, V(r)) for r in self.regs]
    def off(self, addr):
        o = addr - self.base
        assert 0 <= o < 65536, (addr, self.base)
        return o
```

```python
from common import *

vA16 = 0
vG, vU, vP = 32, 96, 160
vWF = 192
vOX = 208
vTRU = 216
vTRN = 220
vDM, vDL = 221, 222
vWD = 223
vL16, vL8 = 232, 233
vWE = 216
vR2 = 234
vFA, vFD = 238, 239
vT = 240
AG = 256

sA, sCOL, sNB, sNL, sWDB, sWD0, sHST, sHSN, sHLD, sMT2 = 76, 77, 78, 79, 80, 81, 82, 83, 84, 85
t0, t1, t2, t3 = 96, 97, 98, 99
sL2, sD2, sE1, sE2 = 92, 93, 94, 95
sKW = 89

CFG = dict(ustep=16, dstep=7, astep=10, hstep=8, hstep2=12, e4=100, ct3=[800], puba=24, s4l=40, s4c=0, wpol='', dpol='', otr=1, ptouch=0, ptm='', fbl=36, fbc=72, fbp=36, w2step=10, e2=200, chain=1, fill=620, fstep=10, s5=2, late=0, lateat=310, abl='', hst='sc1', ost='', wdown=0, rsp1=1, rsp2=1, hlead=30, fine=0, pfB=[(2, 300), (30, 480), (31, 580)], w0=7, w1=8)
LDS_N = 120 * 1024
PAIRS = [(16, 17), (14, 15)] + [(2 * i, 2 * i + 1) for i in range(7)]
def areg(phi, m):
    return vA16 + (phi - 16) * 16 + 4 * m if phi >= 16 else AG + phi * 16 + 4 * m
GSLOT = [4, 3, 0, 2, 1, 0, 2, 1, 0, 2, 1, 0]
def slab_addr(sig):
    return GSLOT[sig // 6] * 24576 + (sig % 6) * 4096
def slab_phi(sig):
    r = sig % 18
    return PAIRS[r // 2][r % 2]
WD_SLAB = [[b * 1024 + 9216 * i for i in range(4)] for b in (120, 84, 48, 12)]
def wd_slab(stage, i): return WD_SLAB[stage % 4][i]
def kappa(p):
    st, i = p // 4, p % 4
    if st == 0: return 32 + i
    kw = (i & 1) + 4 * (i >> 1)
    return 8 * (st - 1) + kw if st <= 4 else 8 * (st - 5) + 2 + kw
def oreg(m, n):
    k = m * 9 + n
    if k < 8: return vA16 + 4 * k
    if k < 16: return vP + 4 * (k - 8)
    return vOX + 4 * (k - 16)

def ffn_setup(C, vlane, vT=vT):
    P = C.P
    L = V(vlane)
    a, b, c, d = V(vT), V(vT + 1), V(vT + 2), V(vT + 3)
    P("s_lshl_b32 %s, %s, 6\ns_lshl_b32 %s, %s, 4\ns_add_u32 %s, %s, %s" % (S(t0), S(sMH), S(t1), S(sRB), S(t0), S(t0), S(t1)))
    P("s_lshl_b32 %s, %s, 2\ns_add_u32 %s, %s, %s" % (S(t1), S(sWAVE), S(t1), S(t1), S(t0)))
    P("s_mul_i32 %s, %s, 18432\ns_add_u32 %s, %s, %d" % (S(sA), S(t1), S(sA), S(sA), WS_HC))
    P("s_mul_i32 %s, %s, 147456\ns_mul_i32 %s, %s, 36864\ns_add_u32 %s, %s, %s\ns_add_u32 %s, %s, %d" %
      (S(t1), S(t1), S(t2), S(sFQ), S(t1), S(t1), S(t2), S(t1), S(t1), WS_HH))
    P("s_lshl_b32 %s, %s, 12\ns_add_u32 %s, %s, %s" % (S(t3), S(sFS), S(sHST), S(t1), S(t3)))
    P("s_lshl_b32 %s, %s, 9\ns_add_u32 %s, %s, %s\ns_add_u32 %s, %s, 32768" % (S(t3), S(sFS), S(sHSN), S(t1), S(t3), S(sHSN), S(sHSN)))
    P("s_lshr_b32 %s, %s, 2\ns_lshl_b32 %s, %s, 3\ns_add_u32 %s, %s, %s\ns_lshl_b32 %s, %s, 1\ns_add_u32 %s, %s, %s" %
      (S(t1), S(sFS), S(t1), S(t1), S(t0), S(t0), S(t1), S(t1), S(sWAVE), S(sMT2), S(t0), S(t1)))
    P("s_mul_i32 %s, %s, 147456\ns_add_u32 %s, %s, %s\ns_add_u32 %s, %s, %d" % (S(sHLD), S(sMT2), S(sHLD), S(sHLD), S(t2), S(sHLD), S(sHLD), WS_HH))
    P("s_mul_i32 %s, %s, 2304\ns_lshl_b32 %s, %s, 8\ns_add_u32 %s, %s, %s" % (S(t0), S(sFQ), S(t1), S(sFS), S(sCOL), S(t0), S(t1)))
    P("s_lshl_b32 %s, %s, 3\ns_add_u32 %s, %s, %s\ns_mul_i32 %s, %s, 36864\ns_add_u32 %s, %s, %s\ns_add_u32 %s, %s, %d" %
      (S(t1), S(sFQ), S(t1), S(t1), S(sFS), S(t1), S(t1), S(t1), S(t1), S(sW1K), S(sNB), S(t1), WS_RN))
    P("s_lshr_b32 %s, %s, 1" % (S(t1), S(sWAVE)))
    P("s_mul_i32 %s, %s, %d\ns_and_b32 %s, %s, 3\ns_mul_i32 %s, %s, 147456\ns_lshl_b32 %s, %s, 8\ns_add_u32 %s, %s, %s" %
      (S(t0), S(sFQ), 1152 * 1152, S(t2), S(sFS), S(sNL), S(t2), S(t2), S(t2), S(t0), S(t0), S(t2)))
    P("s_mul_i32 %s, %s, 36864\ns_add_u32 %s, %s, %s\ns_add_u32 %s, %s, %d" % (S(t2), S(sFQ), S(sNL), S(sNL), S(t2), S(sNL), S(sNL), WS_RD))
    P("s_and_b32 %s, %s, 1\ns_lshl_b32 %s, %s, 2\ns_add_u32 %s, %s, %s\ns_mul_i32 %s, %s, 36864\ns_add_u32 %s, %s, %s" %
      (S(t2), S(sWAVE), S(t1), S(t1), S(sKW), S(t2), S(t1), S(t2), S(sKW), S(sWDB), S(t0), S(t2)))
    P("s_lshl_b32 %s, %s, 10\ns_add_u32 %s, %s, %s" % (S(sKW), S(sKW), S(sKW), S(sKW), S(sNL)))
    P("s_add_u32 %s, %s, 32\ns_mul_i32 %s, %s, 36864\ns_add_u32 %s, %s, %s" % (S(t2), S(sWAVE), S(t2), S(t2), S(sWD0), S(t0), S(t2)))
    P("s_movk_i32 %s, 9216" % S(t3))
    def grow(rho, out, tmp):
        P("v_bfe_u32 %s, %s, 2, 2\nv_lshlrev_b32 %s, 3, %s" % (out, rho, out, out))
        P("v_lshrrev_b32 %s, 4, %s\nv_lshl_add_u32 %s, %s, 2, %s" % (tmp, rho, out, tmp, out))
        P("v_and_b32 %s, 3, %s\nv_add_u32 %s, %s, %s" % (tmp, rho, out, out, tmp))
    P("s_lshl_b32 %s, %s, 3\nv_lshrrev_b32 %s, 3, %s\nv_add_u32 %s, %s, %s" % (S(t2), S(sWAVE), a, L, a, S(t2), a))
    P("v_and_b32 %s, 6, %s\nv_and_b32 %s, 7, %s\nv_xor_b32 %s, %s, %s\nv_lshlrev_b32 %s, 4, %s" % (b, a, c, L, b, b, c, b, b))
    P("v_mad_u32_u24 %s, %s, %s, %s" % (V(vDM), a, S(t3), b))
    grow(a, c, d)
    P("v_mad_u32_u24 %s, %s, %s, %s" % (V(vDL), c, S(t3), b))

def dma_unit(P, sig, tok=None):
    st, phi = sig // 18, slab_phi(sig)
    src = sWG if st % 2 == 0 else sWU
    col = 128 if st >= 2 else 0
    row, vo = 32 * phi, (vDM if phi < 16 else vDL)
    return ["s_add_u32 m0, %s, %d" % (S(sW1K), slab_addr(sig)), "s_add_u32 %s, %s, %d" % (S(t0), S(sCOL), row * 9216 + col),
            P.mk("buffer_load_dwordx4 %s, %s, %s offen %s lds" % (V(vo), srd(src), S(t0), CFG["wpol"]), tok)]

def narrow_items(P, vl16):
    out = []
    for it in [8, 7] + list(range(7)):
        out.append(["s_add_u32 m0, %s, %d" % (S(sW1K), LDS_N + it * 4096), "s_add_u32 %s, %s, %d" % (S(t0), S(sNB), it * 4096),
                    "buffer_load_dwordx4 %s, %s, %s offen sc1 lds" % (V(vl16), srd(sWS), S(t0))])
    return out
def unit_items(P, lo, hi):
    return [dma_unit(P, sig) for sig in range(lo, hi)]

def hbm_prefetch(P, which, vl, ta, tb, tc, dst, mklane=False, s0=None, s1=None):
    L, a, b, c = V(vl), V(ta), V(tb), V(tc)
    if s0 is None: s0, s1 = S(t0), S(t1)
    om = "s_lshl_b32 %s, %s, 6\ns_lshl_b32 %s, %s, 1\ns_add_u32 %s, %s, %s\ns_add_u32 %s, %s, %s" % (s0, S(sWAVE), s1, S(sIDX), s0, s0, s1, s0, s0, S(sMH))
    even = which >= 100
    if even:
        k2 = which % 10; which = (which // 10) % 10
        om = ("s_lshl_b32 %s, %s, 6\ns_lshl_b32 %s, %s, 1\ns_add_u32 %s, %s, %s\ns_add_u32 %s, %s, %d\ns_lshl_b32 %s, %s, 10\ns_add_u32 %s, %s, %s" %
              (s0, S(sWAVE), s1, S(sIDX), s0, s0, s1, s0, s0, k2, s1, S(sMH), s0, s0, s1))
    it = [om]
    if mklane: it.append("v_lshrrev_b32 %s, 4, %s" % (L, V(vL16)))
    def ld(sr):
        x = P.mk("buffer_load_dword %s, %s, %s, %s offen" % (V(dst), a, srd(sr), s1)); x.dst = []
        return x
    if which in (1, 2):
        per, rows = (8, 8)
        nw = 576 // rows
        it.append("v_lshrrev_b32 %s, 3, %s\nv_and_b32 %s, 7, %s\nv_lshl_add_u32 %s, %s, 1, %d" % (a, L, b, L, b, b, which - 1))
        it.append("v_mul_u32_u24 %s, 9216, %s\nv_lshl_add_u32 %s, %s, 7, %s" % (a, a, a, b, a))
        it.append("s_cmp_ge_u32 %s, %d\ns_cselect_b32 %s, %s, %s\ns_cselect_b32 %s, %s, %s\ns_cselect_b32 %s, %d, 0\ns_sub_u32 %s, %s, %s" %
                  (s0, nw, S(sWN), S(sWU), S(sWG), S(sWN + 1), S(sWU + 1), S(sWG + 1), s1, nw, s0, s0, s1))
        it.append("s_mul_i32 %s, %s, %d\ns_mul_i32 %s, %s, 2304\ns_add_u32 %s, %s, %s" % (s0, s0, rows * 9216, s1, S(sFQ), s1, s1, s0))
        it.append(ld(sWN))
    else:
        if which == 4: it.append("s_xor_b32 %s, %s, 1" % (s0, s0))
        if which >= 30:
            k, n = which % 10, (which // 10) - 1
            per = -(-41 // n)
            it.append("v_min_u32 %s, %d, %s\nv_add_u32 %s, %d, %s\nv_min_u32 %s, 40, %s\nv_lshlrev_b32 %s, 7, %s" % (a, per - 1, L, a, k * per, a, a, a, a, a))
        else:
            it.append("v_min_u32 %s, 40, %s\nv_lshlrev_b32 %s, 7, %s" % (a, L, a, a))
        it.append("s_mul_i32 %s, %s, %d\ns_mul_i32 %s, %s, %d\ns_add_u32 %s, %s, %s" % (s0, s0, 41 * 128, s1, S(sFQ), 1152 * 1152, s1, s1, s0))
        it.append(ld(sWD))
    return it

def part_prefill(P, vq, vl16, vl8, t0, t1):
    it = ["s_lshl_b32 %s, s2, 4" % S(t0), "s_add_u32 %s, %s, %s" % (S(t0), S(t0), S(sWAVE)), "s_mul_i32 %s, %s, 2560" % (S(t0), S(t0)),
          "s_add_u32 %s, %s, %d" % (S(t0), S(t0), WS_PART)]
    for i in range(1, 4):
        it += ["s_add_u32 %s, %s, %d" % (S(t1), S(sFQ), i), "s_and_b32 %s, %s, 3" % (S(t1), S(t1)), "s_mul_i32 %s, %s, %d" % (S(t1), S(t1), 4 * 2560),
               "s_add_u32 %s, %s, %s" % (S(t1), S(t1), S(t0)),
               "buffer_store_dwordx4 %s, %s, %s, %s offen sc1" % (V(vq, 4), V(vl16), srd(sWS), S(t1)),
               "buffer_store_dwordx4 %s, %s, %s, %s offen offset:1024 sc1" % (V(vq, 4), V(vl16), srd(sWS), S(t1)),
               "buffer_store_dwordx2 %s, %s, %s, %s offen offset:2048 sc1" % (V(vq, 2), V(vl8), srd(sWS), S(t1))]
    return it

def ffn_addr2(C, vlane):
    P = C.P
    L = V(vlane)
    a, b, c, d = V(vT), V(vT + 1), V(vT + 2), V(vT + 3)
    P("v_lshlrev_b32 %s, 4, %s\nv_lshlrev_b32 %s, 3, %s" % (V(vL16), L, V(vL8), L))
    P("v_lshrrev_b32 %s, 2, %s\nv_and_b32 %s, 3, %s" % (a, L, b, L))
    P("v_add_u32 %s, %d, %s" % (V(vTRN), LDS_N, V(vL16)))
    P("v_bfe_u32 %s, %s, 1, 2" % (c, a))
    P("v_lshlrev_b32 %s, 7, %s\nv_lshl_add_u32 %s, %s, 3, %s" % (d, a, d, b, d))
    for T in range(4):
        P("v_xor_b32 %s, %d, %s\nv_lshl_add_u32 %s, %s, 5, %s" % (V(vTRU + T), T, c, V(vTRU + T), V(vTRU + T), d))
    P("v_bfe_u32 %s, %s, 2, 2\nv_mul_u32_u24 %s, 1152, %s\nv_lshrrev_b32 %s, 4, %s\nv_lshl_add_u32 %s, %s, 6, %s" % (a, L, a, a, c, L, a, c, a))
    P("v_lshl_add_u32 %s, %s, 4, %s\nv_xor_b32 %s, 32, %s" % (c, b, a, d, c))
    for q in range(8):
        P("v_add_u32 %s, %d, %s" % (V(vWD + q), q * 4608 - 1024 * (q % 4), d if q & 1 else c))

def ffn_main(C, vlane_src=None, s3_addr_ready=True):
    P = C.P
    a, b, c, d = V(vT), V(vT + 1), V(vT + 2), V(vT + 3)
    P.add(C.load_flags(vFD, vFA))
    P("s_waitcnt vmcnt(0)")
    for x in C.check_flags(vFD, vFA, 3, vT + 15): P.add(x)
    for x in C.stamp("s3done"): P.add(x)
    def aload(phi, m):
        return ["s_add_u32 %s, %s, %d" % (S(t1), S(sA), m * 18432 + phi * 1024),
                "buffer_load_dwordx4 %s, %s, %s, %s offen sc1" % (R(areg(phi, m), 4), V(vL16), srd(sWS), S(t1)),
                "buffer_load_dwordx4 %s, %s, %s, %s offen offset:1024 sc1" % (R(areg(phi + 1, m), 4), V(vL16), srd(sWS), S(t1))]
    for pr in PAIRS[:2]:
        for m in range(4):
            for x in aload(pr[0], m): P.add(x)
    it = ["v_lshrrev_b32 %s, 4, %s" % (V(vFA), V(vL16)), "v_and_b32 %s, 7, %s" % (V(vFA), V(vFA)), "v_lshlrev_b32 %s, 10, %s" % (V(vFA), V(vFA)),
          "s_lshl_b32 %s, %s, 13" % (S(t1), S(sRB)), "s_lshl_b32 %s, %s, 7" % (S(sL2), S(sXCD)), "s_add_u32 %s, %s, %s" % (S(t1), S(t1), S(sL2)),
          "s_lshr_b32 %s, %s, 2" % (S(sL2), S(sFS)), "s_lshl_b32 %s, %s, 3" % (S(sL2), S(sL2)), "s_add_u32 %s, %s, %s" % (S(t1), S(t1), S(sL2)),
          "s_lshr_b32 %s, %s, 1" % (S(sL2), S(sWAVE)), "s_lshl_b32 %s, %s, 2" % (S(sL2), S(sL2)), "s_add_u32 %s, %s, %s" % (S(t1), S(t1), S(sL2)),
          "v_add_u32 %s, %s, %s" % (V(vFA), S(t1), V(vFA))] + flagfix(V(vFA), V(vFD))
    for x in it: P.add(x)
    P("s_barrier")
    main, blocks = [], []
    for st in range(4):
        tiles = [0, 1, 2, 3] + (["ng", "nu"] if st == 0 else [])
        for pi, pr in enumerate(PAIRS):
            for T in tiles:
                bi = len(blocks)
                wf = vWF + 8 * (bi % 3)
                blocks.append(dict(start=len(main), g=1, st=st, pi=pi, T=T, wf=wf))
                for m in range(4):
                    if T == "ng": acc = vP + 4 * m
                    elif T == "nu": acc = vP + 16 + 4 * m
                    else: acc = (vG if st % 2 == 0 else vU) + 16 * T + 4 * m
                    order = (0, 1) if (m % 2 == 0 or not CFG['chain']) else (1, 0)
                    for q, i in enumerate(order):
                        x = mfma(acc, wf + 4 * i, areg(pr[i], m), None if (pi == 0 and q == 0) else acc)
                        if m == 0 and q == 0:
                            w = list(range(wf, wf + 8))
                            if st == 0 and T == 0 and pi > 0:
                                for mm in range(4): w += [areg(pr[0], mm), areg(pr[1], mm)]
                            x = [WaitRegs(w), x]
                        main.append(x)
    nb1 = len(blocks)
    def hreg(p, m): return AG + 8 * (p % 28) + 4 * m
    for st in range(9):
        for pp in range(2):
            for n in range(9):
                bi = len(blocks)
                wf = AG + 224 + 8 * ((bi - nb1) % 4)
                blocks.append(dict(start=len(main), g=2, st=st, pp=pp, n=n, wf=wf))
                for m in range(2):
                    order = (0, 1) if (m % 2 == 0 or not CFG['chain']) else (1, 0)
                    for q, i in enumerate(order):
                        p = 4 * st + 2 * pp + i
                        x = mfma(oreg(m, n), wf + 4 * i, hreg(p, m), None if (st == 0 and pp == 0 and q == 0) else oreg(m, n))
                        if m == 0 and q == 0:
                            w = list(range(wf, wf + 8))
                            if n == 0:
                                for mm in range(2):
                                    for ii in range(2): w += list(range(hreg(p + ii, mm), hreg(p + ii, mm) + 4))
                            x = [WaitRegs(w), x]
                        main.append(x)
    NM = len(main)
    start = [bl["start"] for bl in blocks] + [NM]
    stage1 = [min(bl["start"] for bl in blocks if bl["g"] == 1 and bl["st"] == s_) for s_ in range(4)] + [start[nb1]]
    stage2 = [min(bl["start"] for bl in blocks if bl["g"] == 2 and bl["st"] == s_) for s_ in range(9)] + [NM]
    def pair_end(st, pi):
        return max(start[i + 1] for i, bl in enumerate(blocks) if bl["g"] == 1 and bl["st"] == st and bl["pi"] == pi) - 1

    rd, dm = [], []
    au = LdsAddr([vTRU + T for T in range(4)], 0)
    aw = LdsAddr([vTRN, vWE, vWE + 1], 0)
    toks = {}
    def wd_dma(stage, nb, step):
        tok = P.newtok(); toks[("d", stage)] = tok
        it = []
        if stage == 0:
            so = S(sWD0)
            it.append("s_add_u32 %s, %s, %s" % (S(t3), S(sNL), S(sW1K))); it.append("s_add_u32 %s, %s, 32768" % (S(t3), S(t3)))
        else:
            k = 8 * (stage - 1) if stage <= 4 else 8 * (stage - 5) + 2
            it.append("s_add_u32 %s, %s, %d" % (S(t2), S(sWDB), k * 36864)); so = S(t2)
            it.append("s_add_u32 %s, %s, %d" % (S(t3), S(sKW), k * 1024))
        base = WD_SLAB[stage % 4][0]
        for q in range(9):
            if q % 4 == 0: it.append("s_add_u32 m0, %s, %d" % (S(sD2), base + 1024 * q))
            if q < 8: it.append("buffer_load_dwordx4 %s, %s, %s offen offset:%d %s lds" % (V(vWD + q), srd(sWD), so, 1024 * (q % 4), CFG["dpol"]))
            else: it.append(P.mk("buffer_load_dwordx4 %s, %s, %s offen sc1 lds" % (V(vL16), srd(sWS), S(t3)), tok))
        dm.extend(paced(it, nb + 1, step)[0])
    P("s_mul_i32 %s, %s, 9216" % (S(sD2), S(sWAVE)))
    if CFG["late"]:
        lo = 30 - CFG["late"]
        its = []
        for s2 in range(lo, 30):
            tok = None
            if s2 % 6 == 5:
                tok = P.newtok(); toks[("u", s2 // 6)] = tok
            its.append(dma_unit(P, s2, tok))
        dm.extend(paced(its, CFG["lateat"], 5, 400)[0])
    prev_nb = -1
    for bi, bl in enumerate(blocks):
        lead = 2 if bl["g"] == 1 else 3
        nb = start[bi - lead] - 1 if bi >= lead else -1
        dl = start[bi - lead + 1] if bi >= lead else 0
        if bl["g"] == 1:
            st, pi, T = bl["st"], bl["pi"], bl["T"]
            sig = st * 18 + 2 * pi
            if T == 0 and sig % 6 == 0 and sig >= 18:
                g = sig // 6
                it = []
                if ("u", g) in toks: it.append(WaitTok(toks[("u", g)]))
                it += ["s_waitcnt lgkmcnt(0)", "s_barrier"]
                rd.append((nb, nb + 1, it))
                if g + 2 < 12:
                    tok = P.newtok(); toks[("u", g + 2)] = tok
                    dm.extend(paced([dma_unit(P, s2, tok if s2 % 6 == 5 else None) for s2 in range(6 * (g + 2), 6 * (g + 3))], nb + 3, CFG["ustep"])[0])
                if g == CFG['w0']: wd_dma(0, nb + 1 + 6 * CFG['ustep'], 5)
                if g == CFG['w1']: wd_dma(1, nb + 1 + 6 * CFG['ustep'], 5)
                if g == 10: wd_dma(2, nb + 1, CFG['w2step'])
                nb += 1
            items = []
            for i in range(2):
                if T in ("ng", "nu"):
                    o = PAIRS[pi][i] * 2048 + (1024 if T == "nu" else 0)
                    items += ["ds_read_b128 %s, %s offset:%d" % (R(bl["wf"] + 4 * i, 4), V(vTRN), o)]
                else:
                    ad = slab_addr(sig + i)
                    gbase = slab_addr(sig - sig % 6)
                    items += au.rebase(gbase, gbase + 24576)
                    items += ["ds_read_b64_tr_b16 %s, %s offset:%d" % (R(bl["wf"] + 4 * i + 2 * h, 2), V(vTRU + T), au.off(ad + 2048 * h)) for h in range(2)]
        else:
            st, pp, n = bl["st"], bl["pp"], bl["n"]
            if bi == nb1:
                nb = start[bi - 2] - 1; dl = start[bi - 1]
            if bi == nb1 + 1:
                nb = start[bi - 3] - 1; dl = start[bi - 1]
            if bi == nb1 + 2:
                dl = start[bi - 1]
            if pp == 0 and n == 0:
                it = [WaitTok(toks[("d", st)]), "s_waitcnt lgkmcnt(0)", "s_barrier"]
                rd.append((nb, nb + 1, it))
                if st == 0:
                    x0, x1 = V(vWE), V(vWE + 1)
                    for x in ["v_and_b32 %s, 0xc0, %s" % (x0, V(vL16)), "v_and_b32 %s, 24, %s" % (x1, V(vL8)), "v_add_u32 %s, %s, %s" % (x0, x0, x1),
                              "v_lshrrev_b32 %s, 8, %s" % (x1, V(vL16)), "v_lshl_add_u32 %s, %s, 10, %s" % (x0, x1, x0), "v_and_b32 %s, 1, %s" % (x1, x1),
                              "v_lshl_add_u32 %s, %s, 5, %s" % (x0, x1, x0), "v_xor_b32 %s, 32, %s" % (x1, x0), "v_mov_b32 %s, %s" % (V(vTRN), V(vL16))]:
                        rd.append((nb + 1, dl, x))
                if st + 3 < 9: wd_dma(st + 3, nb + 1, CFG['dstep'])
                nb += 1
            items = []
            for i in range(2):
                ad = wd_slab(st, 2 * pp + i)
                lo = wd_slab(st, 2 * pp)
                items += aw.rebase(lo, lo + 2 * 9216)
                if n < 8: items += ["ds_read_b64_tr_b16 %s, %s offset:%d" % (R(bl["wf"] + 4 * i + 2 * h, 2), V(vWE + (n & 1)), aw.off(ad + 4096 * h + 256 * (n >> 1))) for h in range(2)]
                else: items += ["ds_read_b128 %s, %s offset:%d" % (R(bl["wf"] + 4 * i, 4), V(vTRN), aw.off(ad + 8192))]
        nb = max(nb, prev_nb); prev_nb = nb
        dl = max(dl, nb + 1)
        k = 0
        for x in items:
            rd.append((min(nb + k * (CFG["rsp1"] if bl["g"] == 1 else CFG["rsp2"]), dl - 1) if nb >= 0 else nb, dl, x))
            if x.startswith("ds_"): k += 1

    ld = []
    apos = 0
    for pi in range(2, 9):
        use = [bl["start"] for bl in blocks if bl["g"] == 1 and bl["st"] == 0 and bl["pi"] == pi][0]
        x, apos = paced([aload(PAIRS[pi][0], m) for m in range(4)], apos, CFG['astep'] / 2, use)
        ld += x
        if pi == 8:
            it = ["v_lshrrev_b32 %s, 2, %s" % (V(vT + 8), V(vL16)), "v_and_b32 %s, 0x3c, %s" % (V(vT + 8), V(vT + 8)),
                  "v_lshrrev_b32 %s, 8, %s" % (V(vT + 9), V(vL16)), "v_lshl_add_u32 %s, %s, 9, %s" % (V(vT + 8), V(vT + 9), V(vT + 8)),
                  "s_sub_u32 %s, %s, %d" % (S(t1), S(sA), WS_HC), "s_mul_hi_u32 %s, %s, %d" % (S(t1), S(t1), 477218589),
                  "s_add_u32 %s, %s, %d" % (S(t1), S(t1), WS_SSQ)]
            for m in range(4):
                if m == 2: it.append("s_add_u32 %s, %s, 4096" % (S(t1), S(t1)))
                for h in range(2):
                    it.append("buffer_load_dword %s, %s, %s, %s offen offset:%d sc1" % (V(vT + 2 * m + h), V(vT + 8), srd(sWS), S(t1), 2048 * (m % 2) + 256 * h))
            x, apos = paced(it, apos, 3)
            ld += x
    for which, at in CFG['pfB']:
        assert at <= 400 or at >= 436
        rg = (vT + 13, vT + 10, vT + 11, vT + 12) if at <= 400 else (vT + 7, vT + 4, vT + 3, vT + 2)
        ld.append((at, 420 if at <= 400 else INF, hbm_prefetch(P, which, rg[0], rg[1], rg[2], rg[3], vFD, True, S(sL2), S(t1))))
    for at in CFG["ct3"]:
        nper = -(-(C.code_bytes - 4096) // (32 * 128))
        lab = P.newlabel(C.name + "_c3")
        x0 = V(vT + 2)
        x = P.mk("global_load_dword %s, %s, s[100:101]" % (V(vFD), x0)); x.dst = []; x.nocount = True
        assert at >= 436
        ld.append((at, INF, ["s_cmp_lg_u32 %s, 3" % S(sWAVE), "s_cbranch_scc1 %s" % lab, "s_getpc_b64 s[100:101]", lab + "_pc:",
                             "s_sub_u32 s100, s100, %s_pc-%s_body" % (lab, C.name), "s_subb_u32 s101, s101, 0", "s_mul_i32 %s, %s, %d" % (S(t1), S(sIDX), nper * 128),
                             "v_lshrrev_b32 %s, 4, %s" % (x0, V(vL16)), "v_min_u32 %s, %d, %s" % (x0, nper - 1, x0), "v_lshl_add_u32 %s, %s, 7, %s" % (x0, x0, S(t1)),
                             "v_min_u32 %s, %d, %s" % (x0, C.code_bytes - 4096 - 128, x0), x, lab + ":"]))
    s4 = stage1[3]
    def hload(p):
        k = kappa(p); it = []
        if p < 4:
            for m in range(2):
                it.append("s_add_u32 %s, %s, %d" % (S(t1), S(sHLD), m * 147456 + k * 1024))
                for h in range(2):
                    it.append("buffer_load_dwordx2 %s, %s, %s, %s offen offset:%d sc1" % (R(hreg(p, m) + 2 * h, 2), V(vL8), srd(sWS), S(t1), 512 * h))
            return [it[:3], it[3:]]
        assert p % 2 == 0 and kappa(p + 1) == k + 1
        out = []
        for m in range(2):
            out.append(["s_add_u32 %s, %s, %d" % (S(t1), S(sHLD), m * 147456 + k * 1024),
                        "buffer_load_dwordx4 %s, %s, %s, %s offen sc1" % (R(hreg(p, m), 4), V(vL16), srd(sWS), S(t1)),
                        "buffer_load_dwordx4 %s, %s, %s, %s offen offset:1024 sc1" % (R(hreg(p + 1, m), 4), V(vL16), srd(sWS), S(t1))])
        return out
    def use2(p): return stage2[p // 4] + 36 * ((p % 4) // 2)
    ld.append((s4 + CFG['s4l'], INF, C.load_flags(vFD, vFA)))
    ld.append((pair_end(3, 2) + CFG['s4c'], INF, C.check_flags(vFD, vFA, 4) + ([] if CFG["fine"] else C.stamp("s4a"))))
    hn = pair_end(3, 2) + CFG['s4c'] + 1
    for p in list(range(4)) + list(range(4, 20, 2)):
        dead = pair_end(3, 2 + (p + 1) // 4)
        x, hn = paced(hload(p), max(hn, dead), CFG['hstep'] / 2, use2(p) - CFG['hlead'])
        ld += x
    FB_LOAD, FB_CHECK = stage2[3] + CFG['fbl'], stage2[3] + CFG['fbc']
    ld.append((FB_LOAD, INF, C.load_flags(vFD, vFA)))
    ld.append((FB_CHECK, INF, C.check_flags(vFD, vFA, 5) + ([] if CFG["fine"] else C.stamp("s4b"))))
    for p in range(20, 36, 2):
        x, hn = paced(hload(p), max(hn, FB_CHECK + 1), CFG['hstep2'] / 2, use2(p) - CFG['hlead'])
        ld += x

    ep = []
    nb = pair_end(0, 7)
    for m in range(4):
        r = vR2 + m
        it = ["v_add_f32 %s, %s, %s" % (V(r), V(vT + 2 * m), V(vT + 2 * m + 1))] + allred(r, vT + 9, "v_add_f32")
        it += ["v_mov_b32 %s, 0x3727c5ac" % V(vT + 9), "v_fmac_f32 %s, 0x3ae38e39, %s" % (V(vT + 9), V(r)), "v_rcp_f32 %s, %s" % (V(r), V(vT + 9))]
        for x in it: ep.append((nb, stage1[1], x))
    stq = [vT + 8, vT + 12]
    nb = stage1[1] + 3
    for m in range(4):
        g, u, q = vP + 4 * m, vP + 16 + 4 * m, stq[m % 2]
        for j in range(4):
            ep.append((nb, INF, "v_max_f32 %s, 0, %s" % (V(g + j), V(g + j))))
            ep.append((nb, INF, "v_mul_f32 %s, %s, %s" % (V(u + j), V(vR2 + m), V(u + j))))
            ep.append((nb, INF, "v_mul_f32 %s, %s, %s" % (V(g + j), V(g + j), V(u + j))))
        for h in range(2): ep.append((nb, INF, "v_cvt_pk_bf16_f32 %s, %s, %s" % (V(q + h), V(g + 2 * h), V(g + 2 * h + 1))))
        ep.append((nb, INF, "s_add_u32 %s, %s, %d" % (S(sE1), S(sHSN), m * 147456)))
        ep.append((nb, INF, "buffer_store_dwordx2 %s, %s, %s, %s offen %s" % (V(q, 2), V(vL8), srd(sWS), S(sE1), CFG["hst"])))
    for T in range(4):
        for m in range(4):
            g, pk = vG + 16 * T + 4 * m, vP + 2 * (4 * T + m)
            for j in range(4): ep.append((nb, stage1[2], "v_mul_f32 %s, %s, %s" % (V(g + j), V(vR2 + m), V(g + j))))
            for h in range(2): ep.append((nb, stage1[2], "v_cvt_pk_bf16_f32 %s, %s, %s" % (V(pk + h), V(g + 2 * h), V(g + 2 * h + 1))))
            for h in range(2): ep.append((nb, stage1[2], "v_pk_max_i16 %s, %s, 0" % (V(pk + h), V(pk + h))))
    nb = stage1[2] + 3
    tokA = P.newtok()
    k = 0
    for m in range(4):
        for i in range(2):
            q = stq[k % 2]; k += 1
            for tt in range(2):
                T = 2 * i + tt
                u, pk = vU + 16 * T + 4 * m, vP + 2 * (4 * T + m)
                for h in range(2):
                    ep.append((nb, stage1[3], "v_lshlrev_b32 %s, 16, %s" % (V(vT + 5), V(pk + h))))
                    ep.append((nb, stage1[3], "v_and_b32 %s, 0xffff0000, %s" % (V(vT + 6), V(pk + h))))
                    ep.append((nb, stage1[3], "v_mul_f32 %s, %s, %s" % (V(vT + 5), V(vT + 5), V(u + 2 * h))))
                    ep.append((nb, stage1[3], "v_mul_f32 %s, %s, %s" % (V(vT + 6), V(vT + 6), V(u + 2 * h + 1))))
                    ep.append((nb, stage1[3], "v_cvt_pk_bf16_f32 %s, %s, %s" % (V(q + 2 * tt + h), V(vT + 5), V(vT + 6))))
            it = []
            if i == 0: it.append("s_add_u32 %s, %s, %d" % (S(sE2), S(sHST), m * 147456))
            it.append(P.mk("buffer_store_dwordx4 %s, %s, %s, %s offen offset:%d %s" % (V(q, 4), V(vL16), srd(sWS), S(sE2), 1024 * i, CFG["hst"]), tokA if (m, i) == (3, 1) else None))
            for x in it: ep.append((nb, stage1[3], x))
    ep.append((stage1[3] - CFG['puba'], stage1[3] + 8, [WaitTok(tokA)] + C.publish(vT + 5, 4)))
    nb = stage1[3] + 9
    for T in range(4):
        for m in range(4):
            g = vG + 16 * T + 4 * m
            for j in range(4):
                ep.append((nb, stage1[4], "v_mul_f32 %s, %s, %s" % (V(g + j), V(vR2 + m), V(g + j))))
                ep.append((nb, stage1[4], "v_max_f32 %s, 0, %s" % (V(g + j), V(g + j))))
    nb = stage1[4] + 3
    tokB = P.newtok()
    k = 0
    for m in range(4):
        for i in range(2):
            q = stq[k % 2]; k += 1
            for tt in range(2):
                T = 2 * i + tt
                u, g = vU + 16 * T + 4 * m, vG + 16 * T + 4 * m
                for j in range(4): ep.append((nb, INF, "v_mul_f32 %s, %s, %s" % (V(u + j), V(u + j), V(g + j))))
                for h in range(2): ep.append((nb, INF, "v_cvt_pk_bf16_f32 %s, %s, %s" % (V(q + 2 * tt + h), V(u + 2 * h), V(u + 2 * h + 1))))
            it = []
            if i == 0: it.append("s_add_u32 %s, %s, %d" % (S(sE2), S(sHST), m * 147456 + 2048))
            it.append(P.mk("buffer_store_dwordx4 %s, %s, %s, %s offen offset:%d %s" % (V(q, 4), V(vL16), srd(sWS), S(sE2), 1024 * i, CFG["hst"]), tokB if (m, i) == (3, 1) else None))
            for x in it: ep.append((nb, INF, x))
    ep.append((stage2[2] + CFG['fbp'], FB_LOAD, [WaitTok(tokB)] + C.publish(vT + 5, 5)))
    it = ["s_lshr_b32 %s, %s, 1" % (S(sE1), S(sFQ)), "s_add_u32 %s, %s, %s" % (S(sMT2), S(sMT2), S(sE1)),
          "s_mul_i32 %s, %s, 18432" % (S(sE1), S(sMT2)), "s_add_u32 %s, %s, %d" % (S(sE1), S(sE1), WS_H),
          "s_and_b32 %s, %s, 3" % (S(sE2), S(sFS)), "s_lshl_b32 %s, %s, 9" % (S(sE2), S(sE2)), "s_add_u32 %s, %s, %s" % (S(sA), S(sE1), S(sE2)),
          "s_add_u32 %s, %s, 16384" % (S(sA), S(sA)), "s_lshl_b32 %s, %s, 3" % (S(sE2), S(sE2)), "s_add_u32 %s, %s, %s" % (S(sE1), S(sE1), S(sE2)),
          "s_and_b32 %s, %s, 1" % (S(sE2), S(sFQ)), "s_mul_i32 %s, %s, 2048" % (S(sE2), S(sE2)), "s_add_u32 %s, %s, %s" % (S(sE1), S(sE1), S(sE2))]
    it += ["buffer_load_dwordx2 %s, %s, %s, %s offen offset:%d sc1" % (V(vG + 2 * n, 2), V(vL8), srd(sWS), S(sE1), 512 * n) for n in range(4)]
    it += ["buffer_load_dwordx2 %s, %s, %s, %s offen sc1" % (V(vG + 10, 2), V(vL8), srd(sWS), S(sA))]
    ep += paced(it, stage2[6] + 30, 5)[0]
    it = ["v_lshrrev_b32 %s, 4, %s" % (V(vFA), V(vL16)), "v_and_b32 %s, 3, %s" % (V(vFA), V(vFA)), "v_lshlrev_b32 %s, 8, %s" % (V(vFA), V(vFA)),
          "s_lshl_b32 %s, %s, 10" % (S(sE1), S(sIDX)), "s_lshl_b32 %s, %s, 7" % (S(sE2), S(sMH)), "s_add_u32 %s, %s, %s" % (S(sE1), S(sE1), S(sE2)),
          "s_lshl_b32 %s, %s, 2" % (S(sE2), S(sWAVE)), "s_add_u32 %s, %s, %s" % (S(sE1), S(sE1), S(sE2)), "v_add_u32 %s, %s, %s" % (V(vFA), S(sE1), V(vFA))] + flagfix(V(vFA), V(vFD))
    for x in it: ep.append((stage2[7] + 10, INF, x))
    if CFG["ptouch"]:
        x0, x1 = V(vT + 2), V(vT + 3)
        it = ["v_lshrrev_b32 %s, 4, %s" % (x0, V(vL16)), "v_mul_u32_u24 %s, 2979, %s" % (x1, x0), "v_lshrrev_b32 %s, 16, %s" % (x1, x1),
              "v_mul_u32_u24 %s, 22, %s" % (V(vT + 4), x1), "v_sub_u32 %s, %s, %s" % (x0, x0, V(vT + 4)),
              "v_add_u32 %s, %s, %s" % (x1, S(sFQ), x1), "v_add_u32 %s, 1, %s" % (x1, x1), "v_and_b32 %s, 3, %s" % (x1, x1),
              "v_mul_u32_u24 %s, 12288, %s" % (x1, x1), "v_lshl_add_u32 %s, %s, 7, %s" % (x0, x0, x1),
              "s_lshl_b32 %s, s2, 4" % S(sE1), "s_add_u32 %s, %s, %s" % (S(sE1), S(sE1), S(sWAVE)), "s_mul_i32 %s, %s, 3072" % (S(sE1), S(sE1)),
              "s_add_u32 %s, %s, %d" % (S(sE1), S(sE1), WS_PART)]
        x = P.mk("buffer_load_dword %s, %s, %s, %s offen %s" % (V(vT + 4), x0, srd(sWS), S(sE1), CFG["ptm"])); x.dst = []
        at = CFG["ptouch"]
        k = [i for i, e in enumerate(ep) if e[0] <= at][-1] + 1
        ep[k:k] = [(at, INF, y) for y in it + [x]]
    for x in final_setup(): ep.append((stage2[8] + 4, INF, x))
    def respread(lo, hi):
        idx = [k for k, e in enumerate(ep) if e[0] == lo]
        for c_, k in enumerate(idx): ep[k] = (lo + (hi - lo) * c_ // len(idx), ep[k][1], ep[k][2])
    respread(pair_end(0, 7), stage1[1] - 2)
    respread(stage1[1] + 3, stage1[2] - 8)
    respread(stage1[2] + 3, stage1[2] + CFG['e2'])
    respread(stage1[3] + 9, stage1[4] - 8)
    respread(stage1[4] + 3, stage1[4] + CFG["e4"])
    if C.timing:
        for s_ in range(1, 5): ep.append((stage1[s_], INF, C.stamp("g1s%d" % s_)))
        if CFG["fine"] == 1:
            for s_ in range(1, 9): ep.append((stage2[s_], INF, C.stamp("b%d" % s_)))
        ep.sort(key=lambda x: x[0])

    def per(i):
        k = 1 if (i + 1 < NM and isinstance(main[i + 1], list)) else 2
        if stage1[4] <= i < stage1[4] + CFG["e4"]: k += 1
        return k
    def txt(x): return x.text if isinstance(x, Ins) else x if isinstance(x, str) else ""
    if "h" in CFG["abl"]: ld = [e for e in ld if not (e[0] >= s4 + 60 and txt(e[2]).startswith("buffer_load_dwordx"))]
    if "a" in CFG["abl"]: ld = [e for e in ld if not (e[0] < s4 and txt(e[2]).startswith("buffer_load_dwordx4"))]
    if "w" in CFG["abl"]: dm = [e for e in dm if not ("s[28:31]" in txt(e[2]) and not (isinstance(e[2], Ins) and e[2].tok))]
    if "u" in CFG["abl"]: dm = [e for e in dm if not (("s[20:23]" in txt(e[2]) or "s[24:27]" in txt(e[2])) and not (isinstance(e[2], Ins) and e[2].tok))]
    if "e" in CFG["abl"]: ep = [e for e in ep if not txt(e[2]).startswith("v_")]
    if "s" in CFG["abl"]: ep = [e for e in ep if not (txt(e[2]).startswith("buffer_store") and not (isinstance(e[2], Ins) and e[2].tok))]
    if "b" in CFG["abl"]: rd = [(e[0], e[1], [y for y in e[2] if y != "s_barrier"] if isinstance(e[2], list) else e[2]) for e in rd]
    if "r" in CFG["abl"]: rd = [e for e in rd if not txt(e[2]).startswith("ds_read")]
    multi_interleave(P, main, [rd, ld, dm, ep], per)
    for x in C.stamp("g2done"): P.add(x)
    ffn_final(C)

def final_setup():
    it = ("s_lshl_b32 %s, %s, 3\ns_add_u32 %s, %s, %s\ns_lshl_b32 %s, %s, 4\ns_add_u32 %s, %s, %s" %
          (S(t0), S(sIDX), S(t0), S(t0), S(sMH), S(t0), S(t0), S(t0), S(t0), S(sWAVE))).split("\n")
    it += ("s_mul_i32 %s, %s, 3072\ns_add_u32 %s, %s, %d" % (S(t0), S(t0), S(t0), S(t0), WS_PART)).split("\n")
    it += ("v_lshrrev_b32 %s, 4, %s\nv_and_b32 %s, 15, %s\nv_mul_u32_u24 %s, 1152, %s" % (V(vT), V(vL16), V(vT + 1), V(vT), V(vT + 1), V(vT + 1))).split("\n")
    it += ("v_mul_u32_u24 %s, 12, %s\nv_lshlrev_b32 %s, 2, %s" % (V(vT + 6), V(vT), V(vT + 7), V(vT))).split("\n")
    it += ("v_lshrrev_b32 %s, 4, %s\nv_lshl_add_u32 %s, %s, 3, %s" % (V(vT), V(vT), V(vT), V(vT), V(vT + 1))).split("\n")
    it += ("s_mul_i32 %s, %s, 18432\ns_and_b32 %s, %s, 3\ns_lshl_b32 %s, %s, 5\ns_add_u32 %s, %s, %s" % (S(t2), S(sMT2), S(t3), S(sFS), S(t3), S(t3), S(sA), S(t2), S(t3))).split("\n")
    it += ("s_lshl_b32 %s, %s, 3\ns_add_u32 %s, %s, %s" % (S(t3), S(t3), S(t2), S(t2), S(t3))).split("\n")
    w, r, o, x = V(vWD), V(vWD + 1), V(vWD + 2), V(vWD + 3)
    it += ["s_mul_i32 %s, %s, 2304" % (S(t3), S(sWAVE)), "v_lshrrev_b32 %s, 4, %s" % (x, V(vL16)), "v_and_b32 %s, 15, %s" % (w, x), "v_mul_u32_u24 %s, 144, %s" % (w, w),
           "v_lshrrev_b32 %s, 4, %s" % (r, x), "v_lshl_add_u32 %s, %s, 3, %s" % (w, r, w), "v_add_u32 %s, %s, %s" % (w, S(t3), w),
           "v_lshrrev_b32 %s, 3, %s" % (x, x), "v_and_b32 %s, 0x70, %s" % (o, V(vL16)), "v_mul_u32_u24 %s, 144, %s" % (r, x), "v_add3_u32 %s, %s, %s, %s" % (r, r, o, S(t3)),
           "v_mul_u32_u24 %s, 1152, %s" % (x, x), "v_add_u32 %s, %s, %s" % (o, o, x),
           "s_and_b32 %s, %s, 1" % (S(t3), S(sFQ)), "s_lshl_b32 %s, %s, 7" % (S(t3), S(t3)), "s_add_u32 %s, %s, %s" % (S(t2), S(t2), S(t3)), "s_add_u32 %s, %s, 9216" % (S(t3), S(t2))]
    return it

def ffn_final(C):
    P = C.P
    labs = [P.newlabel(C.name + "_fin") for _ in range(4)]
    done = P.newlabel(C.name + "_findone")
    C.touch_labels |= set(labs[1:])
    ck = CFG["s5"]
    P.add(WaitRegs(list(range(vG, vG + 8)) + [vG + 10, vG + 11]))
    for fq in range(1, 4):
        P("s_cmp_eq_u32 %s, %d\ns_cbranch_scc1 %s" % (S(sFQ), fq, labs[fq]))
    def part(f): return [(f >> 1, n) for n in ((4, 5, 6, 7) if f & 1 else (0, 1, 2, 3, 8))]
    names = ("f0", "f1", "f2", "f3", "") if ck else ("f0", "f1", "f2", "f3", "f4")
    fst = [C.stamp(n) if (CFG["fine"] == 2 and n) else [] for n in names]
    def xfer(op, st, n, so):
        P("buffer_%s_dwordx4 %s, %s, %s, %s offen sc1" % (op, V(st, 4), V(vL16), srd(sWS), so))
        P("buffer_%s_dwordx4 %s, %s, %s, %s offen offset:1024 sc1" % (op, V(st + 4, 4), V(vL16), srd(sWS), so))
        if ck:
            if n == 5: P("buffer_%s_dwordx3 %s, %s, %s, %s offen offset:2048 sc1" % (op, V(st + 8, 3), V(vT + 6), srd(sWS), so))
            else: P("buffer_%s_dword %s, %s, %s, %s offen offset:2048 sc1" % (op, V(st + 8), V(vT + 7), srd(sWS), so))
        elif n == 5: P("buffer_%s_dwordx2 %s, %s, %s, %s offen offset:2048 sc1" % (op, V(st + 8, 2), V(vL8), srd(sWS), so))
    def csum(dst, st, n):
        P("v_add3_u32 %s, %s, %s, %s" % (V(dst), V(st), V(st + 1), S(sNON)))
        for k in range(2, 2 * n, 2): P("v_add3_u32 %s, %s, %s, %s" % (V(dst), V(st + k), V(st + k + 1), V(dst)))
    for fq in range(4):
        P.label(labs[fq])
        if fq: P("s_nop 4")
        for x in fst[0]: P.add(x)
        st = vU
        for d in range(4):
            if d == fq: continue
            tl = part(d)
            for i, (m, n) in enumerate(tl):
                for h in range(2):
                    P("v_cvt_pk_bf16_f32 %s, %s, %s" % (V(st + 2 * i + h), V(oreg(m, n) + 2 * h), V(oreg(m, n) + 2 * h + 1)))
            P("s_add_u32 %s, %s, %d" % (S(t1), S(t0), (d * 2 * 16 + fq * 4) * 3072))
            if ck: csum(st + 2 * len(tl), st, len(tl))
            xfer("store", st, len(tl), S(t1))
            st += 12
        tl = part(fq)
        if ck == 2:
            for x in C.publish(vT + 5, 6): P.add(x)
        for i, (m, n) in enumerate(tl):
            o = oreg(m, n)
            for h in range(2):
                hr = V(vG + (10 if n == 8 else 2 * i) + h)
                P("v_lshlrev_b32 %s, 16, %s\nv_and_b32 %s, 0xffff0000, %s" % (V(vT + 2), hr, V(vT + 3), hr))
                P("v_pk_add_f32 %s, %s, %s" % (V(o + 2 * h, 2), V(o + 2 * h, 2), V(vT + 2, 2)))
        for x in fst[1]: P.add(x)
        stl = [vU + 40, vU + 52, vG + 12]
        srcs = [d for d in range(4) if d != fq]
        if ck == 2:
            P.add(C.load_flags(vFD, vFA))
            for x in C.check_flags(vFD, vFA, 6, vT + 15): P.add(x)
            for x in fst[2]: P.add(x)
        if ck:
            loop, ok = P.newlabel(C.name + "_s5"), P.newlabel(C.name + "_s5ok")
            P("s_mov_b32 %s, 0" % S(sSPIN))
            P.label(loop)
        else:
            P("s_waitcnt vmcnt(0)")
            for x in fst[2]: P.add(x)
            for x in C.publish(vT + 5, 6): P.add(x)
            P.add(C.load_flags(vFD, vFA))
            P("s_waitcnt vmcnt(0)")
            for x in C.check_flags(vFD, vFA, 6, vT + 15): P.add(x)
            for x in fst[3]: P.add(x)
        for k, d in enumerate(srcs):
            P("s_add_u32 %s, %s, %d" % (S(t1), S(t0), (fq * 2 * 16 + d * 4) * 3072))
            xfer("load", stl[k], len(tl), S(t1))
        if ck:
            P("s_add_u32 %s, %s, 1" % (S(sSPIN), S(sSPIN)))
            for k in range(3):
                csum(vT + 8 + k, stl[k], len(tl))
                P("v_xor_b32 %s, %s, %s" % (V(vT + 8 + k), V(vT + 8 + k), V(stl[k] + 2 * len(tl))))
            P("v_or3_b32 %s, %s, %s, %s" % (V(vT + 8), V(vT + 8), V(vT + 9), V(vT + 10)))
            P("v_cmp_ne_u32 vcc, 0, %s\ns_cmp_gt_u32 %s, %d\ns_cbranch_scc1 %s\ns_cbranch_vccnz %s" % (V(vT + 8), S(sSPIN), SPIN_MAX, ok, loop))
            P.label(ok)
            for x in fst[3]: P.add(x)
        elif CFG["fine"] == 2:
            P("s_waitcnt vmcnt(0)")
            for x in fst[4]: P.add(x)
        for k in range(3):
            st = stl[k]
            for i, (m, n) in enumerate(tl):
                o = oreg(m, n)
                for h in range(2):
                    P("v_lshlrev_b32 %s, 16, %s\nv_and_b32 %s, 0xffff0000, %s" % (V(vT + 2), V(st + 2 * i + h), V(vT + 3), V(st + 2 * i + h)))
                    P("v_pk_add_f32 %s, %s, %s" % (V(o + 2 * h, 2), V(o + 2 * h, 2), V(vT + 2, 2)))
                if k == 2:
                    for h in range(2): P("v_cvt_pk_bf16_f32 %s, %s, %s" % (V(o + h), V(o + 2 * h), V(o + 2 * h + 1)))
                    if n == 8: P("buffer_store_dwordx2 %s, %s, %s, %s offen offset:1024 %s" % (V(o, 2), V(vT), srd(sOUT), S(sA), CFG["ost"]))
                    elif CFG["otr"]:
                        P("ds_write_b64 %s, %s offset:%d" % (V(vWD), V(o, 2), 32 * i))
                        if i == 3:
                            for h in range(2): P("ds_read_b128 %s, %s offset:%d" % (V(vU + 4 * h, 4), V(vWD + 1), 1152 * h))
                    else: P("buffer_store_dwordx2 %s, %s, %s, %s offen offset:%d %s" % (V(o, 2), V(vT), srd(sOUT), S(t2), 32 * i, CFG["ost"]))
        if CFG["otr"]:
            for h in range(2): P("buffer_store_dwordx4 %s, %s, %s, %s offen %s" % (V(vU + 4 * h, 4), V(vWD + 2), srd(sOUT), S(t3 if h else t2), CFG["ost"]))
        if C.timing: P("s_waitcnt vmcnt(0)")
        if fq < 3:
            P("s_branch %s" % done)
            P.reset()
    P.label(done)
    for x in C.stamp("end"): P.add(x)
```
